```python
import torch

def _softmax(x, axis=-1):
    return torch.softmax(x, dim=axis)
def _gelu(x):
    return torch.nn.functional.gelu(x, approximate="tanh")
def _silu(x):
    return torch.nn.functional.silu(x)
def _sigmoid(x):
    return torch.sigmoid(x)
def _layernorm(x, axis=-1, eps=1e-5):
    m = x.mean(dim=axis, keepdim=True)
    v = x.var(dim=axis, keepdim=True, unbiased=False)
    return (x - m) / torch.sqrt(v + eps)
def _scatter_add(tgt, idx, src, axis=0):
    return tgt.clone().index_add_(axis, idx, src)
def _segment_sum(src, seg, n):
    out = torch.zeros((n,) + src.shape[1:], dtype=src.dtype)
    return out.index_add_(0, seg, src)
def _pad(x, pw):
    flat = tuple(v for pair in reversed(pw) for v in pair)
    return torch.nn.functional.pad(x, flat)

kernel_name = 'concat_heads__mha_block_cached__gqa_block_cached__near_ridge'

def setup_inputs():

    _w = (lambda a: (lambda t: t.to(torch.bfloat16) if t.is_floating_point() else t)(torch.as_tensor(a)))
    def _A_setup():
        B, Sq, D = 8, 96, 512
        H, Sk, Dh = 32, 1024, 128
        return {
            "x": _w((lambda *s: torch.randn(*s, dtype=torch.bfloat16) * 0.8)(B, Sq, D)),
            "k_cache": _w((lambda *s: torch.randn(*s, dtype=torch.bfloat16) * 0.8)(B, H, Sk, Dh)),
            "v_cache": _w((lambda *s: torch.randn(*s, dtype=torch.bfloat16) * 0.05)(B, H, Sk, Dh)),
            "wq": _w((lambda *s: torch.randn(*s, dtype=torch.bfloat16) * 0.8)(D, H * Dh) * (D ** -0.5)),
            "wo": _w((lambda *s: torch.randn(*s, dtype=torch.bfloat16) * 0.05)(H * Dh, D) * ((H * Dh) ** -0.5)),
        }
    _A_in = _A_setup()

    def _B_setup():
        B, Sq, D = 8, 96, 512
        Hq, Hkv, Sk, Dh = 32, 32, 1024, 128
        assert Hq % Hkv == 0, (Hq, Hkv)
        return {
            "x": _w((lambda *s: torch.randn(*s, dtype=torch.bfloat16) * 0.8)(B, Sq, D)),
            "k_cache": _w((lambda *s: torch.randn(*s, dtype=torch.bfloat16) * 0.8)(B, Hkv, Sk, Dh)),
            "v_cache": _w((lambda *s: torch.randn(*s, dtype=torch.bfloat16) * 0.05)(B, Hkv, Sk, Dh)),
            "wq": _w((lambda *s: torch.randn(*s, dtype=torch.bfloat16) * 0.8)(D, Hq * Dh) * (D ** -0.5)),
            "wo": _w((lambda *s: torch.randn(*s, dtype=torch.bfloat16) * 0.05)(Hq * Dh, D) * ((Hq * Dh) ** -0.5)),
        }
    _B_in = _B_setup()

    return {
        "A_x": _A_in["x"],
        "A_k_cache": _A_in["k_cache"],
        "A_v_cache": _A_in["v_cache"],
        "A_wq": _A_in["wq"],
        "A_wo": _A_in["wo"],
        "B_x": _B_in["x"],
        "B_k_cache": _B_in["k_cache"],
        "B_v_cache": _B_in["v_cache"],
        "B_wq": _B_in["wq"],
        "B_wo": _B_in["wo"],
    }

def reference(A_x, A_k_cache, A_v_cache, A_wq, A_wo, B_x, B_k_cache, B_v_cache, B_wq, B_wo):
    def _A_ref(x, k_cache, v_cache, wq, wo):
        B, Sq, D = x.shape
        H, Dh = 32, 128
        q = (lambda x, *d: x.permute(*d))((x @ wq).reshape(B, Sq, H, Dh), 0, 2, 1, 3)
        scores = torch.einsum("bhqd,bhkd->bhqk", q, k_cache) * (Dh ** -0.5)
        p = _softmax(scores, axis=-1)
        o = torch.einsum("bhqk,bhkd->bhqd", p, v_cache)
        return (lambda x, *d: x.permute(*d))(o, 0, 2, 1, 3).reshape(B, Sq, H * Dh) @ wo

    def _B_ref(x, k_cache, v_cache, wq, wo):
        B, Sq, D = x.shape
        Hq, Dh = 32, 128
        Hkv = k_cache.shape[1]
        rep = Hq // Hkv
        q = (lambda x, *d: x.permute(*d))((x @ wq).reshape(B, Sq, Hq, Dh), 0, 2, 1, 3)
        k = (lambda x, n, axis: torch.repeat_interleave(x, n, dim=axis))(k_cache, rep, axis=1)
        v = (lambda x, n, axis: torch.repeat_interleave(x, n, dim=axis))(v_cache, rep, axis=1)
        scores = torch.einsum("bhqd,bhkd->bhqk", q, k) * (Dh ** -0.5)
        p = _softmax(scores, axis=-1)
        o = torch.einsum("bhqk,bhkd->bhqd", p, v)
        return (lambda x, *d: x.permute(*d))(o, 0, 2, 1, 3).reshape(B, Sq, Hq * Dh) @ wo

    a = _A_ref(A_x, A_k_cache, A_v_cache, A_wq, A_wo)
    b = _B_ref(B_x, B_k_cache, B_v_cache, B_wq, B_wo)
    return torch.concatenate([a, b], axis=-1)
```

```python
import math
import struct
import sys

NAME = "concat_heads__mha_block_cached__gqa_block_cached__near_ridge"


def f32bits(x):
    return struct.unpack("<I", struct.pack("<f", x))[0]


class Cfg:
    NS = 19
    D = 5
    stamps = False
    T_LOG2 = 8.0
    kvflags = "nt"
    tail = True


SLOT = 8192
WS_FLAGO = 0
WS_FLAGP = 65536
WS_OBUF = 1 << 20
WS_PBUF = 16 << 20
WS_STAMP = 48 << 20
WS_USED = 56 << 20


def vr(base, n=1):
    return "v%d" % base if n == 1 else "v[%d:%d]" % (base, base + n - 1)


def ar(base, n=1):
    return "a%d" % base if n == 1 else "a[%d:%d]" % (base, base + n - 1)


def sr(base, n=1):
    return "s%d" % base if n == 1 else "s[%d:%d]" % (base, base + n - 1)


class Asm:
    def __init__(self):
        self.L = []
        self.nlab = 0

    def e(self, s):
        self.L.append("  " + s)

    def lab(self, name):
        self.L.append(name + ":")

    def newlab(self, base):
        self.nlab += 1
        return "L%s_%d" % (base, self.nlab)

    def extend(self, lst):
        for s in lst:
            self.e(s)

    def text(self):
        return "\n".join(self.L) + "\n"


def interleave(primary, fillers, lead=0):
    out = list(fillers[:lead])
    rest = fillers[lead:]
    n = len(primary)
    done = 0
    for i, p in enumerate(primary):
        out.append(p)
        tgt = (len(rest) * (i + 1)) // n
        out.extend(rest[done:tgt])
        done = tgt
    return out


S_WG = 2
S_WAVE = 3
S_PX, S_PK, S_PV, S_PWQ, S_PWO, S_POUT, S_PDBG, S_PWS = 4, 6, 8, 10, 12, 14, 16, 18
S_X, S_M, S_B4, S_BR, S_QUAD, S_H = 20, 21, 22, 23, 24, 25
S_SPIN = 26
S_T0, S_T1, S_T2, S_T3 = 28, 29, 30, 31
S_RET = 32
S_KA = 36
SL_ISS, SL_PUB, SL_FMIN, SL_SLOT, SL_NEED, SL_OFF, SL_OFF2, SL_CNT, SL_CNT2, SL_KOFF, SL_VOFF, SL_ROT = range(40, 52)
SRD_X, SRD_K, SRD_V, SRD_WQ, SRD_WO = 64, 68, 72, 76, 80
SC_L, SC_SLOT, SC_IDX, SC_IT, SC_C, SC_TC, SC_NEED, SC_OB, SC_PH, SC_SLOT2 = range(40, 50)
SC_NONCE = 50
SC_OOFF, SC_OOFF2, SC_FOFF, SC_POFF = 52, 53, 54, 55
SRD_WS, SRD_OUT = 64, 68
S_ST = 84

V_LANE = 0
V_T = 1
V_KB = 8
V_VB = 16
V_WB = 20
V_KA = 24
V_VA = 32
V_M, V_NMC, V_TH, V_LSUM, V_TMAX, V_T2, V_ALPHA, V_FV, V_LADDR, V_FADDR, V_L16, V_LRD = range(36, 48)
V_PF = 48
V_O = 64
V_SA = 128
V_SB = 144
V_ACC2 = 160
V_Q2 = 160
V_STG = 192
V_Q1 = 224
A_KF = 64
A_VF = [96, 128]
A_XF = 160
A_OF1 = [0, 32, 160, 192]
A_OF2 = [0, 32, 128, 224]

MFMA = "v_mfma_f32_32x32x16_bf16"


def build(cfg):
    NS, D = cfg.NS, cfg.D
    RING = NS * SLOT
    FLAG_L = RING
    FLAG_F = RING + 16
    LDS_BYTES = RING + 64
    a = Asm()
    e = a.e
    hdr = []
    hdr.append("; @launch grid=(256,1,1) block=(256,1,1) lds=%d" % LDS_BYTES)
    hdr.append('.amdgcn_target "amdgcn-amd-amdhsa--gfx950"')
    hdr.append(".text")
    hdr.append(".globl %s_kernel" % NAME)
    hdr.append(".p2align 8")
    hdr.append(".type %s_kernel,@function" % NAME)
    hdr.append("%s_kernel:" % NAME)

    stamp_n = [0]

    def stamp(k):
        if cfg.stamps:
            e("s_memrealtime %s" % sr(S_ST + 2 * k, 2))

    e("s_cmp_ge_u32 s2, 256")
    e("s_cbranch_scc1 L_end")
    e("s_load_dwordx16 s[36:51], s[0:1], 0")
    e("s_load_dwordx4 s[52:55], s[0:1], 64")
    e("s_load_dwordx4 s[56:59], s[0:1], 80")
    e("s_load_dwordx2 s[60:61], s[0:1], 96")
    stamp(0)
    e("v_lshrrev_b32 v1, 6, v0")
    e("v_and_b32 v0, 63, v0")
    e("s_and_b32 %s, s2, 7" % sr(S_X))
    e("v_readfirstlane_b32 %s, v1" % sr(S_WAVE))
    e("s_lshr_b32 s28, s2, 3")
    e("s_and_b32 %s, s28, 3" % sr(S_M))
    e("s_lshr_b32 s29, s28, 2")
    e("s_and_b32 %s, s29, 3" % sr(S_B4))
    e("s_lshr_b32 %s, s28, 4" % sr(S_BR))
    e("s_lshl_b32 %s, %s, 2" % (sr(S_H), sr(S_X)))
    e("s_add_u32 %s, %s, %s" % (sr(S_H), sr(S_H), sr(S_M)))
    e("s_lshl_b32 s28, s28, 1")
    e("s_and_b32 s28, s28, 0x38")
    e("s_add_u32 %s, s28, %s" % (sr(S_QUAD), sr(S_X)))
    e("s_mov_b32 %s, 0x400000" % sr(S_SPIN))
    e("s_cmp_eq_u32 %s, 0" % sr(S_BR))
    e("s_waitcnt lgkmcnt(0)")
    for dst, pa, pb in ((S_PX, 36, 46), (S_PK, 38, 48), (S_PV, 40, 50), (S_PWQ, 42, 52), (S_PWO, 44, 54)):
        e("s_cselect_b32 %s, s%d, s%d" % (sr(dst), pa, pb))
        e("s_cselect_b32 %s, s%d, s%d" % (sr(dst + 1), pa + 1, pb + 1))
    e("s_mov_b64 %s, s[56:57]" % sr(S_POUT, 2))
    e("s_mov_b64 %s, s[58:59]" % sr(S_PDBG, 2))
    e("s_mov_b64 %s, s[60:61]" % sr(S_PWS, 2))
    e("s_cmp_eq_u32 %s, 3" % sr(S_WAVE))
    e("s_cbranch_scc0 L_compute")

    a.lab("L_loader")
    e("s_setprio 3")

    def srd(dst, ptr, nbytes):
        e("s_mov_b32 %s, %s" % (sr(dst), sr(ptr)))
        e("s_mov_b32 %s, %s" % (sr(dst + 1), sr(ptr + 1)))
        e("s_mov_b32 %s, 0x%x" % (sr(dst + 2), nbytes))
        e("s_mov_b32 %s, 0x20000" % sr(dst + 3))

    srd(SRD_X, S_PX, 8 * 96 * 512 * 2)
    srd(SRD_WQ, S_PWQ, 512 * 4096 * 2)
    srd(SRD_K, S_PK, 8 * 32 * 1024 * 128 * 2)
    srd(SRD_V, S_PV, 8 * 32 * 1024 * 128 * 2)
    srd(SRD_WO, S_PWO, 4096 * 512 * 2)
    LV_K, LV_V, LV_X, LV_WQ, LV_WO, LV_T, LV_LADDR, LV_FADDR, LV_F = 8, 12, 16, 20, 24, 28, 32, 33, 36
    e("v_lshrrev_b32 v1, 4, v0")
    e("v_and_b32 v2, 15, v0")
    e("v_xor_b32 v3, v2, v1")
    e("v_lshlrev_b32 v4, 2, v1")
    e("v_xor_b32 v4, v2, v4")
    e("v_lshlrev_b32 v4, 4, v4")
    e("v_lshlrev_b32 v5, 8, v1")
    e("v_lshlrev_b32 v6, 10, v1")
    e("v_lshlrev_b32 v7, 13, v1")
    for j in range(4):
        e("v_xor_b32 v%d, %d, v3" % (LV_T, 4 * j))
        e("v_lshlrev_b32 v%d, 4, v%d" % (LV_T, LV_T))
        e("v_add_u32 v%d, v6, v%d" % (LV_X + j, LV_T))
        if j:
            e("v_add_u32 v%d, %d, v%d" % (LV_X + j, j * 3072, LV_X + j))
        e("v_add_u32 v%d, v7, v4" % (LV_WQ + j))
        if j:
            e("v_add_u32 v%d, %d, v%d" % (LV_WQ + j, j * (32768 - 1024), LV_WQ + j))
        e("v_add_u32 v%d, v5, v%d" % (LV_K + j, LV_T))
        e("v_add_u32 v%d, v6, v4" % (LV_WO + j))
        if j:
            e("v_add_u32 v%d, %d, v%d" % (LV_WO + j, j * 3072, LV_WO + j))
    e("v_add_u32 v%d, v5, v4" % LV_V)
    e("v_mov_b32 v%d, %d" % (LV_LADDR, FLAG_L))
    e("v_mov_b32 v%d, %d" % (LV_FADDR, FLAG_F))
    e("v_mov_b32 v%d, 0" % LV_T)
    e("ds_write_b32 v%d, v%d" % (LV_LADDR, LV_T))
    e("s_mov_b32 %s, 0" % sr(SL_ISS))
    e("s_mov_b32 %s, 0" % sr(SL_PUB))
    e("s_mov_b32 %s, 0" % sr(SL_FMIN))
    e("s_mov_b32 %s, 0" % sr(SL_SLOT))
    e("s_add_u32 %s, %s, %s" % (sr(SL_ROT), sr(S_B4), sr(S_M)))
    e("s_and_b32 %s, %s, 3" % (sr(SL_ROT), sr(SL_ROT)))
    e("s_waitcnt lgkmcnt(0)")
    e("s_barrier")

    def issue_tile(srdreg, voffs, half_stride, flags):
        if not isinstance(voffs, list):
            voffs = [voffs] * 4
        e("s_sub_i32 %s, %s, %d" % (sr(SL_NEED), sr(SL_ISS), NS - 1))
        e("s_cmp_ge_i32 %s, %s" % (sr(SL_FMIN), sr(SL_NEED)))
        ok = a.newlab("ok")
        e("s_cbranch_scc1 %s" % ok)
        e("s_call_b64 %s, L_waitfree" % sr(S_RET, 2))
        a.lab(ok)
        e("s_mov_b32 m0, %s" % sr(SL_SLOT))
        e("s_add_u32 %s, %s, %d" % (sr(SL_OFF2), sr(SL_OFF), half_stride))
        for j in range(4):
            e("buffer_load_dwordx4 v%d, %s, %s offen offset:%d %s lds" % (
                voffs[j], sr(srdreg, 4), sr(SL_OFF), j * 1024, flags))
        e("s_add_u32 m0, %s, 4096" % sr(SL_SLOT))
        e("s_add_u32 %s, %s, 1" % (sr(SL_ISS), sr(SL_ISS)))
        for j in range(4):
            e("buffer_load_dwordx4 v%d, %s, %s offen offset:%d %s lds" % (
                voffs[j], sr(srdreg, 4), sr(SL_OFF2), j * 1024, flags))
        e("s_add_u32 %s, %s, %d" % (sr(SL_SLOT), sr(SL_SLOT), SLOT))
        e("s_cmp_lt_u32 %s, %d" % (sr(SL_SLOT), RING))
        e("s_cselect_b32 %s, %s, 0" % (sr(SL_SLOT), sr(SL_SLOT)))
        e("s_waitcnt vmcnt(%d)" % (8 * D))
        e("s_sub_i32 %s, %s, %d" % (sr(S_T0), sr(SL_ISS), D))
        e("s_max_i32 %s, %s, %s" % (sr(SL_PUB), sr(SL_PUB), sr(S_T0)))
        e("v_mov_b32 v%d, %s" % (LV_T, sr(SL_PUB)))
        e("ds_write_b32 v%d, v%d" % (LV_LADDR, LV_T))

    VX = [LV_X + j for j in range(4)]
    VK = [LV_K + j for j in range(4)]
    VWQ = [LV_WQ + j for j in range(4)]
    VWO = [LV_WO + j for j in range(4)]

    e("s_mov_b32 %s, 0" % sr(SL_CNT))
    a.lab("L_ld_qp")
    e("s_add_u32 %s, %s, %s" % (sr(S_T1), sr(SL_ROT), sr(SL_CNT)))
    e("s_and_b32 %s, %s, 3" % (sr(S_T1), sr(S_T1)))
    e("s_lshl_b32 %s, %s, 8" % (sr(S_T2), sr(S_T1)))
    e("s_mul_i32 %s, %s, %d" % (sr(S_T3), sr(S_B4), 96 * 1024))
    e("s_add_u32 %s, %s, %s" % (sr(S_T3), sr(S_T3), sr(S_T2)))
    for st in range(2):
        for w in range(3):
            e("s_add_u32 %s, %s, %d" % (sr(SL_OFF), sr(S_T3), st * 4 * 96 * 1024 + w * 32 * 1024))
            issue_tile(SRD_X, VX, 16 * 1024, "")
    e("s_lshl_b32 %s, %s, 20" % (sr(S_T2), sr(S_T1)))
    e("s_lshl_b32 %s, %s, 8" % (sr(S_T3), sr(S_H)))
    e("s_add_u32 %s, %s, %s" % (sr(S_T3), sr(S_T3), sr(S_T2)))
    for j in range(4):
        e("s_add_u32 %s, %s, %d" % (sr(SL_OFF), sr(S_T3), j * 32 * 8192))
        issue_tile(SRD_WQ, VWQ, 16 * 8192, "")
    e("s_add_u32 %s, %s, 1" % (sr(SL_CNT), sr(SL_CNT)))
    e("s_cmp_lt_u32 %s, 4" % sr(SL_CNT))
    e("s_cbranch_scc1 L_ld_qp")
    stamp(1)
    e("s_mov_b32 %s, 0" % sr(SL_CNT2))
    e("s_lshl_b32 %s, %s, 5" % (sr(S_T1), sr(S_B4)))
    e("s_add_u32 %s, %s, %s" % (sr(S_T1), sr(S_T1), sr(S_H)))
    e("s_lshl_b32 %s, %s, 18" % (sr(SL_KOFF), sr(S_T1)))
    a.lab("L_ld_head")
    e("s_mov_b32 %s, %s" % (sr(SL_VOFF), sr(SL_KOFF)))
    e("s_mov_b32 %s, %s" % (sr(SL_OFF), sr(SL_KOFF)))
    issue_tile(SRD_K, VK, 4096, cfg.kvflags)
    e("s_mov_b32 %s, 0" % sr(SL_CNT))
    a.lab("L_ld_kv")
    e("s_add_u32 %s, %s, %d" % (sr(SL_OFF), sr(SL_VOFF), SLOT))
    issue_tile(SRD_K, VK, 4096, cfg.kvflags)
    e("s_mov_b32 %s, %s" % (sr(SL_OFF), sr(SL_VOFF)))
    issue_tile(SRD_V, LV_V, 4096, cfg.kvflags)
    e("s_add_u32 %s, %s, %d" % (sr(SL_VOFF), sr(SL_VOFF), SLOT))
    e("s_add_u32 %s, %s, 1" % (sr(SL_CNT), sr(SL_CNT)))
    e("s_cmp_lt_u32 %s, 31" % sr(SL_CNT))
    e("s_cbranch_scc1 L_ld_kv")
    e("s_mov_b32 %s, %s" % (sr(SL_OFF), sr(SL_VOFF)))
    issue_tile(SRD_V, LV_V, 4096, cfg.kvflags)
    e("s_add_u32 %s, %s, %d" % (sr(SL_KOFF), sr(SL_KOFF), 4 * 32 * 262144))
    e("s_add_u32 %s, %s, 1" % (sr(SL_CNT2), sr(SL_CNT2)))
    e("s_cmp_lt_u32 %s, 2" % sr(SL_CNT2))
    e("s_cbranch_scc1 L_ld_head")
    stamp(2)
    if cfg.tail:
        e("s_mov_b32 %s, 0" % sr(SL_CNT2))
        a.lab("L_ld_wo2")
        e("s_lshl_b32 %s, %s, 19" % (sr(SL_KOFF), sr(S_X)))
        e("s_lshl_b32 %s, %s, 8" % (sr(S_T1), sr(S_M)))
        e("s_add_u32 %s, %s, %s" % (sr(SL_KOFF), sr(SL_KOFF), sr(S_T1)))
        e("s_mov_b32 %s, 0" % sr(SL_CNT))
        a.lab("L_ld_wo")
        e("s_mov_b32 %s, %s" % (sr(SL_OFF), sr(SL_KOFF)))
        issue_tile(SRD_WO, VWO, 16 * 1024, "")
        e("s_add_u32 %s, %s, %d" % (sr(SL_KOFF), sr(SL_KOFF), 32 * 1024))
        e("s_add_u32 %s, %s, 1" % (sr(SL_CNT), sr(SL_CNT)))
        e("s_cmp_lt_u32 %s, 16" % sr(SL_CNT))
        e("s_cbranch_scc1 L_ld_wo")
        e("s_add_u32 %s, %s, 1" % (sr(SL_CNT2), sr(SL_CNT2)))
        e("s_cmp_lt_u32 %s, 2" % sr(SL_CNT2))
        e("s_cbranch_scc1 L_ld_wo2")
    for d in range(D - 1, -1, -1):
        e("s_waitcnt vmcnt(%d)" % (8 * d))
        e("s_sub_i32 %s, %s, %d" % (sr(S_T0), sr(SL_ISS), d))
        e("s_max_i32 %s, %s, %s" % (sr(SL_PUB), sr(SL_PUB), sr(S_T0)))
        e("v_mov_b32 v%d, %s" % (LV_T, sr(SL_PUB)))
        e("ds_write_b32 v%d, v%d" % (LV_LADDR, LV_T))
    e("s_waitcnt lgkmcnt(0)")
    stamp(3)
    e("s_branch L_fin")

    a.lab("L_waitfree")

    def readf():
        e("ds_read_b96 v[%d:%d], v%d" % (LV_F, LV_F + 2, LV_FADDR))
        e("s_waitcnt lgkmcnt(0)")
        e("v_min3_u32 v%d, v%d, v%d, v%d" % (LV_F, LV_F, LV_F + 1, LV_F + 2))
        e("s_nop 0")
        e("v_readfirstlane_b32 %s, v%d" % (sr(SL_FMIN), LV_F))
        e("s_nop 3")
        e("s_cmp_ge_i32 %s, %s" % (sr(SL_FMIN), sr(SL_NEED)))
        e("s_cbranch_scc1 L_wf_ret")

    for d in range(D - 1, -1, -1):
        readf()
        e("s_waitcnt vmcnt(%d)" % (8 * d))
        e("s_sub_i32 %s, %s, %d" % (sr(S_T0), sr(SL_ISS), d))
        e("s_max_i32 %s, %s, %s" % (sr(SL_PUB), sr(SL_PUB), sr(S_T0)))
        e("v_mov_b32 v%d, %s" % (LV_T, sr(SL_PUB)))
        e("ds_write_b32 v%d, v%d" % (LV_LADDR, LV_T))
    a.lab("L_wf_spin")
    readf()
    e("s_sleep 1")
    e("s_sub_u32 %s, %s, 1" % (sr(S_SPIN), sr(S_SPIN)))
    e("s_cmp_eq_u32 %s, 0" % sr(S_SPIN))
    e("s_cbranch_scc0 L_wf_spin")
    e("s_endpgm")
    a.lab("L_wf_ret")
    e("s_setpc_b64 %s" % sr(S_RET, 2))

    a.lab("L_compute")
    srd(SRD_WS, S_PWS, WS_USED)
    srd(SRD_OUT, S_POUT, 8 * 96 * 1024 * 2)
    e("v_and_b32 v1, 31, v0")
    e("v_lshrrev_b32 v2, 5, v0")
    e("v_and_b32 v3, 15, v0")
    e("v_xor_b32 v4, v2, v3")
    e("v_lshlrev_b32 v4, 4, v4")
    e("v_lshlrev_b32 v5, 8, v1")
    e("v_add_u32 v%d, v5, v4" % V_KB)
    for s in range(1, 8):
        e("v_xor_b32 v%d, %d, v%d" % (V_KB + s, s * 32, V_KB))
    e("v_lshrrev_b32 v4, 2, v3")
    e("v_and_b32 v5, 3, v0")
    e("v_lshrrev_b32 v6, 1, v5")
    e("v_and_b32 v7, 1, v5")
    e("v_lshlrev_b32 v7, 1, v7")
    e("v_or_b32 v5, v6, v7")
    e("v_lshlrev_b32 v5, 3, v5")
    e("v_lshrrev_b32 v6, 4, v0")
    e("v_and_b32 v6, 1, v6")
    e("v_lshlrev_b32 v6, 5, v6")
    e("v_add_u32 v5, v5, v6")
    e("v_lshlrev_b32 v6, 2, v2")
    e("v_add_u32 v6, v6, v4")
    e("v_lshlrev_b32 v6, 8, v6")
    e("v_add_u32 v6, v6, v5")
    e("v_lshlrev_b32 v7, 3, v2")
    e("v_add_u32 v7, v7, v4")
    e("v_lshlrev_b32 v7, 8, v7")
    e("v_add_u32 v7, v7, v5")
    for db in range(4):
        e("v_xor_b32 v1, %d, v4" % db)
        e("v_lshlrev_b32 v1, 6, v1")
        e("v_add_u32 v%d, v6, v1" % (V_VB + db))
        e("v_add_u32 v%d, v7, v1" % (V_WB + db))
    e("v_mov_b32 v%d, %d" % (V_LADDR, FLAG_L))
    e("s_lshl_b32 %s, %s, 2" % (sr(S_T0), sr(S_WAVE)))
    e("s_add_u32 %s, %s, %d" % (sr(S_T0), sr(S_T0), FLAG_F))
    e("v_mov_b32 v%d, %s" % (V_FADDR, sr(S_T0)))
    e("v_mov_b32 v%d, 0" % V_FV)
    e("ds_write_b32 v%d, v%d" % (V_FADDR, V_FV))
    e("v_lshlrev_b32 v%d, 4, v0" % V_L16)
    e("s_mov_b32 %s, 0" % sr(SC_L))
    c = (128 ** -0.5) * math.log2(math.e)
    e("s_mov_b32 %s, 0x%x" % (sr(SC_C), f32bits(c)))
    e("s_mov_b32 %s, 0x%x" % (sr(SC_TC), f32bits(cfg.T_LOG2 / c)))
    if cfg.tail:
        e("s_or_b32 %s, %s, %s" % (sr(S_T0), sr(S_WG), sr(S_WAVE)))
        e("s_cmp_eq_u32 %s, 0" % sr(S_T0))
        e("s_cbranch_scc0 L_nononce")
        e("s_memrealtime %s" % sr(SC_NONCE, 2))
        e("s_waitcnt lgkmcnt(0)")
        e("s_or_b32 %s, %s, 1" % (sr(SC_NONCE), sr(SC_NONCE)))
        e("v_mov_b32 v2, %s" % sr(SC_NONCE))
        e("v_mov_b32 v3, %s" % sr(SC_NONCE + 1))
        e("v_mov_b32 v1, 0")
        e("global_store_dwordx2 v1, v[2:3], %s sc1" % sr(S_PDBG, 2))
        a.lab("L_nononce")
    for i in range(64):
        e("v_mov_b32 v%d, 0" % (V_O + i))
    for i in range(64):
        e("v_mov_b32 v%d, 0" % (V_ACC2 + i))
    e("s_waitcnt lgkmcnt(0)")
    e("s_barrier")

    def wait_landed_s(need_sgpr):
        ok = a.newlab("lw_ok")
        lp = a.newlab("lw_lp")
        e("s_cmp_ge_u32 %s, %s" % (sr(SC_L), sr(need_sgpr)))
        e("s_cbranch_scc1 %s" % ok)
        a.lab(lp)
        e("ds_read_b32 v%d, v%d" % (V_LRD, V_LADDR))
        e("s_waitcnt lgkmcnt(0)")
        e("v_readfirstlane_b32 %s, v%d" % (sr(SC_L), V_LRD))
        e("s_sub_u32 %s, %s, 1" % (sr(S_SPIN), sr(S_SPIN)))
        e("s_cmp_eq_u32 %s, 0" % sr(S_SPIN))
        e("s_cbranch_scc1 L_end")
        e("s_cmp_ge_u32 %s, %s" % (sr(SC_L), sr(need_sgpr)))
        e("s_cbranch_scc0 %s" % lp)
        a.lab(ok)

    def slot_adv(dst, src, n):
        e("s_add_u32 %s, %s, %d" % (sr(dst), sr(src), n * SLOT))
        e("s_sub_u32 %s, %s, %d" % (sr(S_T0), sr(dst), RING))
        e("s_cmp_lt_u32 %s, %d" % (sr(dst), RING))
        e("s_cselect_b32 %s, %s, %s" % (sr(dst), sr(dst), sr(S_T0)))

    def release_s(val_sgpr):
        e("v_mov_b32 v%d, %s" % (V_FV, sr(val_sgpr)))
        e("ds_write_b32 v%d, v%d" % (V_FADDR, V_FV))

    def k_addr(slot_sgpr):
        return ["v_add_u32 v%d, %s, v%d" % (V_KA + s, sr(slot_sgpr), V_KB + s) for s in range(8)]

    def k_reads(dst_a):
        return ["ds_read_b128 %s, v%d" % (ar(dst_a + 4 * s, 4), V_KA + s) for s in range(8)]

    def v_addr(slot_sgpr, base):
        return ["v_add_u32 v%d, %s, v%d" % (V_VA + db, sr(slot_sgpr), base + db) for db in range(4)]

    def v_reads(dst_a, isw):
        out = []
        for ks in range(2):
            for db in range(4):
                base = dst_a + (ks * 4 + db) * 4
                o2 = 1024 if isw else 2048
                out.append("ds_read_b64_tr_b16 %s, v%d offset:%d" % (ar(base, 2), V_VA + db, ks * 4096))
                out.append("ds_read_b64_tr_b16 %s, v%d offset:%d" % (ar(base + 2, 2), V_VA + db, ks * 4096 + o2))
        return out

    e("s_mov_b32 %s, 0" % sr(SC_IDX))
    e("s_mov_b32 %s, 0" % sr(SC_SLOT))
    e("s_mov_b32 %s, 0" % sr(SC_IT))
    AF = [A_KF, A_VF[0]]
    a.lab("L_qp")
    e("s_add_u32 %s, %s, 6" % (sr(SC_NEED), sr(SC_IDX)))
    wait_landed_s(SC_NEED)
    for st in range(2):
        e("s_mul_i32 %s, %s, %d" % (sr(S_T1), sr(S_WAVE), SLOT))
        e("s_add_u32 %s, %s, %s" % (sr(SC_SLOT2), sr(SC_SLOT), sr(S_T1)))
        slot_adv(SC_SLOT2, SC_SLOT2, 3 * st)
        if st == 0:
            pass
        a.extend(k_addr(SC_SLOT2))
        a.extend(k_reads(A_XF + 32 * st))
    slot_adv(SC_SLOT, SC_SLOT, 6)
    e("s_add_u32 %s, %s, 7" % (sr(SC_NEED), sr(SC_IDX)))
    wait_landed_s(SC_NEED)
    a.extend(v_addr(SC_SLOT, V_WB))
    a.extend(v_reads(AF[0], True))
    for j in range(4):
        e("s_waitcnt lgkmcnt(0)")
        e("s_add_u32 %s, %s, %d" % (sr(S_T1), sr(SC_IDX), 7 + j))
        release_s(S_T1)
        slot_adv(SC_SLOT, SC_SLOT, 1)
        fill = []
        if j < 3:
            e("s_add_u32 %s, %s, %d" % (sr(SC_NEED), sr(SC_IDX), 8 + j))
            wait_landed_s(SC_NEED)
            a.extend(v_addr(SC_SLOT, V_WB))
            fill = v_reads(AF[(j + 1) & 1], True)
        mf = []
        for ks in range(2):
            for db in range(4):
                for st in range(2):
                    acc = (V_O if st == 0 else V_ACC2) + 16 * db
                    mf.append("%s %s, %s, %s, %s" % (
                        MFMA, vr(acc, 16), ar(AF[j & 1] + (ks * 4 + db) * 4, 4),
                        ar(A_XF + 32 * st + (2 * j + ks) * 4, 4), vr(acc, 16)))
        a.extend(interleave(mf, fill))
    e("s_add_u32 %s, %s, 10" % (sr(SC_IDX), sr(SC_IDX)))
    e("s_add_u32 %s, %s, 1" % (sr(SC_IT), sr(SC_IT)))
    e("s_cmp_lt_u32 %s, 4" % sr(SC_IT))
    e("s_cbranch_scc1 L_qp")
    e("s_nop 7")
    e("s_nop 7")
    for i in range(32):
        e("v_cvt_pk_bf16_f32 v%d, v%d, v%d" % (V_Q1 + i, V_O + 2 * i, V_O + 2 * i + 1))
    for i in range(32):
        e("v_cvt_pk_bf16_f32 v%d, v%d, v%d" % (V_Q2 + i, V_ACC2 + 2 * i, V_ACC2 + 2 * i + 1))
    stamp(1)

    def qk_mfmas(sdst, qbase):
        out = []
        for s in range(8):
            out.append("%s %s, %s, %s, %s" % (
                MFMA, vr(sdst, 16), ar(A_KF + 4 * s, 4), vr(qbase + 4 * s, 4),
                "0" if s == 0 else vr(sdst, 16)))
        return out

    def softmax_valu(sc):
        out = []
        for hf in range(2):
            for i in range(8):
                r = sc + 8 * hf + i
                out.append("v_fma_f32 v%d, v%d, %s, v%d" % (r, r, sr(SC_C), V_NMC))
            for i in range(8):
                r = sc + 8 * hf + i
                out.append("v_exp_f32 v%d, v%d" % (r, r))
            for i in range(4):
                r = sc + 8 * hf + 2 * i
                out.append("v_add_f32 v%d, v%d, v%d" % (V_LSUM, V_LSUM, r))
                out.append("v_add_f32 v%d, v%d, v%d" % (V_T2, V_T2, r + 1))
                out.append("v_cvt_pk_bf16_f32 v%d, v%d, v%d" % (V_PF + 4 * hf + i, r, r + 1))
        return out

    def pv_mfmas(vf):
        out = []
        for ks in range(2):
            for db in range(4):
                out.append("%s %s, %s, %s, %s" % (
                    MFMA, vr(V_O + 16 * db, 16), ar(vf + (ks * 4 + db) * 4, 4), vr(V_PF + 4 * ks, 4),
                    vr(V_O + 16 * db, 16)))
        return out

    def max_valu(sn):
        out = ["v_max3_f32 v%d, v%d, v%d, v%d" % (V_TMAX, sn, sn + 1, sn + 2)]
        for i in range(3, 15, 2):
            out.append("v_max3_f32 v%d, v%d, v%d, v%d" % (V_TMAX, V_TMAX, sn + i, sn + i + 1))
        out.append("v_max_f32 v%d, v%d, v%d" % (V_TMAX, V_TMAX, sn + 15))
        out.append("v_cmp_gt_f32 vcc, v%d, v%d" % (V_TMAX, V_TH))
        return out

    def rare_path(lab, back):
        a.lab(lab)
        e("v_mov_b32 v%d, v%d" % (V_T + 0, V_TMAX))
        e("s_nop 1")
        e("v_permlane32_swap_b32 v%d, v%d" % (V_TMAX, V_T + 0))
        e("s_nop 1")
        e("v_max3_f32 v%d, v%d, v%d, v%d" % (V_TMAX, V_TMAX, V_T + 0, V_M))
        e("v_sub_f32 v%d, v%d, v%d" % (V_ALPHA, V_M, V_TMAX))
        e("v_mul_f32 v%d, %s, v%d" % (V_ALPHA, sr(SC_C), V_ALPHA))
        e("v_exp_f32 v%d, v%d" % (V_ALPHA, V_ALPHA))
        e("v_mov_b32 v%d, v%d" % (V_M, V_TMAX))
        e("v_mul_f32 v%d, %s, v%d" % (V_NMC, sr(SC_C), V_M))
        e("v_sub_f32 v%d, 0, v%d" % (V_NMC, V_NMC))
        e("v_add_f32 v%d, %s, v%d" % (V_TH, sr(SC_TC), V_M))
        e("s_nop 7")
        e("s_nop 7")
        e("v_mul_f32 v%d, v%d, v%d" % (V_LSUM, V_LSUM, V_ALPHA))
        e("v_mul_f32 v%d, v%d, v%d" % (V_T2, V_T2, V_ALPHA))
        for i in range(64):
            e("v_mul_f32 v%d, v%d, v%d" % (V_O + i, V_O + i, V_ALPHA))
        e("s_branch %s" % back)

    rare = []

    def head(ph):
        qbase = V_Q1 if ph == 0 else V_Q2
        base_idx = 40 + 64 * ph
        for i in range(64):
            e("v_mov_b32 v%d, 0" % (V_O + i))
        e("v_mov_b32 v%d, 0xff7fffff" % V_M)
        e("v_mov_b32 v%d, 0xff7fffff" % V_TH)
        e("v_mov_b32 v%d, 0" % V_LSUM)
        e("v_mov_b32 v%d, 0" % V_T2)
        e("v_mov_b32 v%d, 0" % V_NMC)
        e("s_add_u32 %s, %s, 1" % (sr(SC_NEED), sr(SC_IDX)))
        wait_landed_s(SC_NEED)
        a.extend(k_addr(SC_SLOT))
        a.extend(k_reads(A_KF))
        e("s_waitcnt lgkmcnt(0)")
        e("s_add_u32 %s, %s, 1" % (sr(S_T1), sr(SC_IDX)))
        release_s(S_T1)
        a.extend(qk_mfmas(V_SA, qbase))
        slot_adv(SC_SLOT, SC_SLOT, 1)
        e("s_add_u32 %s, %s, 3" % (sr(SC_NEED), sr(SC_IDX)))
        wait_landed_s(SC_NEED)
        a.extend(k_addr(SC_SLOT))
        slot_adv(SC_SLOT, SC_SLOT, 1)
        a.extend(v_addr(SC_SLOT, V_VB))
        a.extend(k_reads(A_KF))
        a.extend(v_reads(A_VF[0], False))
        slot_adv(SC_SLOT, SC_SLOT, 1)
        e("s_add_u32 %s, %s, 3" % (sr(SC_IDX), sr(SC_IDX)))
        a.extend(max_valu(V_SA))
        r0 = a.newlab("rare")
        b0 = a.newlab("back")
        e("s_cbranch_vccnz %s" % r0)
        a.lab(b0)
        rare.append((r0, b0))

        def iteration(par, kind):
            scur = V_SA if par == 0 else V_SB
            snext = V_SB if par == 0 else V_SA
            e("s_waitcnt lgkmcnt(0)")
            release_s(SC_IDX)
            if kind != "final":
                a.extend(interleave(qk_mfmas(snext, qbase), softmax_valu(scur)))
            else:
                a.extend(softmax_valu(scur))
            fill = []
            if kind == "full":
                e("s_add_u32 %s, %s, 2" % (sr(SC_NEED), sr(SC_IDX)))
                wait_landed_s(SC_NEED)
                slot_adv(SC_SLOT2, SC_SLOT, 1)
                fill += k_addr(SC_SLOT) + v_addr(SC_SLOT2, V_VB)
                fill += k_reads(A_KF) + v_reads(A_VF[par ^ 1], False)
            elif kind == "lastk":
                e("s_add_u32 %s, %s, 1" % (sr(SC_NEED), sr(SC_IDX)))
                wait_landed_s(SC_NEED)
                fill += v_addr(SC_SLOT, V_VB)
                fill += v_reads(A_VF[par ^ 1], False)
            if kind != "final":
                fill += max_valu(snext)
            a.extend(interleave(pv_mfmas(A_VF[par]), fill, lead=(4 if kind != "final" else 0)))
            if kind == "full":
                slot_adv(SC_SLOT, SC_SLOT, 2)
                e("s_add_u32 %s, %s, 2" % (sr(SC_IDX), sr(SC_IDX)))
            elif kind == "lastk":
                slot_adv(SC_SLOT, SC_SLOT, 1)
                e("s_add_u32 %s, %s, 1" % (sr(SC_IDX), sr(SC_IDX)))
            if kind != "final":
                r = a.newlab("rare")
                b = a.newlab("back")
                e("s_cbranch_vccnz %s" % r)
                a.lab(b)
                rare.append((r, b))

        e("s_mov_b32 %s, 0" % sr(SC_IT))
        lp = a.newlab("attn")
        a.lab(lp)
        iteration(0, "full")
        iteration(1, "full")
        e("s_add_u32 %s, %s, 1" % (sr(SC_IT), sr(SC_IT)))
        if ph == 1 and cfg.tail:
            sk = a.newlab("noev")
            e("s_cmp_eq_u32 %s, 6" % sr(SC_IT))
            e("s_cbranch_scc0 %s" % sk)
            event_load_o(0, A_OF1)
            a.lab(sk)
        e("s_cmp_lt_u32 %s, 15" % sr(SC_IT))
        e("s_cbranch_scc1 %s" % lp)
        iteration(0, "lastk")
        iteration(1, "final")
        e("v_add_f32 v%d, v%d, v%d" % (V_LSUM, V_LSUM, V_T2))
        e("v_mov_b32 v%d, v%d" % (V_T2, V_LSUM))
        e("s_nop 1")
        e("v_permlane32_swap_b32 v%d, v%d" % (V_LSUM, V_T2))
        e("s_nop 1")
        e("v_add_f32 v%d, v%d, v%d" % (V_LSUM, V_LSUM, V_T2))
        e("v_rcp_f32 v%d, v%d" % (V_ALPHA, V_LSUM))
        e("s_nop 7")
        e("s_nop 3")
        for i in range(64):
            e("v_mul_f32 v%d, v%d, v%d" % (V_O + i, V_O + i, V_ALPHA))
        for i in range(32):
            e("v_cvt_pk_bf16_f32 v%d, v%d, v%d" % (V_STG + i, V_O + 2 * i, V_O + 2 * i + 1))
        e("s_lshl_b32 %s, %s, 2" % (sr(S_T1), sr(S_QUAD)))
        e("s_add_u32 %s, %s, %s" % (sr(S_T1), sr(S_T1), sr(S_M)))
        e("s_add_u32 %s, %s, %d" % (sr(S_T1), sr(S_T1), ph * 256))
        e("s_mul_i32 %s, %s, 24576" % (sr(S_T1), sr(S_T1)))
        e("s_lshl_b32 %s, %s, 13" % (sr(S_T2), sr(S_WAVE)))
        e("s_add_u32 %s, %s, %s" % (sr(S_T1), sr(S_T1), sr(S_T2)))
        e("s_add_u32 %s, %s, %d" % (sr(SC_OOFF), sr(S_T1), WS_OBUF))
        e("s_add_u32 %s, %s, 4096" % (sr(SC_OOFF2), sr(SC_OOFF)))
        for s in range(8):
            e("buffer_store_dwordx4 %s, v%d, %s, %s offen offset:%d sc1" % (
                vr(V_STG + 4 * s, 4), V_L16, sr(SRD_WS, 4), sr(SC_OOFF if s < 4 else SC_OOFF2), (s & 3) * 1024))

    def get_nonce():
        lp = a.newlab("nonce")
        a.lab(lp)
        e("v_mov_b32 v1, 0")
        e("global_load_dwordx2 v[2:3], v1, %s sc1" % sr(S_PDBG, 2))
        e("s_waitcnt vmcnt(0)")
        e("v_readfirstlane_b32 %s, v2" % sr(SC_NONCE))
        e("v_readfirstlane_b32 %s, v3" % sr(SC_NONCE + 1))
        e("s_sub_u32 %s, %s, 1" % (sr(S_SPIN), sr(S_SPIN)))
        e("s_cmp_eq_u32 %s, 0" % sr(S_SPIN))
        e("s_cbranch_scc1 L_end")
        e("s_cmp_eq_u32 %s, 0" % sr(SC_NONCE))
        e("s_cbranch_scc1 %s" % lp)

    def flag_store(off_sgpr):
        e("v_mov_b32 v2, %s" % sr(SC_NONCE))
        e("v_mov_b32 v3, %s" % sr(SC_NONCE + 1))
        e("v_mov_b32 v1, 0")
        e("s_mov_b64 s[34:35], exec")
        e("s_mov_b64 exec, 1")
        e("buffer_store_dwordx2 v[2:3], v1, %s, %s offen sc1" % (sr(SRD_WS, 4), sr(off_sgpr)))
        e("s_mov_b64 exec, s[34:35]")

    def flag_poll(off_sgpr, n):
        lp = a.newlab("poll")
        e("v_min_u32 v1, %d, v0" % (n - 1))
        e("v_lshlrev_b32 v1, 3, v1")
        a.lab(lp)
        e("buffer_load_dwordx2 v[2:3], v1, %s, %s offen sc1" % (sr(SRD_WS, 4), sr(off_sgpr)))
        e("s_waitcnt vmcnt(0)")
        e("v_cmp_ne_u32 vcc, %s, v2" % sr(SC_NONCE))
        e("v_cmp_ne_u32 s[34:35], %s, v3" % sr(SC_NONCE + 1))
        e("s_sub_u32 %s, %s, 1" % (sr(S_SPIN), sr(S_SPIN)))
        e("s_cmp_eq_u32 %s, 0" % sr(S_SPIN))
        e("s_cbranch_scc1 L_end")
        e("s_or_b64 vcc, vcc, s[34:35]")
        e("s_cbranch_scc1 %s" % lp)

    def flago_off(dst, ph, with_m):
        e("s_lshl_b32 %s, %s, 2" % (sr(dst), sr(S_QUAD)))
        e("s_add_u32 %s, %s, %s" % (sr(dst), sr(dst), sr(S_WAVE)))
        e("s_lshl_b32 %s, %s, 7" % (sr(dst), sr(dst)))
        e("s_add_u32 %s, %s, %d" % (sr(dst), sr(dst), WS_FLAGO + ph * 64 * 4 * 128))
        if with_m:
            e("s_lshl_b32 %s, %s, 3" % (sr(S_T0), sr(S_M)))
            e("s_add_u32 %s, %s, %s" % (sr(dst), sr(dst), sr(S_T0)))

    def event_load_o(ph, regs):
        flago_off(SC_FOFF, ph, False)
        flag_poll(SC_FOFF, 4)
        e("s_lshl_b32 %s, %s, 2" % (sr(S_T1), sr(S_QUAD)))
        e("s_add_u32 %s, %s, %d" % (sr(S_T1), sr(S_T1), ph * 256))
        e("s_mul_i32 %s, %s, 24576" % (sr(S_T1), sr(S_T1)))
        e("s_lshl_b32 %s, %s, 13" % (sr(S_T2), sr(S_WAVE)))
        e("s_add_u32 %s, %s, %s" % (sr(S_T1), sr(S_T1), sr(S_T2)))
        e("s_add_u32 %s, %s, %d" % (sr(S_T1), sr(S_T1), WS_OBUF))
        for mm in range(4):
            for hf in range(2):
                e("s_add_u32 %s, %s, %d" % (sr(S_T2), sr(S_T1), mm * 24576 + hf * 4096))
                for s in range(4):
                    e("buffer_load_dwordx4 %s, v%d, %s, %s offen offset:%d sc1" % (
                        ar(regs[mm] + 4 * (4 * hf + s), 4), V_L16, sr(SRD_WS, 4), sr(S_T2), s * 1024))

    head(0)
    if cfg.tail:
        get_nonce()
        flago_off(SC_FOFF, 0, True)
        flag_store(SC_FOFF)
    stamp(2)
    head(1)
    stamp(3)

    if cfg.tail:
        def proj_round(acc, of, first, extra_after_first_chunk=None):
            e("s_add_u32 %s, %s, 1" % (sr(SC_NEED), sr(SC_IDX)))
            wait_landed_s(SC_NEED)
            a.extend(v_addr(SC_SLOT, V_WB))
            a.extend(v_reads(AF[0], True))
            for j in range(4):
                e("s_waitcnt lgkmcnt(0)")
                e("s_add_u32 %s, %s, 1" % (sr(SC_IDX), sr(SC_IDX)))
                release_s(SC_IDX)
                slot_adv(SC_SLOT, SC_SLOT, 1)
                fill = []
                if j < 3:
                    e("s_add_u32 %s, %s, 1" % (sr(SC_NEED), sr(SC_IDX)))
                    wait_landed_s(SC_NEED)
                    a.extend(v_addr(SC_SLOT, V_WB))
                    fill = v_reads(AF[(j + 1) & 1], True)
                mf = []
                for ks in range(2):
                    for db in range(4):
                        cin = "0" if (first and j == 0 and ks == 0) else vr(acc + 16 * db, 16)
                        mf.append("%s %s, %s, %s, %s" % (
                            MFMA, vr(acc + 16 * db, 16), ar(AF[j & 1] + (ks * 4 + db) * 4, 4),
                            ar(of + (2 * j + ks) * 4, 4), cin))
                a.extend(interleave(mf, fill))

        def poff(dst, ph, kq_sgpr):
            e("s_lshr_b32 %s, %s, 3" % (sr(dst), sr(S_QUAD)))
            e("s_add_u32 %s, %s, %d" % (sr(dst), sr(dst), ph * 8))
            e("s_lshl_b32 %s, %s, 2" % (sr(dst), sr(dst)))
            e("s_add_u32 %s, %s, %s" % (sr(dst), sr(dst), sr(S_M)))
            e("s_lshl_b32 %s, %s, 3" % (sr(dst), sr(dst)))
            if kq_sgpr is not None:
                e("s_add_u32 %s, %s, %s" % (sr(dst), sr(dst), sr(kq_sgpr)))
            e("s_mul_i32 %s, %s, 49152" % (sr(dst), sr(dst)))
            e("s_lshl_b32 %s, %s, 14" % (sr(S_T0), sr(S_WAVE)))
            e("s_add_u32 %s, %s, %s" % (sr(dst), sr(dst), sr(S_T0)))
            e("s_add_u32 %s, %s, %d" % (sr(dst), sr(dst), WS_PBUF))

        def flagp_off(dst, ph, with_kq):
            e("s_lshr_b32 %s, %s, 3" % (sr(dst), sr(S_QUAD)))
            e("s_add_u32 %s, %s, %d" % (sr(dst), sr(dst), ph * 8))
            e("s_lshl_b32 %s, %s, 2" % (sr(dst), sr(dst)))
            e("s_add_u32 %s, %s, %s" % (sr(dst), sr(dst), sr(S_M)))
            e("s_lshl_b32 %s, %s, 2" % (sr(dst), sr(dst)))
            e("s_add_u32 %s, %s, %s" % (sr(dst), sr(dst), sr(S_WAVE)))
            e("s_lshl_b32 %s, %s, 7" % (sr(dst), sr(dst)))
            e("s_add_u32 %s, %s, %d" % (sr(dst), sr(dst), WS_FLAGP))
            if with_kq:
                e("s_lshl_b32 %s, %s, 3" % (sr(S_T0), sr(S_X)))
                e("s_add_u32 %s, %s, %s" % (sr(dst), sr(dst), sr(S_T0)))

        def partial_store(acc, ph):
            poff(SC_POFF, ph, S_X)
            e("s_nop 7")
            e("s_nop 3")
            for q in range(4):
                e("s_add_u32 %s, %s, %d" % (sr(S_T1), sr(SC_POFF), q * 4096))
                for s in range(4):
                    e("buffer_store_dwordx4 %s, v%d, %s, %s offen offset:%d sc1" % (
                        vr(acc + 4 * (4 * q + s), 4), V_L16, sr(SRD_WS, 4), sr(S_T1), s * 1024))

        def reduce(ph, regs):
            flagp_off(SC_FOFF, ph, False)
            flag_poll(SC_FOFF, 8)
            poff(SC_POFF, ph, None)
            e("s_lshl_b32 %s, %s, 11" % (sr(S_T1), sr(S_X)))
            e("s_add_u32 %s, %s, %s" % (sr(SC_POFF), sr(SC_POFF), sr(S_T1)))
            for kq in range(8):
                e("s_add_u32 %s, %s, %d" % (sr(S_T1), sr(SC_POFF), kq * 49152))
                for cc in range(2):
                    e("buffer_load_dwordx4 %s, v%d, %s, %s offen offset:%d sc1" % (
                        vr(regs + 8 * kq + 4 * cc, 4), V_L16, sr(SRD_WS, 4), sr(S_T1), cc * 1024))
            e("v_and_b32 v1, 31, v0")
            e("v_lshlrev_b32 v1, 11, v1")
            e("v_lshrrev_b32 v2, 5, v0")
            e("v_lshlrev_b32 v2, 4, v2")
            e("v_add_u32 v1, v1, v2")
            e("s_add_u32 %s, %s, %d" % (sr(S_T1), sr(S_B4), 4 * ph))
            e("s_mul_i32 %s, %s, 96" % (sr(S_T1), sr(S_T1)))
            e("s_lshl_b32 %s, %s, 5" % (sr(S_T2), sr(S_WAVE)))
            e("s_add_u32 %s, %s, %s" % (sr(S_T1), sr(S_T1), sr(S_T2)))
            e("s_lshl_b32 %s, %s, 11" % (sr(S_T1), sr(S_T1)))
            e("s_lshl_b32 %s, %s, 10" % (sr(S_T2), sr(S_BR)))
            e("s_add_u32 %s, %s, %s" % (sr(S_T1), sr(S_T1), sr(S_T2)))
            e("s_lshl_b32 %s, %s, 8" % (sr(S_T2), sr(S_M)))
            e("s_add_u32 %s, %s, %s" % (sr(S_T1), sr(S_T1), sr(S_T2)))
            e("s_lshl_b32 %s, %s, 5" % (sr(S_T2), sr(S_X)))
            e("s_add_u32 %s, %s, %s" % (sr(S_T1), sr(S_T1), sr(S_T2)))
            e("s_waitcnt vmcnt(0)")
            for step in (32, 16, 8):
                for i in range(step):
                    e("v_add_f32 v%d, v%d, v%d" % (regs + i, regs + i, regs + i + step))
            for i in range(4):
                e("v_cvt_pk_bf16_f32 v%d, v%d, v%d" % (4 + i, regs + 2 * i, regs + 2 * i + 1))
            e("buffer_store_dwordx4 v[4:7], v1, %s, %s offen" % (sr(SRD_OUT, 4), sr(S_T1)))

        ACC1, ACC2T = V_O, 128
        e("s_waitcnt vmcnt(8)")
        proj_round(ACC1, A_OF1[0], True)
        e("s_waitcnt vmcnt(0)")
        flago_off(SC_FOFF, 1, True)
        flag_store(SC_FOFF)
        proj_round(ACC1, A_OF1[1], False)
        event_load_o(1, A_OF2)
        proj_round(ACC1, A_OF1[2], False)
        proj_round(ACC1, A_OF1[3], False)
        partial_store(ACC1, 0)
        stamp(4)
        e("s_waitcnt vmcnt(16)")
        proj_round(ACC2T, A_OF2[0], True)
        e("s_waitcnt vmcnt(0)")
        flagp_off(SC_FOFF, 0, True)
        flag_store(SC_FOFF)
        proj_round(ACC2T, A_OF2[1], False)
        proj_round(ACC2T, A_OF2[2], False)
        proj_round(ACC2T, A_OF2[3], False)
        partial_store(ACC2T, 1)
        stamp(5)
        e("s_waitcnt vmcnt(0)")
        flagp_off(SC_FOFF, 1, True)
        flag_store(SC_FOFF)
        reduce(0, V_O)
        stamp(6)
        reduce(1, V_O)
        e("s_waitcnt vmcnt(0)")
        stamp(7)
    else:
        e("s_waitcnt vmcnt(0)")

    a.lab("L_fin")
    if cfg.stamps:
        e("s_waitcnt lgkmcnt(0)")
        e("s_lshl_b32 s28, s2, 9")
        e("s_lshl_b32 s29, %s, 7" % sr(S_WAVE))
        e("s_add_u32 s28, s28, s29")
        e("s_add_u32 s28, s28, 0x%x" % WS_STAMP)
        e("v_mov_b32 v1, s28")
        e("s_getreg_b32 s30, hwreg(HW_REG_XCC_ID)")
        e("s_mov_b64 exec, 1")
        for k in range(4):
            for j in range(4):
                e("v_mov_b32 v%d, s%d" % (4 + j, S_ST + 4 * k + j))
            e("global_store_dwordx4 v1, v[4:7], %s offset:%d" % (sr(S_PWS, 2), 16 * k))
            e("s_waitcnt vmcnt(0)")
        e("v_mov_b32 v4, s30")
        e("global_store_dword v1, v4, %s offset:64" % sr(S_PWS, 2))
        e("s_waitcnt vmcnt(0)")
    a.lab("L_end")
    e("s_endpgm")
    for r, b in rare:
        rare_path(r, b)

    kd = []
    kd.append('.section .rodata,"a"')
    kd.append(".p2align 6")
    kd.append(".amdhsa_kernel %s_kernel" % NAME)
    kd.append("  .amdhsa_next_free_vgpr 512")
    kd.append("  .amdhsa_next_free_sgpr 102")
    kd.append("  .amdhsa_accum_offset 256")
    kd.append("  .amdhsa_group_segment_fixed_size 0")
    kd.append("  .amdhsa_kernarg_size 104")
    kd.append("  .amdhsa_user_sgpr_count 2")
    kd.append("  .amdhsa_user_sgpr_kernarg_segment_ptr 1")
    kd.append("  .amdhsa_system_sgpr_workgroup_id_x 1")
    kd.append(".end_amdhsa_kernel")
    return "\n".join(hdr) + "\n" + a.text() + "\n".join(kd) + "\n"


if __name__ == "__main__":
    import argparse
    ap = argparse.ArgumentParser()
    ap.add_argument("-o", default="cdna_kernels/%s.s" % NAME)
    ap.add_argument("--stamps", action="store_true")
    ap.add_argument("--set", action="append", default=[])
    args = ap.parse_args()
    cfg = Cfg()
    cfg.stamps = args.stamps
    for kv in args.set:
        k, v = kv.split("=", 1)
        cur = getattr(cfg, k)
        if isinstance(cur, bool):
            v = v in ("1", "True", "true")
        elif isinstance(cur, int):
            v = int(v)
        elif isinstance(cur, float):
            v = float(v)
        setattr(cfg, k, v)
    open(args.o, "w").write(build(cfg))
    print("wrote", args.o)
```

```python
import math
import struct

NAME = "concat_heads__mha_block_cached__gqa_block_cached__near_ridge"


def f32bits(x):
    return struct.unpack("<I", struct.pack("<f", x))[0]


class Cfg:
    NS = 18
    D = 5
    stamps = False
    T_LOG2 = 8.0
    kvflags = "nt"
    kvsame = False
    noload = False
    nopoll = False
    wopre = 0
    wocont = False
    ev2sleep = 0
    wflags = ""
    woflags = ""
    xflags = ""
    noxchg = False
    nocompute = False
    noevent2 = False
    stamplist = "start,qp,h0,h1,t1,t2,r0,r1"
    tau1_base = 1
    tau1_mod = 13
    tau2_base = 8
    tau2_mod = 7


BLK = 1088
SLOT = 8 * BLK
WS_FLAGO = 0
WS_FLAGP = 65536
WS_OBUF = 1 << 20
WS_PBUF = 16 << 20
WS_STAMP = 48 << 20
WS_USED = 56 << 20


def vr(base, n=1):
    return "v%d" % base if n == 1 else "v[%d:%d]" % (base, base + n - 1)


def ar(base, n=1):
    return "a%d" % base if n == 1 else "a[%d:%d]" % (base, base + n - 1)


def sr(base, n=1):
    return "s%d" % base if n == 1 else "s[%d:%d]" % (base, base + n - 1)


class Asm:
    def __init__(self):
        self.L = []
        self.nlab = 0

    def e(self, s):
        self.L.append("  " + s)

    def lab(self, name):
        self.L.append(name + ":")

    def newlab(self, base):
        self.nlab += 1
        return "L%s_%d" % (base, self.nlab)

    def extend(self, lst):
        for s in lst:
            if s.endswith(":"):
                self.lab(s[:-1])
            else:
                self.e(s)

    def text(self):
        return "\n".join(self.L) + "\n"


def interleave(primary, fillers, lead=0):
    out = list(fillers[:lead])
    rest = fillers[lead:]
    n = len(primary)
    done = 0
    for i, p in enumerate(primary):
        out.append(p)
        tgt = (len(rest) * (i + 1)) // n
        out.extend(rest[done:tgt])
        done = tgt
    return out


def gaps(primary, per_gap):
    out = []
    for p, f in zip(primary, per_gap):
        out.append(p)
        out.extend(f)
    return out


S_WG = 2
S_WAVE = 3
S_PX, S_PK, S_PV, S_PWQ, S_PWO, S_POUT, S_PDBG, S_PWS = 4, 6, 8, 10, 12, 14, 16, 18
S_X, S_M, S_B4, S_BR, S_QUAD, S_H = 20, 21, 22, 23, 24, 25
S_SPIN = 26
S_TAU1, S_TAU2 = 27, 62
S_T0, S_T1, S_T2, S_T3 = 28, 29, 30, 31
S_RET = 32
SL_ISS, SL_PUB, SL_FMIN, SL_SLOT, SL_NEED, SL_OFF, SL_OFF2, SL_CNT, SL_CNT2, SL_KOFF, SL_VOFF, SL_ROT = range(40, 52)
SL_RET2 = 52
SL_XB, SL_WB = 54, 55
SRD_X, SRD_K, SRD_V, SRD_WQ, SRD_WO = 64, 68, 72, 76, 80
SC_L, SC_SLOT, SC_IDX, SC_IT, SC_T, SC_NEED, SC_SLOT2 = range(40, 47)
SC_NONCE = 50
SC_OOFF, SC_OOFF2, SC_FOFF, SC_POFF = 52, 53, 54, 55
SC_RET2 = 56
SC_FOFF0, SC_O1ST = 58, 59
SRD_WS, SRD_OUT = 64, 68
S_ST = 84

V_KB = 8
V_VB = 10
V_WB = 11
V_KA = 12
V_VA = 14
V_L16 = 15
V_VB2 = 25
V_NON = 26
V_LSUM, V_LS2, V_TMAX, V_ALPHA, V_FV, V_LADDR, V_FADDR, V_LRD = range(17, 25)
V_PF = 32
V_NEGM = 48
V_O = 64
V_SA = 128
V_SB = 144
V_ACCQ = 160
V_Q2 = 160
V_STG = 192
V_Q1 = 224
V_ACC1 = 192
V_ACC2 = 128
A_AF = [0, 32]
A_KF = 64
A_VF = [96, 128]
A_XF = [160, 192]
MFMA = "v_mfma_f32_32x32x16_bf16"


def build(cfg):
    NS, D = cfg.NS, cfg.D
    RING = NS * SLOT
    FLAG_L = RING
    FLAG_F = RING + 16
    LDS_BYTES = RING + 64
    a = Asm()
    e = a.e
    hdr = []
    hdr.append("; @launch grid=(256,1,1) block=(256,1,1) lds=%d" % LDS_BYTES)
    hdr.append('.amdgcn_target "amdgcn-amd-amdhsa--gfx950"')
    hdr.append(".text")
    hdr.append(".globl %s_kernel" % NAME)
    hdr.append(".p2align 8")
    hdr.append(".type %s_kernel,@function" % NAME)
    hdr.append("%s_kernel:" % NAME)

    def stamp(name):
        if cfg.stamps:
            lst = cfg.stamplist.split(",")
            for k, nm in enumerate(lst):
                if nm == name:
                    e("s_memrealtime %s" % sr(S_ST + 2 * k, 2))
                if nm == name + ".c":
                    e("s_memtime %s" % sr(S_ST + 2 * k, 2))

    e("s_cmp_ge_u32 s2, 256")
    e("s_cbranch_scc1 L_end")
    e("s_load_dwordx16 s[36:51], s[0:1], 0")
    e("s_load_dwordx4 s[52:55], s[0:1], 64")
    e("s_load_dwordx4 s[56:59], s[0:1], 80")
    e("s_load_dwordx2 s[60:61], s[0:1], 96")
    stamp("start")
    e("v_lshrrev_b32 v1, 6, v0")
    e("v_and_b32 v0, 63, v0")
    e("s_and_b32 %s, s2, 7" % sr(S_X))
    e("v_readfirstlane_b32 %s, v1" % sr(S_WAVE))
    e("s_lshr_b32 s28, s2, 3")
    e("s_and_b32 %s, s28, 3" % sr(S_M))
    e("s_lshr_b32 s29, s28, 2")
    e("s_and_b32 %s, s29, 3" % sr(S_B4))
    e("s_lshr_b32 %s, s28, 4" % sr(S_BR))
    e("s_lshl_b32 %s, %s, 2" % (sr(S_H), sr(S_X)))
    e("s_add_u32 %s, %s, %s" % (sr(S_H), sr(S_H), sr(S_M)))
    for dst, base, mod, mulx in ((S_TAU1, cfg.tau1_base, cfg.tau1_mod, 3), (S_TAU2, cfg.tau2_base, cfg.tau2_mod, 5)):
        e("s_mul_i32 s29, %s, %d" % (sr(S_X), mulx))
        e("s_add_u32 s29, s29, s28")
        nsteps = (31 + 7 * mulx) // mod
        for _ in range(nsteps):
            e("s_sub_u32 s30, s29, %d" % mod)
            e("s_cmp_ge_u32 s29, %d" % mod)
            e("s_cselect_b32 s29, s30, s29")
        e("s_add_u32 %s, s29, %d" % (sr(dst), base))
    e("s_lshl_b32 s28, s28, 1")
    e("s_and_b32 s28, s28, 0x38")
    e("s_add_u32 %s, s28, %s" % (sr(S_QUAD), sr(S_X)))
    e("s_mov_b32 %s, 0x80000" % sr(S_SPIN))
    e("s_cmp_eq_u32 %s, 0" % sr(S_BR))
    e("s_waitcnt lgkmcnt(0)")
    for dst, pa, pb in ((S_PX, 36, 46), (S_PWQ, 42, 52), (S_PK, 38, 48), (S_PV, 40, 50), (S_PWO, 44, 54)):
        e("s_cselect_b32 %s, s%d, s%d" % (sr(dst), pa, pb))
        e("s_cselect_b32 %s, s%d, s%d" % (sr(dst + 1), pa + 1, pb + 1))
    e("s_mov_b64 %s, s[56:57]" % sr(S_POUT, 2))
    e("s_mov_b64 %s, s[58:59]" % sr(S_PDBG, 2))
    e("s_mov_b64 %s, s[60:61]" % sr(S_PWS, 2))
    e("s_cmp_eq_u32 %s, 3" % sr(S_WAVE))
    e("s_cbranch_scc0 L_compute")

    def srd(dst, ptr, nbytes):
        e("s_mov_b32 %s, %s" % (sr(dst), sr(ptr)))
        e("s_mov_b32 %s, %s" % (sr(dst + 1), sr(ptr + 1)))
        e("s_mov_b32 %s, 0x%x" % (sr(dst + 2), nbytes))
        e("s_mov_b32 %s, 0x20000" % sr(dst + 3))

    a.lab("L_loader")
    e("s_setprio 3")
    LV_K, LV_V, LV_X, LV_WQ, LV_WO, LV_T, LV_LADDR, LV_FADDR, LV_F = 8, 12, 16, 20, 24, 28, 29, 30, 32
    BIAS = 4096

    def srdb(dst, ptr, nbytes):
        e("s_sub_u32 %s, %s, %d" % (sr(dst), sr(ptr), BIAS))
        e("s_subb_u32 %s, %s, 0" % (sr(dst + 1), sr(ptr + 1)))
        e("s_mov_b32 %s, 0x%x" % (sr(dst + 2), nbytes + BIAS))
        e("s_mov_b32 %s, 0x20000" % sr(dst + 3))

    srdb(SRD_X, S_PX, 8 * 96 * 512 * 2)
    srdb(SRD_WQ, S_PWQ, 512 * 4096 * 2)
    e("v_lshrrev_b32 v1, 4, v0")
    e("v_and_b32 v2, 15, v0")
    e("v_xor_b32 v3, v2, v1")
    e("v_lshlrev_b32 v3, 4, v3")
    e("v_lshlrev_b32 v2, 4, v2")
    e("v_lshlrev_b32 v4, 12, v1")
    e("v_lshlrev_b32 v5, 15, v1")
    e("v_lshlrev_b32 v6, 10, v1")

    def lane_offs(dst, rowpart, colpart, rs):
        e("v_add_u32 v%d, v%d, v%d" % (dst, rowpart, colpart))
        for b in range(3, 0, -1):
            e("v_add_u32 v%d, %d, v%d" % (dst + b, BIAS + b * (rs - BLK), dst))
        e("v_add_u32 v%d, %d, v%d" % (dst, BIAS, dst))

    lane_offs(LV_X, 4, 3, 1024)
    lane_offs(LV_WQ, 5, 2, 8192)
    e("v_mov_b32 v%d, %d" % (LV_LADDR, FLAG_L))
    e("v_mov_b32 v%d, %d" % (LV_FADDR, FLAG_F))
    e("v_mov_b32 v%d, 0" % LV_T)
    e("ds_write_b32 v%d, v%d" % (LV_LADDR, LV_T))
    e("s_mov_b32 %s, 0" % sr(SL_ISS))
    e("s_mov_b32 %s, 0" % sr(SL_PUB))
    e("s_mov_b32 %s, 0" % sr(SL_FMIN))
    e("s_mov_b32 %s, %d" % (sr(SL_SLOT), SLOT))
    e("s_add_u32 %s, %s, %s" % (sr(SL_ROT), sr(S_B4), sr(S_M)))
    e("s_and_b32 %s, %s, 3" % (sr(SL_ROT), sr(SL_ROT)))

    ool = []

    def publish(d):
        e("s_sub_i32 %s, %s, %d" % (sr(S_T0), sr(SL_ISS), d))
        e("s_max_i32 %s, %s, %s" % (sr(SL_PUB), sr(SL_PUB), sr(S_T0)))
        e("v_mov_b32 v%d, %s" % (LV_T, sr(SL_PUB)))
        e("ds_write_b32 v%d, v%d" % (LV_LADDR, LV_T))

    def issue_tile(srdreg, voff, rs, flags, nowait=False):
        if not nowait:
            e("s_sub_i32 %s, %s, %d" % (sr(SL_NEED), sr(SL_ISS), NS - 1))
            e("s_cmp_ge_i32 %s, %s" % (sr(SL_FMIN), sr(SL_NEED)))
            slow = a.newlab("lslow")
            ok = a.newlab("ok")
            e("s_cbranch_scc0 %s" % slow)
            a.lab(ok)
            ool.append((slow, ok))
        e("s_mov_b32 m0, %s" % sr(SL_SLOT))
        e("s_add_u32 %s, %s, %d" % (sr(SL_OFF2), sr(SL_OFF), 16 * rs))
        for b in range(4):
            e("buffer_load_dwordx4 v%d, %s, %s offen offset:%d %s lds" % (
                voff + b, sr(srdreg, 4), sr(SL_OFF), b * BLK, flags))
        e("s_add_u32 m0, %s, %d" % (sr(SL_SLOT), 4 * BLK))
        e("s_add_u32 %s, %s, 1" % (sr(SL_ISS), sr(SL_ISS)))
        for b in range(4):
            e("buffer_load_dwordx4 v%d, %s, %s offen offset:%d %s lds" % (
                voff + b, sr(srdreg, 4), sr(SL_OFF2), b * BLK, flags))
        e("s_add_u32 %s, %s, %d" % (sr(SL_SLOT), sr(SL_SLOT), SLOT))
        e("s_cmp_lt_u32 %s, %d" % (sr(SL_SLOT), RING))
        e("s_cselect_b32 %s, %s, 0" % (sr(SL_SLOT), sr(SL_SLOT)))
        if not nowait:
            e("s_waitcnt vmcnt(%d)" % (8 * D))
            publish(D)

    def qp_round(first_nowait=0):
        n = 0

        def after():
            if first_nowait and n == first_nowait:
                e("s_waitcnt lgkmcnt(0)")
                e("s_barrier")
        for w in range(3):
            e("s_add_u32 %s, %s, %d" % (sr(SL_OFF), sr(SL_XB), w * 32 * 1024))
            issue_tile(SRD_X, LV_X, 1024, cfg.xflags, nowait=(n < first_nowait))
            n += 1
            after()
        for j in range(4):
            e("s_add_u32 %s, %s, %d" % (sr(SL_OFF), sr(SL_WB), j * 32 * 8192))
            issue_tile(SRD_WQ, LV_WQ, 8192, cfg.wflags, nowait=(n < first_nowait))
            n += 1
            after()

    def qp_bases(ph):
        e("s_add_u32 %s, %s, %s" % (sr(S_T1), sr(SL_ROT), sr(SL_CNT)))
        e("s_and_b32 %s, %s, 3" % (sr(S_T1), sr(S_T1)))
        e("s_lshl_b32 %s, %s, 8" % (sr(S_T2), sr(S_T1)))
        e("s_mul_i32 %s, %s, %d" % (sr(SL_XB), sr(S_B4), 96 * 1024))
        e("s_add_u32 %s, %s, %s" % (sr(SL_XB), sr(SL_XB), sr(S_T2)))
        if ph:
            e("s_add_u32 %s, %s, %d" % (sr(SL_XB), sr(SL_XB), 4 * 96 * 1024))
        e("s_lshl_b32 %s, %s, 20" % (sr(S_T2), sr(S_T1)))
        e("s_lshl_b32 %s, %s, 8" % (sr(SL_WB), sr(S_H)))
        e("s_add_u32 %s, %s, %s" % (sr(SL_WB), sr(SL_WB), sr(S_T2)))

    if cfg.noload:
        e("v_mov_b32 v%d, 100000" % LV_T)
        e("s_waitcnt lgkmcnt(0)")
        e("ds_write_b32 v%d, v%d" % (LV_LADDR, LV_T))
        e("s_waitcnt lgkmcnt(0)")
        e("s_barrier")
        e("s_branch L_fin")
    e("s_mov_b32 %s, 0" % sr(SL_CNT))
    qp_bases(0)
    qp_round(first_nowait=D)
    srdb(SRD_K, S_PK, 8 * 32 * 1024 * 128 * 2)
    srdb(SRD_V, S_PV, 8 * 32 * 1024 * 128 * 2)
    srdb(SRD_WO, S_PWO, 4096 * 512 * 2)
    lane_offs(LV_K, 6, 3, 256)
    lane_offs(LV_V, 6, 2, 256)
    lane_offs(LV_WO, 4, 2, 1024)
    stamp("qx0")
    e("s_mov_b32 %s, 1" % sr(SL_CNT))
    a.lab("L_ld_qp1")
    qp_bases(0)
    qp_round()
    e("s_add_u32 %s, %s, 1" % (sr(SL_CNT), sr(SL_CNT)))
    e("s_cmp_lt_u32 %s, 4" % sr(SL_CNT))
    e("s_cbranch_scc1 L_ld_qp1")
    stamp("qp")
    if cfg.wopre:
        e("s_add_u32 %s, %s, %s" % (sr(S_T1), sr(S_M), sr(S_B4)))
        e("s_and_b32 %s, %s, 3" % (sr(S_T1), sr(S_T1)))
        e("s_lshl_b32 %s, %s, 17" % (sr(S_T1), sr(S_T1)))
        e("s_lshl_b32 %s, %s, 19" % (sr(SL_WB), sr(S_X)))
        e("s_add_u32 %s, %s, %s" % (sr(SL_WB), sr(SL_WB), sr(S_T1)))
        e("s_lshl_b32 %s, %s, 8" % (sr(S_T1), sr(S_M)))
        e("s_add_u32 %s, %s, %s" % (sr(SL_WB), sr(SL_WB), sr(S_T1)))
        for j in range(4):
            e("s_add_u32 %s, %s, %d" % (sr(SL_OFF), sr(SL_WB), j * 32 * 1024))
            issue_tile(SRD_WO, LV_WO, 1024, cfg.woflags)
    kvf = "" if cfg.kvsame else cfg.kvflags
    e("s_mov_b32 %s, 0" % sr(SL_CNT2))
    e("s_lshl_b32 %s, %s, 5" % (sr(S_T1), sr(S_B4)))
    e("s_add_u32 %s, %s, %s" % (sr(S_T1), sr(S_T1), sr(S_H)))
    e("s_lshl_b32 %s, %s, 18" % (sr(SL_KOFF), sr(S_T1)))
    a.lab("L_ld_head")
    e("s_mov_b32 %s, %s" % (sr(SL_OFF), sr(SL_KOFF)))
    issue_tile(SRD_K, LV_K, 256, kvf)
    e("s_add_u32 %s, %s, 8192" % (sr(SL_OFF), sr(SL_KOFF)))
    issue_tile(SRD_K, LV_K, 256, kvf)
    e("s_mov_b32 %s, %s" % (sr(SL_OFF), sr(SL_KOFF)))
    issue_tile(SRD_V, LV_V, 256, kvf)
    e("s_mov_b32 %s, %s" % (sr(SL_VOFF), sr(SL_KOFF)))
    e("s_mov_b32 %s, 0" % sr(SL_CNT))
    a.lab("L_ld_kv")
    e("s_add_u32 %s, %s, 16384" % (sr(SL_OFF), sr(SL_VOFF)))
    issue_tile(SRD_K, LV_K, 256, kvf)
    e("s_add_u32 %s, %s, 8192" % (sr(SL_OFF), sr(SL_VOFF)))
    issue_tile(SRD_V, LV_V, 256, kvf)
    if not cfg.kvsame:
        e("s_add_u32 %s, %s, 8192" % (sr(SL_VOFF), sr(SL_VOFF)))
    e("s_add_u32 %s, %s, 1" % (sr(SL_CNT), sr(SL_CNT)))
    e("s_cmp_eq_u32 %s, 0" % sr(SL_CNT2))
    e("s_cselect_b32 %s, %s, %s" % (sr(S_T1), sr(S_TAU1), sr(S_TAU2)))
    e("s_lshl_b32 %s, %s, 1" % (sr(S_T1), sr(S_T1)))
    e("s_cmp_eq_u32 %s, %s" % (sr(SL_CNT), sr(S_T1)))
    e("s_cbranch_scc1 L_ld_event")
    a.lab("L_ld_evret")
    e("s_cmp_lt_u32 %s, 30" % sr(SL_CNT))
    e("s_cbranch_scc1 L_ld_kv")
    e("s_add_u32 %s, %s, 8192" % (sr(SL_OFF), sr(SL_VOFF)))
    issue_tile(SRD_V, LV_V, 256, kvf)
    if cfg.stamps and "h0" in cfg.stamplist.split(","):
        sk = a.newlab("sk")
        e("s_cmp_eq_u32 %s, 0" % sr(SL_CNT2))
        e("s_cbranch_scc0 %s" % sk)
        stamp("h0")
        a.lab(sk)
    e("s_add_u32 %s, %s, %d" % (sr(SL_KOFF), sr(SL_KOFF), 4 * 32 * 262144))
    e("s_add_u32 %s, %s, 1" % (sr(SL_CNT2), sr(SL_CNT2)))
    e("s_cmp_lt_u32 %s, 2" % sr(SL_CNT2))
    e("s_cbranch_scc1 L_ld_head")
    stamp("h1")
    e("s_call_b64 %s, L_ld_wo" % sr(SL_RET2, 2))
    for d in range(D - 1, -1, -1):
        e("s_waitcnt vmcnt(%d)" % (8 * d))
        publish(d)
    e("s_waitcnt lgkmcnt(0)")
    stamp("t2")
    e("s_branch L_fin")

    a.lab("L_ld_event")
    e("s_cmp_eq_u32 %s, 0" % sr(SL_CNT2))
    e("s_cbranch_scc0 L_ld_ev2")
    e("s_mov_b32 %s, %s" % (sr(SL_RET2), sr(SL_CNT)))
    e("s_mov_b32 %s, 0" % sr(SL_CNT))
    a.lab("L_ld_qp2")
    qp_bases(1)
    qp_round()
    e("s_add_u32 %s, %s, 1" % (sr(SL_CNT), sr(SL_CNT)))
    e("s_cmp_lt_u32 %s, 4" % sr(SL_CNT))
    e("s_cbranch_scc1 L_ld_qp2")
    e("s_mov_b32 %s, %s" % (sr(SL_CNT), sr(SL_RET2)))
    e("s_branch L_ld_evret")
    a.lab("L_ld_ev2")
    if cfg.ev2sleep:
        e("s_waitcnt vmcnt(0)")
        e("s_sleep %d" % cfg.ev2sleep)
    else:
        e("s_call_b64 %s, L_ld_wo" % sr(SL_RET2, 2))
    e("s_branch L_ld_evret")

    a.lab("L_ld_wo")
    e("s_mov_b32 %s, 0" % sr(SL_XB))
    a.lab("L_ld_wo_r")
    e("s_add_u32 %s, %s, %s" % (sr(S_T1), sr(S_M), sr(SL_XB)))
    e("s_and_b32 %s, %s, 3" % (sr(S_T1), sr(S_T1)))
    e("s_lshl_b32 %s, %s, 17" % (sr(S_T1), sr(S_T1)))
    e("s_lshl_b32 %s, %s, 19" % (sr(SL_WB), sr(S_X)))
    e("s_add_u32 %s, %s, %s" % (sr(SL_WB), sr(SL_WB), sr(S_T1)))
    e("s_lshl_b32 %s, %s, 8" % (sr(S_T1), sr(S_M)))
    e("s_add_u32 %s, %s, %s" % (sr(SL_WB), sr(SL_WB), sr(S_T1)))
    if cfg.wocont:
        e("s_lshl_b32 %s, %s, 17" % (sr(SL_WB), sr(S_H)))
        e("s_lshl_b32 %s, %s, 15" % (sr(S_T1), sr(SL_XB)))
        e("s_add_u32 %s, %s, %s" % (sr(SL_WB), sr(SL_WB), sr(S_T1)))
    for j in range(4):
        if cfg.wocont:
            e("s_add_u32 %s, %s, %d" % (sr(SL_OFF), sr(SL_WB), j * 8192))
            issue_tile(SRD_WO, LV_V, 256, cfg.woflags)
        else:
            e("s_add_u32 %s, %s, %d" % (sr(SL_OFF), sr(SL_WB), j * 32 * 1024))
            issue_tile(SRD_WO, LV_WO, 1024, cfg.woflags)
    e("s_add_u32 %s, %s, 1" % (sr(SL_XB), sr(SL_XB)))
    e("s_cmp_lt_u32 %s, 4" % sr(SL_XB))
    e("s_cbranch_scc1 L_ld_wo_r")
    e("s_setpc_b64 %s" % sr(SL_RET2, 2))

    for slow, ok in ool:
        a.lab(slow)
        e("s_call_b64 %s, L_waitfree" % sr(S_RET, 2))
        e("s_branch %s" % ok)
    a.lab("L_waitfree")

    def readf():
        e("ds_read_b96 v[%d:%d], v%d" % (LV_F, LV_F + 2, LV_FADDR))
        e("s_waitcnt lgkmcnt(0)")
        e("v_min3_u32 v%d, v%d, v%d, v%d" % (LV_F, LV_F, LV_F + 1, LV_F + 2))
        e("s_nop 0")
        e("v_readfirstlane_b32 %s, v%d" % (sr(SL_FMIN), LV_F))
        e("s_nop 3")
        e("s_cmp_ge_i32 %s, %s" % (sr(SL_FMIN), sr(SL_NEED)))
        e("s_cbranch_scc1 L_wf_ret")

    for d in range(D - 1, -1, -1):
        readf()
        e("s_waitcnt vmcnt(%d)" % (8 * d))
        publish(d)
    a.lab("L_wf_spin")
    readf()
    e("s_sleep 1")
    e("s_sub_u32 %s, %s, 1" % (sr(S_SPIN), sr(S_SPIN)))
    e("s_cmp_eq_u32 %s, 0" % sr(S_SPIN))
    e("s_cbranch_scc0 L_wf_spin")
    e("s_endpgm")
    a.lab("L_wf_ret")
    e("s_setpc_b64 %s" % sr(S_RET, 2))

    return a, hdr, stamp, srd, RING, FLAG_L, FLAG_F


def build_all(cfg):
    a, hdr, stamp, srd, RING, FLAG_L, FLAG_F = build(cfg)
    e = a.e
    NS, D = cfg.NS, cfg.D

    if cfg.noxchg:
        orig_e = a.e

        def filt(sx):
            if sx.startswith("buffer_") or sx.startswith("global_load") or sx.startswith("global_store_dwordx2"):
                return
            orig_e(sx)
        a.e = filt
        e = filt
    a.lab("L_compute")
    srd(SRD_WS, S_PWS, WS_USED)
    srd(SRD_OUT, S_POUT, 8 * 96 * 1024 * 2)
    e("v_and_b32 v1, 3, v0")
    e("v_lshrrev_b32 v2, 5, v0")
    e("v_lshrrev_b32 v3, 4, v0")
    e("v_and_b32 v3, 1, v3")
    e("v_lshrrev_b32 v4, 2, v0")
    e("v_and_b32 v4, 3, v4")
    e("v_lshlrev_b32 v5, 2, v3")
    e("v_add_u32 v5, v5, v1")
    e("s_movk_i32 %s, %d" % (sr(S_T0), BLK))
    e("v_mul_lo_u32 v5, v5, %s" % sr(S_T0))
    e("v_lshlrev_b32 v6, 8, v4")
    e("v_add_u32 v5, v5, v6")
    for par in range(2):
        e("v_add_u32 v6, %d, v2" % (2 * par))
        e("v_xor_b32 v6, v6, v4")
        e("v_lshlrev_b32 v6, 4, v6")
        e("v_add_u32 v%d, v5, v6" % (V_KB + par))
    e("v_lshrrev_b32 v6, 1, v1")
    e("v_and_b32 v7, 1, v1")
    e("v_lshlrev_b32 v7, 1, v7")
    e("v_or_b32 v6, v6, v7")
    e("v_lshlrev_b32 v6, 3, v6")
    e("v_lshlrev_b32 v7, 5, v3")
    e("v_add_u32 v6, v6, v7")
    e("v_mul_lo_u32 v7, v4, %s" % sr(S_T0))
    e("v_add_u32 v6, v6, v7")
    e("v_lshlrev_b32 v7, 8, v2")
    e("v_add_u32 v%d, v6, v7" % V_VB)
    e("v_add_u32 v%d, v%d, v7" % (V_WB, V_VB))
    e("v_add_u32 v%d, %d, v%d" % (V_VB2, SLOT, V_VB))
    e("v_mov_b32 v%d, %d" % (V_LADDR, FLAG_L))
    e("s_lshl_b32 %s, %s, 2" % (sr(S_T0), sr(S_WAVE)))
    e("s_add_u32 %s, %s, %d" % (sr(S_T0), sr(S_T0), FLAG_F))
    e("v_mov_b32 v%d, %s" % (V_FADDR, sr(S_T0)))
    e("v_mov_b32 v%d, 0" % V_FV)
    e("ds_write_b32 v%d, v%d" % (V_FADDR, V_FV))
    e("v_lshlrev_b32 v%d, 4, v0" % V_L16)
    e("s_mov_b32 %s, 0" % sr(SC_L))
    c = (128 ** -0.5) * math.log2(math.e)
    e("s_mov_b32 %s, 0x%x" % (sr(SC_T), f32bits(cfg.T_LOG2)))
    e("s_or_b32 %s, %s, %s" % (sr(S_T0), sr(S_WG), sr(S_WAVE)))
    e("s_cmp_eq_u32 %s, 0" % sr(S_T0))
    e("s_cbranch_scc0 L_nononce")
    e("s_memrealtime %s" % sr(SC_NONCE, 2))
    e("s_waitcnt lgkmcnt(0)")
    e("s_or_b32 %s, %s, 1" % (sr(SC_NONCE), sr(SC_NONCE)))
    e("v_mov_b32 v2, %s" % sr(SC_NONCE))
    e("v_mov_b32 v3, %s" % sr(SC_NONCE + 1))
    e("v_mov_b32 v1, 0")
    e("global_store_dwordx2 v1, v[2:3], %s sc1" % sr(S_PDBG, 2))
    a.lab("L_nononce")
    e("s_mov_b32 %s, 0" % sr(SC_IDX))
    e("s_mov_b32 %s, %d" % (sr(SC_SLOT), SLOT))
    if cfg.nocompute:
        e("v_mov_b32 v%d, 100000" % V_FV)
        e("ds_write_b32 v%d, v%d" % (V_FADDR, V_FV))
        e("s_waitcnt lgkmcnt(0)")
        e("s_barrier")
        e("s_branch L_fin")
    e("s_waitcnt lgkmcnt(0)")
    e("s_barrier")
    stamp("bar")

    slowwaits = []

    def wait_landed_l(delta):
        slow = a.newlab("lw_slow")
        back = a.newlab("lw_back")
        slowwaits.append((slow, back))
        return ["s_add_u32 %s, %s, %d" % (sr(SC_NEED), sr(SC_IDX), delta),
                "s_cmp_lt_u32 %s, %s" % (sr(SC_L), sr(SC_NEED)),
                "s_cbranch_scc1 %s" % slow,
                back + ":"]

    def wait_landed(delta):
        a.extend(wait_landed_l(delta))

    def slot_adv_l(dst, src, n):
        return ["s_add_u32 %s, %s, %d" % (sr(dst), sr(src), n * SLOT),
                "s_sub_u32 %s, %s, %d" % (sr(S_T0), sr(dst), RING),
                "s_cmp_lt_u32 %s, %d" % (sr(dst), RING),
                "s_cselect_b32 %s, %s, %s" % (sr(dst), sr(dst), sr(S_T0))]

    def slot_adv(dst, src, n):
        a.extend(slot_adv_l(dst, src, n))

    def release_l(sg):
        return ["v_mov_b32 v%d, %s" % (V_FV, sr(sg)), "ds_write_b32 v%d, v%d" % (V_FADDR, V_FV)]

    def k_addr(slot):
        return ["v_add_u32 v%d, %s, v%d" % (V_KA + p, sr(slot), V_KB + p) for p in range(2)]

    def k_reads(dst_a):
        return ["ds_read_b128 %s, v%d offset:%d" % (ar(dst_a + 4 * s, 4), V_KA + (s & 1), (s >> 1) * 64)
                for s in range(8)]

    def v_addr(slot, base):
        return ["v_add_u32 v%d, %s, v%d" % (V_VA, sr(slot), base)]

    def v_reads(dst_a, isw):
        out = []
        for ks in range(2):
            for db in range(4):
                base = dst_a + (ks * 4 + db) * 4
                o2 = 256 if isw else 512
                o = ks * 4 * BLK + db * 64
                out.append("ds_read_b64_tr_b16 %s, v%d offset:%d" % (ar(base, 2), V_VA, o))
                out.append("ds_read_b64_tr_b16 %s, v%d offset:%d" % (ar(base + 2, 2), V_VA, o + o2))
        return out

    def proj(acc, bfrag, xmode):
        ntile_x = 3 if xmode else 0

        def x_prefetch():
            out = []
            out.append("s_mul_i32 %s, %s, %d" % (sr(S_T1), sr(S_WAVE), SLOT))
            out.append("s_add_u32 %s, %s, %s" % (sr(SC_SLOT2), sr(SC_SLOT), sr(S_T1)))
            out += slot_adv_l(SC_SLOT2, SC_SLOT2, 0)
            out += k_addr(SC_SLOT2)
            out += slot_adv_l(SC_SLOT, SC_SLOT, 3)
            return out

        def advance(n):
            return ["s_add_u32 %s, %s, %d" % (sr(SC_IDX), sr(SC_IDX), n)] + slot_adv_l(SC_SLOT, SC_SLOT, 1)

        wait_landed(ntile_x + 1)
        if xmode:
            a.extend(x_prefetch())
            a.extend(k_reads(A_XF[0]))
        a.extend(v_addr(SC_SLOT, V_WB))
        a.extend(v_reads(A_AF[0], True))
        a.extend(advance(ntile_x + 1))
        for cidx in range(16):
            r, j = divmod(cidx, 4)
            e("s_waitcnt lgkmcnt(0)")
            mf = []
            for ks in range(2):
                for db in range(4):
                    cin = "0" if (cidx == 0 and ks == 0) else vr(acc + 16 * db, 16)
                    mf.append("%s %s, %s, %s, %s" % (
                        MFMA, vr(acc + 16 * db, 16), ar(A_AF[cidx & 1] + (ks * 4 + db) * 4, 4),
                        bfrag(r, 2 * j + ks), cin))
            per = [[] for _ in range(8)]
            per[0] += release_l(SC_IDX)
            if cidx < 15:
                nx = ntile_x if j == 3 else 0
                per[0] += wait_landed_l(nx + 1)
                wr = v_reads(A_AF[(cidx + 1) & 1], True)
                if nx:
                    per[0] += x_prefetch()
                    xr = k_reads(A_XF[(r + 1) & 1])
                    per[1] += v_addr(SC_SLOT, V_WB) + wr[0:4]
                    per[2] += wr[4:8]
                    per[3] += wr[8:12]
                    per[4] += wr[12:16]
                    per[5] += xr[0:4] if False else []
                    per[1] = v_addr(SC_SLOT, V_WB) + xr[0:4]
                    per[2] = xr[4:8]
                    per[3] = wr[0:5]
                    per[4] = wr[5:10]
                    per[5] = wr[10:16]
                    per[6] += advance(nx + 1)
                else:
                    per[0] += v_addr(SC_SLOT, V_WB) + wr[0:2]
                    per[1] += wr[2:6]
                    per[2] += wr[6:10]
                    per[3] += wr[10:13]
                    per[4] += wr[13:16]
                    per[5] += advance(1)
            a.extend(gaps(mf, per))
            if hooks.get(cidx):
                hooks[cidx]()

    hooks = {}

    e("s_branch L_main")
    a.lab("L_qproj")
    proj(V_ACCQ, lambda r, s: ar(A_XF[r & 1] + 4 * s, 4), True)
    e("s_nop 7")
    e("s_nop 3")
    e("s_mov_b32 %s, 0x%x" % (sr(S_T1), f32bits(c)))
    for i in range(64):
        e("v_mul_f32 v%d, %s, v%d" % (V_ACCQ + i, sr(S_T1), V_ACCQ + i))
    e("s_setpc_b64 %s" % sr(SC_RET2, 2))

    a.lab("L_main")
    e("s_call_b64 %s, L_qproj" % sr(SC_RET2, 2))
    for i in range(32):
        e("v_cvt_pk_bf16_f32 v%d, v%d, v%d" % (V_Q1 + i, V_ACCQ + 2 * i, V_ACCQ + 2 * i + 1))
    stamp("qp")

    def qk_mfmas(sdst, qbase, cin):
        out = []
        for s in range(8):
            out.append("%s %s, %s, %s, %s" % (
                MFMA, vr(sdst, 16), ar(A_KF + 4 * s, 4), vr(qbase + 4 * s, 4),
                cin if s == 0 else vr(sdst, 16)))
        return out

    def softmax_gaps(sc):
        g = []
        for k in range(8):
            l = ["v_exp_f32 v%d, v%d" % (sc + 2 * k, sc + 2 * k),
                 "v_exp_f32 v%d, v%d" % (sc + 2 * k + 1, sc + 2 * k + 1)]
            if k > 0:
                p = k - 1
                l += ["v_add_f32 v%d, v%d, v%d" % (V_LSUM, V_LSUM, sc + 2 * p),
                      "v_add_f32 v%d, v%d, v%d" % (V_LS2, V_LS2, sc + 2 * p + 1),
                      "v_cvt_pk_bf16_f32 v%d, v%d, v%d" % (V_PF + p, sc + 2 * p, sc + 2 * p + 1)]
            g.append(l)
        tail = ["v_add_f32 v%d, v%d, v%d" % (V_LSUM, V_LSUM, sc + 14),
                "v_add_f32 v%d, v%d, v%d" % (V_LS2, V_LS2, sc + 15),
                "v_cvt_pk_bf16_f32 v%d, v%d, v%d" % (V_PF + 7, sc + 14, sc + 15)]
        return g, tail

    def pv_mfmas(vf):
        out = []
        for ks in range(2):
            for db in range(4):
                out.append("%s %s, %s, %s, %s" % (
                    MFMA, vr(V_O + 16 * db, 16), ar(vf + (ks * 4 + db) * 4, 4), vr(V_PF + 4 * ks, 4),
                    vr(V_O + 16 * db, 16)))
        return out

    def max_valu(sn):
        out = ["v_max3_f32 v%d, v%d, v%d, v%d" % (V_TMAX, sn, sn + 1, sn + 2)]
        for i in range(3, 15, 2):
            out.append("v_max3_f32 v%d, v%d, v%d, v%d" % (V_TMAX, V_TMAX, sn + i, sn + i + 1))
        out.append("v_max_f32 v%d, v%d, v%d" % (V_TMAX, V_TMAX, sn + 15))
        return out

    def cross_half_max():
        e("v_mov_b32 v1, v%d" % V_TMAX)
        e("s_nop 1")
        e("v_permlane32_swap_b32 v%d, v1" % V_TMAX)
        e("s_nop 1")
        e("v_max_f32 v%d, v%d, v1" % (V_TMAX, V_TMAX))

    def rare_path(lab, back, sn):
        a.lab(lab)
        cross_half_max()
        e("v_max_f32 v%d, 0, v%d" % (V_TMAX, V_TMAX))
        e("v_sub_f32 v%d, 0, v%d" % (V_ALPHA, V_TMAX))
        e("v_exp_f32 v%d, v%d" % (V_ALPHA, V_ALPHA))
        for i in range(16):
            e("v_sub_f32 v%d, v%d, v%d" % (sn + i, sn + i, V_TMAX))
        for i in range(16):
            e("v_sub_f32 v%d, v%d, v%d" % (V_NEGM + i, V_NEGM + i, V_TMAX))
        e("v_mul_f32 v%d, v%d, v%d" % (V_LSUM, V_LSUM, V_ALPHA))
        e("v_mul_f32 v%d, v%d, v%d" % (V_LS2, V_LS2, V_ALPHA))
        for i in range(64):
            e("v_mul_f32 v%d, v%d, v%d" % (V_O + i, V_O + i, V_ALPHA))
        e("s_branch %s" % back)

    rare = []
    events = []

    def get_nonce():
        if cfg.noxchg:
            return
        lp = a.newlab("nonce")
        a.lab(lp)
        e("v_mov_b32 v1, 0")
        e("global_load_dwordx2 v[2:3], v1, %s sc1" % sr(S_PDBG, 2))
        e("s_waitcnt vmcnt(0)")
        e("v_readfirstlane_b32 %s, v2" % sr(SC_NONCE))
        e("v_readfirstlane_b32 %s, v3" % sr(SC_NONCE + 1))
        e("s_sub_u32 %s, %s, 1" % (sr(S_SPIN), sr(S_SPIN)))
        e("s_cmp_eq_u32 %s, 0" % sr(S_SPIN))
        e("s_cbranch_scc1 L_end")
        e("s_cmp_eq_u32 %s, 0" % sr(SC_NONCE))
        e("s_cbranch_scc1 %s" % lp)

    def flag_store(off_sgpr):
        e("v_mov_b32 v2, %s" % sr(SC_NONCE))
        e("v_mov_b32 v3, %s" % sr(SC_NONCE + 1))
        e("v_mov_b32 v1, 0")
        e("s_mov_b64 s[34:35], exec")
        e("s_mov_b64 exec, 1")
        e("buffer_store_dwordx2 v[2:3], v1, %s, %s offen sc1" % (sr(SRD_WS, 4), sr(off_sgpr)))
        e("s_mov_b64 exec, s[34:35]")

    def flag_poll(off_sgpr, n):
        if cfg.noxchg:
            return
        lp = a.newlab("poll")
        e("v_min_u32 v1, %d, v0" % (n - 1))
        e("v_lshlrev_b32 v1, 3, v1")
        a.lab(lp)
        e("buffer_load_dwordx2 v[2:3], v1, %s, %s offen sc1" % (sr(SRD_WS, 4), sr(off_sgpr)))
        e("s_waitcnt vmcnt(0)")
        e("v_cmp_ne_u32 vcc, %s, v2" % sr(SC_NONCE))
        e("v_cmp_ne_u32 s[34:35], %s, v3" % sr(SC_NONCE + 1))
        e("s_sub_u32 %s, %s, 1" % (sr(S_SPIN), sr(S_SPIN)))
        e("s_cmp_eq_u32 %s, 0" % sr(S_SPIN))
        e("s_cbranch_scc1 L_end")
        e("s_or_b64 vcc, vcc, s[34:35]")
        e("s_cbranch_scc1 %s" % lp)

    def flago_off(dst, ph, with_m):
        e("s_lshl_b32 %s, %s, 2" % (sr(dst), sr(S_QUAD)))
        e("s_add_u32 %s, %s, %s" % (sr(dst), sr(dst), sr(S_WAVE)))
        e("s_lshl_b32 %s, %s, 7" % (sr(dst), sr(dst)))
        e("s_add_u32 %s, %s, %d" % (sr(dst), sr(dst), WS_FLAGO + ph * 64 * 4 * 128))
        if with_m:
            e("s_lshl_b32 %s, %s, 3" % (sr(S_T0), sr(S_M)))
            e("s_add_u32 %s, %s, %s" % (sr(dst), sr(dst), sr(S_T0)))

    def load_o(ph, regs, ks):
        e("s_lshl_b32 %s, %s, 2" % (sr(S_T1), sr(S_QUAD)))
        e("s_add_u32 %s, %s, %d" % (sr(S_T1), sr(S_T1), ph * 256))
        e("s_mul_i32 %s, %s, 24576" % (sr(S_T1), sr(S_T1)))
        e("s_lshl_b32 %s, %s, 13" % (sr(S_T2), sr(S_WAVE)))
        e("s_add_u32 %s, %s, %s" % (sr(S_T1), sr(S_T1), sr(S_T2)))
        e("s_add_u32 %s, %s, %d" % (sr(S_T1), sr(S_T1), WS_OBUF))
        for k in ks:
            e("s_add_u32 %s, %s, %d" % (sr(S_T2), sr(S_M), k))
            e("s_and_b32 %s, %s, 3" % (sr(S_T2), sr(S_T2)))
            e("s_mul_i32 %s, %s, 24576" % (sr(S_T2), sr(S_T2)))
            e("s_add_u32 %s, %s, %s" % (sr(S_T2), sr(S_T2), sr(S_T1)))
            e("s_add_u32 %s, %s, 4096" % (sr(S_T3), sr(S_T2)))
            for s in range(8):
                e("buffer_load_dwordx4 %s, v%d, %s, %s offen offset:%d sc1" % (
                    ar(regs[k] + 4 * s, 4), V_L16, sr(SRD_WS, 4), sr(S_T2 if s < 4 else S_T3), (s & 3) * 1024))

    def poff(dst, ph, kq_sgpr):
        e("s_lshr_b32 %s, %s, 3" % (sr(dst), sr(S_QUAD)))
        e("s_add_u32 %s, %s, %d" % (sr(dst), sr(dst), ph * 8))
        e("s_lshl_b32 %s, %s, 2" % (sr(dst), sr(dst)))
        e("s_add_u32 %s, %s, %s" % (sr(dst), sr(dst), sr(S_M)))
        e("s_lshl_b32 %s, %s, 3" % (sr(dst), sr(dst)))
        if kq_sgpr is not None:
            e("s_add_u32 %s, %s, %s" % (sr(dst), sr(dst), sr(kq_sgpr)))
        e("s_mul_i32 %s, %s, 49152" % (sr(dst), sr(dst)))
        e("s_lshl_b32 %s, %s, 14" % (sr(S_T0), sr(S_WAVE)))
        e("s_add_u32 %s, %s, %s" % (sr(dst), sr(dst), sr(S_T0)))
        e("s_add_u32 %s, %s, %d" % (sr(dst), sr(dst), WS_PBUF))

    def flagp_off(dst, ph, with_kq):
        e("s_lshr_b32 %s, %s, 3" % (sr(dst), sr(S_QUAD)))
        e("s_add_u32 %s, %s, %d" % (sr(dst), sr(dst), ph * 8))
        e("s_lshl_b32 %s, %s, 2" % (sr(dst), sr(dst)))
        e("s_add_u32 %s, %s, %s" % (sr(dst), sr(dst), sr(S_M)))
        e("s_lshl_b32 %s, %s, 2" % (sr(dst), sr(dst)))
        e("s_add_u32 %s, %s, %s" % (sr(dst), sr(dst), sr(S_WAVE)))
        e("s_lshl_b32 %s, %s, 7" % (sr(dst), sr(dst)))
        e("s_add_u32 %s, %s, %d" % (sr(dst), sr(dst), WS_FLAGP))
        if with_kq:
            e("s_lshl_b32 %s, %s, 3" % (sr(S_T0), sr(S_X)))
            e("s_add_u32 %s, %s, %s" % (sr(dst), sr(dst), sr(S_T0)))

    def partial_store(acc, ph):
        poff(SC_POFF, ph, S_X)
        e("s_nop 3")
        for q in range(4):
            e("s_add_u32 %s, %s, %d" % (sr(S_T1), sr(SC_POFF), q * 4096))
            for s in range(4):
                e("buffer_store_dwordx4 %s, v%d, %s, %s offen offset:%d sc1" % (
                    vr(acc + 4 * (4 * q + s), 4), V_L16, sr(SRD_WS, 4), sr(S_T1), s * 1024))

    def reduce(ph, regs):
        flagp_off(SC_FOFF, ph, False)
        flag_poll(SC_FOFF, 8)
        poff(SC_POFF, ph, None)
        e("s_lshl_b32 %s, %s, 11" % (sr(S_T1), sr(S_X)))
        e("s_add_u32 %s, %s, %s" % (sr(SC_POFF), sr(SC_POFF), sr(S_T1)))
        for kq in range(8):
            e("s_add_u32 %s, %s, %d" % (sr(S_T1), sr(SC_POFF), kq * 49152))
            for cc in range(2):
                e("buffer_load_dwordx4 %s, v%d, %s, %s offen offset:%d sc1" % (
                    vr(regs + 8 * kq + 4 * cc, 4), V_L16, sr(SRD_WS, 4), sr(S_T1), cc * 1024))
        e("v_and_b32 v1, 31, v0")
        e("v_lshlrev_b32 v1, 11, v1")
        e("v_lshrrev_b32 v2, 5, v0")
        e("v_lshlrev_b32 v2, 4, v2")
        e("v_add_u32 v1, v1, v2")
        e("s_add_u32 %s, %s, %d" % (sr(S_T1), sr(S_B4), 4 * ph))
        e("s_mul_i32 %s, %s, 96" % (sr(S_T1), sr(S_T1)))
        e("s_lshl_b32 %s, %s, 5" % (sr(S_T2), sr(S_WAVE)))
        e("s_add_u32 %s, %s, %s" % (sr(S_T1), sr(S_T1), sr(S_T2)))
        e("s_lshl_b32 %s, %s, 11" % (sr(S_T1), sr(S_T1)))
        e("s_lshl_b32 %s, %s, 10" % (sr(S_T2), sr(S_BR)))
        e("s_add_u32 %s, %s, %s" % (sr(S_T1), sr(S_T1), sr(S_T2)))
        e("s_lshl_b32 %s, %s, 8" % (sr(S_T2), sr(S_M)))
        e("s_add_u32 %s, %s, %s" % (sr(S_T1), sr(S_T1), sr(S_T2)))
        e("s_lshl_b32 %s, %s, 5" % (sr(S_T2), sr(S_X)))
        e("s_add_u32 %s, %s, %s" % (sr(S_T1), sr(S_T1), sr(S_T2)))
        e("s_waitcnt vmcnt(0)")
        for step in (32, 16, 8):
            for i in range(step):
                e("v_add_f32 v%d, v%d, v%d" % (regs + i, regs + i, regs + i + step))
        for i in range(4):
            e("v_cvt_pk_bf16_f32 v%d, v%d, v%d" % (4 + i, regs + 2 * i, regs + 2 * i + 1))
        e("buffer_store_dwordx4 v[4:7], v1, %s, %s offen" % (sr(SRD_OUT, 4), sr(S_T1)))

    OFT1 = [160, 192, 224, 160]

    def head(ph):
        qbase = V_Q1 if ph == 0 else V_Q2
        for i in range(64):
            e("v_mov_b32 v%d, 0" % (V_O + i))
        e("v_mov_b32 v%d, 0" % V_LSUM)
        e("v_mov_b32 v%d, 0" % V_LS2)
        wait_landed(1)
        a.extend(k_addr(SC_SLOT))
        a.extend(k_reads(A_KF))
        e("s_waitcnt lgkmcnt(0)")
        a.extend(qk_mfmas(V_SA, qbase, "0"))
        slot_adv(SC_SLOT, SC_SLOT, 1)
        wait_landed(3)
        a.extend(k_addr(SC_SLOT))
        slot_adv(SC_SLOT, SC_SLOT, 1)
        a.extend(v_addr(SC_SLOT, V_VB))
        a.extend(k_reads(A_KF))
        a.extend(v_reads(A_VF[0], False))
        slot_adv(SC_SLOT, SC_SLOT, 1)
        e("s_add_u32 %s, %s, 3" % (sr(SC_IDX), sr(SC_IDX)))
        a.extend(max_valu(V_SA))
        cross_half_max()
        for i in range(16):
            e("v_sub_f32 v%d, v%d, v%d" % (V_SA + i, V_SA + i, V_TMAX))
        e("v_sub_f32 v%d, 0, v%d" % (V_NEGM, V_TMAX))
        for i in range(1, 16):
            e("v_mov_b32 v%d, v%d" % (V_NEGM + i, V_NEGM))

        def iteration(par, kind):
            scur = V_SA if par == 0 else V_SB
            snext = V_SB if par == 0 else V_SA
            g, tl = softmax_gaps(scur)
            if kind != "final":
                e("s_waitcnt lgkmcnt(15)")
                a.extend(gaps(qk_mfmas(snext, qbase, vr(V_NEGM, 16)), g))
            else:
                for l in g:
                    a.extend(l)
            a.extend(tl)
            e("s_waitcnt lgkmcnt(0)")
            pv = pv_mfmas(A_VF[par])
            rel = release_l(SC_IDX)
            if kind == "full":
                kr = k_reads(A_KF)
                vrr = v_reads(A_VF[par ^ 1], False)
                mx = max_valu(snext) + ["v_cmp_lt_f32 vcc, %s, v%d" % (sr(SC_T), V_TMAX)]
                book = ["s_add_u32 %s, %s, %d" % (sr(SC_SLOT), sr(SC_SLOT), 2 * SLOT),
                        "s_add_u32 %s, %s, 2" % (sr(SC_IDX), sr(SC_IDX)),
                        "s_cmp_lt_u32 %s, %d" % (sr(SC_SLOT), RING),
                        "s_cselect_b32 %s, %s, 0" % (sr(SC_SLOT), sr(SC_SLOT))]
                per = [rel + wait_landed_l(2) + k_addr(SC_SLOT),
                       v_addr(SC_SLOT, V_VB2) + kr[0:4],
                       kr[4:8] + book[0:2],
                       vrr[0:4] + book[2:4],
                       vrr[4:8] + mx[0:1],
                       vrr[8:12] + mx[1:3],
                       vrr[12:16] + mx[3:5],
                       mx[5:9]]
                a.extend(gaps(pv, per))
            elif kind == "lastk":
                vrr = v_reads(A_VF[par ^ 1], False)
                mx = max_valu(snext) + ["v_cmp_lt_f32 vcc, %s, v%d" % (sr(SC_T), V_TMAX)]
                book = ["s_add_u32 %s, %s, 1" % (sr(SC_IDX), sr(SC_IDX))] + slot_adv_l(SC_SLOT, SC_SLOT, 1)
                per = [rel + wait_landed_l(1) + v_addr(SC_SLOT, V_VB), vrr[0:4], vrr[4:8], vrr[8:12],
                       vrr[12:16], mx[0:3] + book[0:2], mx[3:6] + book[2:5], mx[6:9]]
                a.extend(gaps(pv, per))
            else:
                a.extend(rel)
                a.extend(pv)
            if kind != "final":
                r = a.newlab("rare")
                b = a.newlab("back")
                e("s_cbranch_vccnz %s" % r)
                a.lab(b)
                rare.append((r, b, snext))

        e("s_mov_b32 %s, 0" % sr(SC_IT))
        lp = a.newlab("attn")
        a.lab(lp)
        iteration(0, "full")
        iteration(1, "full")
        e("s_add_u32 %s, %s, 1" % (sr(SC_IT), sr(SC_IT)))
        ev = a.newlab("event")
        evb = a.newlab("evback")
        e("s_cmp_eq_u32 %s, %s" % (sr(SC_IT), sr(S_TAU1 if ph == 0 else S_TAU2)))
        e("s_cbranch_scc1 %s" % ev)
        a.lab(evb)
        events.append((ph, ev, evb))
        def at_pass(n, body):
            sk = a.newlab("noev")
            e("s_cmp_eq_u32 %s, %d" % (sr(SC_IT), n))
            e("s_cbranch_scc0 %s" % sk)
            body()
            a.lab(sk)

        if cfg.stamps:
            for nm in cfg.stamplist.split(","):
                if nm[0] == "ab"[ph] and nm[1:].isdigit():
                    at_pass(int(nm[1:]), lambda nm=nm: stamp(nm))
        if ph == 0:
            def nonce_issue():
                e("v_mov_b32 v1, 0")
                e("global_load_dwordx2 %s, v1, %s sc1" % (vr(V_NON, 2), sr(S_PDBG, 2)))
            at_pass(1, nonce_issue)
        else:
            def p1():
                ok = a.newlab("nok")
                e("s_waitcnt vmcnt(0)")
                e("v_readfirstlane_b32 %s, v%d" % (sr(SC_NONCE), V_NON))
                e("v_readfirstlane_b32 %s, v%d" % (sr(SC_NONCE + 1), V_NON + 1))
                e("s_nop 3")
                e("s_cmp_lg_u32 %s, 0" % sr(SC_NONCE))
                e("s_cbranch_scc1 %s" % ok)
                get_nonce()
                a.lab(ok)
                flago_off(SC_FOFF, 0, True)
                flag_store(SC_FOFF)

            def poll_issue():
                e("v_min_u32 v1, 3, v0")
                e("v_lshlrev_b32 v1, 3, v1")
                e("buffer_load_dwordx2 %s, v1, %s, %s offen sc1" % (vr(V_NON, 2), sr(SRD_WS, 4), sr(SC_FOFF0)))

            def p1b():
                p1()
                flago_off(SC_FOFF0, 0, False)
                e("s_mov_b32 %s, 0" % sr(SC_O1ST))
                poll_issue()
            if cfg.nopoll or cfg.noxchg:
                def p1c():
                    if not cfg.noxchg:
                        p1()
                    e("s_mov_b32 %s, 1" % sr(SC_O1ST))
                at_pass(1, p1c)
            else:
                at_pass(1, p1b)
            sk = a.newlab("o1skip")
            retry = a.newlab("o1retry")
            e("s_cmp_lt_u32 %s, 2" % sr(SC_IT))
            e("s_cbranch_scc1 %s" % sk)
            e("s_cmp_lg_u32 %s, 0" % sr(SC_O1ST))
            e("s_cbranch_scc1 %s" % sk)
            e("s_waitcnt vmcnt(0)")
            e("v_cmp_ne_u32 vcc, %s, v%d" % (sr(SC_NONCE), V_NON))
            e("v_cmp_ne_u32 s[34:35], %s, v%d" % (sr(SC_NONCE + 1), V_NON + 1))
            e("s_nop 3")
            e("s_or_b64 vcc, vcc, s[34:35]")
            e("s_cbranch_scc1 %s" % retry)
            load_o(0, OFT1, [0, 1, 2])
            e("s_mov_b32 %s, 1" % sr(SC_O1ST))
            e("s_branch %s" % sk)
            a.lab(retry)
            poll_issue()
            a.lab(sk)
        e("s_cmp_lt_u32 %s, 15" % sr(SC_IT))
        e("s_cbranch_scc1 %s" % lp)
        if ph == 1:
            e("s_waitcnt vmcnt(0)")
            flagp_off(SC_FOFF, 0, True)
            flag_store(SC_FOFF)
        iteration(0, "lastk")
        iteration(1, "final")
        e("v_add_f32 v%d, v%d, v%d" % (V_LSUM, V_LSUM, V_LS2))
        e("v_mov_b32 v%d, v%d" % (V_LS2, V_LSUM))
        e("s_nop 1")
        e("v_permlane32_swap_b32 v%d, v%d" % (V_LSUM, V_LS2))
        e("s_nop 1")
        e("v_add_f32 v%d, v%d, v%d" % (V_LSUM, V_LSUM, V_LS2))
        e("v_rcp_f32 v%d, v%d" % (V_ALPHA, V_LSUM))
        e("s_nop 7")
        e("s_nop 3")
        for i in range(32):
            e("v_mul_f32 v%d, v%d, v%d" % (V_O + 2 * i, V_O + 2 * i, V_ALPHA))
            e("v_mul_f32 v%d, v%d, v%d" % (V_O + 2 * i + 1, V_O + 2 * i + 1, V_ALPHA))
            e("v_cvt_pk_bf16_f32 v%d, v%d, v%d" % (V_STG + i, V_O + 2 * i, V_O + 2 * i + 1))
        e("s_lshl_b32 %s, %s, 2" % (sr(S_T1), sr(S_QUAD)))
        e("s_add_u32 %s, %s, %s" % (sr(S_T1), sr(S_T1), sr(S_M)))
        e("s_add_u32 %s, %s, %d" % (sr(S_T1), sr(S_T1), ph * 256))
        e("s_mul_i32 %s, %s, 24576" % (sr(S_T1), sr(S_T1)))
        e("s_lshl_b32 %s, %s, 13" % (sr(S_T2), sr(S_WAVE)))
        e("s_add_u32 %s, %s, %s" % (sr(S_T1), sr(S_T1), sr(S_T2)))
        e("s_add_u32 %s, %s, %d" % (sr(SC_OOFF), sr(S_T1), WS_OBUF))
        e("s_add_u32 %s, %s, 4096" % (sr(SC_OOFF2), sr(SC_OOFF)))
        for s in range(8):
            e("buffer_store_dwordx4 %s, v%d, %s, %s offen offset:%d sc1" % (
                vr(V_STG + 4 * s, 4), V_L16, sr(SRD_WS, 4), sr(SC_OOFF if s < 4 else SC_OOFF2), (s & 3) * 1024))

    head(0)
    stamp("h0")
    head(1)
    stamp("h1")

    OF2 = [None, 160, 192, 224]

    def bf2(r, s):
        return vr(V_STG + 4 * s, 4) if r == 0 else ar(OF2[r] + 4 * s, 4)

    def hook_after_round0():
        e("s_waitcnt vmcnt(0)")
        flago_off(SC_FOFF, 1, True)
        flag_store(SC_FOFF)
        reduce(0, V_O)
        flago_off(SC_FOFF, 1, False)
        flag_poll(SC_FOFF, 4)
        load_o(1, OF2, [1, 2, 3])
        e("s_waitcnt vmcnt(16)")

    def hook_r1():
        e("s_waitcnt vmcnt(8)")

    def hook_r2():
        e("s_waitcnt vmcnt(0)")

    hooks.clear()
    hooks.update({3: hook_after_round0, 7: hook_r1, 11: hook_r2})
    proj(V_ACC2, bf2, False)
    hooks.clear()
    e("s_nop 7")
    partial_store(V_ACC2, 1)
    stamp("t2")
    e("s_waitcnt vmcnt(0)")
    flagp_off(SC_FOFF, 1, True)
    flag_store(SC_FOFF)
    stamp("r0")
    reduce(1, V_O)
    e("s_waitcnt vmcnt(0)")
    stamp("r1")

    a.lab("L_fin")
    if cfg.noxchg:
        a.e = orig_e
        e = orig_e
    if cfg.stamps:
        e("s_waitcnt lgkmcnt(0)")
        e("s_lshl_b32 s28, s2, 9")
        e("s_lshl_b32 s29, %s, 7" % sr(S_WAVE))
        e("s_add_u32 s28, s28, s29")
        e("s_add_u32 s28, s28, 0x%x" % WS_STAMP)
        e("v_mov_b32 v1, s28")
        e("s_getreg_b32 s30, hwreg(HW_REG_XCC_ID)")
        e("s_mov_b64 exec, 1")
        for k in range(4):
            for j in range(4):
                e("v_mov_b32 v%d, s%d" % (4 + j, S_ST + 4 * k + j))
            e("global_store_dwordx4 v1, v[4:7], %s offset:%d" % (sr(S_PWS, 2), 16 * k))
            e("s_waitcnt vmcnt(0)")
        e("v_mov_b32 v4, s30")
        e("global_store_dword v1, v4, %s offset:64" % sr(S_PWS, 2))
        e("s_waitcnt vmcnt(0)")
    a.lab("L_end")
    e("s_endpgm")

    if cfg.noxchg:
        a.e = filt
        e = filt
    for r, b, sn in rare:
        rare_path(r, b, sn)
    EMIT_SLOW_HERE = len(a.L)
    for ph, ev, evb in events:
        a.lab(ev)
        if ph == 0:
            stamp("e0")
            e("s_call_b64 %s, L_qproj" % sr(SC_RET2, 2))
            for i in range(32):
                e("v_cvt_pk_bf16_f32 v%d, v%d, v%d" % (V_Q2 + i, V_ACCQ + 2 * i, V_ACCQ + 2 * i + 1))
            stamp("e1")
        else:
            stamp("e2")
            okl = a.newlab("o1ok")
            e("s_cmp_lg_u32 %s, 0" % sr(SC_O1ST))
            e("s_cbranch_scc1 %s" % okl)
            flag_poll(SC_FOFF0, 4)
            load_o(0, OFT1, [0, 1, 2])
            e("s_mov_b32 %s, 1" % sr(SC_O1ST))
            a.lab(okl)
            e("s_waitcnt vmcnt(0)")

            def hk0():
                load_o(0, OFT1, [3])

            def hk2():
                e("s_waitcnt vmcnt(0)")

            hooks.clear()
            hooks.update({3: hk0, 11: hk2})
            proj(V_ACC1, lambda r, s: ar(OFT1[r] + 4 * s, 4), False)
            hooks.clear()
            e("s_nop 7")
            partial_store(V_ACC1, 0)
            stamp("e3")
        e("s_branch %s" % evb)

    for slow, back in slowwaits:
        a.lab(slow)
        e("ds_read_b32 v%d, v%d" % (V_LRD, V_LADDR))
        e("s_waitcnt lgkmcnt(0)")
        e("v_readfirstlane_b32 %s, v%d" % (sr(SC_L), V_LRD))
        e("s_sub_u32 %s, %s, 1" % (sr(S_SPIN), sr(S_SPIN)))
        e("s_cmp_eq_u32 %s, 0" % sr(S_SPIN))
        e("s_cbranch_scc1 L_end")
        e("s_cmp_lt_u32 %s, %s" % (sr(SC_L), sr(SC_NEED)))
        e("s_cbranch_scc1 %s" % slow)
        e("s_branch %s" % back)
    txt = a.text()

    kd = []
    kd.append('.section .rodata,"a"')
    kd.append(".p2align 6")
    kd.append(".amdhsa_kernel %s_kernel" % NAME)
    kd.append("  .amdhsa_next_free_vgpr 512")
    kd.append("  .amdhsa_next_free_sgpr 102")
    kd.append("  .amdhsa_accum_offset 256")
    kd.append("  .amdhsa_group_segment_fixed_size 0")
    kd.append("  .amdhsa_kernarg_size 104")
    kd.append("  .amdhsa_user_sgpr_count 2")
    kd.append("  .amdhsa_user_sgpr_kernarg_segment_ptr 1")
    kd.append("  .amdhsa_system_sgpr_workgroup_id_x 1")
    kd.append(".end_amdhsa_kernel")
    return "\n".join(hdr) + "\n" + txt + "\n".join(kd) + "\n"


if __name__ == "__main__":
    import argparse
    ap = argparse.ArgumentParser()
    ap.add_argument("-o", default="cdna_kernels/%s.s" % NAME)
    ap.add_argument("--stamps", action="store_true")
    ap.add_argument("--set", action="append", default=[])
    args = ap.parse_args()
    cfg = Cfg()
    cfg.stamps = args.stamps
    for kv in args.set:
        k, v = kv.split("=", 1)
        cur = getattr(cfg, k)
        if isinstance(cur, bool):
            v = v in ("1", "True", "true")
        elif isinstance(cur, int):
            v = int(v)
        elif isinstance(cur, float):
            v = float(v)
        setattr(cfg, k, v)
    open(args.o, "w").write(build_all(cfg))
    print("wrote", args.o)
```

```python
import math
import struct

NAME = "concat_heads__mha_block_cached__gqa_block_cached__near_ridge"


def f32bits(x):
    return struct.unpack("<I", struct.pack("<f", x))[0]


class Cfg:
    NS = 18
    NQ = 11
    E = 7
    D = 5
    stamps = False
    T_LOG2 = 8.0
    kvflags = "nt"
    wflags = ""
    woflags = ""
    xflags = ""
    kvsame = False
    noload = False
    nocompute = False
    noxchg = False
    stamplist = "start,qp,h0,h1,t1,t2,r0,r1"
    tau1_base = 2
    tau1_mul = 13
    tau2_base = 6
    tau2_mul = 8
    ytype = 1
    spin = 0x80000


BLK = 1088
SLOT = 8 * BLK
WS_FLAGO = 0
WS_FLAGP = 65536
WS_OBUF = 1 << 20
WS_PBUF = 16 << 20
WS_STAMP = 48 << 20
WS_USED = 56 << 20


def vr(base, n=1):
    return "v%d" % base if n == 1 else "v[%d:%d]" % (base, base + n - 1)


def ar(base, n=1):
    return "a%d" % base if n == 1 else "a[%d:%d]" % (base, base + n - 1)


def sr(base, n=1):
    return "s%d" % base if n == 1 else "s[%d:%d]" % (base, base + n - 1)


class Asm:
    def __init__(self):
        self.L = []
        self.nlab = 0
        self.filt = None

    def e(self, s):
        if self.filt and self.filt(s):
            return
        self.L.append("  " + s)

    def lab(self, name):
        self.L.append(name + ":")

    def newlab(self, base):
        self.nlab += 1
        return "L%s_%d" % (base, self.nlab)

    def extend(self, lst):
        for s in lst:
            if s.endswith(":"):
                self.lab(s[:-1])
            else:
                self.e(s)

    def text(self):
        return "\n".join(self.L) + "\n"


def gaps(primary, per_gap):
    out = []
    for p, f in zip(primary, per_gap):
        out.append(p)
        out.extend(f)
    return out


S_WG = 2
S_WAVE = 3
S_X, S_M, S_B, S_QUAD, S_H = 20, 21, 22, 24, 25
S_SPIN = 26
S_TAU1, S_TAU2 = 27, 62
S_T0, S_T1, S_T2, S_T3 = 28, 29, 30, 31
S_RET = 32
KA_X, KA_K, KA_V, KA_WQ, KA_WO = 36, 38, 40, 42, 44
KA_PH = 10
KA_OUT, KA_DBG, KA_WS = 56, 58, 60
SL_ISS, SL_PUB, SL_FMIN, SL_SLOT, SL_NEED, SL_OFF, SL_OFF2, SL_CNT, SL_CNT2, SL_KOFF, SL_VOFF, SL_ROT = range(4, 16)
SL_RET2 = 16
SL_XB, SL_WB = 18, 19
SL_NADJ = 23
SL_QSLOT = 63
SRD_X, SRD_K, SRD_V, SRD_WQ, SRD_WO = 64, 68, 72, 76, 80
SC_L, SC_SLOT, SC_IDX, SC_IT, SC_T, SC_NEED, SC_SLOT2, SC_ADJ = range(4, 12)
SC_OOFF, SC_OOFF2, SC_FOFF, SC_POFF = 12, 13, 14, 15
SC_NONCE = 16
SC_RET2 = 18
SC_FOFF0, SC_O1ST = 72, 73
SC_WRAP = 74
SRD_WS, SRD_OUT = 64, 68
S_ST = 84

V_KB = 8
V_VB = 10
V_WB = 11
V_KA = 12
V_VA = 14
V_L16 = 15
V_LSUM, V_LS2, V_TMAX, V_ALPHA, V_FV, V_LADDR, V_FADDR, V_LRD = range(17, 25)
V_VB2 = 25
V_NON = 26
V_PF = 32
V_NEGM = 48
V_O = 64
V_SA = 128
V_SB = 144
V_ACCQ = 160
V_Q2 = 160
V_STG = 192
V_Q1 = 224
V_ACC1 = 192
V_ACC2 = 128
A_AF = [0, 32]
A_KF = 64
A_VF = [96, 128]
A_XF = [160, 192]
MFMA = "v_mfma_f32_32x32x16_bf16"


def build(cfg):
    NS, D, NQ, E = cfg.NS, cfg.D, cfg.NQ, cfg.E
    assert NS == NQ + E and NS % 2 == 0 and (NQ + 3) % 2 == 0
    RING = NS * SLOT
    FLAG_L = RING
    FLAG_F = RING + 16
    LDS_BYTES = RING + 64
    a = Asm()
    e = a.e
    hdr = []
    hdr.append("; @launch grid=(256,1,1) block=(256,1,1) lds=%d" % LDS_BYTES)
    hdr.append('.amdgcn_target "amdgcn-amd-amdhsa--gfx950"')
    hdr.append(".text")
    hdr.append(".globl %s_kernel" % NAME)
    hdr.append(".p2align 8")
    hdr.append(".type %s_kernel,@function" % NAME)
    hdr.append("%s_kernel:" % NAME)
    stl = cfg.stamplist.split(",")

    def stamp(name):
        if cfg.stamps:
            for k, nm in enumerate(stl):
                if nm == name:
                    e("s_memrealtime %s" % sr(S_ST + 2 * k, 2))
                if nm == name + ".c":
                    e("s_memtime %s" % sr(S_ST + 2 * k, 2))

    e("s_cmp_ge_u32 s2, 256")
    e("s_cbranch_scc1 L_end")
    e("s_load_dwordx16 s[36:51], s[0:1], 0")
    e("s_load_dwordx4 s[52:55], s[0:1], 64")
    e("s_load_dwordx4 s[56:59], s[0:1], 80")
    e("s_load_dwordx2 s[60:61], s[0:1], 96")
    stamp("start")
    e("v_lshrrev_b32 v1, 6, v0")
    e("v_and_b32 v0, 63, v0")
    e("s_and_b32 %s, s2, 7" % sr(S_X))
    e("v_readfirstlane_b32 %s, v1" % sr(S_WAVE))
    e("s_lshr_b32 s28, s2, 3")
    e("s_and_b32 %s, s28, 3" % sr(S_M))
    e("s_lshr_b32 %s, s28, 2" % sr(S_B))
    e("s_lshl_b32 %s, %s, 2" % (sr(S_H), sr(S_X)))
    e("s_add_u32 %s, %s, %s" % (sr(S_H), sr(S_H), sr(S_M)))
    e("s_lshl_b32 %s, %s, 3" % (sr(S_QUAD), sr(S_B)))
    e("s_add_u32 %s, %s, %s" % (sr(S_QUAD), sr(S_QUAD), sr(S_X)))
    e("s_mov_b32 %s, 0x%x" % (sr(S_SPIN), cfg.spin))
    for dst, base, mul in ((S_TAU1, cfg.tau1_base, cfg.tau1_mul), (S_TAU2, cfg.tau2_base, cfg.tau2_mul)):
        e("s_mul_i32 %s, %s, %d" % (sr(dst), sr(S_X), mul))
        e("s_lshr_b32 %s, %s, 3" % (sr(dst), sr(dst)))
        e("s_add_u32 %s, %s, %d" % (sr(dst), sr(dst), base))
    e("s_cmp_eq_u32 %s, 3" % sr(S_WAVE))
    e("s_cbranch_scc0 L_compute")

    def srd(dst, ptr, nbytes):
        e("s_mov_b32 %s, %s" % (sr(dst), sr(ptr)))
        e("s_mov_b32 %s, %s" % (sr(dst + 1), sr(ptr + 1)))
        e("s_mov_b32 %s, 0x%x" % (sr(dst + 2), nbytes))
        e("s_mov_b32 %s, 0x20000" % sr(dst + 3))

    a.lab("L_loader")
    e("s_setprio 3")
    LV_K, LV_V, LV_X, LV_WQ, LV_WO, LV_T, LV_LADDR, LV_FADDR, LV_F = 8, 12, 16, 20, 24, 28, 29, 30, 32
    BIAS = 4096
    NB_X, NB_KV, NB_W = 8 * 96 * 512 * 2, 8 * 32 * 1024 * 128 * 2, 512 * 4096 * 2

    def srdb(dst, ptr, nbytes, full=True):
        e("s_sub_u32 %s, %s, %d" % (sr(dst), sr(ptr), BIAS))
        e("s_subb_u32 %s, %s, 0" % (sr(dst + 1), sr(ptr + 1)))
        if full:
            e("s_mov_b32 %s, 0x%x" % (sr(dst + 2), nbytes + BIAS))
            e("s_mov_b32 %s, 0x20000" % sr(dst + 3))

    e("v_lshrrev_b32 v1, 4, v0")
    e("v_and_b32 v2, 15, v0")
    e("v_xor_b32 v3, v2, v1")
    e("v_lshlrev_b32 v3, 4, v3")
    e("v_lshlrev_b32 v2, 4, v2")
    e("v_lshlrev_b32 v4, 12, v1")
    e("v_lshlrev_b32 v5, 15, v1")
    e("v_lshlrev_b32 v6, 10, v1")

    def lane_offs(dst, rowpart, colpart, rs):
        e("v_add_u32 v%d, v%d, v%d" % (dst, rowpart, colpart))
        for b in range(3, 0, -1):
            e("v_add_u32 v%d, %d, v%d" % (dst + b, BIAS + b * (rs - BLK), dst))
        e("v_add_u32 v%d, %d, v%d" % (dst, BIAS, dst))

    lane_offs(LV_X, 4, 3, 1024)
    lane_offs(LV_WQ, 5, 2, 8192)
    e("v_mov_b32 v%d, %d" % (LV_LADDR, FLAG_L))
    e("v_mov_b32 v%d, %d" % (LV_FADDR, FLAG_F))
    e("v_mov_b32 v%d, 0" % LV_T)
    e("ds_write_b32 v%d, v%d" % (LV_LADDR, LV_T))
    e("s_mov_b32 %s, 0" % sr(SL_ISS))
    e("s_mov_b32 %s, 0" % sr(SL_PUB))
    e("s_mov_b32 %s, 0" % sr(SL_FMIN))
    e("s_mov_b32 %s, 0" % sr(SL_SLOT))
    e("s_mov_b32 %s, -1" % sr(SL_NEED))
    e("s_add_u32 %s, %s, %s" % (sr(SL_ROT), sr(S_B), sr(S_M)))
    e("s_and_b32 %s, %s, 3" % (sr(SL_ROT), sr(SL_ROT)))
    e("s_waitcnt lgkmcnt(0)")
    srdb(SRD_X, KA_X, NB_X)
    srdb(SRD_WQ, KA_WQ, NB_W)
    if cfg.noload:
        e("v_mov_b32 v%d, 100000" % LV_T)
        e("ds_write_b32 v%d, v%d" % (LV_LADDR, LV_T))
        e("s_waitcnt lgkmcnt(0)")
        e("s_barrier")
        e("s_branch L_fin")

    ool = []

    def publish(d):
        e("s_sub_i32 %s, %s, %d" % (sr(S_T0), sr(SL_ISS), d))
        e("s_max_i32 %s, %s, %s" % (sr(SL_PUB), sr(SL_PUB), sr(S_T0)))
        e("v_mov_b32 v%d, %s" % (LV_T, sr(SL_PUB)))
        e("ds_write_b32 v%d, v%d" % (LV_LADDR, LV_T))

    def issue_tile(srdreg, voff, rs, flags, wrap, nowait=False, check=True):
        if check:
            e("s_cmp_ge_i32 %s, %s" % (sr(SL_FMIN), sr(SL_NEED)))
            slow = a.newlab("lslow")
            ok = a.newlab("ok")
            e("s_cbranch_scc0 %s" % slow)
            a.lab(ok)
            ool.append((slow, ok))

        def ld(b):
            e("buffer_load_dwordx4 v%d, %s, %s offen offset:%d %s lds" % (
                voff + (b & 3), sr(srdreg, 4), sr(SL_OFF if b < 4 else SL_OFF2), (b & 3) * BLK, flags))
        e("s_mov_b32 m0, %s" % sr(SL_SLOT))
        e("s_add_u32 %s, %s, %d" % (sr(SL_OFF2), sr(SL_OFF), 16 * rs))
        ld(0)
        e("v_mov_b32 v%d, %s" % (LV_T, sr(SL_PUB)))
        ld(1)
        e("ds_write_b32 v%d, v%d" % (LV_LADDR, LV_T))
        ld(2)
        e("s_add_u32 %s, %s, 1" % (sr(SL_ISS), sr(SL_ISS)))
        ld(3)
        e("s_add_u32 m0, %s, %d" % (sr(SL_SLOT), 4 * BLK))
        e("s_add_u32 %s, %s, %d" % (sr(SL_SLOT), sr(SL_SLOT), SLOT))
        ld(4)
        e("s_cmp_lt_u32 %s, %d" % (sr(SL_SLOT), wrap))
        e("s_cselect_b32 %s, %s, 0" % (sr(SL_SLOT), sr(SL_SLOT)))
        ld(5)
        e("s_sub_i32 %s, %s, %s" % (sr(SL_NEED), sr(SL_ISS), sr(SL_NADJ)))
        ld(6)
        e("s_sub_i32 %s, %s, %d" % (sr(S_T0), sr(SL_ISS), D))
        ld(7)
        if not nowait:
            e("s_waitcnt vmcnt(%d)" % (8 * D))
            e("s_max_i32 %s, %s, %s" % (sr(SL_PUB), sr(SL_PUB), sr(S_T0)))

    def qp_round(wrap, first_nowait=0):
        n = 0

        def after():
            if first_nowait and n == first_nowait:
                e("s_waitcnt lgkmcnt(0)")
                e("s_barrier")
        for w in range(3):
            e("s_add_u32 %s, %s, %d" % (sr(SL_OFF), sr(SL_XB), w * 32 * 1024))
            issue_tile(SRD_X, LV_X, 1024, cfg.xflags, wrap, nowait=(n < first_nowait))
            n += 1
            after()
        for j in range(4):
            e("s_add_u32 %s, %s, %d" % (sr(SL_OFF), sr(SL_WB), j * 32 * 8192))
            issue_tile(SRD_WQ, LV_WQ, 8192, cfg.wflags, wrap, nowait=(n < first_nowait))
            n += 1
            after()

    def qp_bases():
        e("s_add_u32 %s, %s, %s" % (sr(S_T1), sr(SL_ROT), sr(SL_CNT)))
        e("s_and_b32 %s, %s, 3" % (sr(S_T1), sr(S_T1)))
        e("s_lshl_b32 %s, %s, 8" % (sr(S_T2), sr(S_T1)))
        e("s_mul_i32 %s, %s, %d" % (sr(SL_XB), sr(S_B), 96 * 1024))
        e("s_add_u32 %s, %s, %s" % (sr(SL_XB), sr(SL_XB), sr(S_T2)))
        e("s_lshl_b32 %s, %s, 20" % (sr(S_T2), sr(S_T1)))
        e("s_lshl_b32 %s, %s, 8" % (sr(SL_WB), sr(S_H)))
        e("s_add_u32 %s, %s, %s" % (sr(SL_WB), sr(SL_WB), sr(S_T2)))

    kvf = "" if cfg.kvsame else cfg.kvflags
    e("s_mov_b32 %s, %d" % (sr(SL_NADJ), NQ - 1))
    e("s_mov_b32 %s, 0" % sr(SL_CNT))
    qp_bases()
    qp_round(NQ * SLOT, first_nowait=D)
    srdb(SRD_K, KA_K, NB_KV)
    srdb(SRD_V, KA_V, NB_KV)
    srdb(SRD_WO, KA_WO, NB_W)
    lane_offs(LV_K, 6, 3, 256)
    lane_offs(LV_V, 6, 2, 256)
    lane_offs(LV_WO, 4, 2, 1024)
    e("s_lshl_b32 %s, %s, 5" % (sr(S_T1), sr(S_B)))
    e("s_add_u32 %s, %s, %s" % (sr(S_T1), sr(S_T1), sr(S_H)))
    e("s_lshl_b32 %s, %s, 18" % (sr(SL_KOFF), sr(S_T1)))
    stamp("qx0")

    def early_tiles():
        e("s_mov_b32 %s, %s" % (sr(SL_QSLOT), sr(SL_SLOT)))
        e("s_mov_b32 %s, %d" % (sr(SL_SLOT), NQ * SLOT))
        seq = [("K", 0), ("K", 1), ("V", 0)]
        t = 0
        while len(seq) < E:
            seq += [("K", t + 2), ("V", t + 1)]
            t += 1
        assert len(seq) == E
        for kind, t in seq:
            e("s_add_u32 %s, %s, %d" % (sr(SL_OFF), sr(SL_KOFF), 0 if cfg.kvsame else t * 8192))
            if kind == "K":
                issue_tile(SRD_K, LV_K, 256, kvf, RING, check=False)
            else:
                issue_tile(SRD_V, LV_V, 256, kvf, RING, check=False)
        e("s_mov_b32 %s, %s" % (sr(SL_SLOT), sr(SL_QSLOT)))

    npairs_early = (E - 3) // 2
    if cfg.ytype == 1:
        e("s_and_b32 %s, %s, 1" % (sr(S_T3), sr(S_M)))
        e("s_cmp_eq_u32 %s, 0" % sr(S_T3))
        e("s_cbranch_scc1 L_ld_x1")
    if cfg.ytype in (1, 2):
        early_tiles()
        e("s_mov_b32 %s, %d" % (sr(SL_NADJ), NQ - 1 + E))
        e("s_sub_i32 %s, %s, %s" % (sr(SL_NEED), sr(SL_ISS), sr(SL_NADJ)))
    a.lab("L_ld_x1")
    e("s_mov_b32 %s, 1" % sr(SL_CNT))
    a.lab("L_ld_qp1")
    qp_bases()
    qp_round(NQ * SLOT)
    e("s_add_u32 %s, %s, 1" % (sr(SL_CNT), sr(SL_CNT)))
    e("s_cmp_lt_u32 %s, 4" % sr(SL_CNT))
    e("s_cbranch_scc1 L_ld_qp1")
    if cfg.ytype == 1:
        e("s_and_b32 %s, %s, 1" % (sr(S_T3), sr(S_M)))
        e("s_cmp_eq_u32 %s, 0" % sr(S_T3))
        e("s_cbranch_scc0 L_ld_y2")
    if cfg.ytype in (0, 1):
        early_tiles()
    a.lab("L_ld_y2")
    stamp("qp")
    e("s_mov_b32 %s, 0" % sr(SL_SLOT))
    e("s_mov_b32 %s, %d" % (sr(SL_NADJ), NS - 1))
    e("s_mov_b32 %s, 28" % sr(SL_NEED))
    srdb(SRD_X, KA_X + KA_PH, NB_X, full=False)
    srdb(SRD_WQ, KA_WQ + KA_PH, NB_W, full=False)

    e("s_mov_b32 %s, 0" % sr(SL_CNT2))
    e("s_add_u32 %s, %s, %d" % (sr(SL_VOFF), sr(SL_KOFF), 0 if cfg.kvsame else npairs_early * 8192))
    e("s_mov_b32 %s, %d" % (sr(SL_CNT), npairs_early))
    e("s_branch L_ld_kv")
    a.lab("L_ld_head")
    e("s_mov_b32 %s, %s" % (sr(SL_OFF), sr(SL_KOFF)))
    issue_tile(SRD_K, LV_K, 256, kvf, RING)
    e("s_add_u32 %s, %s, 8192" % (sr(SL_OFF), sr(SL_KOFF)))
    issue_tile(SRD_K, LV_K, 256, kvf, RING)
    e("s_mov_b32 %s, %s" % (sr(SL_OFF), sr(SL_KOFF)))
    issue_tile(SRD_V, LV_V, 256, kvf, RING)
    e("s_mov_b32 %s, %s" % (sr(SL_VOFF), sr(SL_KOFF)))
    e("s_mov_b32 %s, 0" % sr(SL_CNT))
    a.lab("L_ld_kv")
    e("s_add_u32 %s, %s, 16384" % (sr(SL_OFF), sr(SL_VOFF)))
    issue_tile(SRD_K, LV_K, 256, kvf, RING)
    e("s_add_u32 %s, %s, 8192" % (sr(SL_OFF), sr(SL_VOFF)))
    issue_tile(SRD_V, LV_V, 256, kvf, RING)
    if not cfg.kvsame:
        e("s_add_u32 %s, %s, 8192" % (sr(SL_VOFF), sr(SL_VOFF)))
    e("s_add_u32 %s, %s, 1" % (sr(SL_CNT), sr(SL_CNT)))
    e("s_cmp_eq_u32 %s, 0" % sr(SL_CNT2))
    e("s_cselect_b32 %s, %s, %s" % (sr(S_T1), sr(S_TAU1), sr(S_TAU2)))
    e("s_lshl_b32 %s, %s, 1" % (sr(S_T1), sr(S_T1)))
    e("s_cmp_eq_u32 %s, %s" % (sr(SL_CNT), sr(S_T1)))
    e("s_cbranch_scc1 L_ld_event")
    a.lab("L_ld_evret")
    e("s_cmp_lt_u32 %s, 30" % sr(SL_CNT))
    e("s_cbranch_scc1 L_ld_kv")
    e("s_add_u32 %s, %s, 8192" % (sr(SL_OFF), sr(SL_VOFF)))
    issue_tile(SRD_V, LV_V, 256, kvf, RING)
    e("s_cmp_eq_u32 %s, 0" % sr(SL_CNT2))
    e("s_cbranch_scc0 L_ld_tail")
    stamp("h0")
    srdb(SRD_K, KA_K + KA_PH, NB_KV, full=False)
    srdb(SRD_V, KA_V + KA_PH, NB_KV, full=False)
    e("s_mov_b32 %s, 1" % sr(SL_CNT2))
    e("s_branch L_ld_head")
    a.lab("L_ld_tail")
    stamp("h1")
    srdb(SRD_WO, KA_WO + KA_PH, NB_W, full=False)
    e("s_call_b64 %s, L_ld_wo" % sr(SL_RET2, 2))
    for d in range(D - 1, -1, -1):
        e("s_waitcnt vmcnt(%d)" % (8 * d))
        publish(d)
    e("s_waitcnt lgkmcnt(0)")
    stamp("t2")
    e("s_branch L_fin")

    a.lab("L_ld_event")
    e("s_cmp_eq_u32 %s, 0" % sr(SL_CNT2))
    e("s_cbranch_scc0 L_ld_ev2")
    e("s_mov_b32 %s, %s" % (sr(SL_RET2), sr(SL_CNT)))
    e("s_mov_b32 %s, 0" % sr(SL_CNT))
    a.lab("L_ld_qp2")
    qp_bases()
    qp_round(RING)
    e("s_add_u32 %s, %s, 1" % (sr(SL_CNT), sr(SL_CNT)))
    e("s_cmp_lt_u32 %s, 4" % sr(SL_CNT))
    e("s_cbranch_scc1 L_ld_qp2")
    e("s_mov_b32 %s, %s" % (sr(SL_CNT), sr(SL_RET2)))
    e("s_branch L_ld_evret")
    a.lab("L_ld_ev2")
    e("s_call_b64 %s, L_ld_wo" % sr(SL_RET2, 2))
    e("s_branch L_ld_evret")

    a.lab("L_ld_wo")
    e("s_mov_b32 %s, 0" % sr(SL_XB))
    a.lab("L_ld_wo_r")
    e("s_add_u32 %s, %s, %s" % (sr(S_T1), sr(S_M), sr(SL_XB)))
    e("s_and_b32 %s, %s, 3" % (sr(S_T1), sr(S_T1)))
    e("s_lshl_b32 %s, %s, 17" % (sr(S_T1), sr(S_T1)))
    e("s_lshl_b32 %s, %s, 19" % (sr(SL_WB), sr(S_X)))
    e("s_add_u32 %s, %s, %s" % (sr(SL_WB), sr(SL_WB), sr(S_T1)))
    e("s_lshl_b32 %s, %s, 8" % (sr(S_T1), sr(S_M)))
    e("s_add_u32 %s, %s, %s" % (sr(SL_WB), sr(SL_WB), sr(S_T1)))
    for j in range(4):
        e("s_add_u32 %s, %s, %d" % (sr(SL_OFF), sr(SL_WB), j * 32 * 1024))
        issue_tile(SRD_WO, LV_WO, 1024, cfg.woflags, RING)
    e("s_add_u32 %s, %s, 1" % (sr(SL_XB), sr(SL_XB)))
    e("s_cmp_lt_u32 %s, 4" % sr(SL_XB))
    e("s_cbranch_scc1 L_ld_wo_r")
    e("s_setpc_b64 %s" % sr(SL_RET2, 2))

    for slow, ok in ool:
        a.lab(slow)
        e("s_call_b64 %s, L_waitfree" % sr(S_RET, 2))
        e("s_branch %s" % ok)
    a.lab("L_waitfree")

    def readf():
        e("ds_read_b96 v[%d:%d], v%d" % (LV_F, LV_F + 2, LV_FADDR))
        e("s_waitcnt lgkmcnt(0)")
        e("v_min3_u32 v%d, v%d, v%d, v%d" % (LV_F, LV_F, LV_F + 1, LV_F + 2))
        e("s_nop 0")
        e("v_readfirstlane_b32 %s, v%d" % (sr(SL_FMIN), LV_F))
        e("s_nop 3")
        e("s_cmp_ge_i32 %s, %s" % (sr(SL_FMIN), sr(SL_NEED)))
        e("s_cbranch_scc1 L_wf_ret")

    e("v_mov_b32 v%d, %s" % (LV_T, sr(SL_PUB)))
    e("ds_write_b32 v%d, v%d" % (LV_LADDR, LV_T))
    for d in range(D - 1, -1, -1):
        readf()
        e("s_waitcnt vmcnt(%d)" % (8 * d))
        publish(d)
    a.lab("L_wf_spin")
    readf()
    e("s_sleep 1")
    e("s_sub_u32 %s, %s, 1" % (sr(S_SPIN), sr(S_SPIN)))
    e("s_cmp_eq_u32 %s, 0" % sr(S_SPIN))
    e("s_cbranch_scc0 L_wf_spin")
    e("s_endpgm")
    a.lab("L_wf_ret")
    e("s_setpc_b64 %s" % sr(S_RET, 2))

    if cfg.noxchg:
        a.filt = lambda sx: (sx.startswith("buffer_") or sx.startswith("global_load")
                             or sx.startswith("global_store_dwordx2"))
    a.lab("L_compute")
    e("v_and_b32 v1, 3, v0")
    e("v_lshrrev_b32 v2, 5, v0")
    e("v_lshrrev_b32 v3, 4, v0")
    e("v_and_b32 v3, 1, v3")
    e("v_lshrrev_b32 v4, 2, v0")
    e("v_and_b32 v4, 3, v4")
    e("v_lshlrev_b32 v5, 2, v3")
    e("v_add_u32 v5, v5, v1")
    e("s_movk_i32 %s, %d" % (sr(S_T0), BLK))
    e("v_mul_lo_u32 v5, v5, %s" % sr(S_T0))
    e("v_lshlrev_b32 v6, 8, v4")
    e("v_add_u32 v5, v5, v6")
    for par in range(2):
        e("v_add_u32 v6, %d, v2" % (2 * par))
        e("v_xor_b32 v6, v6, v4")
        e("v_lshlrev_b32 v6, 4, v6")
        e("v_add_u32 v%d, v5, v6" % (V_KB + par))
    e("v_lshrrev_b32 v6, 1, v1")
    e("v_and_b32 v7, 1, v1")
    e("v_lshlrev_b32 v7, 1, v7")
    e("v_or_b32 v6, v6, v7")
    e("v_lshlrev_b32 v6, 3, v6")
    e("v_lshlrev_b32 v7, 5, v3")
    e("v_add_u32 v6, v6, v7")
    e("v_mul_lo_u32 v7, v4, %s" % sr(S_T0))
    e("v_add_u32 v6, v6, v7")
    e("v_lshlrev_b32 v7, 8, v2")
    e("v_add_u32 v%d, v6, v7" % V_VB)
    e("v_add_u32 v%d, v%d, v7" % (V_WB, V_VB))
    e("v_add_u32 v%d, %d, v%d" % (V_VB2, SLOT, V_VB))
    e("v_mov_b32 v%d, %d" % (V_LADDR, FLAG_L))
    e("s_lshl_b32 %s, %s, 2" % (sr(S_T0), sr(S_WAVE)))
    e("s_add_u32 %s, %s, %d" % (sr(S_T0), sr(S_T0), FLAG_F))
    e("v_mov_b32 v%d, %s" % (V_FADDR, sr(S_T0)))
    e("v_mov_b32 v%d, %d" % (V_FV, 100000 if cfg.nocompute else 0))
    e("ds_write_b32 v%d, v%d" % (V_FADDR, V_FV))
    e("v_lshlrev_b32 v%d, 4, v0" % V_L16)
    e("s_mov_b32 %s, 0" % sr(SC_L))
    c = (128 ** -0.5) * math.log2(math.e)
    e("s_mov_b32 %s, 0x%x" % (sr(SC_T), f32bits(cfg.T_LOG2)))
    e("s_mov_b32 %s, 0" % sr(SC_IDX))
    e("s_mov_b32 %s, 0" % sr(SC_SLOT))
    e("s_mov_b32 %s, %d" % (sr(SC_WRAP), NQ * SLOT))
    if cfg.ytype == 1:
        e("s_and_b32 %s, %s, 1" % (sr(S_T1), sr(S_M)))
        e("s_mul_i32 %s, %s, %d" % (sr(S_T1), sr(S_T1), E))
    else:
        e("s_mov_b32 %s, %d" % (sr(S_T1), E if cfg.ytype == 2 else 0))
    e("s_mov_b32 %s, %s" % (sr(SC_OOFF), sr(S_T1)))
    e("s_mov_b32 %s, 0" % sr(SC_ADJ))
    e("s_waitcnt lgkmcnt(0)")
    srd(SRD_WS, KA_WS, WS_USED)
    srd(SRD_OUT, KA_OUT, 8 * 96 * 1024 * 2)
    e("s_or_b32 %s, %s, %s" % (sr(S_T0), sr(S_WG), sr(S_WAVE)))
    e("s_cmp_eq_u32 %s, 0" % sr(S_T0))
    e("s_cbranch_scc0 L_nononce")
    e("s_memrealtime %s" % sr(SC_NONCE, 2))
    e("s_waitcnt lgkmcnt(0)")
    e("s_or_b32 %s, %s, 1" % (sr(SC_NONCE), sr(SC_NONCE)))
    e("v_mov_b32 v2, %s" % sr(SC_NONCE))
    e("v_mov_b32 v3, %s" % sr(SC_NONCE + 1))
    e("v_mov_b32 v1, 0")
    e("global_store_dwordx2 v1, v[2:3], %s sc1" % sr(KA_DBG, 2))
    a.lab("L_nononce")
    e("s_barrier")
    stamp("bar")
    if cfg.nocompute:
        e("s_branch L_fin")

    slowwaits = []

    def wait_landed_l(delta, adj=False):
        slow = a.newlab("lw_slow")
        back = a.newlab("lw_back")
        slowwaits.append((slow, back))
        out = ["s_add_u32 %s, %s, %d" % (sr(SC_NEED), sr(SC_IDX), delta)]
        if adj:
            out.append("s_add_u32 %s, %s, %s" % (sr(SC_NEED), sr(SC_NEED), sr(SC_ADJ)))
        out += ["s_cmp_lt_u32 %s, %s" % (sr(SC_L), sr(SC_NEED)),
                "s_cbranch_scc1 %s" % slow,
                back + ":"]
        return out

    def wait_landed(delta, adj=False):
        a.extend(wait_landed_l(delta, adj))

    def slot_adv_l(dst, src, n):
        return ["s_add_u32 %s, %s, %d" % (sr(dst), sr(src), n * SLOT),
                "s_sub_u32 %s, %s, %s" % (sr(S_T0), sr(dst), sr(SC_WRAP)),
                "s_cmp_lt_u32 %s, %s" % (sr(dst), sr(SC_WRAP)),
                "s_cselect_b32 %s, %s, %s" % (sr(dst), sr(dst), sr(S_T0))]

    def slot_adv(dst, src, n):
        a.extend(slot_adv_l(dst, src, n))

    def release_l(sg):
        return ["v_mov_b32 v%d, %s" % (V_FV, sr(sg)), "ds_write_b32 v%d, v%d" % (V_FADDR, V_FV)]

    def k_addr(slot):
        return ["v_add_u32 v%d, %s, v%d" % (V_KA + p, sr(slot), V_KB + p) for p in range(2)]

    def k_reads(dst_a):
        return ["ds_read_b128 %s, v%d offset:%d" % (ar(dst_a + 4 * s, 4), V_KA + (s & 1), (s >> 1) * 64)
                for s in range(8)]

    def v_addr(slot, base):
        return ["v_add_u32 v%d, %s, v%d" % (V_VA, sr(slot), base)]

    def v_reads(dst_a, isw):
        out = []
        for ks in range(2):
            for db in range(4):
                base = dst_a + (ks * 4 + db) * 4
                o2 = 256 if isw else 512
                o = ks * 4 * BLK + db * 64
                out.append("ds_read_b64_tr_b16 %s, v%d offset:%d" % (ar(base, 2), V_VA, o))
                out.append("ds_read_b64_tr_b16 %s, v%d offset:%d" % (ar(base + 2, 2), V_VA, o + o2))
        return out

    hooks = {}

    def proj(acc, bfrag, xmode):
        ntile_x = 3 if xmode else 0

        def x_prefetch():
            out = []
            out.append("s_mul_i32 %s, %s, %d" % (sr(S_T1), sr(S_WAVE), SLOT))
            out.append("s_add_u32 %s, %s, %s" % (sr(SC_SLOT2), sr(SC_SLOT), sr(S_T1)))
            out += slot_adv_l(SC_SLOT2, SC_SLOT2, 0)
            out += k_addr(SC_SLOT2)
            out += slot_adv_l(SC_SLOT, SC_SLOT, 3)
            return out

        def advance(n):
            return ["s_add_u32 %s, %s, %d" % (sr(SC_IDX), sr(SC_IDX), n)] + slot_adv_l(SC_SLOT, SC_SLOT, 1)

        wait_landed(ntile_x + 1, xmode)
        if xmode:
            a.extend(x_prefetch())
            a.extend(k_reads(A_XF[0]))
        a.extend(v_addr(SC_SLOT, V_WB))
        a.extend(v_reads(A_AF[0], True))
        a.extend(advance(ntile_x + 1))
        for cidx in range(16):
            r, j = divmod(cidx, 4)
            e("s_waitcnt lgkmcnt(0)")
            mf = []
            for ks in range(2):
                for db in range(4):
                    cin = "0" if (cidx == 0 and ks == 0) else vr(acc + 16 * db, 16)
                    mf.append("%s %s, %s, %s, %s" % (
                        MFMA, vr(acc + 16 * db, 16), ar(A_AF[cidx & 1] + (ks * 4 + db) * 4, 4),
                        bfrag(r, 2 * j + ks), cin))
            per = [[] for _ in range(8)]
            per[0] += release_l(SC_IDX)
            if cidx < 15:
                nx = ntile_x if j == 3 else 0
                if xmode and cidx == 3:
                    per[0] += ["s_mov_b32 %s, %s" % (sr(SC_ADJ), sr(SC_OOFF))]
                per[0] += wait_landed_l(nx + 1, xmode)
                wr = v_reads(A_AF[(cidx + 1) & 1], True)
                if nx:
                    per[0] += x_prefetch()
                    xr = k_reads(A_XF[(r + 1) & 1])
                    per[1] = v_addr(SC_SLOT, V_WB) + xr[0:4]
                    per[2] = xr[4:8]
                    per[3] = wr[0:5]
                    per[4] = wr[5:10]
                    per[5] = wr[10:16]
                    per[6] += advance(nx + 1)
                else:
                    per[0] += v_addr(SC_SLOT, V_WB) + wr[0:2]
                    per[1] += wr[2:6]
                    per[2] += wr[6:10]
                    per[3] += wr[10:13]
                    per[4] += wr[13:16]
                    per[5] += advance(1)
            a.extend(gaps(mf, per))
            if hooks.get(cidx):
                hooks[cidx]()

    e("s_branch L_main")
    a.lab("L_qproj")
    proj(V_ACCQ, lambda r, s: ar(A_XF[r & 1] + 4 * s, 4), True)
    e("s_nop 7")
    e("s_nop 3")
    e("s_mov_b32 %s, 0x%x" % (sr(S_T1), f32bits(c)))
    for i in range(64):
        e("v_mul_f32 v%d, %s, v%d" % (V_ACCQ + i, sr(S_T1), V_ACCQ + i))
    e("s_setpc_b64 %s" % sr(SC_RET2, 2))

    a.lab("L_main")
    e("s_call_b64 %s, L_qproj" % sr(SC_RET2, 2))
    for i in range(32):
        e("v_cvt_pk_bf16_f32 v%d, v%d, v%d" % (V_Q1 + i, V_ACCQ + 2 * i, V_ACCQ + 2 * i + 1))
    e("s_mov_b32 %s, %d" % (sr(SC_SLOT), NQ * SLOT))
    e("s_mov_b32 %s, %d" % (sr(SC_WRAP), RING))
    e("s_mov_b32 %s, 0" % sr(SC_ADJ))
    e("s_mov_b32 %s, 0" % sr(SC_OOFF))
    stamp("qp")

    def qk_mfmas(sdst, qbase, cin):
        return ["%s %s, %s, %s, %s" % (MFMA, vr(sdst, 16), ar(A_KF + 4 * s, 4), vr(qbase + 4 * s, 4),
                                       cin if s == 0 else vr(sdst, 16)) for s in range(8)]

    def softmax_gaps(sc):
        g = []
        for k in range(8):
            l = ["v_exp_f32 v%d, v%d" % (sc + 2 * k, sc + 2 * k),
                 "v_exp_f32 v%d, v%d" % (sc + 2 * k + 1, sc + 2 * k + 1)]
            if k > 0:
                p = k - 1
                l += ["v_add_f32 v%d, v%d, v%d" % (V_LSUM, V_LSUM, sc + 2 * p),
                      "v_add_f32 v%d, v%d, v%d" % (V_LS2, V_LS2, sc + 2 * p + 1),
                      "v_cvt_pk_bf16_f32 v%d, v%d, v%d" % (V_PF + p, sc + 2 * p, sc + 2 * p + 1)]
            g.append(l)
        tail = ["v_add_f32 v%d, v%d, v%d" % (V_LSUM, V_LSUM, sc + 14),
                "v_add_f32 v%d, v%d, v%d" % (V_LS2, V_LS2, sc + 15),
                "v_cvt_pk_bf16_f32 v%d, v%d, v%d" % (V_PF + 7, sc + 14, sc + 15)]
        return g, tail

    def pv_mfmas(vf):
        out = []
        for ks in range(2):
            for db in range(4):
                out.append("%s %s, %s, %s, %s" % (
                    MFMA, vr(V_O + 16 * db, 16), ar(vf + (ks * 4 + db) * 4, 4), vr(V_PF + 4 * ks, 4),
                    vr(V_O + 16 * db, 16)))
        return out

    def max_valu(sn):
        out = ["v_max3_f32 v%d, v%d, v%d, v%d" % (V_TMAX, sn, sn + 1, sn + 2)]
        for i in range(3, 15, 2):
            out.append("v_max3_f32 v%d, v%d, v%d, v%d" % (V_TMAX, V_TMAX, sn + i, sn + i + 1))
        out.append("v_max_f32 v%d, v%d, v%d" % (V_TMAX, V_TMAX, sn + 15))
        return out

    def cross_half_max():
        e("v_mov_b32 v1, v%d" % V_TMAX)
        e("s_nop 1")
        e("v_permlane32_swap_b32 v%d, v1" % V_TMAX)
        e("s_nop 1")
        e("v_max_f32 v%d, v%d, v1" % (V_TMAX, V_TMAX))

    def rare_path(lab, back, sn):
        a.lab(lab)
        cross_half_max()
        e("v_max_f32 v%d, 0, v%d" % (V_TMAX, V_TMAX))
        e("v_sub_f32 v%d, 0, v%d" % (V_ALPHA, V_TMAX))
        e("v_exp_f32 v%d, v%d" % (V_ALPHA, V_ALPHA))
        for i in range(16):
            e("v_sub_f32 v%d, v%d, v%d" % (sn + i, sn + i, V_TMAX))
        for i in range(16):
            e("v_sub_f32 v%d, v%d, v%d" % (V_NEGM + i, V_NEGM + i, V_TMAX))
        e("v_mul_f32 v%d, v%d, v%d" % (V_LSUM, V_LSUM, V_ALPHA))
        e("v_mul_f32 v%d, v%d, v%d" % (V_LS2, V_LS2, V_ALPHA))
        for i in range(64):
            e("v_mul_f32 v%d, v%d, v%d" % (V_O + i, V_O + i, V_ALPHA))
        e("s_branch %s" % back)

    rare = []
    events = []

    def get_nonce():
        if cfg.noxchg:
            return
        lp = a.newlab("nonce")
        a.lab(lp)
        e("v_mov_b32 v1, 0")
        e("global_load_dwordx2 v[2:3], v1, %s sc1" % sr(KA_DBG, 2))
        e("s_waitcnt vmcnt(0)")
        e("v_readfirstlane_b32 %s, v2" % sr(SC_NONCE))
        e("v_readfirstlane_b32 %s, v3" % sr(SC_NONCE + 1))
        e("s_sub_u32 %s, %s, 1" % (sr(S_SPIN), sr(S_SPIN)))
        e("s_cmp_eq_u32 %s, 0" % sr(S_SPIN))
        e("s_cbranch_scc1 L_end")
        e("s_cmp_eq_u32 %s, 0" % sr(SC_NONCE))
        e("s_cbranch_scc1 %s" % lp)

    def flag_store(off_sgpr):
        e("v_mov_b32 v2, %s" % sr(SC_NONCE))
        e("v_mov_b32 v3, %s" % sr(SC_NONCE + 1))
        e("v_mov_b32 v1, 0")
        e("s_mov_b64 s[34:35], exec")
        e("s_mov_b64 exec, 1")
        e("buffer_store_dwordx2 v[2:3], v1, %s, %s offen sc1" % (sr(SRD_WS, 4), sr(off_sgpr)))
        e("s_mov_b64 exec, s[34:35]")

    def flag_poll(off_sgpr, n):
        if cfg.noxchg:
            return
        lp = a.newlab("poll")
        e("v_min_u32 v1, %d, v0" % (n - 1))
        e("v_lshlrev_b32 v1, 3, v1")
        a.lab(lp)
        e("buffer_load_dwordx2 v[2:3], v1, %s, %s offen sc1" % (sr(SRD_WS, 4), sr(off_sgpr)))
        e("s_waitcnt vmcnt(0)")
        e("v_cmp_ne_u32 vcc, %s, v2" % sr(SC_NONCE))
        e("v_cmp_ne_u32 s[34:35], %s, v3" % sr(SC_NONCE + 1))
        e("s_sub_u32 %s, %s, 1" % (sr(S_SPIN), sr(S_SPIN)))
        e("s_cmp_eq_u32 %s, 0" % sr(S_SPIN))
        e("s_cbranch_scc1 L_end")
        e("s_or_b64 vcc, vcc, s[34:35]")
        e("s_cbranch_scc1 %s" % lp)

    def flago_off(dst, ph, with_m):
        e("s_lshl_b32 %s, %s, 2" % (sr(dst), sr(S_QUAD)))
        e("s_add_u32 %s, %s, %s" % (sr(dst), sr(dst), sr(S_WAVE)))
        e("s_lshl_b32 %s, %s, 7" % (sr(dst), sr(dst)))
        e("s_add_u32 %s, %s, %d" % (sr(dst), sr(dst), WS_FLAGO + ph * 64 * 4 * 128))
        if with_m:
            e("s_lshl_b32 %s, %s, 3" % (sr(S_T0), sr(S_M)))
            e("s_add_u32 %s, %s, %s" % (sr(dst), sr(dst), sr(S_T0)))

    def load_o(ph, regs, ks):
        e("s_lshl_b32 %s, %s, 2" % (sr(S_T1), sr(S_QUAD)))
        e("s_add_u32 %s, %s, %d" % (sr(S_T1), sr(S_T1), ph * 256))
        e("s_mul_i32 %s, %s, 24576" % (sr(S_T1), sr(S_T1)))
        e("s_lshl_b32 %s, %s, 13" % (sr(S_T2), sr(S_WAVE)))
        e("s_add_u32 %s, %s, %s" % (sr(S_T1), sr(S_T1), sr(S_T2)))
        e("s_add_u32 %s, %s, %d" % (sr(S_T1), sr(S_T1), WS_OBUF))
        for k in ks:
            e("s_add_u32 %s, %s, %d" % (sr(S_T2), sr(S_M), k))
            e("s_and_b32 %s, %s, 3" % (sr(S_T2), sr(S_T2)))
            e("s_mul_i32 %s, %s, 24576" % (sr(S_T2), sr(S_T2)))
            e("s_add_u32 %s, %s, %s" % (sr(S_T2), sr(S_T2), sr(S_T1)))
            e("s_add_u32 %s, %s, 4096" % (sr(S_T3), sr(S_T2)))
            for s in range(8):
                e("buffer_load_dwordx4 %s, v%d, %s, %s offen offset:%d sc1" % (
                    ar(regs[k] + 4 * s, 4), V_L16, sr(SRD_WS, 4), sr(S_T2 if s < 4 else S_T3), (s & 3) * 1024))

    def poff(dst, ph, kq_sgpr):
        e("s_add_u32 %s, %s, %d" % (sr(dst), sr(S_B), ph * 8))
        e("s_lshl_b32 %s, %s, 2" % (sr(dst), sr(dst)))
        e("s_add_u32 %s, %s, %s" % (sr(dst), sr(dst), sr(S_M)))
        e("s_lshl_b32 %s, %s, 3" % (sr(dst), sr(dst)))
        if kq_sgpr is not None:
            e("s_add_u32 %s, %s, %s" % (sr(dst), sr(dst), sr(kq_sgpr)))
        e("s_mul_i32 %s, %s, 24576" % (sr(dst), sr(dst)))
        e("s_lshl_b32 %s, %s, 13" % (sr(S_T0), sr(S_WAVE)))
        e("s_add_u32 %s, %s, %s" % (sr(dst), sr(dst), sr(S_T0)))
        e("s_add_u32 %s, %s, %d" % (sr(dst), sr(dst), WS_PBUF))

    def flagp_off(dst, ph, with_kq):
        e("s_add_u32 %s, %s, %d" % (sr(dst), sr(S_B), ph * 8))
        e("s_lshl_b32 %s, %s, 2" % (sr(dst), sr(dst)))
        e("s_add_u32 %s, %s, %s" % (sr(dst), sr(dst), sr(S_M)))
        e("s_lshl_b32 %s, %s, 2" % (sr(dst), sr(dst)))
        e("s_add_u32 %s, %s, %s" % (sr(dst), sr(dst), sr(S_WAVE)))
        e("s_lshl_b32 %s, %s, 7" % (sr(dst), sr(dst)))
        e("s_add_u32 %s, %s, %d" % (sr(dst), sr(dst), WS_FLAGP))
        if with_kq:
            e("s_lshl_b32 %s, %s, 3" % (sr(S_T0), sr(S_X)))
            e("s_add_u32 %s, %s, %s" % (sr(dst), sr(dst), sr(S_T0)))

    def partial_store(acc, ph):
        poff(SC_POFF, ph, S_X)
        e("s_add_u32 %s, %s, 4096" % (sr(S_T1), sr(SC_POFF)))
        e("s_nop 3")
        for cch in range(8):
            for i in range(4):
                k = 4 * cch + i
                e("v_cvt_pk_bf16_f32 v%d, v%d, v%d" % (acc + k, acc + 2 * k, acc + 2 * k + 1))
            e("buffer_store_dwordx4 %s, v%d, %s, %s offen offset:%d sc1" % (
                vr(acc + 4 * cch, 4), V_L16, sr(SRD_WS, 4), sr(SC_POFF if cch < 4 else S_T1), (cch & 3) * 1024))

    def reduce(ph, regs):
        flagp_off(SC_FOFF, ph, False)
        flag_poll(SC_FOFF, 8)
        poff(SC_POFF, ph, None)
        e("s_lshl_b32 %s, %s, 10" % (sr(S_T1), sr(S_X)))
        e("s_add_u32 %s, %s, %s" % (sr(SC_POFF), sr(SC_POFF), sr(S_T1)))
        for kq in range(8):
            e("s_add_u32 %s, %s, %d" % (sr(S_T1), sr(SC_POFF), kq * 24576))
            e("buffer_load_dwordx4 %s, v%d, %s, %s offen sc1" % (
                vr(regs + 4 * kq, 4), V_L16, sr(SRD_WS, 4), sr(S_T1)))
        e("v_and_b32 v1, 31, v0")
        e("v_lshlrev_b32 v1, 11, v1")
        e("v_lshrrev_b32 v2, 5, v0")
        e("v_lshlrev_b32 v2, 4, v2")
        e("v_add_u32 v1, v1, v2")
        e("s_mul_i32 %s, %s, 96" % (sr(S_T1), sr(S_B)))
        e("s_lshl_b32 %s, %s, 5" % (sr(S_T2), sr(S_WAVE)))
        e("s_add_u32 %s, %s, %s" % (sr(S_T1), sr(S_T1), sr(S_T2)))
        e("s_lshl_b32 %s, %s, 11" % (sr(S_T1), sr(S_T1)))
        e("s_lshl_b32 %s, %s, 8" % (sr(S_T2), sr(S_M)))
        e("s_add_u32 %s, %s, %s" % (sr(S_T1), sr(S_T1), sr(S_T2)))
        e("s_lshl_b32 %s, %s, 5" % (sr(S_T2), sr(S_X)))
        e("s_add_u32 %s, %s, %s" % (sr(S_T1), sr(S_T1), sr(S_T2)))
        if ph:
            e("s_add_u32 %s, %s, 1024" % (sr(S_T1), sr(S_T1)))
        acc = regs + 32
        for kq in range(8):
            e("s_waitcnt vmcnt(%d)" % (7 - kq))
            for i in range(4):
                r = regs + 4 * kq + i
                if kq == 0:
                    e("v_lshlrev_b32 v%d, 16, v%d" % (acc + 2 * i, r))
                    e("v_and_b32 v%d, 0xffff0000, v%d" % (acc + 2 * i + 1, r))
                else:
                    e("v_lshlrev_b32 v%d, 16, v%d" % (acc + 8, r))
                    e("v_and_b32 v%d, 0xffff0000, v%d" % (r, r))
                    e("v_add_f32 v%d, v%d, v%d" % (acc + 2 * i, acc + 2 * i, acc + 8))
                    e("v_add_f32 v%d, v%d, v%d" % (acc + 2 * i + 1, acc + 2 * i + 1, r))
        for i in range(4):
            e("v_cvt_pk_bf16_f32 v%d, v%d, v%d" % (4 + i, acc + 2 * i, acc + 2 * i + 1))
        e("buffer_store_dwordx4 v[4:7], v1, %s, %s offen" % (sr(SRD_OUT, 4), sr(S_T1)))

    OFT1 = [160, 192, 224, 160]

    def head(ph):
        qbase = V_Q1 if ph == 0 else V_Q2
        for i in range(64):
            e("v_mov_b32 v%d, 0" % (V_O + i))
        e("v_mov_b32 v%d, 0" % V_LSUM)
        e("v_mov_b32 v%d, 0" % V_LS2)
        wait_landed(1)
        a.extend(k_addr(SC_SLOT))
        a.extend(k_reads(A_KF))
        e("s_waitcnt lgkmcnt(0)")
        a.extend(qk_mfmas(V_SA, qbase, "0"))
        slot_adv(SC_SLOT, SC_SLOT, 1)
        wait_landed(3)
        a.extend(k_addr(SC_SLOT))
        slot_adv(SC_SLOT, SC_SLOT, 1)
        a.extend(v_addr(SC_SLOT, V_VB))
        a.extend(k_reads(A_KF))
        a.extend(v_reads(A_VF[0], False))
        slot_adv(SC_SLOT, SC_SLOT, 1)
        e("s_add_u32 %s, %s, 3" % (sr(SC_IDX), sr(SC_IDX)))
        a.extend(max_valu(V_SA))
        cross_half_max()
        for i in range(16):
            e("v_sub_f32 v%d, v%d, v%d" % (V_SA + i, V_SA + i, V_TMAX))
        e("v_sub_f32 v%d, 0, v%d" % (V_NEGM, V_TMAX))
        for i in range(1, 16):
            e("v_mov_b32 v%d, v%d" % (V_NEGM + i, V_NEGM))

        def iteration(par, kind):
            scur = V_SA if par == 0 else V_SB
            snext = V_SB if par == 0 else V_SA
            g, tl = softmax_gaps(scur)
            if kind != "final":
                e("s_waitcnt lgkmcnt(15)")
                a.extend(gaps(qk_mfmas(snext, qbase, vr(V_NEGM, 16)), g))
            else:
                for l in g:
                    a.extend(l)
            a.extend(tl)
            e("s_waitcnt lgkmcnt(0)")
            pv = pv_mfmas(A_VF[par])
            rel = release_l(SC_IDX)
            if kind == "full":
                kr = k_reads(A_KF)
                vrr = v_reads(A_VF[par ^ 1], False)
                mx = max_valu(snext) + ["v_cmp_lt_f32 vcc, %s, v%d" % (sr(SC_T), V_TMAX)]
                book = ["s_add_u32 %s, %s, %d" % (sr(SC_SLOT), sr(SC_SLOT), 2 * SLOT),
                        "s_add_u32 %s, %s, 2" % (sr(SC_IDX), sr(SC_IDX)),
                        "s_cmp_lt_u32 %s, %d" % (sr(SC_SLOT), RING),
                        "s_cselect_b32 %s, %s, 0" % (sr(SC_SLOT), sr(SC_SLOT))]
                per = [rel + wait_landed_l(2) + k_addr(SC_SLOT),
                       v_addr(SC_SLOT, V_VB2) + kr[0:4],
                       kr[4:8] + book[0:2],
                       vrr[0:4] + book[2:4],
                       vrr[4:8] + mx[0:1],
                       vrr[8:12] + mx[1:3],
                       vrr[12:16] + mx[3:5],
                       mx[5:9]]
                a.extend(gaps(pv, per))
            elif kind == "lastk":
                vrr = v_reads(A_VF[par ^ 1], False)
                mx = max_valu(snext) + ["v_cmp_lt_f32 vcc, %s, v%d" % (sr(SC_T), V_TMAX)]
                book = ["s_add_u32 %s, %s, 1" % (sr(SC_IDX), sr(SC_IDX))] + slot_adv_l(SC_SLOT, SC_SLOT, 1)
                per = [rel + wait_landed_l(1) + v_addr(SC_SLOT, V_VB), vrr[0:4], vrr[4:8], vrr[8:12],
                       vrr[12:16], mx[0:3] + book[0:2], mx[3:6] + book[2:5], mx[6:9]]
                a.extend(gaps(pv, per))
            else:
                a.extend(rel)
                a.extend(pv)
            if kind != "final":
                r = a.newlab("rare")
                b = a.newlab("back")
                e("s_cbranch_vccnz %s" % r)
                a.lab(b)
                rare.append((r, b, snext))

        e("s_mov_b32 %s, 0" % sr(SC_IT))
        lp = a.newlab("attn")
        a.lab(lp)
        iteration(0, "full")
        iteration(1, "full")
        e("s_add_u32 %s, %s, 1" % (sr(SC_IT), sr(SC_IT)))
        ev = a.newlab("event")
        evb = a.newlab("evback")
        e("s_cmp_eq_u32 %s, %s" % (sr(SC_IT), sr(S_TAU1 if ph == 0 else S_TAU2)))
        e("s_cbranch_scc1 %s" % ev)
        a.lab(evb)
        events.append((ph, ev, evb))

        def at_pass(n, body):
            sk = a.newlab("noev")
            e("s_cmp_eq_u32 %s, %d" % (sr(SC_IT), n))
            e("s_cbranch_scc0 %s" % sk)
            body()
            a.lab(sk)

        if cfg.stamps:
            for nm in stl:
                if nm[0] == "ab"[ph] and nm[1:].isdigit():
                    at_pass(int(nm[1:]), lambda nm=nm: stamp(nm))
        if ph == 0:
            def nonce_issue():
                e("v_mov_b32 v1, 0")
                e("global_load_dwordx2 %s, v1, %s sc1" % (vr(V_NON, 2), sr(KA_DBG, 2)))
            at_pass(1, nonce_issue)
        else:
            def p1():
                ok = a.newlab("nok")
                e("s_waitcnt vmcnt(0)")
                e("v_readfirstlane_b32 %s, v%d" % (sr(SC_NONCE), V_NON))
                e("v_readfirstlane_b32 %s, v%d" % (sr(SC_NONCE + 1), V_NON + 1))
                e("s_nop 3")
                e("s_cmp_lg_u32 %s, 0" % sr(SC_NONCE))
                e("s_cbranch_scc1 %s" % ok)
                get_nonce()
                a.lab(ok)
                flago_off(SC_FOFF, 0, True)
                flag_store(SC_FOFF)

            def poll_issue():
                e("v_min_u32 v1, 3, v0")
                e("v_lshlrev_b32 v1, 3, v1")
                e("buffer_load_dwordx2 %s, v1, %s, %s offen sc1" % (vr(V_NON, 2), sr(SRD_WS, 4), sr(SC_FOFF0)))

            def p1b():
                p1()
                flago_off(SC_FOFF0, 0, False)
                e("s_mov_b32 %s, 0" % sr(SC_O1ST))

            if cfg.noxchg:
                at_pass(2, lambda: e("s_mov_b32 %s, 1" % sr(SC_O1ST)))
            else:
                at_pass(2, p1b)
                at_pass(3, poll_issue)
                sk = a.newlab("o1skip")
                retry = a.newlab("o1retry")
                e("s_cmp_lt_u32 %s, 5" % sr(SC_IT))
                e("s_cbranch_scc1 %s" % sk)
                e("s_cmp_lg_u32 %s, 0" % sr(SC_O1ST))
                e("s_cbranch_scc1 %s" % sk)
                e("s_waitcnt vmcnt(0)")
                e("v_cmp_ne_u32 vcc, %s, v%d" % (sr(SC_NONCE), V_NON))
                e("v_cmp_ne_u32 s[34:35], %s, v%d" % (sr(SC_NONCE + 1), V_NON + 1))
                e("s_nop 3")
                e("s_or_b64 vcc, vcc, s[34:35]")
                e("s_cbranch_scc1 %s" % retry)
                load_o(0, OFT1, [0, 1, 2])
                e("s_mov_b32 %s, 1" % sr(SC_O1ST))
                e("s_branch %s" % sk)
                a.lab(retry)
                poll_issue()
                a.lab(sk)
        e("s_cmp_lt_u32 %s, 15" % sr(SC_IT))
        e("s_cbranch_scc1 %s" % lp)
        if ph == 1:
            e("s_waitcnt vmcnt(0)")
            flagp_off(SC_FOFF, 0, True)
            flag_store(SC_FOFF)
        iteration(0, "lastk")
        iteration(1, "final")
        e("v_add_f32 v%d, v%d, v%d" % (V_LSUM, V_LSUM, V_LS2))
        e("v_mov_b32 v%d, v%d" % (V_LS2, V_LSUM))
        e("s_nop 1")
        e("v_permlane32_swap_b32 v%d, v%d" % (V_LSUM, V_LS2))
        e("s_nop 1")
        e("v_add_f32 v%d, v%d, v%d" % (V_LSUM, V_LSUM, V_LS2))
        e("v_rcp_f32 v%d, v%d" % (V_ALPHA, V_LSUM))
        e("s_lshl_b32 %s, %s, 2" % (sr(S_T1), sr(S_QUAD)))
        e("s_add_u32 %s, %s, %s" % (sr(S_T1), sr(S_T1), sr(S_M)))
        e("s_add_u32 %s, %s, %d" % (sr(S_T1), sr(S_T1), ph * 256))
        e("s_mul_i32 %s, %s, 24576" % (sr(S_T1), sr(S_T1)))
        e("s_lshl_b32 %s, %s, 13" % (sr(S_T2), sr(S_WAVE)))
        e("s_add_u32 %s, %s, %s" % (sr(S_T1), sr(S_T1), sr(S_T2)))
        e("s_add_u32 %s, %s, %d" % (sr(SC_OOFF), sr(S_T1), WS_OBUF))
        e("s_add_u32 %s, %s, 4096" % (sr(SC_OOFF2), sr(SC_OOFF)))
        e("s_nop 3")
        for s in range(8):
            for k in range(4):
                i = 4 * s + k
                e("v_mul_f32 v%d, v%d, v%d" % (V_O + 2 * i, V_O + 2 * i, V_ALPHA))
                e("v_mul_f32 v%d, v%d, v%d" % (V_O + 2 * i + 1, V_O + 2 * i + 1, V_ALPHA))
                e("v_cvt_pk_bf16_f32 v%d, v%d, v%d" % (V_STG + i, V_O + 2 * i, V_O + 2 * i + 1))
            e("buffer_store_dwordx4 %s, v%d, %s, %s offen offset:%d sc1" % (
                vr(V_STG + 4 * s, 4), V_L16, sr(SRD_WS, 4), sr(SC_OOFF if s < 4 else SC_OOFF2), (s & 3) * 1024))
        e("s_mov_b32 %s, 0" % sr(SC_OOFF))

    head(0)
    stamp("h0")
    head(1)
    stamp("h1")

    OF2 = [None, 160, 192, 224]

    def bf2(r, s):
        return vr(V_STG + 4 * s, 4) if r == 0 else ar(OF2[r] + 4 * s, 4)

    def hook_after_round0():
        e("s_waitcnt vmcnt(0)")
        flago_off(SC_FOFF, 1, True)
        flag_store(SC_FOFF)
        reduce(0, V_O)
        flago_off(SC_FOFF, 1, False)
        flag_poll(SC_FOFF, 4)
        load_o(1, OF2, [1, 2, 3])
        e("s_waitcnt vmcnt(16)")
        stamp("t1")

    hooks.clear()
    hooks.update({3: hook_after_round0, 7: lambda: e("s_waitcnt vmcnt(8)"), 11: lambda: e("s_waitcnt vmcnt(0)")})
    proj(V_ACC2, bf2, False)
    hooks.clear()
    e("s_nop 7")
    partial_store(V_ACC2, 1)
    stamp("t2")
    e("s_waitcnt vmcnt(0)")
    flagp_off(SC_FOFF, 1, True)
    flag_store(SC_FOFF)
    stamp("r0")
    reduce(1, V_O)
    e("s_waitcnt vmcnt(0)")
    stamp("r1")

    a.lab("L_fin")
    savef = a.filt
    a.filt = None
    if cfg.stamps:
        e("s_waitcnt lgkmcnt(0)")
        e("s_lshl_b32 s28, s2, 9")
        e("s_lshl_b32 s29, %s, 7" % sr(S_WAVE))
        e("s_add_u32 s28, s28, s29")
        e("s_add_u32 s28, s28, 0x%x" % WS_STAMP)
        e("v_mov_b32 v1, s28")
        e("s_getreg_b32 s30, hwreg(HW_REG_XCC_ID)")
        e("s_mov_b64 exec, 1")
        for k in range(4):
            for j in range(4):
                e("v_mov_b32 v%d, s%d" % (4 + j, S_ST + 4 * k + j))
            e("global_store_dwordx4 v1, v[4:7], %s offset:%d" % (sr(KA_WS, 2), 16 * k))
            e("s_waitcnt vmcnt(0)")
        e("v_mov_b32 v4, s30")
        e("global_store_dword v1, v4, %s offset:64" % sr(KA_WS, 2))
        e("s_waitcnt vmcnt(0)")
    a.lab("L_end")
    e("s_endpgm")
    a.filt = savef

    for r, b, sn in rare:
        rare_path(r, b, sn)
    for ph, ev, evb in events:
        a.lab(ev)
        if ph == 0:
            stamp("e0")
            e("s_call_b64 %s, L_qproj" % sr(SC_RET2, 2))
            for i in range(32):
                e("v_cvt_pk_bf16_f32 v%d, v%d, v%d" % (V_Q2 + i, V_ACCQ + 2 * i, V_ACCQ + 2 * i + 1))
            stamp("e1")
        else:
            stamp("e2")
            okl = a.newlab("o1ok")
            e("s_cmp_lg_u32 %s, 0" % sr(SC_O1ST))
            e("s_cbranch_scc1 %s" % okl)
            flag_poll(SC_FOFF0, 4)
            load_o(0, OFT1, [0, 1, 2])
            e("s_mov_b32 %s, 1" % sr(SC_O1ST))
            a.lab(okl)
            e("s_waitcnt vmcnt(0)")
            hooks.clear()
            hooks.update({3: lambda: load_o(0, OFT1, [3]), 11: lambda: e("s_waitcnt vmcnt(0)")})
            proj(V_ACC1, lambda r, s: ar(OFT1[r] + 4 * s, 4), False)
            hooks.clear()
            e("s_nop 7")
            partial_store(V_ACC1, 0)
            stamp("e3")
        e("s_branch %s" % evb)
    for slow, back in slowwaits:
        a.lab(slow)
        e("ds_read_b32 v%d, v%d" % (V_LRD, V_LADDR))
        e("s_waitcnt lgkmcnt(0)")
        e("v_readfirstlane_b32 %s, v%d" % (sr(SC_L), V_LRD))
        e("s_sub_u32 %s, %s, 1" % (sr(S_SPIN), sr(S_SPIN)))
        e("s_cmp_eq_u32 %s, 0" % sr(S_SPIN))
        e("s_cbranch_scc1 L_end")
        e("s_cmp_lt_u32 %s, %s" % (sr(SC_L), sr(SC_NEED)))
        e("s_cbranch_scc1 %s" % slow)
        e("s_branch %s" % back)
    txt = a.text()

    kd = []
    kd.append('.section .rodata,"a"')
    kd.append(".p2align 6")
    kd.append(".amdhsa_kernel %s_kernel" % NAME)
    kd.append("  .amdhsa_next_free_vgpr 512")
    kd.append("  .amdhsa_next_free_sgpr 102")
    kd.append("  .amdhsa_accum_offset 256")
    kd.append("  .amdhsa_group_segment_fixed_size 0")
    kd.append("  .amdhsa_kernarg_size 104")
    kd.append("  .amdhsa_user_sgpr_count 2")
    kd.append("  .amdhsa_user_sgpr_kernarg_segment_ptr 1")
    kd.append("  .amdhsa_system_sgpr_workgroup_id_x 1")
    kd.append(".end_amdhsa_kernel")
    return "\n".join(hdr) + "\n" + txt + "\n".join(kd) + "\n"


if __name__ == "__main__":
    import argparse
    ap = argparse.ArgumentParser()
    ap.add_argument("-o", default="cdna_kernels/%s.s" % NAME)
    ap.add_argument("--stamps", action="store_true")
    ap.add_argument("--set", action="append", default=[])
    args = ap.parse_args()
    cfg = Cfg()
    cfg.stamps = args.stamps
    for kv in args.set:
        k, v = kv.split("=", 1)
        cur = getattr(cfg, k)
        if isinstance(cur, bool):
            v = v in ("1", "True", "true")
        elif isinstance(cur, int):
            v = int(v)
        elif isinstance(cur, float):
            v = float(v)
        setattr(cfg, k, v)
    open(args.o, "w").write(build(cfg))
    print("wrote", args.o)
```

```python
import math
import struct

NAME = "concat_heads__mha_block_cached__gqa_block_cached__near_ridge"


def f32bits(x):
    return struct.unpack("<I", struct.pack("<f", x))[0]


class Cfg:
    NS = 18
    NQ = 11
    E = 7
    D = 5
    stamps = False
    T_LOG2 = 8.0
    kvflags = "nt"
    wflags = ""
    woflags = ""
    xflags = ""
    kvsame = False
    noload = False
    nocompute = False
    noxchg = False
    stamplist = "start,qp,h0,h1,t1,t2,r0,r1"
    tau1_base = 2
    tau1_mul = 13
    tau2_base = 6
    tau2_mul = 8
    ytype = 1
    spin = 0x80000
    swap = False


BLK = 1088
SLOT = 8 * BLK
WS_FLAGO = 0
WS_FLAGP = 65536
WS_OBUF = 1 << 20
WS_PBUF = 16 << 20
WS_STAMP = 48 << 20
WS_USED = 56 << 20


def vr(base, n=1):
    return "v%d" % base if n == 1 else "v[%d:%d]" % (base, base + n - 1)


def ar(base, n=1):
    return "a%d" % base if n == 1 else "a[%d:%d]" % (base, base + n - 1)


def sr(base, n=1):
    return "s%d" % base if n == 1 else "s[%d:%d]" % (base, base + n - 1)


class Asm:
    def __init__(self):
        self.L = []
        self.nlab = 0
        self.filt = None

    def e(self, s):
        if self.filt and self.filt(s):
            return
        self.L.append("  " + s)

    def lab(self, name):
        self.L.append(name + ":")

    def newlab(self, base):
        self.nlab += 1
        return "L%s_%d" % (base, self.nlab)

    def extend(self, lst):
        for s in lst:
            if s.endswith(":"):
                self.lab(s[:-1])
            else:
                self.e(s)

    def text(self):
        return "\n".join(self.L) + "\n"


def gaps(primary, per_gap):
    out = []
    for p, f in zip(primary, per_gap):
        out.append(p)
        out.extend(f)
    return out


S_WG = 2
S_WAVE = 3
S_X, S_M, S_B, S_QUAD, S_H = 20, 21, 22, 24, 25
S_SPIN = 26
S_TAU1, S_TAU2 = 27, 62
S_T0, S_T1, S_T2, S_T3 = 28, 29, 30, 31
S_RET = 32
KA_X, KA_K, KA_V, KA_WQ, KA_WO = 36, 38, 40, 42, 44
KA_PH = 10
KA_OUT, KA_DBG, KA_WS = 56, 58, 60
SL_ISS, SL_PUB, SL_FMIN, SL_SLOT, SL_NEED, SL_OFF, SL_OFF2, SL_CNT, SL_CNT2, SL_KOFF, SL_VOFF, SL_ROT = range(4, 16)
SL_RET2 = 16
SL_XB, SL_WB = 18, 19
SL_NADJ = 23
SL_QSLOT = 63
SRD_X, SRD_K, SRD_V, SRD_WQ, SRD_WO = 64, 68, 72, 76, 80
SC_L, SC_SLOT, SC_IDX, SC_IT, SC_T, SC_NEED, SC_SLOT2, SC_ADJ = range(4, 12)
SC_OOFF, SC_OOFF2, SC_FOFF, SC_POFF = 12, 13, 14, 15
SC_NONCE = 16
SC_RET2 = 18
SC_FOFF0, SC_O1ST = 72, 73
SC_WRAP = 74
SRD_WS, SRD_OUT = 64, 68
S_ST = 84

V_KB = 8
V_VB = 10
V_WB = 11
V_KA = 12
V_VA = 14
V_L16 = 15
V_LSUM, V_LS2, V_TMAX, V_ALPHA, V_FV, V_LADDR, V_FADDR, V_LRD = range(17, 25)
V_VB2 = 25
V_NON = 26
V_PF = 32
V_NEGM = 48
V_O = 64
V_SA = 128
V_SB = 144
V_ACCQ = 160
V_Q2 = 160
V_STG = 192
V_Q1 = 224
V_ACC1 = 192
V_ACC2 = 128
A_AF = [0, 32]
A_KF = 64
A_VF = [96, 128]
A_XF = [160, 192]
MFMA = "v_mfma_f32_32x32x16_bf16"


def build(cfg):
    NS, D, NQ, E = cfg.NS, cfg.D, cfg.NQ, cfg.E
    assert NS == NQ + E and NS % 2 == 0 and (NQ + 3) % 2 == 0
    RING = NS * SLOT
    FLAG_L = RING
    FLAG_F = RING + 16
    LDS_BYTES = RING + 64
    a = Asm()
    e = a.e
    hdr = []
    hdr.append("; @launch grid=(256,1,1) block=(256,1,1) lds=%d" % LDS_BYTES)
    hdr.append('.amdgcn_target "amdgcn-amd-amdhsa--gfx950"')
    hdr.append(".text")
    hdr.append(".globl %s_kernel" % NAME)
    hdr.append(".p2align 8")
    hdr.append(".type %s_kernel,@function" % NAME)
    hdr.append("%s_kernel:" % NAME)
    stl = cfg.stamplist.split(",")

    def stamp(name):
        if cfg.stamps:
            for k, nm in enumerate(stl):
                if nm == name:
                    e("s_memrealtime %s" % sr(S_ST + 2 * k, 2))
                if nm == name + ".c":
                    e("s_memtime %s" % sr(S_ST + 2 * k, 2))

    e("s_cmp_ge_u32 s2, 256")
    e("s_cbranch_scc1 L_end")
    e("s_load_dwordx16 s[36:51], s[0:1], 0")
    e("s_load_dwordx4 s[52:55], s[0:1], 64")
    e("s_load_dwordx4 s[56:59], s[0:1], 80")
    e("s_load_dwordx2 s[60:61], s[0:1], 96")
    stamp("start")
    e("v_lshrrev_b32 v1, 6, v0")
    e("v_and_b32 v0, 63, v0")
    e("s_and_b32 %s, s2, 7" % sr(S_X))
    e("v_readfirstlane_b32 %s, v1" % sr(S_WAVE))
    e("s_lshr_b32 s28, s2, 3")
    e("s_and_b32 %s, s28, 3" % sr(S_M))
    e("s_lshr_b32 %s, s28, 2" % sr(S_B))
    e("s_lshl_b32 %s, %s, 2" % (sr(S_H), sr(S_X)))
    e("s_add_u32 %s, %s, %s" % (sr(S_H), sr(S_H), sr(S_M)))
    e("s_lshl_b32 %s, %s, 3" % (sr(S_QUAD), sr(S_B)))
    e("s_add_u32 %s, %s, %s" % (sr(S_QUAD), sr(S_QUAD), sr(S_X)))
    e("s_mov_b32 %s, 0x%x" % (sr(S_SPIN), cfg.spin))
    for dst, base, mul in ((S_TAU1, cfg.tau1_base, cfg.tau1_mul), (S_TAU2, cfg.tau2_base, cfg.tau2_mul)):
        e("s_mul_i32 %s, %s, %d" % (sr(dst), sr(S_X), mul))
        e("s_lshr_b32 %s, %s, 3" % (sr(dst), sr(dst)))
        e("s_add_u32 %s, %s, %d" % (sr(dst), sr(dst), base))
    e("s_cmp_eq_u32 %s, 3" % sr(S_WAVE))
    e("s_cbranch_scc0 L_compute")

    def srd(dst, ptr, nbytes):
        e("s_mov_b32 %s, %s" % (sr(dst), sr(ptr)))
        e("s_mov_b32 %s, %s" % (sr(dst + 1), sr(ptr + 1)))
        e("s_mov_b32 %s, 0x%x" % (sr(dst + 2), nbytes))
        e("s_mov_b32 %s, 0x20000" % sr(dst + 3))

    a.lab("L_loader")
    e("s_setprio 3")
    LV_K, LV_V, LV_X, LV_WQ, LV_WO, LV_T, LV_LADDR, LV_FADDR, LV_F = 8, 12, 16, 20, 24, 28, 29, 30, 32
    BIAS = 4096
    NB_X, NB_KV, NB_W = 8 * 96 * 512 * 2, 8 * 32 * 1024 * 128 * 2, 512 * 4096 * 2

    def srdb(dst, ptr, nbytes, full=True):
        e("s_sub_u32 %s, %s, %d" % (sr(dst), sr(ptr), BIAS))
        e("s_subb_u32 %s, %s, 0" % (sr(dst + 1), sr(ptr + 1)))
        if full:
            e("s_mov_b32 %s, 0x%x" % (sr(dst + 2), nbytes + BIAS))
            e("s_mov_b32 %s, 0x20000" % sr(dst + 3))

    e("v_lshrrev_b32 v1, 4, v0")
    e("v_and_b32 v2, 15, v0")
    e("v_xor_b32 v3, v2, v1")
    e("v_lshlrev_b32 v3, 4, v3")
    e("v_lshlrev_b32 v2, 4, v2")
    e("v_lshlrev_b32 v4, 12, v1")
    e("v_lshlrev_b32 v5, 15, v1")
    e("v_lshlrev_b32 v6, 10, v1")

    def lane_offs(dst, rowpart, colpart, rs):
        e("v_add_u32 v%d, v%d, v%d" % (dst, rowpart, colpart))
        for b in range(3, 0, -1):
            e("v_add_u32 v%d, %d, v%d" % (dst + b, BIAS + b * (rs - BLK), dst))
        e("v_add_u32 v%d, %d, v%d" % (dst, BIAS, dst))

    lane_offs(LV_X, 4, 3, 1024)
    lane_offs(LV_WQ, 5, 2, 8192)
    e("v_mov_b32 v%d, %d" % (LV_LADDR, FLAG_L))
    e("v_mov_b32 v%d, %d" % (LV_FADDR, FLAG_F))
    e("v_mov_b32 v%d, 0" % LV_T)
    e("ds_write_b32 v%d, v%d" % (LV_LADDR, LV_T))
    e("s_mov_b32 %s, 0" % sr(SL_ISS))
    e("s_mov_b32 %s, 0" % sr(SL_PUB))
    e("s_mov_b32 %s, 0" % sr(SL_FMIN))
    e("s_mov_b32 %s, 0" % sr(SL_SLOT))
    e("s_mov_b32 %s, -1" % sr(SL_NEED))
    e("s_add_u32 %s, %s, %s" % (sr(SL_ROT), sr(S_B), sr(S_M)))
    e("s_and_b32 %s, %s, 3" % (sr(SL_ROT), sr(SL_ROT)))
    e("s_waitcnt lgkmcnt(0)")
    P0 = KA_PH if cfg.swap else 0
    P1 = 0 if cfg.swap else KA_PH
    srdb(SRD_X, KA_X + P0, NB_X)
    srdb(SRD_WQ, KA_WQ + P0, NB_W)
    if cfg.noload:
        e("v_mov_b32 v%d, 100000" % LV_T)
        e("ds_write_b32 v%d, v%d" % (LV_LADDR, LV_T))
        e("s_waitcnt lgkmcnt(0)")
        e("s_barrier")
        e("s_branch L_fin")

    ool = []

    def publish(d):
        e("s_sub_i32 %s, %s, %d" % (sr(S_T0), sr(SL_ISS), d))
        e("s_max_i32 %s, %s, %s" % (sr(SL_PUB), sr(SL_PUB), sr(S_T0)))
        e("v_mov_b32 v%d, %s" % (LV_T, sr(SL_PUB)))
        e("ds_write_b32 v%d, v%d" % (LV_LADDR, LV_T))

    def issue_tile(srdreg, voff, rs, flags, wrap, nowait=False, check=True):
        if check:
            e("s_cmp_ge_i32 %s, %s" % (sr(SL_FMIN), sr(SL_NEED)))
            slow = a.newlab("lslow")
            ok = a.newlab("ok")
            e("s_cbranch_scc0 %s" % slow)
            a.lab(ok)
            ool.append((slow, ok))

        def ld(b):
            e("buffer_load_dwordx4 v%d, %s, %s offen offset:%d %s lds" % (
                voff + (b & 3), sr(srdreg, 4), sr(SL_OFF if b < 4 else SL_OFF2), (b & 3) * BLK, flags))
        e("s_mov_b32 m0, %s" % sr(SL_SLOT))
        e("s_add_u32 %s, %s, %d" % (sr(SL_OFF2), sr(SL_OFF), 16 * rs))
        ld(0)
        e("v_mov_b32 v%d, %s" % (LV_T, sr(SL_PUB)))
        ld(1)
        e("ds_write_b32 v%d, v%d" % (LV_LADDR, LV_T))
        ld(2)
        e("s_add_u32 %s, %s, 1" % (sr(SL_ISS), sr(SL_ISS)))
        ld(3)
        e("s_add_u32 m0, %s, %d" % (sr(SL_SLOT), 4 * BLK))
        e("s_add_u32 %s, %s, %d" % (sr(SL_SLOT), sr(SL_SLOT), SLOT))
        ld(4)
        e("s_cmp_lt_u32 %s, %d" % (sr(SL_SLOT), wrap))
        e("s_cselect_b32 %s, %s, 0" % (sr(SL_SLOT), sr(SL_SLOT)))
        ld(5)
        e("s_sub_i32 %s, %s, %s" % (sr(SL_NEED), sr(SL_ISS), sr(SL_NADJ)))
        ld(6)
        e("s_sub_i32 %s, %s, %d" % (sr(S_T0), sr(SL_ISS), D))
        ld(7)
        if not nowait:
            e("s_waitcnt vmcnt(%d)" % (8 * D))
            e("s_max_i32 %s, %s, %s" % (sr(SL_PUB), sr(SL_PUB), sr(S_T0)))

    def qp_round(wrap, first_nowait=0):
        n = 0

        def after():
            if first_nowait and n == first_nowait:
                e("s_waitcnt lgkmcnt(0)")
                e("s_barrier")
        for w in range(3):
            e("s_add_u32 %s, %s, %d" % (sr(SL_OFF), sr(SL_XB), w * 32 * 1024))
            issue_tile(SRD_X, LV_X, 1024, cfg.xflags, wrap, nowait=(n < first_nowait))
            n += 1
            after()
        for j in range(4):
            e("s_add_u32 %s, %s, %d" % (sr(SL_OFF), sr(SL_WB), j * 32 * 8192))
            issue_tile(SRD_WQ, LV_WQ, 8192, cfg.wflags, wrap, nowait=(n < first_nowait))
            n += 1
            after()

    def qp_bases():
        e("s_add_u32 %s, %s, %s" % (sr(S_T1), sr(SL_ROT), sr(SL_CNT)))
        e("s_and_b32 %s, %s, 3" % (sr(S_T1), sr(S_T1)))
        e("s_lshl_b32 %s, %s, 8" % (sr(S_T2), sr(S_T1)))
        e("s_mul_i32 %s, %s, %d" % (sr(SL_XB), sr(S_B), 96 * 1024))
        e("s_add_u32 %s, %s, %s" % (sr(SL_XB), sr(SL_XB), sr(S_T2)))
        e("s_lshl_b32 %s, %s, 20" % (sr(S_T2), sr(S_T1)))
        e("s_lshl_b32 %s, %s, 8" % (sr(SL_WB), sr(S_H)))
        e("s_add_u32 %s, %s, %s" % (sr(SL_WB), sr(SL_WB), sr(S_T2)))

    kvf = "" if cfg.kvsame else cfg.kvflags
    e("s_mov_b32 %s, %d" % (sr(SL_NADJ), NQ - 1))
    e("s_mov_b32 %s, 0" % sr(SL_CNT))
    qp_bases()
    qp_round(NQ * SLOT, first_nowait=D)
    srdb(SRD_K, KA_K + P0, NB_KV)
    srdb(SRD_V, KA_V + P0, NB_KV)
    srdb(SRD_WO, KA_WO + P0, NB_W)
    lane_offs(LV_K, 6, 3, 256)
    lane_offs(LV_V, 6, 2, 256)
    lane_offs(LV_WO, 4, 2, 1024)
    e("s_lshl_b32 %s, %s, 5" % (sr(S_T1), sr(S_B)))
    e("s_add_u32 %s, %s, %s" % (sr(S_T1), sr(S_T1), sr(S_H)))
    e("s_lshl_b32 %s, %s, 18" % (sr(SL_KOFF), sr(S_T1)))
    stamp("qx0")

    def early_tiles():
        e("s_mov_b32 %s, %s" % (sr(SL_QSLOT), sr(SL_SLOT)))
        e("s_mov_b32 %s, %d" % (sr(SL_SLOT), NQ * SLOT))
        seq = [("K", 0), ("K", 1), ("V", 0)]
        t = 0
        while len(seq) < E:
            seq += [("K", t + 2), ("V", t + 1)]
            t += 1
        assert len(seq) == E
        for kind, t in seq:
            e("s_add_u32 %s, %s, %d" % (sr(SL_OFF), sr(SL_KOFF), 0 if cfg.kvsame else t * 8192))
            if kind == "K":
                issue_tile(SRD_K, LV_K, 256, kvf, RING, check=False)
            else:
                issue_tile(SRD_V, LV_V, 256, kvf, RING, check=False)
        e("s_mov_b32 %s, %s" % (sr(SL_SLOT), sr(SL_QSLOT)))

    npairs_early = (E - 3) // 2
    if cfg.ytype == 1:
        e("s_and_b32 %s, %s, 1" % (sr(S_T3), sr(S_M)))
        e("s_cmp_eq_u32 %s, 0" % sr(S_T3))
        e("s_cbranch_scc1 L_ld_x1")
    if cfg.ytype in (1, 2):
        early_tiles()
        e("s_mov_b32 %s, %d" % (sr(SL_NADJ), NQ - 1 + E))
        e("s_sub_i32 %s, %s, %s" % (sr(SL_NEED), sr(SL_ISS), sr(SL_NADJ)))
    a.lab("L_ld_x1")
    e("s_mov_b32 %s, 1" % sr(SL_CNT))
    a.lab("L_ld_qp1")
    qp_bases()
    qp_round(NQ * SLOT)
    e("s_add_u32 %s, %s, 1" % (sr(SL_CNT), sr(SL_CNT)))
    e("s_cmp_lt_u32 %s, 4" % sr(SL_CNT))
    e("s_cbranch_scc1 L_ld_qp1")
    if cfg.ytype == 1:
        e("s_and_b32 %s, %s, 1" % (sr(S_T3), sr(S_M)))
        e("s_cmp_eq_u32 %s, 0" % sr(S_T3))
        e("s_cbranch_scc0 L_ld_y2")
    if cfg.ytype in (0, 1):
        early_tiles()
    a.lab("L_ld_y2")
    stamp("qp")
    e("s_mov_b32 %s, 0" % sr(SL_SLOT))
    e("s_mov_b32 %s, %d" % (sr(SL_NADJ), NS - 1))
    e("s_mov_b32 %s, 28" % sr(SL_NEED))
    srdb(SRD_X, KA_X + P1, NB_X, full=False)
    srdb(SRD_WQ, KA_WQ + P1, NB_W, full=False)

    e("s_mov_b32 %s, 0" % sr(SL_CNT2))
    e("s_add_u32 %s, %s, %d" % (sr(SL_VOFF), sr(SL_KOFF), 0 if cfg.kvsame else npairs_early * 8192))
    e("s_mov_b32 %s, %d" % (sr(SL_CNT), npairs_early))
    e("s_branch L_ld_kv")
    a.lab("L_ld_head")
    e("s_mov_b32 %s, %s" % (sr(SL_OFF), sr(SL_KOFF)))
    issue_tile(SRD_K, LV_K, 256, kvf, RING)
    e("s_add_u32 %s, %s, 8192" % (sr(SL_OFF), sr(SL_KOFF)))
    issue_tile(SRD_K, LV_K, 256, kvf, RING)
    e("s_mov_b32 %s, %s" % (sr(SL_OFF), sr(SL_KOFF)))
    issue_tile(SRD_V, LV_V, 256, kvf, RING)
    e("s_mov_b32 %s, %s" % (sr(SL_VOFF), sr(SL_KOFF)))
    e("s_mov_b32 %s, 0" % sr(SL_CNT))
    a.lab("L_ld_kv")
    e("s_add_u32 %s, %s, 16384" % (sr(SL_OFF), sr(SL_VOFF)))
    issue_tile(SRD_K, LV_K, 256, kvf, RING)
    e("s_add_u32 %s, %s, 8192" % (sr(SL_OFF), sr(SL_VOFF)))
    issue_tile(SRD_V, LV_V, 256, kvf, RING)
    if not cfg.kvsame:
        e("s_add_u32 %s, %s, 8192" % (sr(SL_VOFF), sr(SL_VOFF)))
    e("s_add_u32 %s, %s, 1" % (sr(SL_CNT), sr(SL_CNT)))
    e("s_cmp_eq_u32 %s, 0" % sr(SL_CNT2))
    e("s_cselect_b32 %s, %s, %s" % (sr(S_T1), sr(S_TAU1), sr(S_TAU2)))
    e("s_lshl_b32 %s, %s, 1" % (sr(S_T1), sr(S_T1)))
    e("s_cmp_eq_u32 %s, %s" % (sr(SL_CNT), sr(S_T1)))
    e("s_cbranch_scc1 L_ld_event")
    a.lab("L_ld_evret")
    e("s_cmp_lt_u32 %s, 30" % sr(SL_CNT))
    e("s_cbranch_scc1 L_ld_kv")
    e("s_add_u32 %s, %s, 8192" % (sr(SL_OFF), sr(SL_VOFF)))
    issue_tile(SRD_V, LV_V, 256, kvf, RING)
    e("s_cmp_eq_u32 %s, 0" % sr(SL_CNT2))
    e("s_cbranch_scc0 L_ld_tail")
    stamp("h0")
    srdb(SRD_K, KA_K + P1, NB_KV, full=False)
    srdb(SRD_V, KA_V + P1, NB_KV, full=False)
    e("s_mov_b32 %s, 1" % sr(SL_CNT2))
    e("s_branch L_ld_head")
    a.lab("L_ld_tail")
    stamp("h1")
    srdb(SRD_WO, KA_WO + P1, NB_W, full=False)
    e("s_call_b64 %s, L_ld_wo" % sr(SL_RET2, 2))
    for d in range(D - 1, -1, -1):
        e("s_waitcnt vmcnt(%d)" % (8 * d))
        publish(d)
    e("s_waitcnt lgkmcnt(0)")
    stamp("t2")
    e("s_branch L_fin")

    a.lab("L_ld_event")
    e("s_cmp_eq_u32 %s, 0" % sr(SL_CNT2))
    e("s_cbranch_scc0 L_ld_ev2")
    e("s_mov_b32 %s, %s" % (sr(SL_RET2), sr(SL_CNT)))
    e("s_mov_b32 %s, 0" % sr(SL_CNT))
    a.lab("L_ld_qp2")
    qp_bases()
    qp_round(RING)
    e("s_add_u32 %s, %s, 1" % (sr(SL_CNT), sr(SL_CNT)))
    e("s_cmp_lt_u32 %s, 4" % sr(SL_CNT))
    e("s_cbranch_scc1 L_ld_qp2")
    e("s_mov_b32 %s, %s" % (sr(SL_CNT), sr(SL_RET2)))
    e("s_branch L_ld_evret")
    a.lab("L_ld_ev2")
    e("s_call_b64 %s, L_ld_wo" % sr(SL_RET2, 2))
    e("s_branch L_ld_evret")

    a.lab("L_ld_wo")
    e("s_mov_b32 %s, 0" % sr(SL_XB))
    a.lab("L_ld_wo_r")
    e("s_add_u32 %s, %s, %s" % (sr(S_T1), sr(S_M), sr(SL_XB)))
    e("s_and_b32 %s, %s, 3" % (sr(S_T1), sr(S_T1)))
    e("s_lshl_b32 %s, %s, 17" % (sr(S_T1), sr(S_T1)))
    e("s_lshl_b32 %s, %s, 19" % (sr(SL_WB), sr(S_X)))
    e("s_add_u32 %s, %s, %s" % (sr(SL_WB), sr(SL_WB), sr(S_T1)))
    e("s_lshl_b32 %s, %s, 8" % (sr(S_T1), sr(S_M)))
    e("s_add_u32 %s, %s, %s" % (sr(SL_WB), sr(SL_WB), sr(S_T1)))
    for j in range(4):
        e("s_add_u32 %s, %s, %d" % (sr(SL_OFF), sr(SL_WB), j * 32 * 1024))
        issue_tile(SRD_WO, LV_WO, 1024, cfg.woflags, RING)
    e("s_add_u32 %s, %s, 1" % (sr(SL_XB), sr(SL_XB)))
    e("s_cmp_lt_u32 %s, 4" % sr(SL_XB))
    e("s_cbranch_scc1 L_ld_wo_r")
    e("s_setpc_b64 %s" % sr(SL_RET2, 2))

    for slow, ok in ool:
        a.lab(slow)
        e("s_call_b64 %s, L_waitfree" % sr(S_RET, 2))
        e("s_branch %s" % ok)
    a.lab("L_waitfree")

    def readf():
        e("ds_read_b96 v[%d:%d], v%d" % (LV_F, LV_F + 2, LV_FADDR))
        e("s_waitcnt lgkmcnt(0)")
        e("v_min3_u32 v%d, v%d, v%d, v%d" % (LV_F, LV_F, LV_F + 1, LV_F + 2))
        e("s_nop 0")
        e("v_readfirstlane_b32 %s, v%d" % (sr(SL_FMIN), LV_F))
        e("s_nop 3")
        e("s_cmp_ge_i32 %s, %s" % (sr(SL_FMIN), sr(SL_NEED)))
        e("s_cbranch_scc1 L_wf_ret")

    e("v_mov_b32 v%d, %s" % (LV_T, sr(SL_PUB)))
    e("ds_write_b32 v%d, v%d" % (LV_LADDR, LV_T))
    for d in range(D - 1, -1, -1):
        readf()
        e("s_waitcnt vmcnt(%d)" % (8 * d))
        publish(d)
    a.lab("L_wf_spin")
    readf()
    e("s_sleep 1")
    e("s_sub_u32 %s, %s, 1" % (sr(S_SPIN), sr(S_SPIN)))
    e("s_cmp_eq_u32 %s, 0" % sr(S_SPIN))
    e("s_cbranch_scc0 L_wf_spin")
    e("s_endpgm")
    a.lab("L_wf_ret")
    e("s_setpc_b64 %s" % sr(S_RET, 2))

    if cfg.noxchg:
        a.filt = lambda sx: (sx.startswith("buffer_") or sx.startswith("global_load")
                             or sx.startswith("global_store_dwordx2"))
    a.lab("L_compute")
    e("v_and_b32 v1, 3, v0")
    e("v_lshrrev_b32 v2, 5, v0")
    e("v_lshrrev_b32 v3, 4, v0")
    e("v_and_b32 v3, 1, v3")
    e("v_lshrrev_b32 v4, 2, v0")
    e("v_and_b32 v4, 3, v4")
    e("v_lshlrev_b32 v5, 2, v3")
    e("v_add_u32 v5, v5, v1")
    e("s_movk_i32 %s, %d" % (sr(S_T0), BLK))
    e("v_mul_lo_u32 v5, v5, %s" % sr(S_T0))
    e("v_lshlrev_b32 v6, 8, v4")
    e("v_add_u32 v5, v5, v6")
    for par in range(2):
        e("v_add_u32 v6, %d, v2" % (2 * par))
        e("v_xor_b32 v6, v6, v4")
        e("v_lshlrev_b32 v6, 4, v6")
        e("v_add_u32 v%d, v5, v6" % (V_KB + par))
    e("v_lshrrev_b32 v6, 1, v1")
    e("v_and_b32 v7, 1, v1")
    e("v_lshlrev_b32 v7, 1, v7")
    e("v_or_b32 v6, v6, v7")
    e("v_lshlrev_b32 v6, 3, v6")
    e("v_lshlrev_b32 v7, 5, v3")
    e("v_add_u32 v6, v6, v7")
    e("v_mul_lo_u32 v7, v4, %s" % sr(S_T0))
    e("v_add_u32 v6, v6, v7")
    e("v_lshlrev_b32 v7, 8, v2")
    e("v_add_u32 v%d, v6, v7" % V_VB)
    e("v_add_u32 v%d, v%d, v7" % (V_WB, V_VB))
    e("v_add_u32 v%d, %d, v%d" % (V_VB2, SLOT, V_VB))
    e("v_mov_b32 v%d, %d" % (V_LADDR, FLAG_L))
    e("s_lshl_b32 %s, %s, 2" % (sr(S_T0), sr(S_WAVE)))
    e("s_add_u32 %s, %s, %d" % (sr(S_T0), sr(S_T0), FLAG_F))
    e("v_mov_b32 v%d, %s" % (V_FADDR, sr(S_T0)))
    e("v_mov_b32 v%d, %d" % (V_FV, 100000 if cfg.nocompute else 0))
    e("ds_write_b32 v%d, v%d" % (V_FADDR, V_FV))
    e("v_lshlrev_b32 v%d, 4, v0" % V_L16)
    e("s_mov_b32 %s, 0" % sr(SC_L))
    c = (128 ** -0.5) * math.log2(math.e)
    e("s_mov_b32 %s, 0x%x" % (sr(SC_T), f32bits(cfg.T_LOG2)))
    e("s_mov_b32 %s, 0" % sr(SC_IDX))
    e("s_mov_b32 %s, 0" % sr(SC_SLOT))
    e("s_mov_b32 %s, %d" % (sr(SC_WRAP), NQ * SLOT))
    if cfg.ytype == 1:
        e("s_and_b32 %s, %s, 1" % (sr(S_T1), sr(S_M)))
        e("s_mul_i32 %s, %s, %d" % (sr(S_T1), sr(S_T1), E))
    else:
        e("s_mov_b32 %s, %d" % (sr(S_T1), E if cfg.ytype == 2 else 0))
    e("s_mov_b32 %s, %s" % (sr(SC_OOFF), sr(S_T1)))
    e("s_mov_b32 %s, 0" % sr(SC_ADJ))
    e("s_waitcnt lgkmcnt(0)")
    srd(SRD_WS, KA_WS, WS_USED)
    srd(SRD_OUT, KA_OUT, 8 * 96 * 1024 * 2)
    e("s_or_b32 %s, %s, %s" % (sr(S_T0), sr(S_WG), sr(S_WAVE)))
    e("s_cmp_eq_u32 %s, 0" % sr(S_T0))
    e("s_cbranch_scc0 L_nononce")
    e("s_memrealtime %s" % sr(SC_NONCE, 2))
    e("s_waitcnt lgkmcnt(0)")
    e("s_or_b32 %s, %s, 1" % (sr(SC_NONCE), sr(SC_NONCE)))
    e("v_mov_b32 v2, %s" % sr(SC_NONCE))
    e("v_mov_b32 v3, %s" % sr(SC_NONCE + 1))
    e("v_mov_b32 v1, 0")
    e("global_store_dwordx2 v1, v[2:3], %s sc1" % sr(KA_DBG, 2))
    a.lab("L_nononce")
    e("s_barrier")
    stamp("bar")
    if cfg.nocompute:
        e("s_branch L_fin")

    slowwaits = []

    def wait_landed_l(delta, adj=False):
        slow = a.newlab("lw_slow")
        back = a.newlab("lw_back")
        slowwaits.append((slow, back))
        out = ["s_add_u32 %s, %s, %d" % (sr(SC_NEED), sr(SC_IDX), delta)]
        if adj:
            out.append("s_add_u32 %s, %s, %s" % (sr(SC_NEED), sr(SC_NEED), sr(SC_ADJ)))
        out += ["s_cmp_lt_u32 %s, %s" % (sr(SC_L), sr(SC_NEED)),
                "s_cbranch_scc1 %s" % slow,
                back + ":"]
        return out

    def wait_landed(delta, adj=False):
        a.extend(wait_landed_l(delta, adj))

    def slot_adv_l(dst, src, n):
        return ["s_add_u32 %s, %s, %d" % (sr(dst), sr(src), n * SLOT),
                "s_sub_u32 %s, %s, %s" % (sr(S_T0), sr(dst), sr(SC_WRAP)),
                "s_cmp_lt_u32 %s, %s" % (sr(dst), sr(SC_WRAP)),
                "s_cselect_b32 %s, %s, %s" % (sr(dst), sr(dst), sr(S_T0))]

    def slot_adv(dst, src, n):
        a.extend(slot_adv_l(dst, src, n))

    def release_l(sg):
        return ["v_mov_b32 v%d, %s" % (V_FV, sr(sg)), "ds_write_b32 v%d, v%d" % (V_FADDR, V_FV)]

    def k_addr(slot):
        return ["v_add_u32 v%d, %s, v%d" % (V_KA + p, sr(slot), V_KB + p) for p in range(2)]

    def k_reads(dst_a):
        return ["ds_read_b128 %s, v%d offset:%d" % (ar(dst_a + 4 * s, 4), V_KA + (s & 1), (s >> 1) * 64)
                for s in range(8)]

    def v_addr(slot, base):
        return ["v_add_u32 v%d, %s, v%d" % (V_VA, sr(slot), base)]

    def v_reads(dst_a, isw):
        out = []
        for ks in range(2):
            for db in range(4):
                base = dst_a + (ks * 4 + db) * 4
                o2 = 256 if isw else 512
                o = ks * 4 * BLK + db * 64
                out.append("ds_read_b64_tr_b16 %s, v%d offset:%d" % (ar(base, 2), V_VA, o))
                out.append("ds_read_b64_tr_b16 %s, v%d offset:%d" % (ar(base + 2, 2), V_VA, o + o2))
        return out

    hooks = {}

    def proj(acc, bfrag, xmode):
        ntile_x = 3 if xmode else 0

        def x_prefetch():
            out = []
            out.append("s_mul_i32 %s, %s, %d" % (sr(S_T1), sr(S_WAVE), SLOT))
            out.append("s_add_u32 %s, %s, %s" % (sr(SC_SLOT2), sr(SC_SLOT), sr(S_T1)))
            out += slot_adv_l(SC_SLOT2, SC_SLOT2, 0)
            out += k_addr(SC_SLOT2)
            out += slot_adv_l(SC_SLOT, SC_SLOT, 3)
            return out

        def advance(n):
            return ["s_add_u32 %s, %s, %d" % (sr(SC_IDX), sr(SC_IDX), n)] + slot_adv_l(SC_SLOT, SC_SLOT, 1)

        wait_landed(ntile_x + 1, xmode)
        if xmode:
            a.extend(x_prefetch())
            a.extend(k_reads(A_XF[0]))
        a.extend(v_addr(SC_SLOT, V_WB))
        a.extend(v_reads(A_AF[0], True))
        a.extend(advance(ntile_x + 1))
        for cidx in range(16):
            r, j = divmod(cidx, 4)
            e("s_waitcnt lgkmcnt(0)")
            mf = []
            for ks in range(2):
                for db in range(4):
                    cin = "0" if (cidx == 0 and ks == 0) else vr(acc + 16 * db, 16)
                    mf.append("%s %s, %s, %s, %s" % (
                        MFMA, vr(acc + 16 * db, 16), ar(A_AF[cidx & 1] + (ks * 4 + db) * 4, 4),
                        bfrag(r, 2 * j + ks), cin))
            per = [[] for _ in range(8)]
            per[0] += release_l(SC_IDX)
            if cidx < 15:
                nx = ntile_x if j == 3 else 0
                if xmode and cidx == 3:
                    per[0] += ["s_mov_b32 %s, %s" % (sr(SC_ADJ), sr(SC_OOFF))]
                per[0] += wait_landed_l(nx + 1, xmode)
                wr = v_reads(A_AF[(cidx + 1) & 1], True)
                if nx:
                    per[0] += x_prefetch()
                    xr = k_reads(A_XF[(r + 1) & 1])
                    per[1] = v_addr(SC_SLOT, V_WB) + xr[0:4]
                    per[2] = xr[4:8]
                    per[3] = wr[0:5]
                    per[4] = wr[5:10]
                    per[5] = wr[10:16]
                    per[6] += advance(nx + 1)
                else:
                    per[0] += v_addr(SC_SLOT, V_WB) + wr[0:2]
                    per[1] += wr[2:6]
                    per[2] += wr[6:10]
                    per[3] += wr[10:13]
                    per[4] += wr[13:16]
                    per[5] += advance(1)
            a.extend(gaps(mf, per))
            if hooks.get(cidx):
                hooks[cidx]()

    e("s_branch L_main")
    a.lab("L_qproj")
    proj(V_ACCQ, lambda r, s: ar(A_XF[r & 1] + 4 * s, 4), True)
    e("s_nop 7")
    e("s_nop 3")
    e("s_mov_b32 %s, 0x%x" % (sr(S_T1), f32bits(c)))
    for i in range(64):
        e("v_mul_f32 v%d, %s, v%d" % (V_ACCQ + i, sr(S_T1), V_ACCQ + i))
    e("s_setpc_b64 %s" % sr(SC_RET2, 2))

    a.lab("L_main")
    e("s_call_b64 %s, L_qproj" % sr(SC_RET2, 2))
    for i in range(32):
        e("v_cvt_pk_bf16_f32 v%d, v%d, v%d" % (V_Q1 + i, V_ACCQ + 2 * i, V_ACCQ + 2 * i + 1))
    e("s_mov_b32 %s, %d" % (sr(SC_SLOT), NQ * SLOT))
    e("s_mov_b32 %s, %d" % (sr(SC_WRAP), RING))
    e("s_mov_b32 %s, 0" % sr(SC_ADJ))
    e("s_mov_b32 %s, 0" % sr(SC_OOFF))
    stamp("qp")

    def qk_mfmas(sdst, qbase, cin):
        return ["%s %s, %s, %s, %s" % (MFMA, vr(sdst, 16), ar(A_KF + 4 * s, 4), vr(qbase + 4 * s, 4),
                                       cin if s == 0 else vr(sdst, 16)) for s in range(8)]

    def softmax_gaps(sc):
        g = []
        for k in range(8):
            l = ["v_exp_f32 v%d, v%d" % (sc + 2 * k, sc + 2 * k),
                 "v_exp_f32 v%d, v%d" % (sc + 2 * k + 1, sc + 2 * k + 1)]
            if k > 0:
                p = k - 1
                l += ["v_add_f32 v%d, v%d, v%d" % (V_LSUM, V_LSUM, sc + 2 * p),
                      "v_add_f32 v%d, v%d, v%d" % (V_LS2, V_LS2, sc + 2 * p + 1),
                      "v_cvt_pk_bf16_f32 v%d, v%d, v%d" % (V_PF + p, sc + 2 * p, sc + 2 * p + 1)]
            g.append(l)
        tail = ["v_add_f32 v%d, v%d, v%d" % (V_LSUM, V_LSUM, sc + 14),
                "v_add_f32 v%d, v%d, v%d" % (V_LS2, V_LS2, sc + 15),
                "v_cvt_pk_bf16_f32 v%d, v%d, v%d" % (V_PF + 7, sc + 14, sc + 15)]
        return g, tail

    def pv_mfmas(vf):
        out = []
        for ks in range(2):
            for db in range(4):
                out.append("%s %s, %s, %s, %s" % (
                    MFMA, vr(V_O + 16 * db, 16), ar(vf + (ks * 4 + db) * 4, 4), vr(V_PF + 4 * ks, 4),
                    vr(V_O + 16 * db, 16)))
        return out

    def max_valu(sn):
        out = ["v_max3_f32 v%d, v%d, v%d, v%d" % (V_TMAX, sn, sn + 1, sn + 2)]
        for i in range(3, 15, 2):
            out.append("v_max3_f32 v%d, v%d, v%d, v%d" % (V_TMAX, V_TMAX, sn + i, sn + i + 1))
        out.append("v_max_f32 v%d, v%d, v%d" % (V_TMAX, V_TMAX, sn + 15))
        return out

    def cross_half_max():
        e("v_mov_b32 v1, v%d" % V_TMAX)
        e("s_nop 1")
        e("v_permlane32_swap_b32 v%d, v1" % V_TMAX)
        e("s_nop 1")
        e("v_max_f32 v%d, v%d, v1" % (V_TMAX, V_TMAX))

    def rare_path(lab, back, sn):
        a.lab(lab)
        cross_half_max()
        e("v_max_f32 v%d, 0, v%d" % (V_TMAX, V_TMAX))
        e("v_sub_f32 v%d, 0, v%d" % (V_ALPHA, V_TMAX))
        e("v_exp_f32 v%d, v%d" % (V_ALPHA, V_ALPHA))
        for i in range(16):
            e("v_sub_f32 v%d, v%d, v%d" % (sn + i, sn + i, V_TMAX))
        for i in range(16):
            e("v_sub_f32 v%d, v%d, v%d" % (V_NEGM + i, V_NEGM + i, V_TMAX))
        e("v_mul_f32 v%d, v%d, v%d" % (V_LSUM, V_LSUM, V_ALPHA))
        e("v_mul_f32 v%d, v%d, v%d" % (V_LS2, V_LS2, V_ALPHA))
        for i in range(64):
            e("v_mul_f32 v%d, v%d, v%d" % (V_O + i, V_O + i, V_ALPHA))
        e("s_branch %s" % back)

    rare = []
    events = []

    def get_nonce():
        if cfg.noxchg:
            return
        lp = a.newlab("nonce")
        a.lab(lp)
        e("v_mov_b32 v1, 0")
        e("global_load_dwordx2 v[2:3], v1, %s sc1" % sr(KA_DBG, 2))
        e("s_waitcnt vmcnt(0)")
        e("v_readfirstlane_b32 %s, v2" % sr(SC_NONCE))
        e("v_readfirstlane_b32 %s, v3" % sr(SC_NONCE + 1))
        e("s_sub_u32 %s, %s, 1" % (sr(S_SPIN), sr(S_SPIN)))
        e("s_cmp_eq_u32 %s, 0" % sr(S_SPIN))
        e("s_cbranch_scc1 L_end")
        e("s_cmp_eq_u32 %s, 0" % sr(SC_NONCE))
        e("s_cbranch_scc1 %s" % lp)

    def flag_store(off_sgpr):
        e("v_mov_b32 v2, %s" % sr(SC_NONCE))
        e("v_mov_b32 v3, %s" % sr(SC_NONCE + 1))
        e("v_mov_b32 v1, 0")
        e("s_mov_b64 s[34:35], exec")
        e("s_mov_b64 exec, 1")
        e("buffer_store_dwordx2 v[2:3], v1, %s, %s offen sc1" % (sr(SRD_WS, 4), sr(off_sgpr)))
        e("s_mov_b64 exec, s[34:35]")

    def flag_poll(off_sgpr, n):
        if cfg.noxchg:
            return
        lp = a.newlab("poll")
        e("v_min_u32 v1, %d, v0" % (n - 1))
        e("v_lshlrev_b32 v1, 3, v1")
        a.lab(lp)
        e("buffer_load_dwordx2 v[2:3], v1, %s, %s offen sc1" % (sr(SRD_WS, 4), sr(off_sgpr)))
        e("s_waitcnt vmcnt(0)")
        e("v_cmp_ne_u32 vcc, %s, v2" % sr(SC_NONCE))
        e("v_cmp_ne_u32 s[34:35], %s, v3" % sr(SC_NONCE + 1))
        e("s_sub_u32 %s, %s, 1" % (sr(S_SPIN), sr(S_SPIN)))
        e("s_cmp_eq_u32 %s, 0" % sr(S_SPIN))
        e("s_cbranch_scc1 L_end")
        e("s_or_b64 vcc, vcc, s[34:35]")
        e("s_cbranch_scc1 %s" % lp)

    def flago_off(dst, ph, with_m):
        e("s_lshl_b32 %s, %s, 2" % (sr(dst), sr(S_QUAD)))
        e("s_add_u32 %s, %s, %s" % (sr(dst), sr(dst), sr(S_WAVE)))
        e("s_lshl_b32 %s, %s, 7" % (sr(dst), sr(dst)))
        e("s_add_u32 %s, %s, %d" % (sr(dst), sr(dst), WS_FLAGO + ph * 64 * 4 * 128))
        if with_m:
            e("s_lshl_b32 %s, %s, 3" % (sr(S_T0), sr(S_M)))
            e("s_add_u32 %s, %s, %s" % (sr(dst), sr(dst), sr(S_T0)))

    def load_o(ph, regs, ks):
        e("s_lshl_b32 %s, %s, 2" % (sr(S_T1), sr(S_QUAD)))
        e("s_add_u32 %s, %s, %d" % (sr(S_T1), sr(S_T1), ph * 256))
        e("s_mul_i32 %s, %s, 24576" % (sr(S_T1), sr(S_T1)))
        e("s_lshl_b32 %s, %s, 13" % (sr(S_T2), sr(S_WAVE)))
        e("s_add_u32 %s, %s, %s" % (sr(S_T1), sr(S_T1), sr(S_T2)))
        e("s_add_u32 %s, %s, %d" % (sr(S_T1), sr(S_T1), WS_OBUF))
        for k in ks:
            e("s_add_u32 %s, %s, %d" % (sr(S_T2), sr(S_M), k))
            e("s_and_b32 %s, %s, 3" % (sr(S_T2), sr(S_T2)))
            e("s_mul_i32 %s, %s, 24576" % (sr(S_T2), sr(S_T2)))
            e("s_add_u32 %s, %s, %s" % (sr(S_T2), sr(S_T2), sr(S_T1)))
            e("s_add_u32 %s, %s, 4096" % (sr(S_T3), sr(S_T2)))
            for s in range(8):
                e("buffer_load_dwordx4 %s, v%d, %s, %s offen offset:%d sc1" % (
                    ar(regs[k] + 4 * s, 4), V_L16, sr(SRD_WS, 4), sr(S_T2 if s < 4 else S_T3), (s & 3) * 1024))

    def poff(dst, ph, kq_sgpr):
        e("s_add_u32 %s, %s, %d" % (sr(dst), sr(S_B), ph * 8))
        e("s_lshl_b32 %s, %s, 2" % (sr(dst), sr(dst)))
        e("s_add_u32 %s, %s, %s" % (sr(dst), sr(dst), sr(S_M)))
        e("s_lshl_b32 %s, %s, 3" % (sr(dst), sr(dst)))
        if kq_sgpr is not None:
            e("s_add_u32 %s, %s, %s" % (sr(dst), sr(dst), sr(kq_sgpr)))
        e("s_mul_i32 %s, %s, 24576" % (sr(dst), sr(dst)))
        e("s_lshl_b32 %s, %s, 13" % (sr(S_T0), sr(S_WAVE)))
        e("s_add_u32 %s, %s, %s" % (sr(dst), sr(dst), sr(S_T0)))
        e("s_add_u32 %s, %s, %d" % (sr(dst), sr(dst), WS_PBUF))

    def flagp_off(dst, ph, with_kq):
        e("s_add_u32 %s, %s, %d" % (sr(dst), sr(S_B), ph * 8))
        e("s_lshl_b32 %s, %s, 2" % (sr(dst), sr(dst)))
        e("s_add_u32 %s, %s, %s" % (sr(dst), sr(dst), sr(S_M)))
        e("s_lshl_b32 %s, %s, 2" % (sr(dst), sr(dst)))
        e("s_add_u32 %s, %s, %s" % (sr(dst), sr(dst), sr(S_WAVE)))
        e("s_lshl_b32 %s, %s, 7" % (sr(dst), sr(dst)))
        e("s_add_u32 %s, %s, %d" % (sr(dst), sr(dst), WS_FLAGP))
        if with_kq:
            e("s_lshl_b32 %s, %s, 3" % (sr(S_T0), sr(S_X)))
            e("s_add_u32 %s, %s, %s" % (sr(dst), sr(dst), sr(S_T0)))

    def partial_store(acc, ph):
        poff(SC_POFF, ph, S_X)
        e("s_add_u32 %s, %s, 4096" % (sr(S_T1), sr(SC_POFF)))
        e("s_nop 3")
        for cch in range(8):
            for i in range(4):
                k = 4 * cch + i
                e("v_cvt_pk_bf16_f32 v%d, v%d, v%d" % (acc + k, acc + 2 * k, acc + 2 * k + 1))
            e("buffer_store_dwordx4 %s, v%d, %s, %s offen offset:%d sc1" % (
                vr(acc + 4 * cch, 4), V_L16, sr(SRD_WS, 4), sr(SC_POFF if cch < 4 else S_T1), (cch & 3) * 1024))

    def reduce(ph, regs):
        flagp_off(SC_FOFF, ph, False)
        flag_poll(SC_FOFF, 8)
        poff(SC_POFF, ph, None)
        e("s_lshl_b32 %s, %s, 10" % (sr(S_T1), sr(S_X)))
        e("s_add_u32 %s, %s, %s" % (sr(SC_POFF), sr(SC_POFF), sr(S_T1)))
        for kq in range(8):
            e("s_add_u32 %s, %s, %d" % (sr(S_T1), sr(SC_POFF), kq * 24576))
            e("buffer_load_dwordx4 %s, v%d, %s, %s offen sc1" % (
                vr(regs + 4 * kq, 4), V_L16, sr(SRD_WS, 4), sr(S_T1)))
        e("v_and_b32 v1, 31, v0")
        e("v_lshlrev_b32 v1, 11, v1")
        e("v_lshrrev_b32 v2, 5, v0")
        e("v_lshlrev_b32 v2, 4, v2")
        e("v_add_u32 v1, v1, v2")
        e("s_mul_i32 %s, %s, 96" % (sr(S_T1), sr(S_B)))
        e("s_lshl_b32 %s, %s, 5" % (sr(S_T2), sr(S_WAVE)))
        e("s_add_u32 %s, %s, %s" % (sr(S_T1), sr(S_T1), sr(S_T2)))
        e("s_lshl_b32 %s, %s, 11" % (sr(S_T1), sr(S_T1)))
        e("s_lshl_b32 %s, %s, 8" % (sr(S_T2), sr(S_M)))
        e("s_add_u32 %s, %s, %s" % (sr(S_T1), sr(S_T1), sr(S_T2)))
        e("s_lshl_b32 %s, %s, 5" % (sr(S_T2), sr(S_X)))
        e("s_add_u32 %s, %s, %s" % (sr(S_T1), sr(S_T1), sr(S_T2)))
        if ph ^ int(cfg.swap):
            e("s_add_u32 %s, %s, 1024" % (sr(S_T1), sr(S_T1)))
        acc = regs + 32
        for kq in range(8):
            e("s_waitcnt vmcnt(%d)" % (7 - kq))
            for i in range(4):
                r = regs + 4 * kq + i
                if kq == 0:
                    e("v_lshlrev_b32 v%d, 16, v%d" % (acc + 2 * i, r))
                    e("v_and_b32 v%d, 0xffff0000, v%d" % (acc + 2 * i + 1, r))
                else:
                    e("v_lshlrev_b32 v%d, 16, v%d" % (acc + 8, r))
                    e("v_and_b32 v%d, 0xffff0000, v%d" % (r, r))
                    e("v_add_f32 v%d, v%d, v%d" % (acc + 2 * i, acc + 2 * i, acc + 8))
                    e("v_add_f32 v%d, v%d, v%d" % (acc + 2 * i + 1, acc + 2 * i + 1, r))
        for i in range(4):
            e("v_cvt_pk_bf16_f32 v%d, v%d, v%d" % (4 + i, acc + 2 * i, acc + 2 * i + 1))
        e("buffer_store_dwordx4 v[4:7], v1, %s, %s offen" % (sr(SRD_OUT, 4), sr(S_T1)))

    OFT1 = [160, 192, 224, 160]

    def head(ph):
        qbase = V_Q1 if ph == 0 else V_Q2
        for i in range(64):
            e("v_mov_b32 v%d, 0" % (V_O + i))
        e("v_mov_b32 v%d, 0" % V_LSUM)
        e("v_mov_b32 v%d, 0" % V_LS2)
        wait_landed(1)
        a.extend(k_addr(SC_SLOT))
        a.extend(k_reads(A_KF))
        e("s_waitcnt lgkmcnt(0)")
        a.extend(qk_mfmas(V_SA, qbase, "0"))
        slot_adv(SC_SLOT, SC_SLOT, 1)
        wait_landed(3)
        a.extend(k_addr(SC_SLOT))
        slot_adv(SC_SLOT, SC_SLOT, 1)
        a.extend(v_addr(SC_SLOT, V_VB))
        a.extend(k_reads(A_KF))
        a.extend(v_reads(A_VF[0], False))
        slot_adv(SC_SLOT, SC_SLOT, 1)
        e("s_add_u32 %s, %s, 3" % (sr(SC_IDX), sr(SC_IDX)))
        a.extend(max_valu(V_SA))
        cross_half_max()
        for i in range(16):
            e("v_sub_f32 v%d, v%d, v%d" % (V_SA + i, V_SA + i, V_TMAX))
        e("v_sub_f32 v%d, 0, v%d" % (V_NEGM, V_TMAX))
        for i in range(1, 16):
            e("v_mov_b32 v%d, v%d" % (V_NEGM + i, V_NEGM))

        def iteration(par, kind):
            scur = V_SA if par == 0 else V_SB
            snext = V_SB if par == 0 else V_SA
            g, tl = softmax_gaps(scur)
            if kind != "final":
                e("s_waitcnt lgkmcnt(15)")
                a.extend(gaps(qk_mfmas(snext, qbase, vr(V_NEGM, 16)), g))
            else:
                for l in g:
                    a.extend(l)
            a.extend(tl)
            e("s_waitcnt lgkmcnt(0)")
            pv = pv_mfmas(A_VF[par])
            rel = release_l(SC_IDX)
            if kind == "full":
                kr = k_reads(A_KF)
                vrr = v_reads(A_VF[par ^ 1], False)
                mx = max_valu(snext) + ["v_cmp_lt_f32 vcc, %s, v%d" % (sr(SC_T), V_TMAX)]
                book = ["s_add_u32 %s, %s, %d" % (sr(SC_SLOT), sr(SC_SLOT), 2 * SLOT),
                        "s_add_u32 %s, %s, 2" % (sr(SC_IDX), sr(SC_IDX)),
                        "s_cmp_lt_u32 %s, %d" % (sr(SC_SLOT), RING),
                        "s_cselect_b32 %s, %s, 0" % (sr(SC_SLOT), sr(SC_SLOT))]
                per = [rel + wait_landed_l(2) + k_addr(SC_SLOT),
                       v_addr(SC_SLOT, V_VB2) + kr[0:4],
                       kr[4:8] + book[0:2],
                       vrr[0:4] + book[2:4],
                       vrr[4:8] + mx[0:1],
                       vrr[8:12] + mx[1:3],
                       vrr[12:16] + mx[3:5],
                       mx[5:9]]
                a.extend(gaps(pv, per))
            elif kind == "lastk":
                vrr = v_reads(A_VF[par ^ 1], False)
                mx = max_valu(snext) + ["v_cmp_lt_f32 vcc, %s, v%d" % (sr(SC_T), V_TMAX)]
                book = ["s_add_u32 %s, %s, 1" % (sr(SC_IDX), sr(SC_IDX))] + slot_adv_l(SC_SLOT, SC_SLOT, 1)
                per = [rel + wait_landed_l(1) + v_addr(SC_SLOT, V_VB), vrr[0:4], vrr[4:8], vrr[8:12],
                       vrr[12:16], mx[0:3] + book[0:2], mx[3:6] + book[2:5], mx[6:9]]
                a.extend(gaps(pv, per))
            else:
                a.extend(rel)
                a.extend(pv)
            if kind != "final":
                r = a.newlab("rare")
                b = a.newlab("back")
                e("s_cbranch_vccnz %s" % r)
                a.lab(b)
                rare.append((r, b, snext))

        e("s_mov_b32 %s, 0" % sr(SC_IT))
        lp = a.newlab("attn")
        a.lab(lp)
        iteration(0, "full")
        iteration(1, "full")
        e("s_add_u32 %s, %s, 1" % (sr(SC_IT), sr(SC_IT)))
        ev = a.newlab("event")
        evb = a.newlab("evback")
        e("s_cmp_eq_u32 %s, %s" % (sr(SC_IT), sr(S_TAU1 if ph == 0 else S_TAU2)))
        e("s_cbranch_scc1 %s" % ev)
        a.lab(evb)
        events.append((ph, ev, evb))

        def at_pass(n, body):
            sk = a.newlab("noev")
            e("s_cmp_eq_u32 %s, %d" % (sr(SC_IT), n))
            e("s_cbranch_scc0 %s" % sk)
            body()
            a.lab(sk)

        if cfg.stamps:
            for nm in stl:
                if nm[0] == "ab"[ph] and nm[1:].isdigit():
                    at_pass(int(nm[1:]), lambda nm=nm: stamp(nm))
        if ph == 0:
            def nonce_issue():
                e("v_mov_b32 v1, 0")
                e("global_load_dwordx2 %s, v1, %s sc1" % (vr(V_NON, 2), sr(KA_DBG, 2)))
            at_pass(1, nonce_issue)
        else:
            def p1():
                ok = a.newlab("nok")
                e("s_waitcnt vmcnt(0)")
                e("v_readfirstlane_b32 %s, v%d" % (sr(SC_NONCE), V_NON))
                e("v_readfirstlane_b32 %s, v%d" % (sr(SC_NONCE + 1), V_NON + 1))
                e("s_nop 3")
                e("s_cmp_lg_u32 %s, 0" % sr(SC_NONCE))
                e("s_cbranch_scc1 %s" % ok)
                get_nonce()
                a.lab(ok)
                flago_off(SC_FOFF, 0, True)
                flag_store(SC_FOFF)

            def poll_issue():
                e("v_min_u32 v1, 3, v0")
                e("v_lshlrev_b32 v1, 3, v1")
                e("buffer_load_dwordx2 %s, v1, %s, %s offen sc1" % (vr(V_NON, 2), sr(SRD_WS, 4), sr(SC_FOFF0)))

            def p1b():
                p1()
                flago_off(SC_FOFF0, 0, False)
                e("s_mov_b32 %s, 0" % sr(SC_O1ST))

            if cfg.noxchg:
                at_pass(2, lambda: e("s_mov_b32 %s, 1" % sr(SC_O1ST)))
            else:
                at_pass(2, p1b)
                at_pass(3, poll_issue)
                sk = a.newlab("o1skip")
                retry = a.newlab("o1retry")
                e("s_cmp_lt_u32 %s, 5" % sr(SC_IT))
                e("s_cbranch_scc1 %s" % sk)
                e("s_cmp_lg_u32 %s, 0" % sr(SC_O1ST))
                e("s_cbranch_scc1 %s" % sk)
                e("s_waitcnt vmcnt(0)")
                e("v_cmp_ne_u32 vcc, %s, v%d" % (sr(SC_NONCE), V_NON))
                e("v_cmp_ne_u32 s[34:35], %s, v%d" % (sr(SC_NONCE + 1), V_NON + 1))
                e("s_nop 3")
                e("s_or_b64 vcc, vcc, s[34:35]")
                e("s_cbranch_scc1 %s" % retry)
                load_o(0, OFT1, [0, 1, 2])
                e("s_mov_b32 %s, 1" % sr(SC_O1ST))
                e("s_branch %s" % sk)
                a.lab(retry)
                poll_issue()
                a.lab(sk)
        e("s_cmp_lt_u32 %s, 15" % sr(SC_IT))
        e("s_cbranch_scc1 %s" % lp)
        if ph == 1:
            e("s_waitcnt vmcnt(0)")
            flagp_off(SC_FOFF, 0, True)
            flag_store(SC_FOFF)
        iteration(0, "lastk")
        iteration(1, "final")
        e("v_add_f32 v%d, v%d, v%d" % (V_LSUM, V_LSUM, V_LS2))
        e("v_mov_b32 v%d, v%d" % (V_LS2, V_LSUM))
        e("s_nop 1")
        e("v_permlane32_swap_b32 v%d, v%d" % (V_LSUM, V_LS2))
        e("s_nop 1")
        e("v_add_f32 v%d, v%d, v%d" % (V_LSUM, V_LSUM, V_LS2))
        e("v_rcp_f32 v%d, v%d" % (V_ALPHA, V_LSUM))
        e("s_lshl_b32 %s, %s, 2" % (sr(S_T1), sr(S_QUAD)))
        e("s_add_u32 %s, %s, %s" % (sr(S_T1), sr(S_T1), sr(S_M)))
        e("s_add_u32 %s, %s, %d" % (sr(S_T1), sr(S_T1), ph * 256))
        e("s_mul_i32 %s, %s, 24576" % (sr(S_T1), sr(S_T1)))
        e("s_lshl_b32 %s, %s, 13" % (sr(S_T2), sr(S_WAVE)))
        e("s_add_u32 %s, %s, %s" % (sr(S_T1), sr(S_T1), sr(S_T2)))
        e("s_add_u32 %s, %s, %d" % (sr(SC_OOFF), sr(S_T1), WS_OBUF))
        e("s_add_u32 %s, %s, 4096" % (sr(SC_OOFF2), sr(SC_OOFF)))
        e("s_nop 3")
        for s in range(8):
            for k in range(4):
                i = 4 * s + k
                e("v_mul_f32 v%d, v%d, v%d" % (V_O + 2 * i, V_O + 2 * i, V_ALPHA))
                e("v_mul_f32 v%d, v%d, v%d" % (V_O + 2 * i + 1, V_O + 2 * i + 1, V_ALPHA))
                e("v_cvt_pk_bf16_f32 v%d, v%d, v%d" % (V_STG + i, V_O + 2 * i, V_O + 2 * i + 1))
            e("buffer_store_dwordx4 %s, v%d, %s, %s offen offset:%d sc1" % (
                vr(V_STG + 4 * s, 4), V_L16, sr(SRD_WS, 4), sr(SC_OOFF if s < 4 else SC_OOFF2), (s & 3) * 1024))
        e("s_mov_b32 %s, 0" % sr(SC_OOFF))

    head(0)
    stamp("h0")
    head(1)
    stamp("h1")

    OF2 = [None, 160, 192, 224]

    def bf2(r, s):
        return vr(V_STG + 4 * s, 4) if r == 0 else ar(OF2[r] + 4 * s, 4)

    def hook_after_round0():
        e("s_waitcnt vmcnt(0)")
        flago_off(SC_FOFF, 1, True)
        flag_store(SC_FOFF)
        reduce(0, V_O)
        flago_off(SC_FOFF, 1, False)
        flag_poll(SC_FOFF, 4)
        load_o(1, OF2, [1, 2, 3])
        e("s_waitcnt vmcnt(16)")
        stamp("t1")

    hooks.clear()
    hooks.update({3: hook_after_round0, 7: lambda: e("s_waitcnt vmcnt(8)"), 11: lambda: e("s_waitcnt vmcnt(0)")})
    proj(V_ACC2, bf2, False)
    hooks.clear()
    e("s_nop 7")
    partial_store(V_ACC2, 1)
    stamp("t2")
    e("s_waitcnt vmcnt(0)")
    flagp_off(SC_FOFF, 1, True)
    flag_store(SC_FOFF)
    stamp("r0")
    reduce(1, V_O)
    e("s_waitcnt vmcnt(0)")
    stamp("r1")

    a.lab("L_fin")
    savef = a.filt
    a.filt = None
    if cfg.stamps:
        e("s_waitcnt lgkmcnt(0)")
        e("s_lshl_b32 s28, s2, 9")
        e("s_lshl_b32 s29, %s, 7" % sr(S_WAVE))
        e("s_add_u32 s28, s28, s29")
        e("s_add_u32 s28, s28, 0x%x" % WS_STAMP)
        e("v_mov_b32 v1, s28")
        e("s_getreg_b32 s30, hwreg(HW_REG_XCC_ID)")
        e("s_mov_b64 exec, 1")
        for k in range(4):
            for j in range(4):
                e("v_mov_b32 v%d, s%d" % (4 + j, S_ST + 4 * k + j))
            e("global_store_dwordx4 v1, v[4:7], %s offset:%d" % (sr(KA_WS, 2), 16 * k))
            e("s_waitcnt vmcnt(0)")
        e("v_mov_b32 v4, s30")
        e("global_store_dword v1, v4, %s offset:64" % sr(KA_WS, 2))
        e("s_waitcnt vmcnt(0)")
    a.lab("L_end")
    e("s_endpgm")
    a.filt = savef

    for r, b, sn in rare:
        rare_path(r, b, sn)
    for ph, ev, evb in events:
        a.lab(ev)
        if ph == 0:
            stamp("e0")
            e("s_call_b64 %s, L_qproj" % sr(SC_RET2, 2))
            for i in range(32):
                e("v_cvt_pk_bf16_f32 v%d, v%d, v%d" % (V_Q2 + i, V_ACCQ + 2 * i, V_ACCQ + 2 * i + 1))
            stamp("e1")
        else:
            stamp("e2")
            okl = a.newlab("o1ok")
            e("s_cmp_lg_u32 %s, 0" % sr(SC_O1ST))
            e("s_cbranch_scc1 %s" % okl)
            flag_poll(SC_FOFF0, 4)
            load_o(0, OFT1, [0, 1, 2])
            e("s_mov_b32 %s, 1" % sr(SC_O1ST))
            a.lab(okl)
            e("s_waitcnt vmcnt(0)")
            hooks.clear()
            hooks.update({3: lambda: load_o(0, OFT1, [3]), 11: lambda: e("s_waitcnt vmcnt(0)")})
            proj(V_ACC1, lambda r, s: ar(OFT1[r] + 4 * s, 4), False)
            hooks.clear()
            e("s_nop 7")
            partial_store(V_ACC1, 0)
            stamp("e3")
        e("s_branch %s" % evb)
    for slow, back in slowwaits:
        a.lab(slow)
        e("ds_read_b32 v%d, v%d" % (V_LRD, V_LADDR))
        e("s_waitcnt lgkmcnt(0)")
        e("v_readfirstlane_b32 %s, v%d" % (sr(SC_L), V_LRD))
        e("s_sub_u32 %s, %s, 1" % (sr(S_SPIN), sr(S_SPIN)))
        e("s_cmp_eq_u32 %s, 0" % sr(S_SPIN))
        e("s_cbranch_scc1 L_end")
        e("s_cmp_lt_u32 %s, %s" % (sr(SC_L), sr(SC_NEED)))
        e("s_cbranch_scc1 %s" % slow)
        e("s_branch %s" % back)
    txt = a.text()

    kd = []
    kd.append('.section .rodata,"a"')
    kd.append(".p2align 6")
    kd.append(".amdhsa_kernel %s_kernel" % NAME)
    kd.append("  .amdhsa_next_free_vgpr 512")
    kd.append("  .amdhsa_next_free_sgpr 102")
    kd.append("  .amdhsa_accum_offset 256")
    kd.append("  .amdhsa_group_segment_fixed_size 0")
    kd.append("  .amdhsa_kernarg_size 104")
    kd.append("  .amdhsa_user_sgpr_count 2")
    kd.append("  .amdhsa_user_sgpr_kernarg_segment_ptr 1")
    kd.append("  .amdhsa_system_sgpr_workgroup_id_x 1")
    kd.append(".end_amdhsa_kernel")
    return "\n".join(hdr) + "\n" + txt + "\n".join(kd) + "\n"


if __name__ == "__main__":
    import argparse
    ap = argparse.ArgumentParser()
    ap.add_argument("-o", default="cdna_kernels/%s.s" % NAME)
    ap.add_argument("--stamps", action="store_true")
    ap.add_argument("--set", action="append", default=[])
    args = ap.parse_args()
    cfg = Cfg()
    cfg.stamps = args.stamps
    for kv in args.set:
        k, v = kv.split("=", 1)
        cur = getattr(cfg, k)
        if isinstance(cur, bool):
            v = v in ("1", "True", "true")
        elif isinstance(cur, int):
            v = int(v)
        elif isinstance(cur, float):
            v = float(v)
        setattr(cfg, k, v)
    open(args.o, "w").write(build(cfg))
    print("wrote", args.o)
```

```python
import math
import struct

NAME = "concat_heads__mha_block_cached__gqa_block_cached__near_ridge"


def f32bits(x):
    return struct.unpack("<I", struct.pack("<f", x))[0]


class Cfg:
    NS = 18
    NQ = 11
    E = 7
    D = 5
    stamps = False
    T_LOG2 = 8.0
    kvflags = "nt"
    wflags = ""
    woflags = ""
    xflags = ""
    kvsame = False
    noload = False
    nocompute = False
    noxchg = False
    stamplist = "start,qp,h0,h1,t1,t2,r0,r1"
    tau1_base = 5
    tau1_mul = 9
    lead = 6
    pft = 22
    prefetch = True
    tau2_base = 6
    tau2_mul = 8
    ytype = 1
    spin = 0x80000
    taumode = "x"
    ev2sleep = 0
    burn = 0
    lab = ""
    psleep = 0
    lsleep = 0
    halfwg = 0
    ablate = ""
    local = True
    deven = 5
    dodd = 5
    swap = False


BLK = 1088
SLOT = 8 * BLK
WS_FLAGO = 0
WS_FLAGP = 65536
WS_FLAGI = 131072
WS_OBUF = 1 << 20
WS_PBUF = 16 << 20
WS_STAMP = 48 << 20
WS_USED = 56 << 20


def vr(base, n=1):
    return "v%d" % base if n == 1 else "v[%d:%d]" % (base, base + n - 1)


def ar(base, n=1):
    return "a%d" % base if n == 1 else "a[%d:%d]" % (base, base + n - 1)


def sr(base, n=1):
    return "s%d" % base if n == 1 else "s[%d:%d]" % (base, base + n - 1)


class Asm:
    def __init__(self):
        self.L = []
        self.nlab = 0
        self.filt = None

    def e(self, s):
        if self.filt and self.filt(s):
            return
        self.L.append("  " + s)

    def lab(self, name):
        self.L.append(name + ":")

    def newlab(self, base):
        self.nlab += 1
        return "L%s_%d" % (base, self.nlab)

    def extend(self, lst):
        for s in lst:
            if s.endswith(":"):
                self.lab(s[:-1])
            else:
                self.e(s)

    def text(self):
        return "\n".join(self.L) + "\n"


def gaps(primary, per_gap):
    out = []
    for p, f in zip(primary, per_gap):
        out.append(p)
        out.extend(f)
    return out


S_WG = 2
S_WAVE = 3
S_X, S_M, S_B, S_QUAD, S_H = 20, 21, 22, 24, 25
S_SPIN = 26
S_TAU1, S_TAU2 = 27, 62
S_T0, S_T1, S_T2, S_T3 = 28, 29, 30, 31
S_RET = 32
KA_X, KA_K, KA_V, KA_WQ, KA_WO = 36, 38, 40, 42, 44
KA_PH = 10
KA_OUT, KA_DBG, KA_WS = 56, 58, 60
SL_ISS, SL_PUB, SL_FMIN, SL_SLOT, SL_NEED, SL_OFF, SL_OFF2, SL_CNT, SL_CNT2, SL_KOFF, SL_VOFF, SL_ROT = range(4, 16)
SL_RET2 = 16
SL_XB, SL_WB = 18, 19
SL_NADJ = 23
SL_QSLOT = 63
SL_EVM = 101
SL_THR = 100
SRD_X, SRD_K, SRD_V, SRD_WQ, SRD_WO = 64, 68, 72, 76, 80
SC_L, SC_SLOT, SC_IDX, SC_IT, SC_T, SC_NEED, SC_SLOT2, SC_ADJ = range(4, 12)
SC_OOFF, SC_OOFF2, SC_FOFF, SC_POFF = 12, 13, 14, 15
SC_NONCE = 16
SC_RET2 = 18
SC_FOFF0, SC_O1ST = 72, 73
SC_LOCAL, SC_XCC, SC_IDOFF, SC_EVM = 75, 76, 77, 78
SC_WRAP = 74
SRD_WS, SRD_OUT = 64, 68
S_ST = 84

V_KB = 8
V_VB = 10
V_WB = 11
V_KA = 12
V_VA = 14
V_L16 = 15
V_LSUM, V_LS2, V_TMAX, V_ALPHA, V_FV, V_LADDR, V_FADDR, V_LRD = range(17, 25)
V_VB2 = 25
V_NON = 26
V_PF = 32
V_NEGM = 48
V_O = 64
V_SA = 128
V_SB = 144
V_ACCQ = 160
V_Q2 = 160
V_STG = 192
V_Q1 = 224
V_ACC1 = 192
V_ACC2 = 128
A_AF = [0, 32]
A_KF = 64
A_VF = [96, 128]
A_XF = [160, 192]
MFMA = "v_mfma_f32_32x32x16_bf16"


def build(cfg):
    NS, D, NQ, E = cfg.NS, cfg.D, cfg.NQ, cfg.E
    assert NS == NQ + E and NS % 2 == 0 and (NQ + 3) % 2 == 0
    RING = NS * SLOT
    FLAG_L = RING
    FLAG_F = RING + 16
    LDS_BYTES = RING + 64
    a = Asm()
    e = a.e
    hdr = []
    hdr.append("; @launch grid=(256,1,1) block=(256,1,1) lds=%d" % LDS_BYTES)
    hdr.append('.amdgcn_target "amdgcn-amd-amdhsa--gfx950"')
    hdr.append(".text")
    hdr.append(".globl %s_kernel" % NAME)
    hdr.append(".p2align 8")
    hdr.append(".type %s_kernel,@function" % NAME)
    hdr.append("%s_kernel:" % NAME)
    stl = cfg.stamplist.split(",")

    def stamp(name):
        if cfg.stamps:
            for k, nm in enumerate(stl):
                if nm == name:
                    e("s_memrealtime %s" % sr(S_ST + 2 * k, 2))
                if nm == name + ".c":
                    e("s_memtime %s" % sr(S_ST + 2 * k, 2))

    e("s_cmp_ge_u32 s2, 256")
    e("s_cbranch_scc1 L_end")
    e("s_load_dwordx16 s[36:51], s[0:1], 0")
    e("s_load_dwordx4 s[52:55], s[0:1], 64")
    e("s_load_dwordx4 s[56:59], s[0:1], 80")
    e("s_load_dwordx2 s[60:61], s[0:1], 96")
    stamp("start")
    e("v_lshrrev_b32 v1, 6, v0")
    e("v_and_b32 v0, 63, v0")
    e("s_and_b32 %s, s2, 7" % sr(S_X))
    e("v_readfirstlane_b32 %s, v1" % sr(S_WAVE))
    e("s_lshr_b32 s28, s2, 3")
    if cfg.halfwg:
        e("s_and_b32 s29, s28, %d" % cfg.halfwg)
        e("s_cmp_lg_u32 s29, 0")
        e("s_cbranch_scc1 L_end")
    e("s_and_b32 %s, s28, 3" % sr(S_M))
    e("s_lshr_b32 %s, s28, 2" % sr(S_B))
    e("s_lshl_b32 %s, %s, 2" % (sr(S_H), sr(S_X)))
    e("s_add_u32 %s, %s, %s" % (sr(S_H), sr(S_H), sr(S_M)))
    e("s_lshl_b32 %s, %s, 3" % (sr(S_QUAD), sr(S_B)))
    e("s_add_u32 %s, %s, %s" % (sr(S_QUAD), sr(S_QUAD), sr(S_X)))
    e("s_mov_b32 %s, 0x%x" % (sr(S_SPIN), cfg.spin))
    for dst, base, mul in ((S_TAU1, cfg.tau1_base, cfg.tau1_mul), (S_TAU2, cfg.tau2_base, cfg.tau2_mul)):
        if cfg.taumode == "x":
            e("s_mul_i32 %s, %s, %d" % (sr(dst), sr(S_X), mul))
        elif cfg.taumode == "m":
            e("s_lshl_b32 %s, %s, 1" % (sr(dst), sr(S_M)))
            e("s_and_b32 s29, %s, 1" % sr(S_X))
            e("s_add_u32 %s, %s, s29" % (sr(dst), sr(dst)))
            e("s_mul_i32 %s, %s, %d" % (sr(dst), sr(dst), mul))
        else:
            e("s_mul_i32 %s, %s, %d" % (sr(dst), sr(S_B), mul))
        e("s_lshr_b32 %s, %s, 3" % (sr(dst), sr(dst)))
        e("s_add_u32 %s, %s, %d" % (sr(dst), sr(dst), base))
    e("s_cmp_eq_u32 %s, 3" % sr(S_WAVE))
    e("s_cbranch_scc0 L_compute")

    def srd(dst, ptr, nbytes):
        e("s_mov_b32 %s, %s" % (sr(dst), sr(ptr)))
        e("s_mov_b32 %s, %s" % (sr(dst + 1), sr(ptr + 1)))
        e("s_mov_b32 %s, 0x%x" % (sr(dst + 2), nbytes))
        e("s_mov_b32 %s, 0x20000" % sr(dst + 3))

    a.lab("L_loader")
    e("s_setprio 3")
    LV_K, LV_V, LV_X, LV_WQ, LV_WO, LV_T, LV_LADDR, LV_FADDR, LV_F = 8, 12, 16, 20, 24, 28, 29, 30, 32
    BIAS = 4096
    NB_X, NB_KV, NB_W = 8 * 96 * 512 * 2, 8 * 32 * 1024 * 128 * 2, 512 * 4096 * 2

    def srdb(dst, ptr, nbytes, full=True):
        e("s_sub_u32 %s, %s, %d" % (sr(dst), sr(ptr), BIAS))
        e("s_subb_u32 %s, %s, 0" % (sr(dst + 1), sr(ptr + 1)))
        if full:
            e("s_mov_b32 %s, 0x%x" % (sr(dst + 2), nbytes + BIAS))
            e("s_mov_b32 %s, 0x20000" % sr(dst + 3))

    e("v_lshrrev_b32 v1, 4, v0")
    e("v_and_b32 v2, 15, v0")
    e("v_xor_b32 v3, v2, v1")
    e("v_lshlrev_b32 v3, 4, v3")
    e("v_lshlrev_b32 v2, 4, v2")
    e("v_lshlrev_b32 v4, 12, v1")
    e("v_lshlrev_b32 v5, 15, v1")
    e("v_lshlrev_b32 v6, 10, v1")

    def lane_offs(dst, rowpart, colpart, rs):
        e("v_add_u32 v%d, v%d, v%d" % (dst, rowpart, colpart))
        for b in range(3, 0, -1):
            e("v_add_u32 v%d, %d, v%d" % (dst + b, BIAS + b * (rs - BLK), dst))
        e("v_add_u32 v%d, %d, v%d" % (dst, BIAS, dst))

    lane_offs(LV_X, 4, 3, 1024)
    lane_offs(LV_WQ, 5, 2, 8192)
    e("s_getreg_b32 %s, hwreg(HW_REG_XCC_ID)" % sr(SL_THR))
    e("s_and_b32 %s, %s, 1" % (sr(SL_THR), sr(SL_THR)))
    if cfg.deven < cfg.dodd:
        e("s_xor_b32 %s, %s, 1" % (sr(SL_THR), sr(SL_THR)))
    e("v_mov_b32 v%d, %d" % (LV_LADDR, FLAG_L))
    e("v_mov_b32 v%d, %d" % (LV_FADDR, FLAG_F))
    e("v_mov_b32 v%d, 0" % LV_T)
    e("ds_write_b32 v%d, v%d" % (LV_LADDR, LV_T))
    e("s_mov_b32 %s, 0" % sr(SL_ISS))
    e("s_mov_b32 %s, 0" % sr(SL_PUB))
    e("s_mov_b32 %s, 0" % sr(SL_FMIN))
    e("s_mov_b32 %s, 0" % sr(SL_SLOT))
    e("s_mov_b32 %s, -1" % sr(SL_NEED))
    e("s_add_u32 %s, %s, %s" % (sr(SL_ROT), sr(S_B), sr(S_M)))
    e("s_and_b32 %s, %s, 3" % (sr(SL_ROT), sr(SL_ROT)))
    e("s_waitcnt lgkmcnt(0)")
    P0 = KA_PH if cfg.swap else 0
    P1 = 0 if cfg.swap else KA_PH
    srdb(SRD_X, KA_X + P0, NB_X)
    srdb(SRD_WQ, KA_WQ + P0, NB_W)
    if cfg.noload:
        e("v_mov_b32 v%d, 100000" % LV_T)
        e("ds_write_b32 v%d, v%d" % (LV_LADDR, LV_T))
        e("s_waitcnt lgkmcnt(0)")
        e("s_barrier")
        e("s_branch L_fin")

    ool = []

    def landed_nb():
        e("s_getreg_b32 %s, hwreg(HW_REG_IB_STS)" % sr(S_T0))
        e("s_lshr_b32 %s, %s, 18" % (sr(S_T1), sr(S_T0)))
        e("s_and_b32 %s, %s, 15" % (sr(S_T0), sr(S_T0)))
        e("s_and_b32 %s, %s, 0x30" % (sr(S_T1), sr(S_T1)))
        e("s_add_u32 %s, %s, %s" % (sr(S_T0), sr(S_T0), sr(S_T1)))
        e("s_add_u32 %s, %s, 7" % (sr(S_T0), sr(S_T0)))
        e("s_lshr_b32 %s, %s, 3" % (sr(S_T0), sr(S_T0)))
        e("s_sub_i32 %s, %s, %s" % (sr(SL_PUB), sr(SL_ISS), sr(S_T0)))

    def publish_nb():
        landed_nb()
        e("v_mov_b32 v%d, %s" % (LV_T, sr(SL_PUB)))
        e("ds_write_b32 v%d, v%d" % (LV_LADDR, LV_T))

    def issue_tile(srdreg, voff, rs, flags, wrap, nowait=False, check=True):
        if check and "nochk" not in cfg.lab:
            e("s_cmp_ge_i32 %s, %s" % (sr(SL_FMIN), sr(SL_NEED)))
            slow = a.newlab("lslow")
            ok = a.newlab("ok")
            e("s_cbranch_scc0 %s" % slow)
            a.lab(ok)
            ool.append((slow, ok))

        def ld(b):
            e("buffer_load_dwordx4 v%d, %s, %s offen offset:%d %s lds" % (
                voff + (b & 3), sr(srdreg, 4), sr(SL_OFF if b < 4 else SL_OFF2), (b & 3) * BLK, flags))
        e("s_mov_b32 m0, %s" % sr(SL_SLOT))
        e("s_add_u32 %s, %s, %d" % (sr(SL_OFF2), sr(SL_OFF), 16 * rs))
        ld(0)
        ld(1)
        ld(2)
        e("s_add_u32 %s, %s, 1" % (sr(SL_ISS), sr(SL_ISS)))
        ld(3)
        e("s_add_u32 m0, %s, %d" % (sr(SL_SLOT), 4 * BLK))
        e("s_add_u32 %s, %s, %d" % (sr(SL_SLOT), sr(SL_SLOT), SLOT))
        ld(4)
        e("s_cmp_lt_u32 %s, %d" % (sr(SL_SLOT), wrap))
        e("s_cselect_b32 %s, %s, 0" % (sr(SL_SLOT), sr(SL_SLOT)))
        ld(5)
        e("s_sub_i32 %s, %s, %s" % (sr(SL_NEED), sr(SL_ISS), sr(SL_NADJ)))
        ld(6)
        e("s_cmp_eq_u32 %s, 0" % sr(SL_THR))
        ld(7)
        if not nowait:
            dmax, dmin = max(cfg.deven, cfg.dodd), min(cfg.deven, cfg.dodd)
            if "nowait" not in cfg.lab:
                e("s_waitcnt vmcnt(%d)" % (8 * dmax))
            if dmin != dmax:
                sk = a.newlab("thr")
                e("s_cbranch_scc1 %s" % sk)
                e("s_waitcnt vmcnt(%d)" % (8 * dmin))
                a.lab(sk)
            if "nopub" not in cfg.lab:
                publish_nb()

    def qp_round(wrap, first_nowait=0):
        n = 0

        def after():
            if first_nowait and n == first_nowait:
                e("s_waitcnt lgkmcnt(0)")
                e("s_barrier")
        for w in range(3):
            e("s_add_u32 %s, %s, %d" % (sr(SL_OFF), sr(SL_XB), w * 32 * 1024))
            issue_tile(SRD_X, LV_X, 1024, cfg.xflags, wrap, nowait=(n < first_nowait))
            n += 1
            after()
        for j in range(4):
            e("s_add_u32 %s, %s, %d" % (sr(SL_OFF), sr(SL_WB), j * 32 * 8192))
            issue_tile(SRD_WQ, LV_WQ, 8192, cfg.wflags, wrap, nowait=(n < first_nowait))
            n += 1
            after()

    def qp_bases():
        e("s_add_u32 %s, %s, %s" % (sr(S_T1), sr(SL_ROT), sr(SL_CNT)))
        e("s_and_b32 %s, %s, 3" % (sr(S_T1), sr(S_T1)))
        e("s_lshl_b32 %s, %s, 8" % (sr(S_T2), sr(S_T1)))
        e("s_mul_i32 %s, %s, %d" % (sr(SL_XB), sr(S_B), 96 * 1024))
        e("s_add_u32 %s, %s, %s" % (sr(SL_XB), sr(SL_XB), sr(S_T2)))
        e("s_lshl_b32 %s, %s, 20" % (sr(S_T2), sr(S_T1)))
        e("s_lshl_b32 %s, %s, 8" % (sr(SL_WB), sr(S_H)))
        e("s_add_u32 %s, %s, %s" % (sr(SL_WB), sr(SL_WB), sr(S_T2)))

    kvf = "" if cfg.kvsame else cfg.kvflags
    e("s_mov_b32 %s, %d" % (sr(SL_NADJ), NQ - 1))
    e("s_mov_b32 %s, 0" % sr(SL_CNT))
    qp_bases()
    qp_round(NQ * SLOT, first_nowait=D)
    srdb(SRD_K, KA_K + P0, NB_KV)
    srdb(SRD_V, KA_V + P0, NB_KV)
    srdb(SRD_WO, KA_WO + P0, NB_W)
    lane_offs(LV_K, 6, 3, 256)
    lane_offs(LV_V, 6, 2, 256)
    lane_offs(LV_WO, 4, 2, 1024)
    e("s_lshl_b32 %s, %s, 5" % (sr(S_T1), sr(S_B)))
    e("s_add_u32 %s, %s, %s" % (sr(S_T1), sr(S_T1), sr(S_H)))
    e("s_lshl_b32 %s, %s, 18" % (sr(SL_KOFF), sr(S_T1)))
    stamp("qx0")
    stamp("q3")

    def early_tiles():
        e("s_mov_b32 %s, %s" % (sr(SL_QSLOT), sr(SL_SLOT)))
        e("s_mov_b32 %s, %d" % (sr(SL_SLOT), NQ * SLOT))
        seq = [("K", 0), ("K", 1), ("V", 0)]
        t = 0
        while len(seq) < E:
            seq += [("K", t + 2), ("V", t + 1)]
            t += 1
        assert len(seq) == E
        for kind, t in seq:
            e("s_add_u32 %s, %s, %d" % (sr(SL_OFF), sr(SL_KOFF), 0 if cfg.kvsame else t * 8192))
            if kind == "K":
                issue_tile(SRD_K, LV_K, 256, kvf, RING, check=False)
            else:
                issue_tile(SRD_V, LV_V, 256, kvf, RING, check=False)
        e("s_mov_b32 %s, %s" % (sr(SL_SLOT), sr(SL_QSLOT)))

    npairs_early = (E - 3) // 2
    if cfg.ytype == 1:
        e("s_and_b32 %s, %s, 1" % (sr(S_T3), sr(S_M)))
        e("s_cmp_eq_u32 %s, 0" % sr(S_T3))
        e("s_cbranch_scc1 L_ld_x1")
    if cfg.ytype in (1, 2):
        early_tiles()
        e("s_mov_b32 %s, %d" % (sr(SL_NADJ), NQ - 1 + E))
        e("s_sub_i32 %s, %s, %s" % (sr(SL_NEED), sr(SL_ISS), sr(SL_NADJ)))
    a.lab("L_ld_x1")
    e("s_mov_b32 %s, 1" % sr(SL_CNT))
    a.lab("L_ld_qp1")
    qp_bases()
    qp_round(NQ * SLOT)
    if cfg.stamps:
        for rr in (1, 2, 3):
            nm = "q%d" % (4 * rr + 3)
            if nm in stl:
                sk = a.newlab("sk")
                e("s_cmp_eq_u32 %s, %d" % (sr(SL_CNT), rr))
                e("s_cbranch_scc0 %s" % sk)
                stamp(nm)
                a.lab(sk)
    e("s_add_u32 %s, %s, 1" % (sr(SL_CNT), sr(SL_CNT)))
    e("s_cmp_lt_u32 %s, 4" % sr(SL_CNT))
    e("s_cbranch_scc1 L_ld_qp1")
    if cfg.ytype == 1:
        e("s_and_b32 %s, %s, 1" % (sr(S_T3), sr(S_M)))
        e("s_cmp_eq_u32 %s, 0" % sr(S_T3))
        e("s_cbranch_scc0 L_ld_y2")
    if cfg.ytype in (0, 1):
        early_tiles()
    a.lab("L_ld_y2")
    stamp("qp")
    e("s_mov_b32 %s, 0" % sr(SL_SLOT))
    e("s_mov_b32 %s, %d" % (sr(SL_NADJ), NS - 1))
    e("s_mov_b32 %s, 28" % sr(SL_NEED))
    srdb(SRD_X, KA_X + P1, NB_X, full=False)
    srdb(SRD_WQ, KA_WQ + P1, NB_W, full=False)

    e("s_lshl_b32 %s, %s, 1" % (sr(S_T1), sr(S_TAU1)))
    e("s_min_u32 %s, %s, 31" % (sr(S_T1), sr(S_T1)))
    e("s_lshl_b32 %s, 1, %s" % (sr(SL_EVM), sr(S_T1)))
    if cfg.prefetch:
        e("s_sub_u32 %s, %s, %d" % (sr(S_T1), sr(S_T1), cfg.lead))
        e("s_lshl_b32 %s, 1, %s" % (sr(S_T2), sr(S_T1)))
        e("s_or_b32 %s, %s, %s" % (sr(SL_EVM), sr(SL_EVM), sr(S_T2)))
    e("s_mov_b32 %s, 0" % sr(SL_CNT2))
    e("s_add_u32 %s, %s, %d" % (sr(SL_VOFF), sr(SL_KOFF), 0 if cfg.kvsame else npairs_early * 8192))
    e("s_mov_b32 %s, %d" % (sr(SL_CNT), npairs_early))
    e("s_branch L_ld_kv")
    a.lab("L_ld_head")
    e("s_mov_b32 %s, %s" % (sr(SL_OFF), sr(SL_KOFF)))
    issue_tile(SRD_K, LV_K, 256, kvf, RING)
    e("s_add_u32 %s, %s, 8192" % (sr(SL_OFF), sr(SL_KOFF)))
    issue_tile(SRD_K, LV_K, 256, kvf, RING)
    e("s_mov_b32 %s, %s" % (sr(SL_OFF), sr(SL_KOFF)))
    issue_tile(SRD_V, LV_V, 256, kvf, RING)
    e("s_mov_b32 %s, %s" % (sr(SL_VOFF), sr(SL_KOFF)))
    e("s_mov_b32 %s, 0" % sr(SL_CNT))
    a.lab("L_ld_kv")
    e("s_add_u32 %s, %s, 16384" % (sr(SL_OFF), sr(SL_VOFF)))
    issue_tile(SRD_K, LV_K, 256, kvf, RING)
    e("s_add_u32 %s, %s, 8192" % (sr(SL_OFF), sr(SL_VOFF)))
    issue_tile(SRD_V, LV_V, 256, kvf, RING)
    if not cfg.kvsame:
        e("s_add_u32 %s, %s, 8192" % (sr(SL_VOFF), sr(SL_VOFF)))
    e("s_add_u32 %s, %s, 1" % (sr(SL_CNT), sr(SL_CNT)))
    e("s_bitcmp1_b32 %s, %s" % (sr(SL_EVM), sr(SL_CNT)))
    e("s_cbranch_scc1 L_ld_disp")
    a.lab("L_ld_evret")
    e("s_cmp_lt_u32 %s, 30" % sr(SL_CNT))
    e("s_cbranch_scc1 L_ld_kv")
    e("s_add_u32 %s, %s, 8192" % (sr(SL_OFF), sr(SL_VOFF)))
    issue_tile(SRD_V, LV_V, 256, kvf, RING)
    e("s_cmp_eq_u32 %s, 0" % sr(SL_CNT2))
    e("s_cbranch_scc0 L_ld_tail")
    stamp("h0")
    srdb(SRD_K, KA_K + P1, NB_KV, full=False)
    srdb(SRD_V, KA_V + P1, NB_KV, full=False)
    e("s_lshl_b32 %s, %s, 1" % (sr(S_T1), sr(S_TAU2)))
    e("s_min_u32 %s, %s, 31" % (sr(S_T1), sr(S_T1)))
    e("s_lshl_b32 %s, 1, %s" % (sr(SL_EVM), sr(S_T1)))
    if cfg.prefetch:
        e("s_sub_u32 %s, %s, %d" % (sr(S_T1), sr(S_T1), cfg.lead))
        e("s_lshl_b32 %s, 1, %s" % (sr(S_T2), sr(S_T1)))
        e("s_or_b32 %s, %s, %s" % (sr(SL_EVM), sr(SL_EVM), sr(S_T2)))
        e("s_or_b32 %s, %s, 0x%x" % (sr(SL_EVM), sr(SL_EVM), 1 << cfg.pft))
    e("s_mov_b32 %s, 1" % sr(SL_CNT2))
    e("s_branch L_ld_head")
    a.lab("L_ld_tail")
    stamp("h1")
    srdb(SRD_WO, KA_WO + P1, NB_W, full=False)
    e("s_call_b64 %s, L_ld_wo" % sr(SL_RET2, 2))
    a.lab("L_ld_drain")
    publish_nb()
    e("s_cmp_lt_i32 %s, %s" % (sr(SL_PUB), sr(SL_ISS)))
    e("s_cbranch_scc1 L_ld_drain")
    e("s_waitcnt lgkmcnt(0)")
    stamp("t2")
    e("s_branch L_fin")

    def pf_tile(srdreg, voff, rs, flags, vdst):
        e("s_add_u32 %s, %s, %d" % (sr(SL_OFF2), sr(SL_OFF), 16 * rs))
        for b in range(8):
            e("buffer_load_dwordx4 %s, v%d, %s, %s offen offset:%d %s" % (
                vr(vdst + 4 * b, 4), voff + (b & 3), sr(srdreg, 4), sr(SL_OFF if b < 4 else SL_OFF2),
                (b & 3) * BLK, flags))

    def pf_wo(srdreg):
        e("s_lshl_b32 %s, %s, 19" % (sr(SL_OFF), sr(S_X)))
        e("s_lshl_b32 %s, %s, 16" % (sr(S_T1), sr(S_B)))
        e("s_add_u32 %s, %s, %s" % (sr(SL_OFF), sr(SL_OFF), sr(S_T1)))
        e("s_lshl_b32 %s, %s, 8" % (sr(S_T1), sr(S_M)))
        e("s_add_u32 %s, %s, %s" % (sr(SL_OFF), sr(SL_OFF), sr(S_T1)))
        pf_tile(srdreg, LV_WO, 1024, cfg.woflags, 40)
        e("s_add_u32 %s, %s, %d" % (sr(SL_OFF), sr(SL_OFF), 32 * 1024))
        pf_tile(srdreg, LV_WO, 1024, cfg.woflags, 72)

    a.lab("L_ld_disp")
    e("s_cmp_eq_u32 %s, 0" % sr(SL_CNT2))
    e("s_cselect_b32 %s, %s, %s" % (sr(S_T3), sr(S_TAU1), sr(S_TAU2)))
    e("s_lshl_b32 %s, %s, 1" % (sr(S_T3), sr(S_T3)))
    if cfg.prefetch:
        nx1 = a.newlab("pfn")
        e("s_cmp_eq_u32 %s, %d" % (sr(SL_CNT), cfg.pft))
        e("s_cbranch_scc0 %s" % nx1)
        e("s_cmp_eq_u32 %s, 1" % sr(SL_CNT2))
        e("s_cbranch_scc0 %s" % nx1)
        e("s_sub_u32 s32, %s, %d" % (sr(KA_WO + P1), BIAS))
        e("s_subb_u32 s33, %s, 0" % sr(KA_WO + P1 + 1))
        e("s_mov_b32 s34, 0x%x" % (NB_W + BIAS))
        e("s_mov_b32 s35, 0x20000")
        pf_wo(32)
        a.lab(nx1)
        nx2 = a.newlab("pfn")
        e("s_sub_u32 %s, %s, %d" % (sr(S_T2), sr(S_T3), cfg.lead))
        e("s_cmp_eq_u32 %s, %s" % (sr(SL_CNT), sr(S_T2)))
        e("s_cbranch_scc0 %s" % nx2)
        e("s_cmp_eq_u32 %s, 0" % sr(SL_CNT2))
        e("s_cbranch_scc0 L_ld_pf2")
        e("s_lshl_b32 %s, %s, 19" % (sr(SL_OFF), sr(S_B)))
        e("s_lshl_b32 %s, %s, 8" % (sr(S_T1), sr(S_H)))
        e("s_add_u32 %s, %s, %s" % (sr(SL_OFF), sr(SL_OFF), sr(S_T1)))
        pf_tile(SRD_WQ, LV_WQ, 8192, cfg.wflags, 40)
        e("s_add_u32 %s, %s, %d" % (sr(SL_OFF), sr(SL_OFF), 32 * 8192))
        pf_tile(SRD_WQ, LV_WQ, 8192, cfg.wflags, 72)
        e("s_mul_i32 %s, %s, %d" % (sr(SL_OFF), sr(S_B), 96 * 1024))
        e("s_lshl_b32 %s, %s, 8" % (sr(S_T1), sr(S_M)))
        e("s_add_u32 %s, %s, %s" % (sr(SL_OFF), sr(SL_OFF), sr(S_T1)))
        for w in range(3):
            pf_tile(SRD_X, LV_X, 1024, cfg.xflags, 104 + 32 * w)
            if w < 2:
                e("s_add_u32 %s, %s, %d" % (sr(SL_OFF), sr(SL_OFF), 32 * 1024))
        e("s_branch %s" % nx2)
        a.lab("L_ld_pf2")
        pf_wo(SRD_WO)
        a.lab(nx2)
    e("s_cmp_eq_u32 %s, 0" % sr(SL_CNT2))
    e("s_cselect_b32 %s, %s, %s" % (sr(S_T3), sr(S_TAU1), sr(S_TAU2)))
    e("s_lshl_b32 %s, %s, 1" % (sr(S_T3), sr(S_T3)))
    e("s_cmp_eq_u32 %s, %s" % (sr(SL_CNT), sr(S_T3)))
    e("s_cbranch_scc0 L_ld_evret")
    a.lab("L_ld_event")
    e("s_cmp_eq_u32 %s, 0" % sr(SL_CNT2))
    e("s_cbranch_scc0 L_ld_ev2")
    stamp("e0")
    e("s_mov_b32 %s, %s" % (sr(SL_RET2), sr(SL_CNT)))
    e("s_mov_b32 %s, 0" % sr(SL_CNT))
    a.lab("L_ld_qp2")
    qp_bases()
    qp_round(RING)
    e("s_add_u32 %s, %s, 1" % (sr(SL_CNT), sr(SL_CNT)))
    e("s_cmp_lt_u32 %s, 4" % sr(SL_CNT))
    e("s_cbranch_scc1 L_ld_qp2")
    e("s_mov_b32 %s, %s" % (sr(SL_CNT), sr(SL_RET2)))
    stamp("e1")
    e("s_branch L_ld_evret")
    a.lab("L_ld_ev2")
    stamp("e2")
    if cfg.ev2sleep:
        e("s_waitcnt vmcnt(0)")
        e("s_sleep %d" % cfg.ev2sleep)
    else:
        e("s_call_b64 %s, L_ld_wo" % sr(SL_RET2, 2))
    stamp("e3")
    e("s_branch L_ld_evret")

    a.lab("L_ld_wo")
    e("s_mov_b32 %s, 0" % sr(SL_XB))
    a.lab("L_ld_wo_r")
    e("s_add_u32 %s, %s, %s" % (sr(S_T1), sr(S_M), sr(SL_XB)))
    e("s_and_b32 %s, %s, 3" % (sr(S_T1), sr(S_T1)))
    e("s_lshl_b32 %s, %s, 17" % (sr(S_T1), sr(S_T1)))
    e("s_lshl_b32 %s, %s, 19" % (sr(SL_WB), sr(S_X)))
    e("s_add_u32 %s, %s, %s" % (sr(SL_WB), sr(SL_WB), sr(S_T1)))
    e("s_lshl_b32 %s, %s, 8" % (sr(S_T1), sr(S_M)))
    e("s_add_u32 %s, %s, %s" % (sr(SL_WB), sr(SL_WB), sr(S_T1)))
    for j in range(4):
        e("s_add_u32 %s, %s, %d" % (sr(SL_OFF), sr(SL_WB), j * 32 * 1024))
        issue_tile(SRD_WO, LV_WO, 1024, cfg.woflags, RING)
    e("s_add_u32 %s, %s, 1" % (sr(SL_XB), sr(SL_XB)))
    e("s_cmp_lt_u32 %s, 4" % sr(SL_XB))
    e("s_cbranch_scc1 L_ld_wo_r")
    e("s_setpc_b64 %s" % sr(SL_RET2, 2))

    for slow, ok in ool:
        a.lab(slow)
        e("s_call_b64 %s, L_waitfree" % sr(S_RET, 2))
        e("s_branch %s" % ok)
    a.lab("L_waitfree")
    e("ds_read_b96 v[%d:%d], v%d" % (LV_F, LV_F + 2, LV_FADDR))
    publish_nb()
    e("s_waitcnt lgkmcnt(1)")
    e("v_min3_u32 v%d, v%d, v%d, v%d" % (LV_F, LV_F, LV_F + 1, LV_F + 2))
    e("s_sub_u32 %s, %s, 1" % (sr(S_SPIN), sr(S_SPIN)))
    e("v_readfirstlane_b32 %s, v%d" % (sr(SL_FMIN), LV_F))
    e("s_cmp_eq_u32 %s, 0" % sr(S_SPIN))
    e("s_cbranch_scc1 L_end")
    e("s_nop 1")
    e("s_cmp_ge_i32 %s, %s" % (sr(SL_FMIN), sr(SL_NEED)))
    if cfg.lsleep:
        e("s_cbranch_scc1 L_wf_ret")
        e("s_sleep %d" % cfg.lsleep)
        e("s_branch L_waitfree")
        a.lab("L_wf_ret")
    else:
        e("s_cbranch_scc0 L_waitfree")
    e("s_setpc_b64 %s" % sr(S_RET, 2))

    if cfg.noxchg:
        a.filt = lambda sx: (sx.startswith("buffer_") or sx.startswith("global_load")
                             or sx.startswith("global_store_dwordx2"))
    a.lab("L_compute")
    e("v_and_b32 v1, 3, v0")
    e("v_lshrrev_b32 v2, 5, v0")
    e("v_lshrrev_b32 v3, 4, v0")
    e("v_and_b32 v3, 1, v3")
    e("v_lshrrev_b32 v4, 2, v0")
    e("v_and_b32 v4, 3, v4")
    e("v_lshlrev_b32 v5, 2, v3")
    e("v_add_u32 v5, v5, v1")
    e("s_movk_i32 %s, %d" % (sr(S_T0), BLK))
    e("v_mul_lo_u32 v5, v5, %s" % sr(S_T0))
    e("v_lshlrev_b32 v6, 8, v4")
    e("v_add_u32 v5, v5, v6")
    for par in range(2):
        e("v_add_u32 v6, %d, v2" % (2 * par))
        e("v_xor_b32 v6, v6, v4")
        e("v_lshlrev_b32 v6, 4, v6")
        e("v_add_u32 v%d, v5, v6" % (V_KB + par))
    e("v_lshrrev_b32 v6, 1, v1")
    e("v_and_b32 v7, 1, v1")
    e("v_lshlrev_b32 v7, 1, v7")
    e("v_or_b32 v6, v6, v7")
    e("v_lshlrev_b32 v6, 3, v6")
    e("v_lshlrev_b32 v7, 5, v3")
    e("v_add_u32 v6, v6, v7")
    e("v_mul_lo_u32 v7, v4, %s" % sr(S_T0))
    e("v_add_u32 v6, v6, v7")
    e("v_lshlrev_b32 v7, 8, v2")
    e("v_add_u32 v%d, v6, v7" % V_VB)
    e("v_add_u32 v%d, v%d, v7" % (V_WB, V_VB))
    e("v_add_u32 v%d, %d, v%d" % (V_VB2, SLOT, V_VB))
    e("v_mov_b32 v%d, %d" % (V_LADDR, FLAG_L))
    e("s_lshl_b32 %s, %s, 2" % (sr(S_T0), sr(S_WAVE)))
    e("s_add_u32 %s, %s, %d" % (sr(S_T0), sr(S_T0), FLAG_F))
    e("v_mov_b32 v%d, %s" % (V_FADDR, sr(S_T0)))
    e("v_mov_b32 v%d, %d" % (V_FV, 100000 if cfg.nocompute else 0))
    e("ds_write_b32 v%d, v%d" % (V_FADDR, V_FV))
    e("v_lshlrev_b32 v%d, 4, v0" % V_L16)
    e("s_mov_b32 %s, 0" % sr(SC_L))
    c = (128 ** -0.5) * math.log2(math.e)
    e("s_mov_b32 %s, 0x%x" % (sr(SC_T), f32bits(cfg.T_LOG2)))
    e("s_mov_b32 %s, 0" % sr(SC_IDX))
    e("s_mov_b32 %s, 0" % sr(SC_SLOT))
    e("s_mov_b32 %s, %d" % (sr(SC_WRAP), NQ * SLOT))
    if cfg.ytype == 1:
        e("s_and_b32 %s, %s, 1" % (sr(S_T1), sr(S_M)))
        e("s_mul_i32 %s, %s, %d" % (sr(S_T1), sr(S_T1), E))
    else:
        e("s_mov_b32 %s, %d" % (sr(S_T1), E if cfg.ytype == 2 else 0))
    e("s_mov_b32 %s, %s" % (sr(SC_OOFF), sr(S_T1)))
    e("s_mov_b32 %s, 0" % sr(SC_ADJ))
    e("s_waitcnt lgkmcnt(0)")
    srd(SRD_WS, KA_WS, WS_USED)
    srd(SRD_OUT, KA_OUT, 8 * 96 * 1024 * 2)
    e("s_or_b32 %s, %s, %s" % (sr(S_T0), sr(S_WG), sr(S_WAVE)))
    e("s_cmp_eq_u32 %s, 0" % sr(S_T0))
    e("s_cbranch_scc0 L_nononce")
    e("s_memrealtime %s" % sr(SC_NONCE, 2))
    e("s_waitcnt lgkmcnt(0)")
    e("s_or_b32 %s, %s, 1" % (sr(SC_NONCE), sr(SC_NONCE)))
    e("v_mov_b32 v2, %s" % sr(SC_NONCE))
    e("v_mov_b32 v3, %s" % sr(SC_NONCE + 1))
    e("v_mov_b32 v1, 0")
    e("global_store_dwordx2 v1, v[2:3], %s sc1" % sr(KA_DBG, 2))
    a.lab("L_nononce")
    e("s_barrier")
    stamp("bar")
    if cfg.nocompute:
        if cfg.burn:
            e("s_mov_b32 %s, 0" % sr(SC_IT))
            for i in range(64, 256):
                e("v_mov_b32 v%d, 0x3f803f80" % i)
            a.lab("L_burn")
            for k in range(16):
                e("%s %s, %s, %s, %s" % (MFMA, vr(64 + 16 * (k & 3), 16), vr(128 + 4 * k, 4), vr(192 + 4 * k, 4),
                                         vr(64 + 16 * (k & 3), 16)))
                if cfg.burn and k % 2 == 0:
                    e("v_exp_f32 v%d, v%d" % (20 + k, 20 + k))
            e("s_add_u32 %s, %s, 1" % (sr(SC_IT), sr(SC_IT)))
            e("s_cmp_lt_u32 %s, %d" % (sr(SC_IT), cfg.burn))
            e("s_cbranch_scc1 L_burn")
        e("s_branch L_fin")

    slowwaits = []

    def wait_landed_l(delta, adj=False):
        slow = a.newlab("lw_slow")
        back = a.newlab("lw_back")
        slowwaits.append((slow, back))
        out = ["s_add_u32 %s, %s, %d" % (sr(SC_NEED), sr(SC_IDX), delta)]
        if adj:
            out.append("s_add_u32 %s, %s, %s" % (sr(SC_NEED), sr(SC_NEED), sr(SC_ADJ)))
        out += ["s_cmp_lt_u32 %s, %s" % (sr(SC_L), sr(SC_NEED)),
                "s_cbranch_scc1 %s" % slow,
                back + ":"]
        return out

    def wait_landed(delta, adj=False):
        a.extend(wait_landed_l(delta, adj))

    def slot_adv_l(dst, src, n):
        return ["s_add_u32 %s, %s, %d" % (sr(dst), sr(src), n * SLOT),
                "s_sub_u32 %s, %s, %s" % (sr(S_T0), sr(dst), sr(SC_WRAP)),
                "s_cmp_lt_u32 %s, %s" % (sr(dst), sr(SC_WRAP)),
                "s_cselect_b32 %s, %s, %s" % (sr(dst), sr(dst), sr(S_T0))]

    def slot_adv(dst, src, n):
        a.extend(slot_adv_l(dst, src, n))

    def release_l(sg):
        return ["v_mov_b32 v%d, %s" % (V_FV, sr(sg)), "ds_write_b32 v%d, v%d" % (V_FADDR, V_FV)]

    def k_addr(slot):
        return ["v_add_u32 v%d, %s, v%d" % (V_KA + p, sr(slot), V_KB + p) for p in range(2)]

    def k_reads(dst_a):
        return ["ds_read_b128 %s, v%d offset:%d" % (ar(dst_a + 4 * s, 4), V_KA + (s & 1), (s >> 1) * 64)
                for s in range(8)]

    def v_addr(slot, base):
        return ["v_add_u32 v%d, %s, v%d" % (V_VA, sr(slot), base)]

    def v_reads(dst_a, isw):
        out = []
        for ks in range(2):
            for db in range(4):
                base = dst_a + (ks * 4 + db) * 4
                o2 = 256 if isw else 512
                o = ks * 4 * BLK + db * 64
                out.append("ds_read_b64_tr_b16 %s, v%d offset:%d" % (ar(base, 2), V_VA, o))
                out.append("ds_read_b64_tr_b16 %s, v%d offset:%d" % (ar(base + 2, 2), V_VA, o + o2))
        return out

    hooks = {}

    def proj(acc, bfrag, xmode):
        ntile_x = 3 if xmode else 0

        def x_prefetch():
            out = []
            out.append("s_mul_i32 %s, %s, %d" % (sr(S_T1), sr(S_WAVE), SLOT))
            out.append("s_add_u32 %s, %s, %s" % (sr(SC_SLOT2), sr(SC_SLOT), sr(S_T1)))
            out += slot_adv_l(SC_SLOT2, SC_SLOT2, 0)
            out += k_addr(SC_SLOT2)
            out += slot_adv_l(SC_SLOT, SC_SLOT, 3)
            return out

        def advance(n):
            return ["s_add_u32 %s, %s, %d" % (sr(SC_IDX), sr(SC_IDX), n)] + slot_adv_l(SC_SLOT, SC_SLOT, 1)

        wait_landed(ntile_x + 1, xmode)
        if xmode:
            a.extend(x_prefetch())
            a.extend(k_reads(A_XF[0]))
        a.extend(v_addr(SC_SLOT, V_WB))
        a.extend(v_reads(A_AF[0], True))
        a.extend(advance(ntile_x + 1))
        fullwait = True
        for cidx in range(16):
            r, j = divmod(cidx, 4)
            mf = []
            for ks in range(2):
                for db in range(4):
                    cin = "0" if (cidx == 0 and ks == 0) else vr(acc + 16 * db, 16)
                    mf.append("%s %s, %s, %s, %s" % (
                        MFMA, vr(acc + 16 * db, 16), ar(A_AF[cidx & 1] + (ks * 4 + db) * 4, 4),
                        bfrag(r, 2 * j + ks), cin))
            per = [[] for _ in range(8)]
            rel = release_l(SC_IDX)
            if cidx == 15 or (xmode and j == 3):
                fullwait = True
            if fullwait:
                e("s_waitcnt lgkmcnt(0)")
            nextfull = False
            if cidx < 15:
                nx = ntile_x if j == 3 else 0
                pre = []
                if xmode and cidx == 3:
                    pre += ["s_mov_b32 %s, %s" % (sr(SC_ADJ), sr(SC_OOFF))]
                chk = pre + wait_landed_l(nx + 1, xmode)
                wr = v_reads(A_AF[(cidx + 1) & 1], True)
                if nx:
                    xp = x_prefetch()
                    xr = k_reads(A_XF[(r + 1) & 1])
                    adv = advance(nx + 1)
                    per[0] = rel[0:1] + chk + xp[0:2]
                    per[1] = xp[2:8]
                    per[2] = xr[0:2] + xp[8:12]
                    per[3] = v_addr(SC_SLOT, V_WB) + xr[2:6] + wr[0:1]
                    per[4] = xr[6:8] + wr[1:5]
                    per[5] = wr[5:11]
                    per[6] = wr[11:16]
                    per[7] = adv + rel[1:2]
                    nextfull = True
                else:
                    adv = advance(1)
                    per[0] = rel[0:1] + chk + v_addr(SC_SLOT, V_WB) + wr[0:2]
                    per[1] = wr[2:4] + adv[0:2]
                    per[2] = wr[4:6] + adv[2:4]
                    per[3] = wr[6:8] + adv[4:5]
                    per[4] = wr[8:10]
                    per[5] = wr[10:12]
                    per[6] = wr[12:14]
                    per[7] = wr[14:16] + rel[1:2]
            else:
                per[0] = rel
            if not fullwait:
                for g in (1, 3, 5):
                    per[g] = per[g] + ["s_waitcnt lgkmcnt(13)"]
                e("s_waitcnt lgkmcnt(13)")
            a.extend(gaps(mf, per))
            fullwait = nextfull
            if hooks.get(cidx):
                hooks[cidx]()

    e("s_branch L_main")
    a.lab("L_qproj")
    if cfg.stamps:
        for cc in range(16):
            if ("q%d" % cc) in stl:
                hooks[cc] = (lambda cc=cc: stamp("q%d" % cc))
    proj(V_ACCQ, lambda r, s: ar(A_XF[r & 1] + 4 * s, 4), True)
    hooks.clear()
    e("s_nop 7")
    e("s_nop 3")
    e("s_mov_b32 %s, 0x%x" % (sr(S_T1), f32bits(c)))
    for i in range(64):
        e("v_mul_f32 v%d, %s, v%d" % (V_ACCQ + i, sr(S_T1), V_ACCQ + i))
    e("s_setpc_b64 %s" % sr(SC_RET2, 2))

    a.lab("L_main")
    e("s_call_b64 %s, L_qproj" % sr(SC_RET2, 2))
    for i in range(32):
        e("v_cvt_pk_bf16_f32 v%d, v%d, v%d" % (V_Q1 + i, V_ACCQ + 2 * i, V_ACCQ + 2 * i + 1))
    e("s_mov_b32 %s, %d" % (sr(SC_SLOT), NQ * SLOT))
    e("s_mov_b32 %s, %d" % (sr(SC_WRAP), RING))
    e("s_mov_b32 %s, 0" % sr(SC_ADJ))
    e("s_mov_b32 %s, 0" % sr(SC_OOFF))
    stamp("qp")

    def qk_mfmas(sdst, qbase, cin):
        return ["%s %s, %s, %s, %s" % (MFMA, vr(sdst, 16), ar(A_KF + 4 * s, 4), vr(qbase + 4 * s, 4),
                                       cin if s == 0 else vr(sdst, 16)) for s in range(8)]

    def softmax_gaps(sc):
        g = []
        for k in range(8):
            l = ["v_exp_f32 v%d, v%d" % (sc + 2 * k, sc + 2 * k),
                 "v_exp_f32 v%d, v%d" % (sc + 2 * k + 1, sc + 2 * k + 1)]
            if k > 0:
                p = k - 1
                l += ["v_add_f32 v%d, v%d, v%d" % (V_LSUM, V_LSUM, sc + 2 * p),
                      "v_add_f32 v%d, v%d, v%d" % (V_LS2, V_LS2, sc + 2 * p + 1),
                      "v_cvt_pk_bf16_f32 v%d, v%d, v%d" % (V_PF + p, sc + 2 * p, sc + 2 * p + 1)]
            g.append(l)
        tail = ["v_add_f32 v%d, v%d, v%d" % (V_LSUM, V_LSUM, sc + 14),
                "v_add_f32 v%d, v%d, v%d" % (V_LS2, V_LS2, sc + 15),
                "v_cvt_pk_bf16_f32 v%d, v%d, v%d" % (V_PF + 7, sc + 14, sc + 15)]
        ab = cfg.ablate.split("+")
        for key, pat in (("add", "v_add_f32"), ("exp", "v_exp_f32"), ("cvt", "v_cvt_pk")):
            if key in ab:
                g = [[x for x in l if not x.startswith(pat)] for l in g]
                tail = [x for x in tail if not x.startswith(pat)]
        return g, tail

    def pv_mfmas(vf):
        out = []
        for ks in range(2):
            for db in range(4):
                out.append("%s %s, %s, %s, %s" % (
                    MFMA, vr(V_O + 16 * db, 16), ar(vf + (ks * 4 + db) * 4, 4), vr(V_PF + 4 * ks, 4),
                    vr(V_O + 16 * db, 16)))
        return out

    def max_valu(sn):
        out = ["v_max3_f32 v%d, v%d, v%d, v%d" % (V_TMAX, sn, sn + 1, sn + 2)]
        for i in range(3, 15, 2):
            out.append("v_max3_f32 v%d, v%d, v%d, v%d" % (V_TMAX, V_TMAX, sn + i, sn + i + 1))
        out.append("v_max_f32 v%d, v%d, v%d" % (V_TMAX, V_TMAX, sn + 15))
        return out

    def cross_half_max():
        e("v_mov_b32 v1, v%d" % V_TMAX)
        e("s_nop 1")
        e("v_permlane32_swap_b32 v%d, v1" % V_TMAX)
        e("s_nop 1")
        e("v_max_f32 v%d, v%d, v1" % (V_TMAX, V_TMAX))

    def rare_path(lab, back, sn):
        a.lab(lab)
        cross_half_max()
        e("v_max_f32 v%d, 0, v%d" % (V_TMAX, V_TMAX))
        e("v_sub_f32 v%d, 0, v%d" % (V_ALPHA, V_TMAX))
        e("v_exp_f32 v%d, v%d" % (V_ALPHA, V_ALPHA))
        for i in range(16):
            e("v_sub_f32 v%d, v%d, v%d" % (sn + i, sn + i, V_TMAX))
        for i in range(16):
            e("v_sub_f32 v%d, v%d, v%d" % (V_NEGM + i, V_NEGM + i, V_TMAX))
        e("v_mul_f32 v%d, v%d, v%d" % (V_LSUM, V_LSUM, V_ALPHA))
        e("v_mul_f32 v%d, v%d, v%d" % (V_LS2, V_LS2, V_ALPHA))
        for i in range(64):
            e("v_mul_f32 v%d, v%d, v%d" % (V_O + i, V_O + i, V_ALPHA))
        e("s_branch %s" % back)

    rare = []
    events = []
    dispatchers = []

    def get_nonce():
        if cfg.noxchg:
            return
        lp = a.newlab("nonce")
        a.lab(lp)
        e("v_mov_b32 v1, 0")
        e("global_load_dwordx2 v[2:3], v1, %s sc1" % sr(KA_DBG, 2))
        e("s_waitcnt vmcnt(0)")
        e("v_readfirstlane_b32 %s, v2" % sr(SC_NONCE))
        e("v_readfirstlane_b32 %s, v3" % sr(SC_NONCE + 1))
        e("s_sub_u32 %s, %s, 1" % (sr(S_SPIN), sr(S_SPIN)))
        e("s_cmp_eq_u32 %s, 0" % sr(S_SPIN))
        e("s_cbranch_scc1 L_end")
        e("s_cmp_eq_u32 %s, 0" % sr(SC_NONCE))
        e("s_cbranch_scc1 %s" % lp)

    def flag_store(off_sgpr, local=False, hi=None):
        e("v_mov_b32 v2, %s" % sr(SC_NONCE))
        e("v_mov_b32 v3, %s" % sr(SC_NONCE + 1 if hi is None else hi))
        e("v_mov_b32 v1, 0")
        e("s_mov_b64 s[34:35], exec")
        e("s_mov_b64 exec, 1")
        if local and cfg.local:
            gl = a.newlab("fsg")
            dn = a.newlab("fsd")
            e("s_cmp_eq_u32 %s, 0" % sr(SC_LOCAL))
            e("s_cbranch_scc1 %s" % gl)
            e("buffer_store_dwordx2 v[2:3], v1, %s, %s offen" % (sr(SRD_WS, 4), sr(off_sgpr)))
            e("s_branch %s" % dn)
            a.lab(gl)
            e("buffer_store_dwordx2 v[2:3], v1, %s, %s offen sc1" % (sr(SRD_WS, 4), sr(off_sgpr)))
            a.lab(dn)
        else:
            e("buffer_store_dwordx2 v[2:3], v1, %s, %s offen sc1" % (sr(SRD_WS, 4), sr(off_sgpr)))
        e("s_mov_b64 exec, s[34:35]")

    def flag_poll(off_sgpr, n):
        if cfg.noxchg:
            return
        lp = a.newlab("poll")
        e("v_min_u32 v1, %d, v0" % (n - 1))
        e("v_lshlrev_b32 v1, 3, v1")
        a.lab(lp)
        e("buffer_load_dwordx2 v[2:3], v1, %s, %s offen sc1" % (sr(SRD_WS, 4), sr(off_sgpr)))
        e("s_waitcnt vmcnt(0)")
        e("v_cmp_ne_u32 vcc, %s, v2" % sr(SC_NONCE))
        e("v_cmp_ne_u32 s[34:35], %s, v3" % sr(SC_NONCE + 1))
        e("s_sub_u32 %s, %s, 1" % (sr(S_SPIN), sr(S_SPIN)))
        e("s_cmp_eq_u32 %s, 0" % sr(S_SPIN))
        e("s_cbranch_scc1 L_end")
        e("s_or_b64 vcc, vcc, s[34:35]")
        e("s_cbranch_scc1 %s" % lp)

    def flago_off(dst, ph, with_m):
        e("s_lshl_b32 %s, %s, 2" % (sr(dst), sr(S_QUAD)))
        e("s_add_u32 %s, %s, %s" % (sr(dst), sr(dst), sr(S_WAVE)))
        e("s_lshl_b32 %s, %s, 7" % (sr(dst), sr(dst)))
        e("s_add_u32 %s, %s, %d" % (sr(dst), sr(dst), WS_FLAGO + ph * 64 * 4 * 128))
        if with_m:
            e("s_lshl_b32 %s, %s, 3" % (sr(S_T0), sr(S_M)))
            e("s_add_u32 %s, %s, %s" % (sr(dst), sr(dst), sr(S_T0)))

    def load_o(ph, regs, ks):
        e("s_lshl_b32 %s, %s, 2" % (sr(S_T1), sr(S_QUAD)))
        e("s_add_u32 %s, %s, %d" % (sr(S_T1), sr(S_T1), ph * 256))
        e("s_mul_i32 %s, %s, 24576" % (sr(S_T1), sr(S_T1)))
        e("s_lshl_b32 %s, %s, 13" % (sr(S_T2), sr(S_WAVE)))
        e("s_add_u32 %s, %s, %s" % (sr(S_T1), sr(S_T1), sr(S_T2)))
        e("s_add_u32 %s, %s, %d" % (sr(S_T1), sr(S_T1), WS_OBUF))
        for k in ks:
            e("s_add_u32 %s, %s, %d" % (sr(S_T2), sr(S_M), k))
            e("s_and_b32 %s, %s, 3" % (sr(S_T2), sr(S_T2)))
            e("s_mul_i32 %s, %s, 24576" % (sr(S_T2), sr(S_T2)))
            e("s_add_u32 %s, %s, %s" % (sr(S_T2), sr(S_T2), sr(S_T1)))
            e("s_add_u32 %s, %s, 4096" % (sr(S_T3), sr(S_T2)))
            for s in range(8):
                e("buffer_load_dwordx4 %s, v%d, %s, %s offen offset:%d sc1" % (
                    ar(regs[k] + 4 * s, 4), V_L16, sr(SRD_WS, 4), sr(S_T2 if s < 4 else S_T3), (s & 3) * 1024))

    def poff(dst, ph, kq_sgpr):
        e("s_add_u32 %s, %s, %d" % (sr(dst), sr(S_B), ph * 8))
        e("s_lshl_b32 %s, %s, 2" % (sr(dst), sr(dst)))
        e("s_add_u32 %s, %s, %s" % (sr(dst), sr(dst), sr(S_M)))
        e("s_lshl_b32 %s, %s, 3" % (sr(dst), sr(dst)))
        if kq_sgpr is not None:
            e("s_add_u32 %s, %s, %s" % (sr(dst), sr(dst), sr(kq_sgpr)))
        e("s_mul_i32 %s, %s, 24576" % (sr(dst), sr(dst)))
        e("s_lshl_b32 %s, %s, 13" % (sr(S_T0), sr(S_WAVE)))
        e("s_add_u32 %s, %s, %s" % (sr(dst), sr(dst), sr(S_T0)))
        e("s_add_u32 %s, %s, %d" % (sr(dst), sr(dst), WS_PBUF))

    def flagp_off(dst, ph, with_kq):
        e("s_add_u32 %s, %s, %d" % (sr(dst), sr(S_B), ph * 8))
        e("s_lshl_b32 %s, %s, 2" % (sr(dst), sr(dst)))
        e("s_add_u32 %s, %s, %s" % (sr(dst), sr(dst), sr(S_M)))
        e("s_lshl_b32 %s, %s, 2" % (sr(dst), sr(dst)))
        e("s_add_u32 %s, %s, %s" % (sr(dst), sr(dst), sr(S_WAVE)))
        e("s_lshl_b32 %s, %s, 7" % (sr(dst), sr(dst)))
        e("s_add_u32 %s, %s, %d" % (sr(dst), sr(dst), WS_FLAGP))
        if with_kq:
            e("s_lshl_b32 %s, %s, 3" % (sr(S_T0), sr(S_X)))
            e("s_add_u32 %s, %s, %s" % (sr(dst), sr(dst), sr(S_T0)))

    def partial_store(acc, ph):
        poff(SC_POFF, ph, S_X)
        e("s_add_u32 %s, %s, 4096" % (sr(S_T1), sr(SC_POFF)))
        e("s_nop 3")
        for cch in range(8):
            for i in range(4):
                k = 4 * cch + i
                e("v_cvt_pk_bf16_f32 v%d, v%d, v%d" % (acc + k, acc + 2 * k, acc + 2 * k + 1))
            e("buffer_store_dwordx4 %s, v%d, %s, %s offen offset:%d sc1" % (
                vr(acc + 4 * cch, 4), V_L16, sr(SRD_WS, 4), sr(SC_POFF if cch < 4 else S_T1), (cch & 3) * 1024))

    def reduce(ph, regs):
        flagp_off(SC_FOFF, ph, False)
        flag_poll(SC_FOFF, 8)
        poff(SC_POFF, ph, None)
        e("s_lshl_b32 %s, %s, 10" % (sr(S_T1), sr(S_X)))
        e("s_add_u32 %s, %s, %s" % (sr(SC_POFF), sr(SC_POFF), sr(S_T1)))
        for kq in range(8):
            e("s_add_u32 %s, %s, %d" % (sr(S_T1), sr(SC_POFF), kq * 24576))
            e("buffer_load_dwordx4 %s, v%d, %s, %s offen sc1" % (
                vr(regs + 4 * kq, 4), V_L16, sr(SRD_WS, 4), sr(S_T1)))
        e("v_and_b32 v1, 31, v0")
        e("v_lshlrev_b32 v1, 11, v1")
        e("v_lshrrev_b32 v2, 5, v0")
        e("v_lshlrev_b32 v2, 4, v2")
        e("v_add_u32 v1, v1, v2")
        e("s_mul_i32 %s, %s, 96" % (sr(S_T1), sr(S_B)))
        e("s_lshl_b32 %s, %s, 5" % (sr(S_T2), sr(S_WAVE)))
        e("s_add_u32 %s, %s, %s" % (sr(S_T1), sr(S_T1), sr(S_T2)))
        e("s_lshl_b32 %s, %s, 11" % (sr(S_T1), sr(S_T1)))
        e("s_lshl_b32 %s, %s, 8" % (sr(S_T2), sr(S_M)))
        e("s_add_u32 %s, %s, %s" % (sr(S_T1), sr(S_T1), sr(S_T2)))
        e("s_lshl_b32 %s, %s, 5" % (sr(S_T2), sr(S_X)))
        e("s_add_u32 %s, %s, %s" % (sr(S_T1), sr(S_T1), sr(S_T2)))
        if ph ^ int(cfg.swap):
            e("s_add_u32 %s, %s, 1024" % (sr(S_T1), sr(S_T1)))
        acc = regs + 32
        for kq in range(8):
            e("s_waitcnt vmcnt(%d)" % (7 - kq))
            for i in range(4):
                r = regs + 4 * kq + i
                if kq == 0:
                    e("v_lshlrev_b32 v%d, 16, v%d" % (acc + 2 * i, r))
                    e("v_and_b32 v%d, 0xffff0000, v%d" % (acc + 2 * i + 1, r))
                else:
                    e("v_lshlrev_b32 v%d, 16, v%d" % (acc + 8, r))
                    e("v_and_b32 v%d, 0xffff0000, v%d" % (r, r))
                    e("v_add_f32 v%d, v%d, v%d" % (acc + 2 * i, acc + 2 * i, acc + 8))
                    e("v_add_f32 v%d, v%d, v%d" % (acc + 2 * i + 1, acc + 2 * i + 1, r))
        for i in range(4):
            e("v_cvt_pk_bf16_f32 v%d, v%d, v%d" % (4 + i, acc + 2 * i, acc + 2 * i + 1))
        e("buffer_store_dwordx4 v[4:7], v1, %s, %s offen" % (sr(SRD_OUT, 4), sr(S_T1)))

    OFT1 = [160, 192, 224, 160]

    def head(ph):
        qbase = V_Q1 if ph == 0 else V_Q2
        for i in range(64):
            e("v_mov_b32 v%d, 0" % (V_O + i))
        e("v_mov_b32 v%d, 0" % V_LSUM)
        e("v_mov_b32 v%d, 0" % V_LS2)
        wait_landed(1)
        a.extend(k_addr(SC_SLOT))
        a.extend(k_reads(A_KF))
        e("s_waitcnt lgkmcnt(0)")
        a.extend(qk_mfmas(V_SA, qbase, "0"))
        slot_adv(SC_SLOT, SC_SLOT, 1)
        wait_landed(3)
        a.extend(k_addr(SC_SLOT))
        slot_adv(SC_SLOT, SC_SLOT, 1)
        a.extend(v_addr(SC_SLOT, V_VB))
        a.extend(k_reads(A_KF))
        a.extend(v_reads(A_VF[0], False))
        slot_adv(SC_SLOT, SC_SLOT, 1)
        e("s_add_u32 %s, %s, 3" % (sr(SC_IDX), sr(SC_IDX)))
        a.extend(max_valu(V_SA))
        cross_half_max()
        for i in range(16):
            e("v_sub_f32 v%d, v%d, v%d" % (V_SA + i, V_SA + i, V_TMAX))
        e("v_sub_f32 v%d, 0, v%d" % (V_NEGM, V_TMAX))
        for i in range(1, 16):
            e("v_mov_b32 v%d, v%d" % (V_NEGM + i, V_NEGM))

        def iteration(par, kind):
            scur = V_SA if par == 0 else V_SB
            snext = V_SB if par == 0 else V_SA
            ex = ["v_exp_f32 v%d, v%d" % (scur + i, scur + i) for i in range(16)]
            ad = ["v_add_f32 v%d, v%d, v%d" % ((V_LSUM, V_LS2)[i & 1], (V_LSUM, V_LS2)[i & 1], scur + i)
                  for i in range(16)]
            cv = ["v_cvt_pk_bf16_f32 v%d, v%d, v%d" % (V_PF + k, scur + 2 * k, scur + 2 * k + 1) for k in range(8)]
            ab = cfg.ablate.split("+")
            pv = pv_mfmas(A_VF[par])
            rel = release_l(SC_IDX)
            e("s_waitcnt lgkmcnt(%d)" % (15 if kind == "full" else 0))
            if kind == "full":
                qk = qk_mfmas(snext, qbase, vr(V_NEGM, 16))
                kr = k_reads(A_KF)
                r = v_reads(A_VF[par ^ 1], False)
                mx = max_valu(snext)
                cmp_ = ["v_cmp_lt_f32 vcc, %s, v%d" % (sr(SC_T), V_TMAX)]
                book = ["s_add_u32 %s, %s, %d" % (sr(SC_SLOT), sr(SC_SLOT), 2 * SLOT),
                        "s_add_u32 %s, %s, 2" % (sr(SC_IDX), sr(SC_IDX)),
                        "s_cmp_lt_u32 %s, %d" % (sr(SC_SLOT), RING),
                        "s_cselect_b32 %s, %s, 0" % (sr(SC_SLOT), sr(SC_SLOT))]
                ka = k_addr(SC_SLOT)
                va = v_addr(SC_SLOT, V_VB2)
                per = [
                    [ex[0], ex[1]] + wait_landed_l(2),
                    [ex[2], ex[3], cv[0], ka[0]],
                    [ex[4], ex[5], cv[1], ka[1]],
                    [ex[6], ex[7], cv[2], va[0]],
                    [ex[8], ex[9], cv[3], rel[0]],
                    [ex[10], ex[11], cv[4], book[0]],
                    [ex[12], ex[13], cv[5], book[1]],
                    [ex[14], ex[15], cv[6], cv[7], "s_waitcnt lgkmcnt(0)"],
                    [rel[1]] + kr[0:4] + [ad[0]],
                    kr[4:8] + [ad[1]],
                    r[0:4] + ad[2:4],
                    r[4:8] + ad[4:6],
                    r[8:12] + ad[6:8],
                    r[12:16] + ad[8:10],
                    mx[0:4] + ad[10:12] + book[2:4],
                    mx[4:8] + cmp_ + ad[12:16],
                ]
                def keep(x):
                    for key, pat in (("add", "v_add_f32"), ("exp", "v_exp_f32"), ("cvt", "v_cvt_pk"),
                                     ("kr", "ds_read_b128"), ("vr", "ds_read_b64"), ("mx", "v_max"),
                                     ("rel", "ds_write"), ("salu", "s_add_u32"), ("salu", "s_cselect"),
                                     ("chk", "s_cbranch_scc1")):
                        if key in ab and x.startswith(pat):
                            return False
                    return True
                per = [[x for x in l if keep(x)] for l in per]
                a.extend(gaps(qk + pv, per))
            else:
                g, tl = softmax_gaps(scur)
                if kind == "lastk":
                    a.extend(wait_landed_l(1) + v_addr(SC_SLOT, V_VB))
                    vrr = v_reads(A_VF[par ^ 1], False)
                    g = [l + vrr[2 * k:2 * k + 2] for k, l in enumerate(g)]
                    a.extend(gaps(qk_mfmas(snext, qbase, vr(V_NEGM, 16)), g))
                    a.extend(tl)
                    mx = max_valu(snext) + ["v_cmp_lt_f32 vcc, %s, v%d" % (sr(SC_T), V_TMAX)]
                    book = ["s_add_u32 %s, %s, 1" % (sr(SC_IDX), sr(SC_IDX))] + slot_adv_l(SC_SLOT, SC_SLOT, 1)
                    per = [rel, [], [], mx[0:2], mx[2:4] + book[0:1], mx[4:6] + book[1:3], mx[6:8] + book[3:5],
                           mx[8:9]]
                    a.extend(gaps(pv, per))
                else:
                    for l in g:
                        a.extend(l)
                    a.extend(tl)
                    a.extend(rel)
                    a.extend(pv)
            if kind != "final":
                r_ = a.newlab("rare")
                b_ = a.newlab("back")
                e("s_cbranch_vccnz %s" % r_)
                a.lab(b_)
                rare.append((r_, b_, snext))

        acts = []
        static_mask = 0

        def at_pass(n, body):
            nonlocal static_mask
            static_mask |= 1 << n
            acts.append((n, body))

        if cfg.stamps:
            for nm in stl:
                if nm[0] == "ab"[ph] and nm[1:].isdigit():
                    at_pass(int(nm[1:]), lambda nm=nm: stamp(nm))
        pollmask = 0
        if ph == 0:
            def nonce_issue():
                e("v_mov_b32 v1, 0")
                e("global_load_dwordx2 %s, v1, %s sc1" % (vr(V_NON, 2), sr(KA_DBG, 2)))

            def nonce_get():
                ok = a.newlab("nok")
                e("s_waitcnt vmcnt(0)")
                e("v_readfirstlane_b32 %s, v%d" % (sr(SC_NONCE), V_NON))
                e("v_readfirstlane_b32 %s, v%d" % (sr(SC_NONCE + 1), V_NON + 1))
                e("s_nop 3")
                e("s_cmp_lg_u32 %s, 0" % sr(SC_NONCE))
                e("s_cbranch_scc1 %s" % ok)
                get_nonce()
                a.lab(ok)
                e("s_getreg_b32 %s, hwreg(HW_REG_XCC_ID)" % sr(SC_XCC))
                e("s_and_b32 %s, %s, 15" % (sr(SC_XCC), sr(SC_XCC)))
                e("s_add_u32 %s, %s, %s" % (sr(SC_XCC), sr(SC_XCC), sr(SC_NONCE + 1)))
                e("s_lshl_b32 %s, %s, 7" % (sr(SC_IDOFF), sr(S_QUAD)))
                e("s_add_u32 %s, %s, %d" % (sr(SC_IDOFF), sr(SC_IDOFF), WS_FLAGI))
                e("s_mov_b32 %s, 0" % sr(SC_LOCAL))
                if cfg.local:
                    sk = a.newlab("idsk")
                    e("s_cmp_eq_u32 %s, 0" % sr(S_WAVE))
                    e("s_cbranch_scc0 %s" % sk)
                    e("s_lshl_b32 %s, %s, 3" % (sr(S_T1), sr(S_M)))
                    e("s_add_u32 %s, %s, %s" % (sr(S_T1), sr(S_T1), sr(SC_IDOFF)))
                    flag_store(S_T1, hi=SC_XCC)
                    a.lab(sk)

            def id_issue():
                e("v_min_u32 v1, 3, v0")
                e("v_lshlrev_b32 v1, 3, v1")
                e("buffer_load_dwordx2 %s, v1, %s, %s offen sc1" % (vr(V_NON, 2), sr(SRD_WS, 4), sr(SC_IDOFF)))

            def id_check():
                e("s_waitcnt vmcnt(0)")
                e("v_cmp_ne_u32 vcc, %s, v%d" % (sr(SC_NONCE), V_NON))
                e("v_cmp_ne_u32 s[34:35], %s, v%d" % (sr(SC_XCC), V_NON + 1))
                e("s_nop 3")
                e("s_or_b64 vcc, vcc, s[34:35]")
                e("s_cselect_b32 %s, 0, 1" % sr(SC_LOCAL))
            if not cfg.noxchg:
                at_pass(1, nonce_issue)
                at_pass(3, nonce_get)
                if cfg.local:
                    at_pass(11, id_issue)
                    at_pass(13, id_check)
        else:
            def poll_issue():
                e("v_min_u32 v1, 3, v0")
                e("v_lshlrev_b32 v1, 3, v1")
                e("buffer_load_dwordx2 %s, v1, %s, %s offen sc1" % (vr(V_NON, 2), sr(SRD_WS, 4), sr(SC_FOFF0)))

            def p1b():
                e("s_waitcnt vmcnt(0)")
                flago_off(SC_FOFF, 0, True)
                flag_store(SC_FOFF, local=True)
                flago_off(SC_FOFF0, 0, False)
                e("s_mov_b32 %s, 0" % sr(SC_O1ST))

            def poll_check():
                sk = a.newlab("o1skip")
                retry = a.newlab("o1retry")
                e("s_cmp_lg_u32 %s, 0" % sr(SC_O1ST))
                e("s_cbranch_scc1 %s" % sk)
                e("s_waitcnt vmcnt(0)")
                e("v_cmp_ne_u32 vcc, %s, v%d" % (sr(SC_NONCE), V_NON))
                e("v_cmp_ne_u32 s[34:35], %s, v%d" % (sr(SC_NONCE + 1), V_NON + 1))
                e("s_nop 3")
                e("s_or_b64 vcc, vcc, s[34:35]")
                e("s_cbranch_scc1 %s" % retry)
                load_o(0, OFT1, [0, 1, 2])
                e("s_mov_b32 %s, 1" % sr(SC_O1ST))
                e("s_andn2_b32 %s, %s, 0x%x" % (sr(SC_EVM), sr(SC_EVM), pollmask))
                e("s_lshl_b32 %s, 1, %s" % (sr(S_T1), sr(S_TAU2)))
                e("s_or_b32 %s, %s, %s" % (sr(SC_EVM), sr(SC_EVM), sr(S_T1)))
                e("s_or_b32 %s, %s, 0x%x" % (sr(SC_EVM), sr(SC_EVM), static_mask))
                e("s_branch %s" % sk)
                a.lab(retry)
                poll_issue()
                a.lab(sk)

            if cfg.noxchg:
                at_pass(2, lambda: e("s_mov_b32 %s, 1" % sr(SC_O1ST)))
            else:
                at_pass(2, p1b)
                at_pass(3, poll_issue)
                pollmask = 0x7fe0
        e("s_lshl_b32 %s, 1, %s" % (sr(SC_EVM), sr(S_TAU1 if ph == 0 else S_TAU2)))
        e("s_or_b32 %s, %s, 0x%x" % (sr(SC_EVM), sr(SC_EVM), static_mask | pollmask))
        e("s_mov_b32 %s, 0" % sr(SC_IT))
        lp = a.newlab("attn")
        a.lab(lp)
        iteration(0, "full")
        iteration(1, "full")
        e("s_add_u32 %s, %s, 1" % (sr(SC_IT), sr(SC_IT)))
        evd = a.newlab("evdisp")
        evdb = a.newlab("evdback")
        e("s_bitcmp1_b32 %s, %s" % (sr(SC_EVM), sr(SC_IT)))
        e("s_cbranch_scc1 %s" % evd)
        a.lab(evdb)
        e("s_cmp_lt_u32 %s, 15" % sr(SC_IT))
        e("s_cbranch_scc1 %s" % lp)

        def dispatcher(ph=ph, evd=evd, evdb=evdb, acts=acts, pollmask=pollmask,
                       poll_check=(poll_check if (ph == 1 and not cfg.noxchg) else None)):
            a.lab(evd)
            ev = a.newlab("event")
            evb = a.newlab("evback")
            e("s_cmp_eq_u32 %s, %s" % (sr(SC_IT), sr(S_TAU1 if ph == 0 else S_TAU2)))
            e("s_cbranch_scc1 %s" % ev)
            a.lab(evb)
            events.append((ph, ev, evb))
            for n, body in acts:
                sk = a.newlab("noev")
                e("s_cmp_eq_u32 %s, %d" % (sr(SC_IT), n))
                e("s_cbranch_scc0 %s" % sk)
                body()
                a.lab(sk)
            if poll_check is not None:
                sk = a.newlab("nopoll")
                e("s_cmp_lt_u32 %s, 5" % sr(SC_IT))
                e("s_cbranch_scc1 %s" % sk)
                poll_check()
                a.lab(sk)
            e("s_branch %s" % evdb)
        dispatchers.append(dispatcher)
        if ph == 1:
            e("s_waitcnt vmcnt(0)")
            flagp_off(SC_FOFF, 0, True)
            flag_store(SC_FOFF)
        iteration(0, "lastk")
        iteration(1, "final")
        e("v_add_f32 v%d, v%d, v%d" % (V_LSUM, V_LSUM, V_LS2))
        e("v_mov_b32 v%d, v%d" % (V_LS2, V_LSUM))
        e("s_nop 1")
        e("v_permlane32_swap_b32 v%d, v%d" % (V_LSUM, V_LS2))
        e("s_nop 1")
        e("v_add_f32 v%d, v%d, v%d" % (V_LSUM, V_LSUM, V_LS2))
        e("v_rcp_f32 v%d, v%d" % (V_ALPHA, V_LSUM))
        e("s_lshl_b32 %s, %s, 2" % (sr(S_T1), sr(S_QUAD)))
        e("s_add_u32 %s, %s, %s" % (sr(S_T1), sr(S_T1), sr(S_M)))
        e("s_add_u32 %s, %s, %d" % (sr(S_T1), sr(S_T1), ph * 256))
        e("s_mul_i32 %s, %s, 24576" % (sr(S_T1), sr(S_T1)))
        e("s_lshl_b32 %s, %s, 13" % (sr(S_T2), sr(S_WAVE)))
        e("s_add_u32 %s, %s, %s" % (sr(S_T1), sr(S_T1), sr(S_T2)))
        e("s_add_u32 %s, %s, %d" % (sr(SC_OOFF), sr(S_T1), WS_OBUF))
        e("s_add_u32 %s, %s, 4096" % (sr(SC_OOFF2), sr(SC_OOFF)))
        e("s_nop 3")
        def ostores(flav):
            for s in range(8):
                for k in range(4):
                    i = 4 * s + k
                    e("v_mul_f32 v%d, v%d, v%d" % (V_O + 2 * i, V_O + 2 * i, V_ALPHA))
                    e("v_mul_f32 v%d, v%d, v%d" % (V_O + 2 * i + 1, V_O + 2 * i + 1, V_ALPHA))
                    e("v_cvt_pk_bf16_f32 v%d, v%d, v%d" % (V_STG + i, V_O + 2 * i, V_O + 2 * i + 1))
                e("buffer_store_dwordx4 %s, v%d, %s, %s offen offset:%d %s" % (
                    vr(V_STG + 4 * s, 4), V_L16, sr(SRD_WS, 4), sr(SC_OOFF if s < 4 else SC_OOFF2),
                    (s & 3) * 1024, flav))
        if cfg.local:
            gl = a.newlab("osg")
            dn = a.newlab("osd")
            e("s_cmp_eq_u32 %s, 0" % sr(SC_LOCAL))
            e("s_cbranch_scc1 %s" % gl)
            ostores("")
            e("s_branch %s" % dn)
            a.lab(gl)
            ostores("sc1")
            a.lab(dn)
        else:
            ostores("sc1")
        e("s_mov_b32 %s, 0" % sr(SC_OOFF))

    head(0)
    stamp("h0")
    head(1)
    stamp("h1")

    OF2 = [None, 160, 192, 224]

    def bf2(r, s):
        return vr(V_STG + 4 * s, 4) if r == 0 else ar(OF2[r] + 4 * s, 4)

    def hook_after_round0():
        e("s_waitcnt vmcnt(0)")
        flago_off(SC_FOFF, 1, True)
        flag_store(SC_FOFF, local=True)
        flago_off(SC_FOFF, 1, False)
        flag_poll(SC_FOFF, 4)
        load_o(1, OF2, [1, 2, 3])
        e("s_waitcnt vmcnt(16)")
        stamp("t1")

    hooks.clear()
    hooks.update({3: hook_after_round0, 7: lambda: e("s_waitcnt vmcnt(8)"), 11: lambda: e("s_waitcnt vmcnt(0)")})
    proj(V_ACC2, bf2, False)
    hooks.clear()
    e("s_nop 7")
    partial_store(V_ACC2, 1)
    stamp("t2")
    e("s_waitcnt vmcnt(0)")
    flagp_off(SC_FOFF, 1, True)
    flag_store(SC_FOFF)
    reduce(0, V_O)
    stamp("r0")
    reduce(1, V_O)
    e("s_waitcnt vmcnt(0)")
    stamp("r1")

    a.lab("L_fin")
    savef = a.filt
    a.filt = None
    if cfg.stamps:
        e("s_waitcnt lgkmcnt(0)")
        for k, nm in enumerate(stl):
            if nm == "loc":
                e("s_mov_b32 %s, %s" % (sr(S_ST + 2 * k), sr(SC_LOCAL)))
        e("s_lshl_b32 s28, s2, 9")
        e("s_lshl_b32 s29, %s, 7" % sr(S_WAVE))
        e("s_add_u32 s28, s28, s29")
        e("s_add_u32 s28, s28, 0x%x" % WS_STAMP)
        e("v_mov_b32 v1, s28")
        e("s_getreg_b32 s30, hwreg(HW_REG_XCC_ID)")
        e("s_mov_b64 exec, 1")
        for k in range(4):
            for j in range(4):
                e("v_mov_b32 v%d, s%d" % (4 + j, S_ST + 4 * k + j))
            e("global_store_dwordx4 v1, v[4:7], %s offset:%d" % (sr(KA_WS, 2), 16 * k))
            e("s_waitcnt vmcnt(0)")
        e("v_mov_b32 v4, s30")
        e("global_store_dword v1, v4, %s offset:64" % sr(KA_WS, 2))
        e("s_waitcnt vmcnt(0)")
    a.lab("L_end")
    e("s_endpgm")
    a.filt = savef

    for r, b, sn in rare:
        rare_path(r, b, sn)
    for d in dispatchers:
        d()
    for ph, ev, evb in events:
        a.lab(ev)
        if ph == 0:
            stamp("e0")
            e("s_call_b64 %s, L_qproj" % sr(SC_RET2, 2))
            for i in range(32):
                e("v_cvt_pk_bf16_f32 v%d, v%d, v%d" % (V_Q2 + i, V_ACCQ + 2 * i, V_ACCQ + 2 * i + 1))
            stamp("e1")
        else:
            stamp("e2")
            okl = a.newlab("o1ok")
            e("s_cmp_lg_u32 %s, 0" % sr(SC_O1ST))
            e("s_cbranch_scc1 %s" % okl)
            flag_poll(SC_FOFF0, 4)
            load_o(0, OFT1, [0, 1, 2])
            e("s_mov_b32 %s, 1" % sr(SC_O1ST))
            a.lab(okl)
            e("s_waitcnt vmcnt(0)")
            hooks.clear()
            hooks.update({3: lambda: load_o(0, OFT1, [3]), 11: lambda: e("s_waitcnt vmcnt(0)")})
            proj(V_ACC1, lambda r, s: ar(OFT1[r] + 4 * s, 4), False)
            hooks.clear()
            e("s_nop 7")
            partial_store(V_ACC1, 0)
            stamp("e3")
        e("s_branch %s" % evb)
    for slow, back in slowwaits:
        a.lab(slow)
        e("ds_read_b32 v%d, v%d" % (V_LRD, V_LADDR))
        e("s_waitcnt lgkmcnt(0)")
        e("v_readfirstlane_b32 %s, v%d" % (sr(SC_L), V_LRD))
        e("s_sub_u32 %s, %s, 1" % (sr(S_SPIN), sr(S_SPIN)))
        e("s_cmp_eq_u32 %s, 0" % sr(S_SPIN))
        e("s_cbranch_scc1 L_end")
        e("s_cmp_lt_u32 %s, %s" % (sr(SC_L), sr(SC_NEED)))
        if cfg.psleep:
            e("s_cbranch_scc0 %s" % back)
            e("s_sleep %d" % cfg.psleep)
            e("s_branch %s" % slow)
        else:
            e("s_cbranch_scc1 %s" % slow)
            e("s_branch %s" % back)
    txt = a.text()

    kd = []
    kd.append('.section .rodata,"a"')
    kd.append(".p2align 6")
    kd.append(".amdhsa_kernel %s_kernel" % NAME)
    kd.append("  .amdhsa_next_free_vgpr 512")
    kd.append("  .amdhsa_next_free_sgpr 102")
    kd.append("  .amdhsa_accum_offset 256")
    kd.append("  .amdhsa_group_segment_fixed_size 0")
    kd.append("  .amdhsa_kernarg_size 104")
    kd.append("  .amdhsa_user_sgpr_count 2")
    kd.append("  .amdhsa_user_sgpr_kernarg_segment_ptr 1")
    kd.append("  .amdhsa_system_sgpr_workgroup_id_x 1")
    kd.append(".end_amdhsa_kernel")
    return "\n".join(hdr) + "\n" + txt + "\n".join(kd) + "\n"


if __name__ == "__main__":
    import argparse
    ap = argparse.ArgumentParser()
    ap.add_argument("-o", default="cdna_kernels/%s.s" % NAME)
    ap.add_argument("--stamps", action="store_true")
    ap.add_argument("--set", action="append", default=[])
    args = ap.parse_args()
    cfg = Cfg()
    cfg.stamps = args.stamps
    for kv in args.set:
        k, v = kv.split("=", 1)
        cur = getattr(cfg, k)
        if isinstance(cur, bool):
            v = v in ("1", "True", "true")
        elif isinstance(cur, int):
            v = int(v)
        elif isinstance(cur, float):
            v = float(v)
        setattr(cfg, k, v)
    open(args.o, "w").write(build(cfg))
    print("wrote", args.o)
```

```python
import math
import struct

NAME = "concat_heads__mha_block_cached__gqa_block_cached__near_ridge"


def f32bits(x):
    return struct.unpack("<I", struct.pack("<f", x))[0]


class Cfg:
    NS = 18
    NQ = 11
    E = 7
    D = 5
    stamps = False
    T_LOG2 = 8.0
    kvflags = "nt"
    wflags = ""
    woflags = ""
    xflags = ""
    kvsame = False
    noload = False
    nocompute = False
    noxchg = False
    stamplist = "start,qp,h0,h1,t1,t2,r0,r1"
    tau1_base = 5
    tau1_mul = 9
    lead = 6
    pft = 22
    prefetch = True
    tau2_base = 6
    tau2_mul = 8
    ytype = 1
    spin = 0x80000
    taumode = "m"
    ev2sleep = 0
    burn = 0
    lab = ""
    psleep = 0
    lsleep = 0
    halfwg = 0
    ablate = ""
    local = True
    deven = 4
    dodd = 4
    swap = False


BLK = 1088
SLOT = 8 * BLK
WS_FLAGO = 0
WS_FLAGP = 65536
WS_FLAGI = 131072
WS_OBUF = 1 << 20
WS_PBUF = 16 << 20
WS_STAMP = 48 << 20
WS_USED = 56 << 20


def vr(base, n=1):
    return "v%d" % base if n == 1 else "v[%d:%d]" % (base, base + n - 1)


def ar(base, n=1):
    return "a%d" % base if n == 1 else "a[%d:%d]" % (base, base + n - 1)


def sr(base, n=1):
    return "s%d" % base if n == 1 else "s[%d:%d]" % (base, base + n - 1)


class Asm:
    def __init__(self):
        self.L = []
        self.nlab = 0
        self.filt = None

    def e(self, s):
        if self.filt and self.filt(s):
            return
        self.L.append("  " + s)

    def lab(self, name):
        self.L.append(name + ":")

    def newlab(self, base):
        self.nlab += 1
        return "L%s_%d" % (base, self.nlab)

    def extend(self, lst):
        for s in lst:
            if s.endswith(":"):
                self.lab(s[:-1])
            else:
                self.e(s)

    def text(self):
        return "\n".join(self.L) + "\n"


def gaps(primary, per_gap):
    out = []
    for p, f in zip(primary, per_gap):
        out.append(p)
        out.extend(f)
    return out


S_WG = 2
S_WAVE = 3
S_X, S_M, S_B, S_QUAD, S_H = 20, 21, 22, 24, 25
S_SPIN = 26
S_TAU1, S_TAU2 = 27, 62
S_T0, S_T1, S_T2, S_T3 = 28, 29, 30, 31
S_RET = 32
KA_X, KA_K, KA_V, KA_WQ, KA_WO = 36, 38, 40, 42, 44
KA_PH = 10
KA_OUT, KA_DBG, KA_WS = 56, 58, 60
SL_ISS, SL_PUB, SL_FMIN, SL_SLOT, SL_NEED, SL_OFF, SL_OFF2, SL_CNT, SL_CNT2, SL_KOFF, SL_VOFF, SL_ROT = range(4, 16)
SL_RET2 = 16
SL_XB, SL_WB = 18, 19
SL_NADJ = 23
SL_QSLOT = 63
SL_EVM = 101
SL_NONCE = 34
SL_THR = 100
SRD_X, SRD_K, SRD_V, SRD_WQ, SRD_WO = 64, 68, 72, 76, 80
SC_L, SC_SLOT, SC_IDX, SC_IT, SC_T, SC_NEED, SC_SLOT2, SC_ADJ = range(4, 12)
SC_OOFF, SC_OOFF2, SC_FOFF, SC_POFF = 12, 13, 14, 15
SC_NONCE = 16
SC_RET2 = 18
SC_FOFF0, SC_O1ST = 72, 73
SC_LOCAL, SC_XCC, SC_IDOFF, SC_EVM = 75, 76, 77, 78
SC_WRAP = 74
SRD_WS, SRD_OUT = 64, 68
S_ST = 84

V_KB = 8
V_VB = 10
V_WB = 11
V_KA = 12
V_VA = 14
V_L16 = 15
V_LSUM, V_LS2, V_TMAX, V_ALPHA, V_FV, V_LADDR, V_FADDR, V_LRD = range(17, 25)
V_VB2 = 25
V_NON = 26
V_PF = 32
V_NEGM = 48
V_O = 64
V_SA = 128
V_SB = 144
V_ACCQ = 160
V_Q2 = 160
V_STG = 192
V_Q1 = 224
V_ACC1 = 192
V_ACC2 = 128
A_AF = [0, 32]
A_KF = 64
A_VF = [96, 128]
A_XF = [160, 192]
MFMA = "v_mfma_f32_32x32x16_bf16"


def build(cfg):
    NS, D, NQ, E = cfg.NS, cfg.D, cfg.NQ, cfg.E
    assert NS == NQ + E and NS % 2 == 0 and (NQ + 3) % 2 == 0
    RING = NS * SLOT
    FLAG_L = RING
    FLAG_F = RING + 16
    LDS_BYTES = RING + 64
    a = Asm()
    e = a.e
    hdr = []
    hdr.append("; @launch grid=(256,1,1) block=(256,1,1) lds=%d" % LDS_BYTES)
    hdr.append('.amdgcn_target "amdgcn-amd-amdhsa--gfx950"')
    hdr.append(".text")
    hdr.append(".globl %s_kernel" % NAME)
    hdr.append(".p2align 8")
    hdr.append(".type %s_kernel,@function" % NAME)
    hdr.append("%s_kernel:" % NAME)
    stl = cfg.stamplist.split(",")

    def stamp(name):
        if cfg.stamps:
            for k, nm in enumerate(stl):
                if nm == name:
                    e("s_memrealtime %s" % sr(S_ST + 2 * k, 2))
                if nm == name + ".c":
                    e("s_memtime %s" % sr(S_ST + 2 * k, 2))

    e("s_cmp_ge_u32 s2, 256")
    e("s_cbranch_scc1 L_end")
    e("s_load_dwordx16 s[36:51], s[0:1], 0")
    e("s_load_dwordx4 s[52:55], s[0:1], 64")
    e("s_load_dwordx4 s[56:59], s[0:1], 80")
    e("s_load_dwordx2 s[60:61], s[0:1], 96")
    stamp("start")
    e("v_lshrrev_b32 v1, 6, v0")
    e("v_and_b32 v0, 63, v0")
    e("s_and_b32 %s, s2, 7" % sr(S_X))
    e("v_readfirstlane_b32 %s, v1" % sr(S_WAVE))
    e("s_lshr_b32 s28, s2, 3")
    if cfg.halfwg:
        e("s_and_b32 s29, s28, %d" % cfg.halfwg)
        e("s_cmp_lg_u32 s29, 0")
        e("s_cbranch_scc1 L_end")
    e("s_and_b32 %s, s28, 3" % sr(S_M))
    e("s_lshr_b32 %s, s28, 2" % sr(S_B))
    e("s_lshl_b32 %s, %s, 2" % (sr(S_H), sr(S_X)))
    e("s_add_u32 %s, %s, %s" % (sr(S_H), sr(S_H), sr(S_M)))
    e("s_lshl_b32 %s, %s, 3" % (sr(S_QUAD), sr(S_B)))
    e("s_add_u32 %s, %s, %s" % (sr(S_QUAD), sr(S_QUAD), sr(S_X)))
    e("s_mov_b32 %s, 0x%x" % (sr(S_SPIN), cfg.spin))
    for dst, base, mul in ((S_TAU1, cfg.tau1_base, cfg.tau1_mul), (S_TAU2, cfg.tau2_base, cfg.tau2_mul)):
        if cfg.taumode == "x":
            e("s_mul_i32 %s, %s, %d" % (sr(dst), sr(S_X), mul))
        elif cfg.taumode == "m":
            e("s_lshl_b32 %s, %s, 1" % (sr(dst), sr(S_M)))
            e("s_and_b32 s29, %s, 1" % sr(S_X))
            e("s_add_u32 %s, %s, s29" % (sr(dst), sr(dst)))
            e("s_mul_i32 %s, %s, %d" % (sr(dst), sr(dst), mul))
        else:
            e("s_mul_i32 %s, %s, %d" % (sr(dst), sr(S_B), mul))
        e("s_lshr_b32 %s, %s, 3" % (sr(dst), sr(dst)))
        e("s_add_u32 %s, %s, %d" % (sr(dst), sr(dst), base))
    e("s_cmp_eq_u32 %s, 3" % sr(S_WAVE))
    e("s_cbranch_scc0 L_compute")

    def srd(dst, ptr, nbytes):
        e("s_mov_b32 %s, %s" % (sr(dst), sr(ptr)))
        e("s_mov_b32 %s, %s" % (sr(dst + 1), sr(ptr + 1)))
        e("s_mov_b32 %s, 0x%x" % (sr(dst + 2), nbytes))
        e("s_mov_b32 %s, 0x20000" % sr(dst + 3))

    a.lab("L_loader")
    e("s_setprio 3")
    LV_K, LV_V, LV_X, LV_WQ, LV_WO, LV_T, LV_LADDR, LV_FADDR, LV_F = 8, 12, 16, 20, 24, 28, 29, 30, 32
    LV_O, LV_FL, LV_NON, LV_FA = 36, 200, 202, 204
    BIAS = 4096
    NB_X, NB_KV, NB_W = 8 * 96 * 512 * 2, 8 * 32 * 1024 * 128 * 2, 512 * 4096 * 2

    def srdb(dst, ptr, nbytes, full=True):
        e("s_sub_u32 %s, %s, %d" % (sr(dst), sr(ptr), BIAS))
        e("s_subb_u32 %s, %s, 0" % (sr(dst + 1), sr(ptr + 1)))
        if full:
            e("s_mov_b32 %s, 0x%x" % (sr(dst + 2), nbytes + BIAS))
            e("s_mov_b32 %s, 0x20000" % sr(dst + 3))

    e("v_lshrrev_b32 v1, 4, v0")
    e("v_and_b32 v2, 15, v0")
    e("v_xor_b32 v3, v2, v1")
    e("v_lshlrev_b32 v3, 4, v3")
    e("v_lshlrev_b32 v2, 4, v2")
    e("v_lshlrev_b32 v4, 12, v1")
    e("v_lshlrev_b32 v5, 15, v1")
    e("v_lshlrev_b32 v6, 10, v1")

    def lane_offs(dst, rowpart, colpart, rs):
        e("v_add_u32 v%d, v%d, v%d" % (dst, rowpart, colpart))
        for b in range(3, 0, -1):
            e("v_add_u32 v%d, %d, v%d" % (dst + b, BIAS + b * (rs - BLK), dst))
        e("v_add_u32 v%d, %d, v%d" % (dst, BIAS, dst))

    lane_offs(LV_X, 4, 3, 1024)
    lane_offs(LV_WQ, 5, 2, 8192)
    e("s_getreg_b32 %s, hwreg(HW_REG_XCC_ID)" % sr(SL_THR))
    e("s_and_b32 %s, %s, 1" % (sr(SL_THR), sr(SL_THR)))
    if cfg.deven < cfg.dodd:
        e("s_xor_b32 %s, %s, 1" % (sr(SL_THR), sr(SL_THR)))
    e("v_mov_b32 v%d, %d" % (LV_LADDR, FLAG_L))
    e("v_mov_b32 v%d, %d" % (LV_FADDR, FLAG_F))
    e("v_mov_b32 v%d, 0" % LV_T)
    e("ds_write_b32 v%d, v%d" % (LV_LADDR, LV_T))
    e("s_mov_b32 %s, 0" % sr(SL_ISS))
    e("s_mov_b32 %s, 0" % sr(SL_PUB))
    e("s_mov_b32 %s, 0" % sr(SL_FMIN))
    e("s_mov_b32 %s, 0" % sr(SL_SLOT))
    e("s_mov_b32 %s, -1" % sr(SL_NEED))
    e("s_add_u32 %s, %s, %s" % (sr(SL_ROT), sr(S_B), sr(S_M)))
    e("s_and_b32 %s, %s, 3" % (sr(SL_ROT), sr(SL_ROT)))
    e("s_waitcnt lgkmcnt(0)")
    P0 = KA_PH if cfg.swap else 0
    P1 = 0 if cfg.swap else KA_PH
    srdb(SRD_X, KA_X + P0, NB_X)
    srdb(SRD_WQ, KA_WQ + P0, NB_W)
    if cfg.noload:
        e("v_mov_b32 v%d, 100000" % LV_T)
        e("ds_write_b32 v%d, v%d" % (LV_LADDR, LV_T))
        e("s_waitcnt lgkmcnt(0)")
        e("s_barrier")
        e("s_branch L_fin")

    ool = []

    def landed_nb():
        e("s_getreg_b32 %s, hwreg(HW_REG_IB_STS)" % sr(S_T0))
        e("s_lshr_b32 %s, %s, 18" % (sr(S_T1), sr(S_T0)))
        e("s_and_b32 %s, %s, 15" % (sr(S_T0), sr(S_T0)))
        e("s_and_b32 %s, %s, 0x30" % (sr(S_T1), sr(S_T1)))
        e("s_add_u32 %s, %s, %s" % (sr(S_T0), sr(S_T0), sr(S_T1)))
        e("s_add_u32 %s, %s, 7" % (sr(S_T0), sr(S_T0)))
        e("s_lshr_b32 %s, %s, 3" % (sr(S_T0), sr(S_T0)))
        e("s_sub_i32 %s, %s, %s" % (sr(SL_PUB), sr(SL_ISS), sr(S_T0)))

    def publish_nb():
        landed_nb()
        e("v_mov_b32 v%d, %s" % (LV_T, sr(SL_PUB)))
        e("ds_write_b32 v%d, v%d" % (LV_LADDR, LV_T))

    def issue_tile(srdreg, voff, rs, flags, wrap, nowait=False, check=True):
        if check and "nochk" not in cfg.lab:
            e("s_cmp_ge_i32 %s, %s" % (sr(SL_FMIN), sr(SL_NEED)))
            slow = a.newlab("lslow")
            ok = a.newlab("ok")
            e("s_cbranch_scc0 %s" % slow)
            a.lab(ok)
            ool.append((slow, ok))

        def ld(b):
            e("buffer_load_dwordx4 v%d, %s, %s offen offset:%d %s lds" % (
                voff + (b & 3), sr(srdreg, 4), sr(SL_OFF if b < 4 else SL_OFF2), (b & 3) * BLK, flags))
        e("s_mov_b32 m0, %s" % sr(SL_SLOT))
        e("s_add_u32 %s, %s, %d" % (sr(SL_OFF2), sr(SL_OFF), 16 * rs))
        ld(0)
        ld(1)
        ld(2)
        e("s_add_u32 %s, %s, 1" % (sr(SL_ISS), sr(SL_ISS)))
        ld(3)
        e("s_add_u32 m0, %s, %d" % (sr(SL_SLOT), 4 * BLK))
        e("s_add_u32 %s, %s, %d" % (sr(SL_SLOT), sr(SL_SLOT), SLOT))
        ld(4)
        e("s_cmp_lt_u32 %s, %d" % (sr(SL_SLOT), wrap))
        e("s_cselect_b32 %s, %s, 0" % (sr(SL_SLOT), sr(SL_SLOT)))
        ld(5)
        e("s_sub_i32 %s, %s, %s" % (sr(SL_NEED), sr(SL_ISS), sr(SL_NADJ)))
        ld(6)
        e("s_cmp_eq_u32 %s, 0" % sr(SL_THR))
        ld(7)
        if not nowait:
            dmax, dmin = max(cfg.deven, cfg.dodd), min(cfg.deven, cfg.dodd)
            if "nowait" not in cfg.lab:
                e("s_waitcnt vmcnt(%d)" % (8 * dmax))
            if dmin != dmax:
                sk = a.newlab("thr")
                e("s_cbranch_scc1 %s" % sk)
                e("s_waitcnt vmcnt(%d)" % (8 * dmin))
                a.lab(sk)
            if "nopub" not in cfg.lab:
                publish_nb()

    def qp_round(wrap, first_nowait=0):
        n = 0

        def after():
            if first_nowait and n == first_nowait:
                e("s_waitcnt lgkmcnt(0)")
                e("s_barrier")
        for w in range(3):
            e("s_add_u32 %s, %s, %d" % (sr(SL_OFF), sr(SL_XB), w * 32 * 1024))
            issue_tile(SRD_X, LV_X, 1024, cfg.xflags, wrap, nowait=(n < first_nowait))
            n += 1
            after()
        for j in range(4):
            e("s_add_u32 %s, %s, %d" % (sr(SL_OFF), sr(SL_WB), j * 32 * 8192))
            issue_tile(SRD_WQ, LV_WQ, 8192, cfg.wflags, wrap, nowait=(n < first_nowait))
            n += 1
            after()

    def qp_bases():
        e("s_add_u32 %s, %s, %s" % (sr(S_T1), sr(SL_ROT), sr(SL_CNT)))
        e("s_and_b32 %s, %s, 3" % (sr(S_T1), sr(S_T1)))
        e("s_lshl_b32 %s, %s, 8" % (sr(S_T2), sr(S_T1)))
        e("s_mul_i32 %s, %s, %d" % (sr(SL_XB), sr(S_B), 96 * 1024))
        e("s_add_u32 %s, %s, %s" % (sr(SL_XB), sr(SL_XB), sr(S_T2)))
        e("s_lshl_b32 %s, %s, 20" % (sr(S_T2), sr(S_T1)))
        e("s_lshl_b32 %s, %s, 8" % (sr(SL_WB), sr(S_H)))
        e("s_add_u32 %s, %s, %s" % (sr(SL_WB), sr(SL_WB), sr(S_T2)))

    kvf = "" if cfg.kvsame else cfg.kvflags
    e("s_mov_b32 %s, %d" % (sr(SL_NADJ), NQ - 1))
    e("s_mov_b32 %s, 0" % sr(SL_CNT))
    qp_bases()
    qp_round(NQ * SLOT, first_nowait=D)
    srdb(SRD_K, KA_K + P0, NB_KV)
    srdb(SRD_V, KA_V + P0, NB_KV)
    srdb(SRD_WO, KA_WO + P0, NB_W)
    lane_offs(LV_K, 6, 3, 256)
    lane_offs(LV_V, 6, 2, 256)
    lane_offs(LV_WO, 4, 2, 1024)
    e("v_lshlrev_b32 v7, 4, v0")
    for b in range(3, 0, -1):
        e("v_add_u32 v%d, %d, v7" % (LV_O + b, BIAS + b * (1024 - BLK)))
    e("v_add_u32 v%d, %d, v7" % (LV_O, BIAS))
    e("v_min_u32 v7, 11, v0")
    e("v_lshrrev_b32 v%d, 2, v7" % LV_FA)
    e("v_lshlrev_b32 v%d, 7, v%d" % (LV_FA, LV_FA))
    e("v_and_b32 v7, 3, v7")
    e("v_lshlrev_b32 v7, 3, v7")
    e("v_add_u32 v%d, v%d, v7" % (LV_FA, LV_FA))
    e("v_add_u32 v%d, %d, v%d" % (LV_FA, BIAS, LV_FA))
    e("s_lshl_b32 %s, %s, 5" % (sr(S_T1), sr(S_B)))
    e("s_add_u32 %s, %s, %s" % (sr(S_T1), sr(S_T1), sr(S_H)))
    e("s_lshl_b32 %s, %s, 18" % (sr(SL_KOFF), sr(S_T1)))
    stamp("qx0")
    stamp("q3")

    def early_tiles():
        e("s_mov_b32 %s, %s" % (sr(SL_QSLOT), sr(SL_SLOT)))
        e("s_mov_b32 %s, %d" % (sr(SL_SLOT), NQ * SLOT))
        seq = [("K", 0), ("K", 1), ("V", 0)]
        t = 0
        while len(seq) < E:
            seq += [("K", t + 2), ("V", t + 1)]
            t += 1
        assert len(seq) == E
        for kind, t in seq:
            e("s_add_u32 %s, %s, %d" % (sr(SL_OFF), sr(SL_KOFF), 0 if cfg.kvsame else t * 8192))
            if kind == "K":
                issue_tile(SRD_K, LV_K, 256, kvf, RING, check=False)
            else:
                issue_tile(SRD_V, LV_V, 256, kvf, RING, check=False)
        e("s_mov_b32 %s, %s" % (sr(SL_SLOT), sr(SL_QSLOT)))

    npairs_early = (E - 3) // 2
    if cfg.ytype == 1:
        e("s_and_b32 %s, %s, 1" % (sr(S_T3), sr(S_M)))
        e("s_cmp_eq_u32 %s, 0" % sr(S_T3))
        e("s_cbranch_scc1 L_ld_x1")
    if cfg.ytype in (1, 2):
        early_tiles()
        e("s_mov_b32 %s, %d" % (sr(SL_NADJ), NQ - 1 + E))
        e("s_sub_i32 %s, %s, %s" % (sr(SL_NEED), sr(SL_ISS), sr(SL_NADJ)))
    a.lab("L_ld_x1")
    e("s_mov_b32 %s, 1" % sr(SL_CNT))
    a.lab("L_ld_qp1")
    qp_bases()
    qp_round(NQ * SLOT)
    if cfg.stamps:
        for rr in (1, 2, 3):
            nm = "q%d" % (4 * rr + 3)
            if nm in stl:
                sk = a.newlab("sk")
                e("s_cmp_eq_u32 %s, %d" % (sr(SL_CNT), rr))
                e("s_cbranch_scc0 %s" % sk)
                stamp(nm)
                a.lab(sk)
    e("s_add_u32 %s, %s, 1" % (sr(SL_CNT), sr(SL_CNT)))
    e("s_cmp_lt_u32 %s, 4" % sr(SL_CNT))
    e("s_cbranch_scc1 L_ld_qp1")
    if cfg.ytype == 1:
        e("s_and_b32 %s, %s, 1" % (sr(S_T3), sr(S_M)))
        e("s_cmp_eq_u32 %s, 0" % sr(S_T3))
        e("s_cbranch_scc0 L_ld_y2")
    if cfg.ytype in (0, 1):
        early_tiles()
    a.lab("L_ld_y2")
    stamp("qp")
    e("s_mov_b32 %s, 0" % sr(SL_SLOT))
    e("s_mov_b32 %s, %d" % (sr(SL_NADJ), NS - 1))
    e("s_mov_b32 %s, 28" % sr(SL_NEED))
    srdb(SRD_X, KA_X + P1, NB_X, full=False)
    srdb(SRD_WQ, KA_WQ + P1, NB_W, full=False)

    e("s_lshl_b32 %s, %s, 1" % (sr(S_T1), sr(S_TAU1)))
    e("s_min_u32 %s, %s, 31" % (sr(S_T1), sr(S_T1)))
    e("s_lshl_b32 %s, 1, %s" % (sr(SL_EVM), sr(S_T1)))
    if cfg.prefetch:
        e("s_sub_u32 %s, %s, %d" % (sr(S_T1), sr(S_T1), cfg.lead))
        e("s_lshl_b32 %s, 1, %s" % (sr(S_T2), sr(S_T1)))
        e("s_or_b32 %s, %s, %s" % (sr(SL_EVM), sr(SL_EVM), sr(S_T2)))
    e("s_mov_b32 %s, 0" % sr(SL_CNT2))
    e("s_add_u32 %s, %s, %d" % (sr(SL_VOFF), sr(SL_KOFF), 0 if cfg.kvsame else npairs_early * 8192))
    e("s_mov_b32 %s, %d" % (sr(SL_CNT), npairs_early))
    e("s_branch L_ld_kv")
    a.lab("L_ld_head")
    e("s_mov_b32 %s, %s" % (sr(SL_OFF), sr(SL_KOFF)))
    issue_tile(SRD_K, LV_K, 256, kvf, RING)
    e("s_add_u32 %s, %s, 8192" % (sr(SL_OFF), sr(SL_KOFF)))
    issue_tile(SRD_K, LV_K, 256, kvf, RING)
    e("s_mov_b32 %s, %s" % (sr(SL_OFF), sr(SL_KOFF)))
    issue_tile(SRD_V, LV_V, 256, kvf, RING)
    e("s_mov_b32 %s, %s" % (sr(SL_VOFF), sr(SL_KOFF)))
    e("s_mov_b32 %s, 0" % sr(SL_CNT))
    a.lab("L_ld_kv")
    e("s_add_u32 %s, %s, 16384" % (sr(SL_OFF), sr(SL_VOFF)))
    issue_tile(SRD_K, LV_K, 256, kvf, RING)
    e("s_add_u32 %s, %s, 8192" % (sr(SL_OFF), sr(SL_VOFF)))
    issue_tile(SRD_V, LV_V, 256, kvf, RING)
    if not cfg.kvsame:
        e("s_add_u32 %s, %s, 8192" % (sr(SL_VOFF), sr(SL_VOFF)))
    e("s_add_u32 %s, %s, 1" % (sr(SL_CNT), sr(SL_CNT)))
    e("s_bitcmp1_b32 %s, %s" % (sr(SL_EVM), sr(SL_CNT)))
    e("s_cbranch_scc1 L_ld_disp")
    a.lab("L_ld_evret")
    e("s_cmp_lt_u32 %s, 30" % sr(SL_CNT))
    e("s_cbranch_scc1 L_ld_kv")
    e("s_add_u32 %s, %s, 8192" % (sr(SL_OFF), sr(SL_VOFF)))
    issue_tile(SRD_V, LV_V, 256, kvf, RING)
    e("s_cmp_eq_u32 %s, 0" % sr(SL_CNT2))
    e("s_cbranch_scc0 L_ld_tail")
    stamp("h0")
    srdb(SRD_K, KA_K + P1, NB_KV, full=False)
    srdb(SRD_V, KA_V + P1, NB_KV, full=False)
    srdb(SRD_X, KA_WS, WS_USED)
    srdb(SRD_WQ, KA_WO + P1, NB_W)
    if not cfg.noxchg and not cfg.nocompute:
        okn = a.newlab("lnok")
        e("v_readfirstlane_b32 %s, v%d" % (sr(SL_NONCE), LV_NON))
        e("v_readfirstlane_b32 %s, v%d" % (sr(SL_NONCE + 1), LV_NON + 1))
        e("s_nop 3")
        e("s_cmp_lg_u32 %s, 0" % sr(SL_NONCE))
        e("s_cbranch_scc1 %s" % okn)
        lpn = a.newlab("lnlp")
        a.lab(lpn)
        e("v_mov_b32 v7, 0")
        e("global_load_dwordx2 %s, v7, %s sc1" % (vr(LV_NON, 2), sr(KA_DBG, 2)))
        e("s_waitcnt vmcnt(0)")
        e("v_readfirstlane_b32 %s, v%d" % (sr(SL_NONCE), LV_NON))
        e("v_readfirstlane_b32 %s, v%d" % (sr(SL_NONCE + 1), LV_NON + 1))
        e("s_sub_u32 %s, %s, 1" % (sr(S_SPIN), sr(S_SPIN)))
        e("s_cmp_eq_u32 %s, 0" % sr(S_SPIN))
        e("s_cbranch_scc1 L_end")
        e("s_cmp_eq_u32 %s, 0" % sr(SL_NONCE))
        e("s_cbranch_scc1 %s" % lpn)
        a.lab(okn)
    e("s_lshl_b32 %s, %s, 1" % (sr(S_T1), sr(S_TAU2)))
    e("s_min_u32 %s, %s, 31" % (sr(S_T1), sr(S_T1)))
    e("s_lshl_b32 %s, 1, %s" % (sr(SL_EVM), sr(S_T1)))
    if cfg.prefetch:
        e("s_sub_u32 %s, %s, %d" % (sr(S_T1), sr(S_T1), cfg.lead))
        e("s_lshl_b32 %s, 1, %s" % (sr(S_T2), sr(S_T1)))
        e("s_or_b32 %s, %s, %s" % (sr(SL_EVM), sr(SL_EVM), sr(S_T2)))
        e("s_or_b32 %s, %s, 0x%x" % (sr(SL_EVM), sr(SL_EVM), 1 << cfg.pft))
    e("s_mov_b32 %s, 1" % sr(SL_CNT2))
    e("s_branch L_ld_head")
    a.lab("L_ld_tail")
    stamp("h1")
    srdb(SRD_WO, KA_WO + P1, NB_W, full=False)
    e("s_call_b64 %s, L_ld_wo" % sr(SL_RET2, 2))
    a.lab("L_ld_drain")
    publish_nb()
    e("s_cmp_lt_i32 %s, %s" % (sr(SL_PUB), sr(SL_ISS)))
    e("s_cbranch_scc1 L_ld_drain")
    e("s_waitcnt lgkmcnt(0)")
    stamp("t2")
    e("s_branch L_fin")

    def pf_tile(srdreg, voff, rs, flags, vdst):
        e("s_add_u32 %s, %s, %d" % (sr(SL_OFF2), sr(SL_OFF), 16 * rs))
        for b in range(8):
            e("buffer_load_dwordx4 %s, v%d, %s, %s offen offset:%d %s" % (
                vr(vdst + 4 * b, 4), voff + (b & 3), sr(srdreg, 4), sr(SL_OFF if b < 4 else SL_OFF2),
                (b & 3) * BLK, flags))

    def pf_wo(srdreg):
        e("s_lshl_b32 %s, %s, 19" % (sr(SL_OFF), sr(S_X)))
        e("s_lshl_b32 %s, %s, 16" % (sr(S_T1), sr(S_B)))
        e("s_add_u32 %s, %s, %s" % (sr(SL_OFF), sr(SL_OFF), sr(S_T1)))
        e("s_lshl_b32 %s, %s, 8" % (sr(S_T1), sr(S_M)))
        e("s_add_u32 %s, %s, %s" % (sr(SL_OFF), sr(SL_OFF), sr(S_T1)))
        pf_tile(srdreg, LV_WO, 1024, cfg.woflags, 40)
        e("s_add_u32 %s, %s, %d" % (sr(SL_OFF), sr(SL_OFF), 32 * 1024))
        pf_tile(srdreg, LV_WO, 1024, cfg.woflags, 72)

    def flag_off_l(dst):
        e("s_lshl_b32 %s, %s, 9" % (sr(dst), sr(S_QUAD)))
        if WS_FLAGO:
            e("s_add_u32 %s, %s, %d" % (sr(dst), sr(dst), WS_FLAGO))

    def flag_poll_issue_l():
        flag_off_l(S_T1)
        e("buffer_load_dwordx2 %s, v%d, %s, %s offen sc1" % (vr(LV_FL, 2), LV_FA, sr(SRD_X, 4), sr(S_T1)))

    a.lab("L_ld_disp")
    e("s_cmp_eq_u32 %s, 0" % sr(SL_CNT2))
    e("s_cselect_b32 %s, %s, %s" % (sr(S_T3), sr(S_TAU1), sr(S_TAU2)))
    e("s_lshl_b32 %s, %s, 1" % (sr(S_T3), sr(S_T3)))
    if cfg.prefetch:
        nx1 = a.newlab("pfn")
        e("s_cmp_eq_u32 %s, %d" % (sr(SL_CNT), cfg.pft))
        e("s_cbranch_scc0 %s" % nx1)
        e("s_cmp_eq_u32 %s, 1" % sr(SL_CNT2))
        e("s_cbranch_scc0 %s" % nx1)
        pf_wo(SRD_WQ)
        a.lab(nx1)
        nx2 = a.newlab("pfn")
        e("s_sub_u32 %s, %s, %d" % (sr(S_T2), sr(S_T3), cfg.lead))
        e("s_cmp_eq_u32 %s, %s" % (sr(SL_CNT), sr(S_T2)))
        e("s_cbranch_scc0 %s" % nx2)
        e("s_cmp_eq_u32 %s, 0" % sr(SL_CNT2))
        e("s_cbranch_scc0 L_ld_pf2")
        e("s_lshl_b32 %s, %s, 19" % (sr(SL_OFF), sr(S_B)))
        e("s_lshl_b32 %s, %s, 8" % (sr(S_T1), sr(S_H)))
        e("s_add_u32 %s, %s, %s" % (sr(SL_OFF), sr(SL_OFF), sr(S_T1)))
        pf_tile(SRD_WQ, LV_WQ, 8192, cfg.wflags, 40)
        e("s_add_u32 %s, %s, %d" % (sr(SL_OFF), sr(SL_OFF), 32 * 8192))
        pf_tile(SRD_WQ, LV_WQ, 8192, cfg.wflags, 72)
        e("s_mul_i32 %s, %s, %d" % (sr(SL_OFF), sr(S_B), 96 * 1024))
        e("s_lshl_b32 %s, %s, 8" % (sr(S_T1), sr(S_M)))
        e("s_add_u32 %s, %s, %s" % (sr(SL_OFF), sr(SL_OFF), sr(S_T1)))
        for w in range(3):
            pf_tile(SRD_X, LV_X, 1024, cfg.xflags, 104 + 32 * w)
            if w < 2:
                e("s_add_u32 %s, %s, %d" % (sr(SL_OFF), sr(SL_OFF), 32 * 1024))
        e("s_branch %s" % nx2)
        a.lab("L_ld_pf2")
        stamp("pf")
        pf_wo(SRD_WO)
        a.lab(nx2)
    e("s_cmp_eq_u32 %s, 0" % sr(SL_CNT2))
    e("s_cselect_b32 %s, %s, %s" % (sr(S_T3), sr(S_TAU1), sr(S_TAU2)))
    e("s_lshl_b32 %s, %s, 1" % (sr(S_T3), sr(S_T3)))
    e("s_cmp_eq_u32 %s, %s" % (sr(SL_CNT), sr(S_T3)))
    e("s_cbranch_scc0 L_ld_evret")
    a.lab("L_ld_event")
    e("s_cmp_eq_u32 %s, 0" % sr(SL_CNT2))
    e("s_cbranch_scc0 L_ld_ev2")
    stamp("e0")
    e("v_mov_b32 v7, 0")
    e("global_load_dwordx2 %s, v7, %s sc1" % (vr(LV_NON, 2), sr(KA_DBG, 2)))
    e("s_mov_b32 %s, %s" % (sr(SL_RET2), sr(SL_CNT)))
    e("s_mov_b32 %s, 0" % sr(SL_CNT))
    a.lab("L_ld_qp2")
    qp_bases()
    qp_round(RING)
    e("s_add_u32 %s, %s, 1" % (sr(SL_CNT), sr(SL_CNT)))
    e("s_cmp_lt_u32 %s, 4" % sr(SL_CNT))
    e("s_cbranch_scc1 L_ld_qp2")
    e("s_mov_b32 %s, %s" % (sr(SL_CNT), sr(SL_RET2)))
    stamp("e1")
    e("s_branch L_ld_evret")
    a.lab("L_ld_ev2")
    stamp("e2")
    if cfg.ev2sleep:
        e("s_waitcnt vmcnt(0)")
        e("s_sleep %d" % cfg.ev2sleep)
    else:
        if not cfg.noxchg and not cfg.nocompute:
            lpf = a.newlab("lfl")
            a.lab(lpf)
            flag_poll_issue_l()
            e("s_waitcnt vmcnt(0)")
            e("v_cmp_ne_u32 vcc, %s, v%d" % (sr(SL_NONCE), LV_FL))
            e("v_cmp_ne_u32 s[28:29], %s, v%d" % (sr(SL_NONCE + 1), LV_FL + 1))
            e("s_sub_u32 %s, %s, 1" % (sr(S_SPIN), sr(S_SPIN)))
            e("s_cmp_eq_u32 %s, 0" % sr(S_SPIN))
            e("s_cbranch_scc1 L_end")
            e("s_or_b64 vcc, vcc, s[28:29]")
            e("s_cbranch_scc1 %s" % lpf)
        stamp("ep")
        e("s_call_b64 %s, L_ld_task1" % sr(SL_RET2, 2))
    stamp("e3")
    e("s_branch L_ld_evret")

    a.lab("L_ld_task1")
    e("s_mov_b32 %s, 0" % sr(SL_XB))
    a.lab("L_ld_task1_r")
    e("s_add_u32 %s, %s, %s" % (sr(S_T1), sr(S_M), sr(SL_XB)))
    e("s_and_b32 %s, %s, 3" % (sr(S_T1), sr(S_T1)))
    e("s_lshl_b32 %s, %s, 2" % (sr(S_T2), sr(S_QUAD)))
    e("s_add_u32 %s, %s, %s" % (sr(S_T2), sr(S_T2), sr(S_T1)))
    e("s_mul_i32 %s, %s, 24576" % (sr(S_T2), sr(S_T2)))
    e("s_add_u32 %s, %s, %d" % (sr(SL_KOFF), sr(S_T2), WS_OBUF))
    e("s_lshl_b32 %s, %s, 17" % (sr(S_T1), sr(S_T1)))
    e("s_lshl_b32 %s, %s, 19" % (sr(SL_WB), sr(S_X)))
    e("s_add_u32 %s, %s, %s" % (sr(SL_WB), sr(SL_WB), sr(S_T1)))
    e("s_lshl_b32 %s, %s, 8" % (sr(S_T1), sr(S_M)))
    e("s_add_u32 %s, %s, %s" % (sr(SL_WB), sr(SL_WB), sr(S_T1)))
    for w in range(3):
        e("s_add_u32 %s, %s, %d" % (sr(SL_OFF), sr(SL_KOFF), w * 8192))
        issue_tile(SRD_X, LV_O, 256, "sc1", RING)
    for j in range(4):
        e("s_add_u32 %s, %s, %d" % (sr(SL_OFF), sr(SL_WB), j * 32 * 1024))
        issue_tile(SRD_WO, LV_WO, 1024, cfg.woflags, RING)
    e("s_add_u32 %s, %s, 1" % (sr(SL_XB), sr(SL_XB)))
    e("s_cmp_lt_u32 %s, 4" % sr(SL_XB))
    e("s_cbranch_scc1 L_ld_task1_r")
    e("s_setpc_b64 %s" % sr(SL_RET2, 2))

    a.lab("L_ld_wo")
    e("s_mov_b32 %s, 0" % sr(SL_XB))
    a.lab("L_ld_wo_r")
    e("s_add_u32 %s, %s, %s" % (sr(S_T1), sr(S_M), sr(SL_XB)))
    e("s_and_b32 %s, %s, 3" % (sr(S_T1), sr(S_T1)))
    e("s_lshl_b32 %s, %s, 17" % (sr(S_T1), sr(S_T1)))
    e("s_lshl_b32 %s, %s, 19" % (sr(SL_WB), sr(S_X)))
    e("s_add_u32 %s, %s, %s" % (sr(SL_WB), sr(SL_WB), sr(S_T1)))
    e("s_lshl_b32 %s, %s, 8" % (sr(S_T1), sr(S_M)))
    e("s_add_u32 %s, %s, %s" % (sr(SL_WB), sr(SL_WB), sr(S_T1)))
    for j in range(4):
        e("s_add_u32 %s, %s, %d" % (sr(SL_OFF), sr(SL_WB), j * 32 * 1024))
        issue_tile(SRD_WO, LV_WO, 1024, cfg.woflags, RING)
    e("s_add_u32 %s, %s, 1" % (sr(SL_XB), sr(SL_XB)))
    e("s_cmp_lt_u32 %s, 4" % sr(SL_XB))
    e("s_cbranch_scc1 L_ld_wo_r")
    e("s_setpc_b64 %s" % sr(SL_RET2, 2))

    for slow, ok in ool:
        a.lab(slow)
        e("s_call_b64 %s, L_waitfree" % sr(S_RET, 2))
        e("s_branch %s" % ok)
    a.lab("L_waitfree")
    e("ds_read_b96 v[%d:%d], v%d" % (LV_F, LV_F + 2, LV_FADDR))
    publish_nb()
    e("s_waitcnt lgkmcnt(1)")
    e("v_min3_u32 v%d, v%d, v%d, v%d" % (LV_F, LV_F, LV_F + 1, LV_F + 2))
    e("s_sub_u32 %s, %s, 1" % (sr(S_SPIN), sr(S_SPIN)))
    e("v_readfirstlane_b32 %s, v%d" % (sr(SL_FMIN), LV_F))
    e("s_cmp_eq_u32 %s, 0" % sr(S_SPIN))
    e("s_cbranch_scc1 L_end")
    e("s_nop 1")
    e("s_cmp_ge_i32 %s, %s" % (sr(SL_FMIN), sr(SL_NEED)))
    if cfg.lsleep:
        e("s_cbranch_scc1 L_wf_ret")
        e("s_sleep %d" % cfg.lsleep)
        e("s_branch L_waitfree")
        a.lab("L_wf_ret")
    else:
        e("s_cbranch_scc0 L_waitfree")
    e("s_setpc_b64 %s" % sr(S_RET, 2))

    if cfg.noxchg:
        a.filt = lambda sx: (sx.startswith("buffer_") or sx.startswith("global_load")
                             or sx.startswith("global_store_dwordx2"))
    a.lab("L_compute")
    e("v_and_b32 v1, 3, v0")
    e("v_lshrrev_b32 v2, 5, v0")
    e("v_lshrrev_b32 v3, 4, v0")
    e("v_and_b32 v3, 1, v3")
    e("v_lshrrev_b32 v4, 2, v0")
    e("v_and_b32 v4, 3, v4")
    e("v_lshlrev_b32 v5, 2, v3")
    e("v_add_u32 v5, v5, v1")
    e("s_movk_i32 %s, %d" % (sr(S_T0), BLK))
    e("v_mul_lo_u32 v5, v5, %s" % sr(S_T0))
    e("v_lshlrev_b32 v6, 8, v4")
    e("v_add_u32 v5, v5, v6")
    for par in range(2):
        e("v_add_u32 v6, %d, v2" % (2 * par))
        e("v_xor_b32 v6, v6, v4")
        e("v_lshlrev_b32 v6, 4, v6")
        e("v_add_u32 v%d, v5, v6" % (V_KB + par))
    e("v_lshrrev_b32 v6, 1, v1")
    e("v_and_b32 v7, 1, v1")
    e("v_lshlrev_b32 v7, 1, v7")
    e("v_or_b32 v6, v6, v7")
    e("v_lshlrev_b32 v6, 3, v6")
    e("v_lshlrev_b32 v7, 5, v3")
    e("v_add_u32 v6, v6, v7")
    e("v_mul_lo_u32 v7, v4, %s" % sr(S_T0))
    e("v_add_u32 v6, v6, v7")
    e("v_lshlrev_b32 v7, 8, v2")
    e("v_add_u32 v%d, v6, v7" % V_VB)
    e("v_add_u32 v%d, v%d, v7" % (V_WB, V_VB))
    e("v_add_u32 v%d, %d, v%d" % (V_VB2, SLOT, V_VB))
    e("v_mov_b32 v%d, %d" % (V_LADDR, FLAG_L))
    e("s_lshl_b32 %s, %s, 2" % (sr(S_T0), sr(S_WAVE)))
    e("s_add_u32 %s, %s, %d" % (sr(S_T0), sr(S_T0), FLAG_F))
    e("v_mov_b32 v%d, %s" % (V_FADDR, sr(S_T0)))
    e("v_mov_b32 v%d, %d" % (V_FV, 100000 if cfg.nocompute else 0))
    e("ds_write_b32 v%d, v%d" % (V_FADDR, V_FV))
    e("v_lshlrev_b32 v%d, 4, v0" % V_L16)
    e("s_mov_b32 %s, 0" % sr(SC_L))
    c = (128 ** -0.5) * math.log2(math.e)
    e("s_mov_b32 %s, 0x%x" % (sr(SC_T), f32bits(cfg.T_LOG2)))
    e("s_mov_b32 %s, 0" % sr(SC_IDX))
    e("s_mov_b32 %s, 0" % sr(SC_SLOT))
    e("s_mov_b32 %s, %d" % (sr(SC_WRAP), NQ * SLOT))
    if cfg.ytype == 1:
        e("s_and_b32 %s, %s, 1" % (sr(S_T1), sr(S_M)))
        e("s_mul_i32 %s, %s, %d" % (sr(S_T1), sr(S_T1), E))
    else:
        e("s_mov_b32 %s, %d" % (sr(S_T1), E if cfg.ytype == 2 else 0))
    e("s_mov_b32 %s, %s" % (sr(SC_OOFF), sr(S_T1)))
    e("s_mov_b32 %s, 0" % sr(SC_ADJ))
    e("s_waitcnt lgkmcnt(0)")
    srd(SRD_WS, KA_WS, WS_USED)
    srd(SRD_OUT, KA_OUT, 8 * 96 * 1024 * 2)
    e("s_or_b32 %s, %s, %s" % (sr(S_T0), sr(S_WG), sr(S_WAVE)))
    e("s_cmp_eq_u32 %s, 0" % sr(S_T0))
    e("s_cbranch_scc0 L_nononce")
    e("s_memrealtime %s" % sr(SC_NONCE, 2))
    e("s_waitcnt lgkmcnt(0)")
    e("s_or_b32 %s, %s, 1" % (sr(SC_NONCE), sr(SC_NONCE)))
    e("v_mov_b32 v2, %s" % sr(SC_NONCE))
    e("v_mov_b32 v3, %s" % sr(SC_NONCE + 1))
    e("v_mov_b32 v1, 0")
    e("global_store_dwordx2 v1, v[2:3], %s sc1" % sr(KA_DBG, 2))
    a.lab("L_nononce")
    e("s_barrier")
    stamp("bar")
    if cfg.nocompute:
        if cfg.burn:
            e("s_mov_b32 %s, 0" % sr(SC_IT))
            for i in range(64, 256):
                e("v_mov_b32 v%d, 0x3f803f80" % i)
            a.lab("L_burn")
            for k in range(16):
                e("%s %s, %s, %s, %s" % (MFMA, vr(64 + 16 * (k & 3), 16), vr(128 + 4 * k, 4), vr(192 + 4 * k, 4),
                                         vr(64 + 16 * (k & 3), 16)))
                if cfg.burn and k % 2 == 0:
                    e("v_exp_f32 v%d, v%d" % (20 + k, 20 + k))
            e("s_add_u32 %s, %s, 1" % (sr(SC_IT), sr(SC_IT)))
            e("s_cmp_lt_u32 %s, %d" % (sr(SC_IT), cfg.burn))
            e("s_cbranch_scc1 L_burn")
        e("s_branch L_fin")

    slowwaits = []

    def wait_landed_l(delta, adj=False):
        slow = a.newlab("lw_slow")
        back = a.newlab("lw_back")
        slowwaits.append((slow, back))
        out = ["s_add_u32 %s, %s, %d" % (sr(SC_NEED), sr(SC_IDX), delta)]
        if adj:
            out.append("s_add_u32 %s, %s, %s" % (sr(SC_NEED), sr(SC_NEED), sr(SC_ADJ)))
        out += ["s_cmp_lt_u32 %s, %s" % (sr(SC_L), sr(SC_NEED)),
                "s_cbranch_scc1 %s" % slow,
                back + ":"]
        return out

    def wait_landed(delta, adj=False):
        a.extend(wait_landed_l(delta, adj))

    def slot_adv_l(dst, src, n):
        return ["s_add_u32 %s, %s, %d" % (sr(dst), sr(src), n * SLOT),
                "s_sub_u32 %s, %s, %s" % (sr(S_T0), sr(dst), sr(SC_WRAP)),
                "s_cmp_lt_u32 %s, %s" % (sr(dst), sr(SC_WRAP)),
                "s_cselect_b32 %s, %s, %s" % (sr(dst), sr(dst), sr(S_T0))]

    def slot_adv(dst, src, n):
        a.extend(slot_adv_l(dst, src, n))

    def release_l(sg):
        return ["v_mov_b32 v%d, %s" % (V_FV, sr(sg)), "ds_write_b32 v%d, v%d" % (V_FADDR, V_FV)]

    def k_addr(slot):
        return ["v_add_u32 v%d, %s, v%d" % (V_KA + p, sr(slot), V_KB + p) for p in range(2)]

    def k_reads(dst_a):
        return ["ds_read_b128 %s, v%d offset:%d" % (ar(dst_a + 4 * s, 4), V_KA + (s & 1), (s >> 1) * 64)
                for s in range(8)]

    def v_addr(slot, base):
        return ["v_add_u32 v%d, %s, v%d" % (V_VA, sr(slot), base)]

    def v_reads(dst_a, isw):
        out = []
        for ks in range(2):
            for db in range(4):
                base = dst_a + (ks * 4 + db) * 4
                o2 = 256 if isw else 512
                o = ks * 4 * BLK + db * 64
                out.append("ds_read_b64_tr_b16 %s, v%d offset:%d" % (ar(base, 2), V_VA, o))
                out.append("ds_read_b64_tr_b16 %s, v%d offset:%d" % (ar(base + 2, 2), V_VA, o + o2))
        return out

    hooks = {}

    def proj(acc, bfrag, xmode):
        ntile_x = 3 if xmode else 0

        def x_prefetch():
            out = []
            out.append("s_mul_i32 %s, %s, %d" % (sr(S_T1), sr(S_WAVE), SLOT))
            out.append("s_add_u32 %s, %s, %s" % (sr(SC_SLOT2), sr(SC_SLOT), sr(S_T1)))
            out += slot_adv_l(SC_SLOT2, SC_SLOT2, 0)
            if xmode == "o":
                out += ["v_add_u32 v%d, %s, v%d" % (V_KA, sr(SC_SLOT2), V_L16), "s_nop 0"]
            else:
                out += k_addr(SC_SLOT2)
            out += slot_adv_l(SC_SLOT, SC_SLOT, 3)
            return out

        def x_reads(dst_a):
            if xmode == "o":
                return ["ds_read_b128 %s, v%d offset:%d" % (ar(dst_a + 4 * s_, 4), V_KA, s_ * BLK) for s_ in range(8)]
            return k_reads(dst_a)

        def advance(n):
            return ["s_add_u32 %s, %s, %d" % (sr(SC_IDX), sr(SC_IDX), n)] + slot_adv_l(SC_SLOT, SC_SLOT, 1)

        wait_landed(ntile_x + 1, xmode is True)
        if xmode:
            a.extend(x_prefetch())
            a.extend(x_reads(A_XF[0]))
        a.extend(v_addr(SC_SLOT, V_WB))
        a.extend(v_reads(A_AF[0], True))
        a.extend(advance(ntile_x + 1))
        fullwait = True
        for cidx in range(16):
            r, j = divmod(cidx, 4)
            mf = []
            for ks in range(2):
                for db in range(4):
                    cin = "0" if (cidx == 0 and ks == 0) else vr(acc + 16 * db, 16)
                    mf.append("%s %s, %s, %s, %s" % (
                        MFMA, vr(acc + 16 * db, 16), ar(A_AF[cidx & 1] + (ks * 4 + db) * 4, 4),
                        bfrag(r, 2 * j + ks), cin))
            per = [[] for _ in range(8)]
            rel = release_l(SC_IDX)
            if cidx == 15 or (xmode and j == 3):
                fullwait = True
            if fullwait:
                e("s_waitcnt lgkmcnt(0)")
            nextfull = False
            if cidx < 15:
                nx = ntile_x if j == 3 else 0
                pre = []
                if xmode is True and cidx == 3:
                    pre += ["s_mov_b32 %s, %s" % (sr(SC_ADJ), sr(SC_OOFF))]
                chk = pre + wait_landed_l(nx + 1, xmode is True)
                wr = v_reads(A_AF[(cidx + 1) & 1], True)
                if nx:
                    xp = x_prefetch()
                    xr = x_reads(A_XF[(r + 1) & 1])
                    adv = advance(nx + 1)
                    per[0] = rel[0:1] + chk + xp[0:2]
                    per[1] = xp[2:8]
                    per[2] = xr[0:2] + xp[8:12]
                    per[3] = v_addr(SC_SLOT, V_WB) + xr[2:6] + wr[0:1]
                    per[4] = xr[6:8] + wr[1:5]
                    per[5] = wr[5:11]
                    per[6] = wr[11:16]
                    per[7] = adv + rel[1:2]
                    nextfull = True
                else:
                    adv = advance(1)
                    per[0] = rel[0:1] + chk + v_addr(SC_SLOT, V_WB) + wr[0:2]
                    per[1] = wr[2:4] + adv[0:2]
                    per[2] = wr[4:6] + adv[2:4]
                    per[3] = wr[6:8] + adv[4:5]
                    per[4] = wr[8:10]
                    per[5] = wr[10:12]
                    per[6] = wr[12:14]
                    per[7] = wr[14:16] + rel[1:2]
            else:
                per[0] = rel
            if not fullwait:
                for g in (1, 3, 5):
                    per[g] = per[g] + ["s_waitcnt lgkmcnt(13)"]
                e("s_waitcnt lgkmcnt(13)")
            a.extend(gaps(mf, per))
            fullwait = nextfull
            if hooks.get(cidx):
                hooks[cidx]()

    e("s_branch L_main")
    a.lab("L_qproj")
    if cfg.stamps:
        for cc in range(16):
            if ("q%d" % cc) in stl:
                hooks[cc] = (lambda cc=cc: stamp("q%d" % cc))
    proj(V_ACCQ, lambda r, s: ar(A_XF[r & 1] + 4 * s, 4), True)
    hooks.clear()
    e("s_nop 7")
    e("s_nop 3")
    e("s_mov_b32 %s, 0x%x" % (sr(S_T1), f32bits(c)))
    for i in range(64):
        e("v_mul_f32 v%d, %s, v%d" % (V_ACCQ + i, sr(S_T1), V_ACCQ + i))
    e("s_setpc_b64 %s" % sr(SC_RET2, 2))

    a.lab("L_main")
    e("s_call_b64 %s, L_qproj" % sr(SC_RET2, 2))
    for i in range(32):
        e("v_cvt_pk_bf16_f32 v%d, v%d, v%d" % (V_Q1 + i, V_ACCQ + 2 * i, V_ACCQ + 2 * i + 1))
    e("s_mov_b32 %s, %d" % (sr(SC_SLOT), NQ * SLOT))
    e("s_mov_b32 %s, %d" % (sr(SC_WRAP), RING))
    e("s_mov_b32 %s, 0" % sr(SC_ADJ))
    e("s_mov_b32 %s, 0" % sr(SC_OOFF))
    stamp("qp")

    def qk_mfmas(sdst, qbase, cin):
        return ["%s %s, %s, %s, %s" % (MFMA, vr(sdst, 16), ar(A_KF + 4 * s, 4), vr(qbase + 4 * s, 4),
                                       cin if s == 0 else vr(sdst, 16)) for s in range(8)]

    def softmax_gaps(sc):
        g = []
        for k in range(8):
            l = ["v_exp_f32 v%d, v%d" % (sc + 2 * k, sc + 2 * k),
                 "v_exp_f32 v%d, v%d" % (sc + 2 * k + 1, sc + 2 * k + 1)]
            if k > 0:
                p = k - 1
                l += ["v_add_f32 v%d, v%d, v%d" % (V_LSUM, V_LSUM, sc + 2 * p),
                      "v_add_f32 v%d, v%d, v%d" % (V_LS2, V_LS2, sc + 2 * p + 1),
                      "v_cvt_pk_bf16_f32 v%d, v%d, v%d" % (V_PF + p, sc + 2 * p, sc + 2 * p + 1)]
            g.append(l)
        tail = ["v_add_f32 v%d, v%d, v%d" % (V_LSUM, V_LSUM, sc + 14),
                "v_add_f32 v%d, v%d, v%d" % (V_LS2, V_LS2, sc + 15),
                "v_cvt_pk_bf16_f32 v%d, v%d, v%d" % (V_PF + 7, sc + 14, sc + 15)]
        ab = cfg.ablate.split("+")
        for key, pat in (("add", "v_add_f32"), ("exp", "v_exp_f32"), ("cvt", "v_cvt_pk")):
            if key in ab:
                g = [[x for x in l if not x.startswith(pat)] for l in g]
                tail = [x for x in tail if not x.startswith(pat)]
        return g, tail

    def pv_mfmas(vf):
        out = []
        for ks in range(2):
            for db in range(4):
                out.append("%s %s, %s, %s, %s" % (
                    MFMA, vr(V_O + 16 * db, 16), ar(vf + (ks * 4 + db) * 4, 4), vr(V_PF + 4 * ks, 4),
                    vr(V_O + 16 * db, 16)))
        return out

    def max_valu(sn):
        out = ["v_max3_f32 v%d, v%d, v%d, v%d" % (V_TMAX, sn, sn + 1, sn + 2)]
        for i in range(3, 15, 2):
            out.append("v_max3_f32 v%d, v%d, v%d, v%d" % (V_TMAX, V_TMAX, sn + i, sn + i + 1))
        out.append("v_max_f32 v%d, v%d, v%d" % (V_TMAX, V_TMAX, sn + 15))
        return out

    def cross_half_max():
        e("v_mov_b32 v1, v%d" % V_TMAX)
        e("s_nop 1")
        e("v_permlane32_swap_b32 v%d, v1" % V_TMAX)
        e("s_nop 1")
        e("v_max_f32 v%d, v%d, v1" % (V_TMAX, V_TMAX))

    def rare_path(lab, back, sn):
        a.lab(lab)
        cross_half_max()
        e("v_max_f32 v%d, 0, v%d" % (V_TMAX, V_TMAX))
        e("v_sub_f32 v%d, 0, v%d" % (V_ALPHA, V_TMAX))
        e("v_exp_f32 v%d, v%d" % (V_ALPHA, V_ALPHA))
        for i in range(16):
            e("v_sub_f32 v%d, v%d, v%d" % (sn + i, sn + i, V_TMAX))
        for i in range(16):
            e("v_sub_f32 v%d, v%d, v%d" % (V_NEGM + i, V_NEGM + i, V_TMAX))
        e("v_mul_f32 v%d, v%d, v%d" % (V_LSUM, V_LSUM, V_ALPHA))
        e("v_mul_f32 v%d, v%d, v%d" % (V_LS2, V_LS2, V_ALPHA))
        for i in range(64):
            e("v_mul_f32 v%d, v%d, v%d" % (V_O + i, V_O + i, V_ALPHA))
        e("s_branch %s" % back)

    rare = []
    events = []
    dispatchers = []

    def get_nonce():
        if cfg.noxchg:
            return
        lp = a.newlab("nonce")
        a.lab(lp)
        e("v_mov_b32 v1, 0")
        e("global_load_dwordx2 v[2:3], v1, %s sc1" % sr(KA_DBG, 2))
        e("s_waitcnt vmcnt(0)")
        e("v_readfirstlane_b32 %s, v2" % sr(SC_NONCE))
        e("v_readfirstlane_b32 %s, v3" % sr(SC_NONCE + 1))
        e("s_sub_u32 %s, %s, 1" % (sr(S_SPIN), sr(S_SPIN)))
        e("s_cmp_eq_u32 %s, 0" % sr(S_SPIN))
        e("s_cbranch_scc1 L_end")
        e("s_cmp_eq_u32 %s, 0" % sr(SC_NONCE))
        e("s_cbranch_scc1 %s" % lp)

    def flag_store(off_sgpr, local=False, hi=None):
        e("v_mov_b32 v2, %s" % sr(SC_NONCE))
        e("v_mov_b32 v3, %s" % sr(SC_NONCE + 1 if hi is None else hi))
        e("v_mov_b32 v1, 0")
        e("s_mov_b64 s[34:35], exec")
        e("s_mov_b64 exec, 1")
        if local and cfg.local:
            gl = a.newlab("fsg")
            dn = a.newlab("fsd")
            e("s_cmp_eq_u32 %s, 0" % sr(SC_LOCAL))
            e("s_cbranch_scc1 %s" % gl)
            e("buffer_store_dwordx2 v[2:3], v1, %s, %s offen" % (sr(SRD_WS, 4), sr(off_sgpr)))
            e("s_branch %s" % dn)
            a.lab(gl)
            e("buffer_store_dwordx2 v[2:3], v1, %s, %s offen sc1" % (sr(SRD_WS, 4), sr(off_sgpr)))
            a.lab(dn)
        else:
            e("buffer_store_dwordx2 v[2:3], v1, %s, %s offen sc1" % (sr(SRD_WS, 4), sr(off_sgpr)))
        e("s_mov_b64 exec, s[34:35]")

    def flag_poll(off_sgpr, n):
        if cfg.noxchg:
            return
        lp = a.newlab("poll")
        e("v_min_u32 v1, %d, v0" % (n - 1))
        e("v_lshlrev_b32 v1, 3, v1")
        a.lab(lp)
        e("buffer_load_dwordx2 v[2:3], v1, %s, %s offen sc1" % (sr(SRD_WS, 4), sr(off_sgpr)))
        e("s_waitcnt vmcnt(0)")
        e("v_cmp_ne_u32 vcc, %s, v2" % sr(SC_NONCE))
        e("v_cmp_ne_u32 s[34:35], %s, v3" % sr(SC_NONCE + 1))
        e("s_sub_u32 %s, %s, 1" % (sr(S_SPIN), sr(S_SPIN)))
        e("s_cmp_eq_u32 %s, 0" % sr(S_SPIN))
        e("s_cbranch_scc1 L_end")
        e("s_or_b64 vcc, vcc, s[34:35]")
        e("s_cbranch_scc1 %s" % lp)

    def flago_off(dst, ph, with_m):
        e("s_lshl_b32 %s, %s, 2" % (sr(dst), sr(S_QUAD)))
        e("s_add_u32 %s, %s, %s" % (sr(dst), sr(dst), sr(S_WAVE)))
        e("s_lshl_b32 %s, %s, 7" % (sr(dst), sr(dst)))
        e("s_add_u32 %s, %s, %d" % (sr(dst), sr(dst), WS_FLAGO + ph * 64 * 4 * 128))
        if with_m:
            e("s_lshl_b32 %s, %s, 3" % (sr(S_T0), sr(S_M)))
            e("s_add_u32 %s, %s, %s" % (sr(dst), sr(dst), sr(S_T0)))

    def load_o(ph, regs, ks):
        e("s_lshl_b32 %s, %s, 2" % (sr(S_T1), sr(S_QUAD)))
        e("s_add_u32 %s, %s, %d" % (sr(S_T1), sr(S_T1), ph * 256))
        e("s_mul_i32 %s, %s, 24576" % (sr(S_T1), sr(S_T1)))
        e("s_lshl_b32 %s, %s, 13" % (sr(S_T2), sr(S_WAVE)))
        e("s_add_u32 %s, %s, %s" % (sr(S_T1), sr(S_T1), sr(S_T2)))
        e("s_add_u32 %s, %s, %d" % (sr(S_T1), sr(S_T1), WS_OBUF))
        for k in ks:
            e("s_add_u32 %s, %s, %d" % (sr(S_T2), sr(S_M), k))
            e("s_and_b32 %s, %s, 3" % (sr(S_T2), sr(S_T2)))
            e("s_mul_i32 %s, %s, 24576" % (sr(S_T2), sr(S_T2)))
            e("s_add_u32 %s, %s, %s" % (sr(S_T2), sr(S_T2), sr(S_T1)))
            e("s_add_u32 %s, %s, 4096" % (sr(S_T3), sr(S_T2)))
            for s in range(8):
                e("buffer_load_dwordx4 %s, v%d, %s, %s offen offset:%d sc1" % (
                    ar(regs[k] + 4 * s, 4), V_L16, sr(SRD_WS, 4), sr(S_T2 if s < 4 else S_T3), (s & 3) * 1024))

    def poff(dst, ph, kq_sgpr):
        e("s_add_u32 %s, %s, %d" % (sr(dst), sr(S_B), ph * 8))
        e("s_lshl_b32 %s, %s, 2" % (sr(dst), sr(dst)))
        e("s_add_u32 %s, %s, %s" % (sr(dst), sr(dst), sr(S_M)))
        e("s_lshl_b32 %s, %s, 3" % (sr(dst), sr(dst)))
        if kq_sgpr is not None:
            e("s_add_u32 %s, %s, %s" % (sr(dst), sr(dst), sr(kq_sgpr)))
        e("s_mul_i32 %s, %s, 24576" % (sr(dst), sr(dst)))
        e("s_lshl_b32 %s, %s, 13" % (sr(S_T0), sr(S_WAVE)))
        e("s_add_u32 %s, %s, %s" % (sr(dst), sr(dst), sr(S_T0)))
        e("s_add_u32 %s, %s, %d" % (sr(dst), sr(dst), WS_PBUF))

    def flagp_off(dst, ph, with_kq):
        e("s_add_u32 %s, %s, %d" % (sr(dst), sr(S_B), ph * 8))
        e("s_lshl_b32 %s, %s, 2" % (sr(dst), sr(dst)))
        e("s_add_u32 %s, %s, %s" % (sr(dst), sr(dst), sr(S_M)))
        e("s_lshl_b32 %s, %s, 2" % (sr(dst), sr(dst)))
        e("s_add_u32 %s, %s, %s" % (sr(dst), sr(dst), sr(S_WAVE)))
        e("s_lshl_b32 %s, %s, 7" % (sr(dst), sr(dst)))
        e("s_add_u32 %s, %s, %d" % (sr(dst), sr(dst), WS_FLAGP))
        if with_kq:
            e("s_lshl_b32 %s, %s, 3" % (sr(S_T0), sr(S_X)))
            e("s_add_u32 %s, %s, %s" % (sr(dst), sr(dst), sr(S_T0)))

    def partial_store(acc, ph):
        poff(SC_POFF, ph, S_X)
        e("s_add_u32 %s, %s, 4096" % (sr(S_T1), sr(SC_POFF)))
        e("s_nop 3")
        for cch in range(8):
            for i in range(4):
                k = 4 * cch + i
                e("v_cvt_pk_bf16_f32 v%d, v%d, v%d" % (acc + k, acc + 2 * k, acc + 2 * k + 1))
            e("buffer_store_dwordx4 %s, v%d, %s, %s offen offset:%d sc1" % (
                vr(acc + 4 * cch, 4), V_L16, sr(SRD_WS, 4), sr(SC_POFF if cch < 4 else S_T1), (cch & 3) * 1024))

    def reduce(ph, regs):
        flagp_off(SC_FOFF, ph, False)
        flag_poll(SC_FOFF, 8)
        poff(SC_POFF, ph, None)
        e("s_lshl_b32 %s, %s, 10" % (sr(S_T1), sr(S_X)))
        e("s_add_u32 %s, %s, %s" % (sr(SC_POFF), sr(SC_POFF), sr(S_T1)))
        for kq in range(8):
            e("s_add_u32 %s, %s, %d" % (sr(S_T1), sr(SC_POFF), kq * 24576))
            e("buffer_load_dwordx4 %s, v%d, %s, %s offen sc1" % (
                vr(regs + 4 * kq, 4), V_L16, sr(SRD_WS, 4), sr(S_T1)))
        e("v_and_b32 v1, 31, v0")
        e("v_lshlrev_b32 v1, 11, v1")
        e("v_lshrrev_b32 v2, 5, v0")
        e("v_lshlrev_b32 v2, 4, v2")
        e("v_add_u32 v1, v1, v2")
        e("s_mul_i32 %s, %s, 96" % (sr(S_T1), sr(S_B)))
        e("s_lshl_b32 %s, %s, 5" % (sr(S_T2), sr(S_WAVE)))
        e("s_add_u32 %s, %s, %s" % (sr(S_T1), sr(S_T1), sr(S_T2)))
        e("s_lshl_b32 %s, %s, 11" % (sr(S_T1), sr(S_T1)))
        e("s_lshl_b32 %s, %s, 8" % (sr(S_T2), sr(S_M)))
        e("s_add_u32 %s, %s, %s" % (sr(S_T1), sr(S_T1), sr(S_T2)))
        e("s_lshl_b32 %s, %s, 5" % (sr(S_T2), sr(S_X)))
        e("s_add_u32 %s, %s, %s" % (sr(S_T1), sr(S_T1), sr(S_T2)))
        if ph ^ int(cfg.swap):
            e("s_add_u32 %s, %s, 1024" % (sr(S_T1), sr(S_T1)))
        acc = regs + 32
        for kq in range(8):
            e("s_waitcnt vmcnt(%d)" % (7 - kq))
            for i in range(4):
                r = regs + 4 * kq + i
                if kq == 0:
                    e("v_lshlrev_b32 v%d, 16, v%d" % (acc + 2 * i, r))
                    e("v_and_b32 v%d, 0xffff0000, v%d" % (acc + 2 * i + 1, r))
                else:
                    e("v_lshlrev_b32 v%d, 16, v%d" % (acc + 8, r))
                    e("v_and_b32 v%d, 0xffff0000, v%d" % (r, r))
                    e("v_add_f32 v%d, v%d, v%d" % (acc + 2 * i, acc + 2 * i, acc + 8))
                    e("v_add_f32 v%d, v%d, v%d" % (acc + 2 * i + 1, acc + 2 * i + 1, r))
        for i in range(4):
            e("v_cvt_pk_bf16_f32 v%d, v%d, v%d" % (4 + i, acc + 2 * i, acc + 2 * i + 1))
        e("buffer_store_dwordx4 v[4:7], v1, %s, %s offen" % (sr(SRD_OUT, 4), sr(S_T1)))

    OFT1 = [160, 192, 224, 160]

    def head(ph):
        qbase = V_Q1 if ph == 0 else V_Q2
        for i in range(64):
            e("v_mov_b32 v%d, 0" % (V_O + i))
        e("v_mov_b32 v%d, 0" % V_LSUM)
        e("v_mov_b32 v%d, 0" % V_LS2)
        wait_landed(1)
        a.extend(k_addr(SC_SLOT))
        a.extend(k_reads(A_KF))
        e("s_waitcnt lgkmcnt(0)")
        a.extend(qk_mfmas(V_SA, qbase, "0"))
        slot_adv(SC_SLOT, SC_SLOT, 1)
        wait_landed(3)
        a.extend(k_addr(SC_SLOT))
        slot_adv(SC_SLOT, SC_SLOT, 1)
        a.extend(v_addr(SC_SLOT, V_VB))
        a.extend(k_reads(A_KF))
        a.extend(v_reads(A_VF[0], False))
        slot_adv(SC_SLOT, SC_SLOT, 1)
        e("s_add_u32 %s, %s, 3" % (sr(SC_IDX), sr(SC_IDX)))
        a.extend(max_valu(V_SA))
        cross_half_max()
        for i in range(16):
            e("v_sub_f32 v%d, v%d, v%d" % (V_SA + i, V_SA + i, V_TMAX))
        e("v_sub_f32 v%d, 0, v%d" % (V_NEGM, V_TMAX))
        for i in range(1, 16):
            e("v_mov_b32 v%d, v%d" % (V_NEGM + i, V_NEGM))

        def iteration(par, kind):
            scur = V_SA if par == 0 else V_SB
            snext = V_SB if par == 0 else V_SA
            ex = ["v_exp_f32 v%d, v%d" % (scur + i, scur + i) for i in range(16)]
            ad = ["v_add_f32 v%d, v%d, v%d" % ((V_LSUM, V_LS2)[i & 1], (V_LSUM, V_LS2)[i & 1], scur + i)
                  for i in range(16)]
            cv = ["v_cvt_pk_bf16_f32 v%d, v%d, v%d" % (V_PF + k, scur + 2 * k, scur + 2 * k + 1) for k in range(8)]
            ab = cfg.ablate.split("+")
            pv = pv_mfmas(A_VF[par])
            rel = release_l(SC_IDX)
            e("s_waitcnt lgkmcnt(%d)" % (15 if kind == "full" else 0))
            if kind == "full":
                qk = qk_mfmas(snext, qbase, vr(V_NEGM, 16))
                kr = k_reads(A_KF)
                r = v_reads(A_VF[par ^ 1], False)
                mx = max_valu(snext)
                cmp_ = ["v_cmp_lt_f32 vcc, %s, v%d" % (sr(SC_T), V_TMAX)]
                book = ["s_add_u32 %s, %s, %d" % (sr(SC_SLOT), sr(SC_SLOT), 2 * SLOT),
                        "s_add_u32 %s, %s, 2" % (sr(SC_IDX), sr(SC_IDX)),
                        "s_cmp_lt_u32 %s, %d" % (sr(SC_SLOT), RING),
                        "s_cselect_b32 %s, %s, 0" % (sr(SC_SLOT), sr(SC_SLOT))]
                ka = k_addr(SC_SLOT)
                va = v_addr(SC_SLOT, V_VB2)
                per = [
                    [ex[0], ex[1]] + wait_landed_l(2),
                    [ex[2], ex[3], cv[0], ka[0]],
                    [ex[4], ex[5], cv[1], ka[1]],
                    [ex[6], ex[7], cv[2], va[0]],
                    [ex[8], ex[9], cv[3], rel[0]],
                    [ex[10], ex[11], cv[4], book[0]],
                    [ex[12], ex[13], cv[5], book[1]],
                    [ex[14], ex[15], cv[6], cv[7], "s_waitcnt lgkmcnt(0)"],
                    [rel[1]] + kr[0:4] + [ad[0]],
                    kr[4:8] + [ad[1]],
                    r[0:4] + ad[2:4],
                    r[4:8] + ad[4:6],
                    r[8:12] + ad[6:8],
                    r[12:16] + ad[8:10],
                    mx[0:4] + ad[10:12] + book[2:4],
                    mx[4:8] + cmp_ + ad[12:16],
                ]
                def keep(x):
                    for key, pat in (("add", "v_add_f32"), ("exp", "v_exp_f32"), ("cvt", "v_cvt_pk"),
                                     ("kr", "ds_read_b128"), ("vr", "ds_read_b64"), ("mx", "v_max"),
                                     ("rel", "ds_write"), ("salu", "s_add_u32"), ("salu", "s_cselect"),
                                     ("chk", "s_cbranch_scc1")):
                        if key in ab and x.startswith(pat):
                            return False
                    return True
                per = [[x for x in l if keep(x)] for l in per]
                a.extend(gaps(qk + pv, per))
            else:
                g, tl = softmax_gaps(scur)
                if kind == "lastk":
                    a.extend(wait_landed_l(1) + v_addr(SC_SLOT, V_VB))
                    vrr = v_reads(A_VF[par ^ 1], False)
                    g = [l + vrr[2 * k:2 * k + 2] for k, l in enumerate(g)]
                    a.extend(gaps(qk_mfmas(snext, qbase, vr(V_NEGM, 16)), g))
                    a.extend(tl)
                    mx = max_valu(snext) + ["v_cmp_lt_f32 vcc, %s, v%d" % (sr(SC_T), V_TMAX)]
                    book = ["s_add_u32 %s, %s, 1" % (sr(SC_IDX), sr(SC_IDX))] + slot_adv_l(SC_SLOT, SC_SLOT, 1)
                    per = [rel, [], [], mx[0:2], mx[2:4] + book[0:1], mx[4:6] + book[1:3], mx[6:8] + book[3:5],
                           mx[8:9]]
                    a.extend(gaps(pv, per))
                else:
                    for l in g:
                        a.extend(l)
                    a.extend(tl)
                    a.extend(rel)
                    a.extend(pv)
            if kind != "final":
                r_ = a.newlab("rare")
                b_ = a.newlab("back")
                e("s_cbranch_vccnz %s" % r_)
                a.lab(b_)
                rare.append((r_, b_, snext))

        acts = []
        static_mask = 0

        def at_pass(n, body):
            nonlocal static_mask
            static_mask |= 1 << n
            acts.append((n, body))

        if cfg.stamps:
            for nm in stl:
                if nm[0] == "ab"[ph] and nm[1:].isdigit():
                    at_pass(int(nm[1:]), lambda nm=nm: stamp(nm))
        pollmask = 0
        if ph == 0:
            def nonce_issue():
                e("v_mov_b32 v1, 0")
                e("global_load_dwordx2 %s, v1, %s sc1" % (vr(V_NON, 2), sr(KA_DBG, 2)))

            def nonce_get():
                ok = a.newlab("nok")
                e("s_waitcnt vmcnt(0)")
                e("v_readfirstlane_b32 %s, v%d" % (sr(SC_NONCE), V_NON))
                e("v_readfirstlane_b32 %s, v%d" % (sr(SC_NONCE + 1), V_NON + 1))
                e("s_nop 3")
                e("s_cmp_lg_u32 %s, 0" % sr(SC_NONCE))
                e("s_cbranch_scc1 %s" % ok)
                get_nonce()
                a.lab(ok)
                e("s_getreg_b32 %s, hwreg(HW_REG_XCC_ID)" % sr(SC_XCC))
                e("s_and_b32 %s, %s, 15" % (sr(SC_XCC), sr(SC_XCC)))
                e("s_add_u32 %s, %s, %s" % (sr(SC_XCC), sr(SC_XCC), sr(SC_NONCE + 1)))
                e("s_lshl_b32 %s, %s, 7" % (sr(SC_IDOFF), sr(S_QUAD)))
                e("s_add_u32 %s, %s, %d" % (sr(SC_IDOFF), sr(SC_IDOFF), WS_FLAGI))
                e("s_mov_b32 %s, 0" % sr(SC_LOCAL))
                if cfg.local:
                    sk = a.newlab("idsk")
                    e("s_cmp_eq_u32 %s, 0" % sr(S_WAVE))
                    e("s_cbranch_scc0 %s" % sk)
                    e("s_lshl_b32 %s, %s, 3" % (sr(S_T1), sr(S_M)))
                    e("s_add_u32 %s, %s, %s" % (sr(S_T1), sr(S_T1), sr(SC_IDOFF)))
                    flag_store(S_T1, hi=SC_XCC)
                    a.lab(sk)

            def id_issue():
                e("v_min_u32 v1, 3, v0")
                e("v_lshlrev_b32 v1, 3, v1")
                e("buffer_load_dwordx2 %s, v1, %s, %s offen sc1" % (vr(V_NON, 2), sr(SRD_WS, 4), sr(SC_IDOFF)))

            def id_check():
                e("s_waitcnt vmcnt(0)")
                e("v_cmp_ne_u32 vcc, %s, v%d" % (sr(SC_NONCE), V_NON))
                e("v_cmp_ne_u32 s[34:35], %s, v%d" % (sr(SC_XCC), V_NON + 1))
                e("s_nop 3")
                e("s_or_b64 vcc, vcc, s[34:35]")
                e("s_cselect_b32 %s, 0, 1" % sr(SC_LOCAL))
            if not cfg.noxchg:
                at_pass(1, nonce_issue)
                at_pass(3, nonce_get)
                if cfg.local:
                    at_pass(11, id_issue)
                    at_pass(13, id_check)
        else:
            def p1b():
                e("s_waitcnt vmcnt(0)")
                flago_off(SC_FOFF, 0, True)
                flag_store(SC_FOFF, local=True)

            if not cfg.noxchg:
                at_pass(1, p1b)
        e("s_lshl_b32 %s, 1, %s" % (sr(SC_EVM), sr(S_TAU1 if ph == 0 else S_TAU2)))
        e("s_or_b32 %s, %s, 0x%x" % (sr(SC_EVM), sr(SC_EVM), static_mask | pollmask))
        e("s_mov_b32 %s, 0" % sr(SC_IT))
        lp = a.newlab("attn")
        a.lab(lp)
        iteration(0, "full")
        iteration(1, "full")
        e("s_add_u32 %s, %s, 1" % (sr(SC_IT), sr(SC_IT)))
        evd = a.newlab("evdisp")
        evdb = a.newlab("evdback")
        e("s_bitcmp1_b32 %s, %s" % (sr(SC_EVM), sr(SC_IT)))
        e("s_cbranch_scc1 %s" % evd)
        a.lab(evdb)
        e("s_cmp_lt_u32 %s, 15" % sr(SC_IT))
        e("s_cbranch_scc1 %s" % lp)

        def dispatcher(ph=ph, evd=evd, evdb=evdb, acts=acts, pollmask=pollmask,
                       poll_check=None):
            a.lab(evd)
            ev = a.newlab("event")
            evb = a.newlab("evback")
            e("s_cmp_eq_u32 %s, %s" % (sr(SC_IT), sr(S_TAU1 if ph == 0 else S_TAU2)))
            e("s_cbranch_scc1 %s" % ev)
            a.lab(evb)
            events.append((ph, ev, evb))
            for n, body in acts:
                sk = a.newlab("noev")
                e("s_cmp_eq_u32 %s, %d" % (sr(SC_IT), n))
                e("s_cbranch_scc0 %s" % sk)
                body()
                a.lab(sk)
            if poll_check is not None:
                sk = a.newlab("nopoll")
                e("s_cmp_lt_u32 %s, 5" % sr(SC_IT))
                e("s_cbranch_scc1 %s" % sk)
                poll_check()
                a.lab(sk)
            e("s_branch %s" % evdb)
        dispatchers.append(dispatcher)
        if ph == 1:
            e("s_waitcnt vmcnt(0)")
            flagp_off(SC_FOFF, 0, True)
            flag_store(SC_FOFF)
        iteration(0, "lastk")
        iteration(1, "final")
        e("v_add_f32 v%d, v%d, v%d" % (V_LSUM, V_LSUM, V_LS2))
        e("v_mov_b32 v%d, v%d" % (V_LS2, V_LSUM))
        e("s_nop 1")
        e("v_permlane32_swap_b32 v%d, v%d" % (V_LSUM, V_LS2))
        e("s_nop 1")
        e("v_add_f32 v%d, v%d, v%d" % (V_LSUM, V_LSUM, V_LS2))
        e("v_rcp_f32 v%d, v%d" % (V_ALPHA, V_LSUM))
        e("s_lshl_b32 %s, %s, 2" % (sr(S_T1), sr(S_QUAD)))
        e("s_add_u32 %s, %s, %s" % (sr(S_T1), sr(S_T1), sr(S_M)))
        e("s_add_u32 %s, %s, %d" % (sr(S_T1), sr(S_T1), ph * 256))
        e("s_mul_i32 %s, %s, 24576" % (sr(S_T1), sr(S_T1)))
        e("s_lshl_b32 %s, %s, 13" % (sr(S_T2), sr(S_WAVE)))
        e("s_add_u32 %s, %s, %s" % (sr(S_T1), sr(S_T1), sr(S_T2)))
        e("s_add_u32 %s, %s, %d" % (sr(SC_OOFF), sr(S_T1), WS_OBUF))
        e("s_add_u32 %s, %s, 4096" % (sr(SC_OOFF2), sr(SC_OOFF)))
        e("s_nop 3")
        def ostores(flav):
            for s in range(8):
                for k in range(4):
                    i = 4 * s + k
                    e("v_mul_f32 v%d, v%d, v%d" % (V_O + 2 * i, V_O + 2 * i, V_ALPHA))
                    e("v_mul_f32 v%d, v%d, v%d" % (V_O + 2 * i + 1, V_O + 2 * i + 1, V_ALPHA))
                    e("v_cvt_pk_bf16_f32 v%d, v%d, v%d" % (V_STG + i, V_O + 2 * i, V_O + 2 * i + 1))
                e("buffer_store_dwordx4 %s, v%d, %s, %s offen offset:%d %s" % (
                    vr(V_STG + 4 * s, 4), V_L16, sr(SRD_WS, 4), sr(SC_OOFF if s < 4 else SC_OOFF2),
                    (s & 3) * 1024, flav))
        if cfg.local:
            gl = a.newlab("osg")
            dn = a.newlab("osd")
            e("s_cmp_eq_u32 %s, 0" % sr(SC_LOCAL))
            e("s_cbranch_scc1 %s" % gl)
            ostores("")
            e("s_branch %s" % dn)
            a.lab(gl)
            ostores("sc1")
            a.lab(dn)
        else:
            ostores("sc1")
        e("s_mov_b32 %s, 0" % sr(SC_OOFF))

    head(0)
    stamp("h0")
    head(1)
    stamp("h1")

    OF2 = [None, 160, 192, 224]

    def bf2(r, s):
        return vr(V_STG + 4 * s, 4) if r == 0 else ar(OF2[r] + 4 * s, 4)

    def hook_after_round0():
        e("s_waitcnt vmcnt(0)")
        flago_off(SC_FOFF, 1, True)
        flag_store(SC_FOFF, local=True)
        flago_off(SC_FOFF, 1, False)
        flag_poll(SC_FOFF, 4)
        load_o(1, OF2, [1, 2, 3])
        e("s_waitcnt vmcnt(16)")
        stamp("t1")

    hooks.clear()
    hooks.update({3: hook_after_round0, 7: lambda: e("s_waitcnt vmcnt(8)"), 11: lambda: e("s_waitcnt vmcnt(0)")})
    proj(V_ACC2, bf2, False)
    hooks.clear()
    e("s_nop 7")
    partial_store(V_ACC2, 1)
    stamp("t2")
    e("s_waitcnt vmcnt(0)")
    flagp_off(SC_FOFF, 1, True)
    flag_store(SC_FOFF)
    reduce(0, V_O)
    stamp("r0")
    reduce(1, V_O)
    e("s_waitcnt vmcnt(0)")
    stamp("r1")

    a.lab("L_fin")
    savef = a.filt
    a.filt = None
    if cfg.stamps:
        e("s_waitcnt lgkmcnt(0)")
        for k, nm in enumerate(stl):
            if nm == "loc":
                e("s_mov_b32 %s, %s" % (sr(S_ST + 2 * k), sr(SC_LOCAL)))
        e("s_lshl_b32 s28, s2, 9")
        e("s_lshl_b32 s29, %s, 7" % sr(S_WAVE))
        e("s_add_u32 s28, s28, s29")
        e("s_add_u32 s28, s28, 0x%x" % WS_STAMP)
        e("v_mov_b32 v1, s28")
        e("s_getreg_b32 s30, hwreg(HW_REG_XCC_ID)")
        e("s_mov_b64 exec, 1")
        for k in range(4):
            for j in range(4):
                e("v_mov_b32 v%d, s%d" % (4 + j, S_ST + 4 * k + j))
            e("global_store_dwordx4 v1, v[4:7], %s offset:%d" % (sr(KA_WS, 2), 16 * k))
            e("s_waitcnt vmcnt(0)")
        e("v_mov_b32 v4, s30")
        e("global_store_dword v1, v4, %s offset:64" % sr(KA_WS, 2))
        e("s_waitcnt vmcnt(0)")
    a.lab("L_end")
    e("s_endpgm")
    a.filt = savef

    for r, b, sn in rare:
        rare_path(r, b, sn)
    for d in dispatchers:
        d()
    for ph, ev, evb in events:
        a.lab(ev)
        if ph == 0:
            stamp("e0")
            e("s_call_b64 %s, L_qproj" % sr(SC_RET2, 2))
            for i in range(32):
                e("v_cvt_pk_bf16_f32 v%d, v%d, v%d" % (V_Q2 + i, V_ACCQ + 2 * i, V_ACCQ + 2 * i + 1))
            stamp("e1")
        else:
            stamp("e2")
            hooks.clear()
            proj(V_ACC1, lambda r, s: ar(A_XF[r & 1] + 4 * s, 4), "o")
            e("s_nop 7")
            partial_store(V_ACC1, 0)
            stamp("e3")
        e("s_branch %s" % evb)
    for slow, back in slowwaits:
        a.lab(slow)
        e("ds_read_b32 v%d, v%d" % (V_LRD, V_LADDR))
        e("s_waitcnt lgkmcnt(0)")
        e("v_readfirstlane_b32 %s, v%d" % (sr(SC_L), V_LRD))
        e("s_sub_u32 %s, %s, 1" % (sr(S_SPIN), sr(S_SPIN)))
        e("s_cmp_eq_u32 %s, 0" % sr(S_SPIN))
        e("s_cbranch_scc1 L_end")
        e("s_cmp_lt_u32 %s, %s" % (sr(SC_L), sr(SC_NEED)))
        if cfg.psleep:
            e("s_cbranch_scc0 %s" % back)
            e("s_sleep %d" % cfg.psleep)
            e("s_branch %s" % slow)
        else:
            e("s_cbranch_scc1 %s" % slow)
            e("s_branch %s" % back)
    txt = a.text()

    kd = []
    kd.append('.section .rodata,"a"')
    kd.append(".p2align 6")
    kd.append(".amdhsa_kernel %s_kernel" % NAME)
    kd.append("  .amdhsa_next_free_vgpr 512")
    kd.append("  .amdhsa_next_free_sgpr 102")
    kd.append("  .amdhsa_accum_offset 256")
    kd.append("  .amdhsa_group_segment_fixed_size 0")
    kd.append("  .amdhsa_kernarg_size 104")
    kd.append("  .amdhsa_user_sgpr_count 2")
    kd.append("  .amdhsa_user_sgpr_kernarg_segment_ptr 1")
    kd.append("  .amdhsa_system_sgpr_workgroup_id_x 1")
    kd.append(".end_amdhsa_kernel")
    return "\n".join(hdr) + "\n" + txt + "\n".join(kd) + "\n"


if __name__ == "__main__":
    import argparse
    ap = argparse.ArgumentParser()
    ap.add_argument("-o", default="cdna_kernels/%s.s" % NAME)
    ap.add_argument("--stamps", action="store_true")
    ap.add_argument("--set", action="append", default=[])
    args = ap.parse_args()
    cfg = Cfg()
    cfg.stamps = args.stamps
    for kv in args.set:
        k, v = kv.split("=", 1)
        cur = getattr(cfg, k)
        if isinstance(cur, bool):
            v = v in ("1", "True", "true")
        elif isinstance(cur, int):
            v = int(v)
        elif isinstance(cur, float):
            v = float(v)
        setattr(cfg, k, v)
    open(args.o, "w").write(build(cfg))
    print("wrote", args.o)
```

```python
import math
import struct

NAME = "concat_heads__mha_block_cached__gqa_block_cached__near_ridge"


def f32bits(x):
    return struct.unpack("<I", struct.pack("<f", x))[0]


class Cfg:
    NS = 18
    NQ = 11
    E = 7
    D = 5
    deven = 5
    dodd = 5
    polllead = 3
    stamps = False
    T_LOG2 = 8.0
    kvflags = "nt"
    wflags = ""
    woflags = ""
    xflags = ""
    kvsame = False
    noload = False
    nocompute = False
    noxchg = False
    stamplist = "start,qp,h0,h1,t1,t2,r0,r1"
    po_base = 10
    po_mul = 4
    pft = 20
    prefetch = True
    ytype = 1
    spin = 0x80000
    local = True
    psleep = 0
    dumpq = False
    dbgstamps = False
    ablate = ""


BLK = 1088
SLOT = 8 * BLK
NQT = 40
WS_FLAGO = 0
WS_FLAGP = 65536
WS_FLAGI = 131072
WS_OBUF = 1 << 20
WS_PBUF = 16 << 20
WS_STAMP = 48 << 20
WS_USED = 56 << 20


def vr(base, n=1):
    return "v%d" % base if n == 1 else "v[%d:%d]" % (base, base + n - 1)


def ar(base, n=1):
    return "a%d" % base if n == 1 else "a[%d:%d]" % (base, base + n - 1)


def sr(base, n=1):
    return "s%d" % base if n == 1 else "s[%d:%d]" % (base, base + n - 1)


class Asm:
    def __init__(self):
        self.L = []
        self.nlab = 0
        self.filt = None

    def e(self, s):
        if self.filt and self.filt(s):
            return
        self.L.append("  " + s)

    def lab(self, name):
        self.L.append(name + ":")

    def newlab(self, base):
        self.nlab += 1
        return "L%s_%d" % (base, self.nlab)

    def extend(self, lst):
        for s in lst:
            if s.endswith(":"):
                self.lab(s[:-1])
            else:
                self.e(s)

    def text(self):
        return "\n".join(self.L) + "\n"


def gaps(primary, per_gap):
    out = []
    for p, f in zip(primary, per_gap):
        out.append(p)
        out.extend(f)
    return out


S_WG = 2
S_WAVE = 3
S_X, S_M, S_G8, S_QUAD, S_H = 20, 21, 22, 24, 25
S_SPIN = 26
S_TAU = 27
S_T0, S_T1, S_T2, S_T3 = 28, 29, 30, 31
S_RET = 32
KA_X, KA_K, KA_V, KA_WQ, KA_WO = 36, 38, 40, 42, 44
S_B4, S_BR = 46, 47
KA_OUT, KA_DBG, KA_WS = 56, 58, 60
SL_ISS, SL_PUB, SL_FMIN, SL_SLOT, SL_NEED, SL_OFF, SL_OFF2, SL_CNT, SL_CNT2, SL_KOFF, SL_VOFF, SL_ROT = range(4, 16)
SL_RET2 = 16
SL_XB, SL_WB = 18, 19
SL_NADJ = 23
SL_QSLOT = 48
SL_EVM = 49
SL_NONCE = 34
SL_THR = 50
SL_WFC = 51
SRD_X, SRD_K, SRD_V, SRD_WQ, SRD_WO = 64, 68, 72, 76, 80
SC_L, SC_SLOT, SC_IDX, SC_IT, SC_T, SC_NEED, SC_SLOT2, SC_ADJ = range(4, 12)
SC_OOFF, SC_OOFF2, SC_FOFF, SC_POFF = 12, 13, 14, 15
SC_NONCE = 16
SC_RET2 = 18
SC_WRAP, SC_LOCAL, SC_XCC, SC_IDOFF, SC_EVM, SC_PADJ, SC_SAVE, SC_SWC = 72, 73, 74, 75, 76, 77, 78, 79
SRD_WS, SRD_OUT = 64, 68
S_ST = 84

V_KB = 8
V_VB = 10
V_WB = 11
V_KA = 12
V_VA = 14
V_L16 = 15
V_LSUM, V_LS2, V_TMAX, V_ALPHA, V_FV, V_LADDR, V_FADDR, V_LRD = range(17, 25)
V_VB2 = 25
V_NON = 26
V_PF = 32
V_NEGM = 48
V_O = 64
V_SA = 128
V_SB = 144
V_ACCQ = 160
V_Q2 = 160
V_STG = 192
V_Q1 = 224
A_AF = [0, 32]
A_KF = 64
A_VF = [96, 128]
A_XF = [[128, 160], [192, 224]]
A_OF1 = [None, 160, 192, 224]
A_OF2 = [None, 64, 96, 128]
MFMA = "v_mfma_f32_32x32x16_bf16"


def build(cfg):
    NS, D, NQ, E = cfg.NS, cfg.D, cfg.NQ, cfg.E
    assert NS == NQ + E and NS % 2 == 0 and (NQ + 3) % 2 == 0
    RING = NS * SLOT
    FLAG_L = RING
    FLAG_F = RING + 16
    LDS_BYTES = RING + 64
    a = Asm()
    e = a.e
    hdr = []
    hdr.append("; @launch grid=(256,1,1) block=(256,1,1) lds=%d" % LDS_BYTES)
    hdr.append('.amdgcn_target "amdgcn-amd-amdhsa--gfx950"')
    hdr.append(".text")
    hdr.append(".globl %s_kernel" % NAME)
    hdr.append(".p2align 8")
    hdr.append(".type %s_kernel,@function" % NAME)
    hdr.append("%s_kernel:" % NAME)
    stl = cfg.stamplist.split(",")

    def stamp(name):
        if cfg.stamps:
            for k, nm in enumerate(stl):
                if nm == name:
                    e("s_memrealtime %s" % sr(S_ST + 2 * k, 2))
                if nm == name + ".c":
                    e("s_memtime %s" % sr(S_ST + 2 * k, 2))

    def cnt(name):
        if cfg.stamps:
            for k, nm in enumerate(stl):
                if nm == name:
                    e("s_mov_b32 %s, %s" % (sr(S_ST + 2 * k), sr(SL_WFC)))

    e("s_cmp_ge_u32 s2, 256")
    e("s_cbranch_scc1 L_end")
    e("s_load_dwordx16 s[36:51], s[0:1], 0")
    e("s_load_dwordx4 s[52:55], s[0:1], 64")
    e("s_load_dwordx4 s[56:59], s[0:1], 80")
    e("s_load_dwordx2 s[60:61], s[0:1], 96")
    stamp("start")
    e("v_lshrrev_b32 v1, 6, v0")
    e("v_and_b32 v0, 63, v0")
    e("s_and_b32 %s, s2, 7" % sr(S_X))
    e("v_readfirstlane_b32 %s, v1" % sr(S_WAVE))
    e("s_lshr_b32 s28, s2, 3")
    e("s_and_b32 %s, s28, 3" % sr(S_M))
    e("s_lshr_b32 %s, s28, 2" % sr(S_G8))
    e("s_lshl_b32 %s, %s, 2" % (sr(S_H), sr(S_X)))
    e("s_add_u32 %s, %s, %s" % (sr(S_H), sr(S_H), sr(S_M)))
    e("s_lshl_b32 %s, %s, 3" % (sr(S_QUAD), sr(S_G8)))
    e("s_add_u32 %s, %s, %s" % (sr(S_QUAD), sr(S_QUAD), sr(S_X)))
    e("s_mov_b32 %s, 0x%x" % (sr(S_SPIN), cfg.spin))
    e("s_lshl_b32 %s, %s, 1" % (sr(S_TAU), sr(S_M)))
    e("s_and_b32 s29, %s, 1" % sr(S_X))
    e("s_add_u32 %s, %s, s29" % (sr(S_TAU), sr(S_TAU)))
    e("s_mul_i32 %s, %s, %d" % (sr(S_TAU), sr(S_TAU), cfg.po_mul))
    e("s_lshr_b32 %s, %s, 3" % (sr(S_TAU), sr(S_TAU)))
    e("s_add_u32 %s, %s, %d" % (sr(S_TAU), sr(S_TAU), cfg.po_base))
    e("s_cmp_lt_u32 %s, 4" % sr(S_G8))
    e("s_waitcnt lgkmcnt(0)")
    for k in range(10):
        e("s_cselect_b32 s%d, s%d, s%d" % (36 + k, 36 + k, 46 + k))
    e("s_and_b32 %s, %s, 3" % (sr(S_B4), sr(S_G8)))
    e("s_lshr_b32 %s, %s, 2" % (sr(S_BR), sr(S_G8)))
    e("s_cmp_eq_u32 %s, 3" % sr(S_WAVE))
    e("s_cbranch_scc0 L_compute")

    def srd(dst, ptr, nbytes):
        e("s_mov_b32 %s, %s" % (sr(dst), sr(ptr)))
        e("s_mov_b32 %s, %s" % (sr(dst + 1), sr(ptr + 1)))
        e("s_mov_b32 %s, 0x%x" % (sr(dst + 2), nbytes))
        e("s_mov_b32 %s, 0x20000" % sr(dst + 3))

    a.lab("L_loader")
    e("s_setprio 3")
    LV_K, LV_V, LV_X, LV_WQ, LV_WO, LV_T, LV_LADDR, LV_FADDR, LV_F = 8, 12, 16, 20, 24, 28, 29, 30, 32
    LV_O, LV_FL, LV_NON, LV_FA = 36, 200, 202, 204
    BIAS = 4096
    NB_X, NB_KV, NB_W = 8 * 96 * 512 * 2, 8 * 32 * 1024 * 128 * 2, 512 * 4096 * 2

    def srdb(dst, ptr, nbytes):
        e("s_sub_u32 %s, %s, %d" % (sr(dst), sr(ptr), BIAS))
        e("s_subb_u32 %s, %s, 0" % (sr(dst + 1), sr(ptr + 1)))
        e("s_mov_b32 %s, 0x%x" % (sr(dst + 2), nbytes + BIAS))
        e("s_mov_b32 %s, 0x20000" % sr(dst + 3))

    e("v_lshrrev_b32 v1, 4, v0")
    e("v_and_b32 v2, 15, v0")
    e("v_xor_b32 v3, v2, v1")
    e("v_lshlrev_b32 v3, 4, v3")
    e("v_lshlrev_b32 v2, 4, v2")
    e("v_lshlrev_b32 v4, 12, v1")
    e("v_lshlrev_b32 v5, 15, v1")
    e("v_lshlrev_b32 v6, 10, v1")

    def lane_offs(dst, rowpart, colpart, rs):
        e("v_add_u32 v%d, v%d, v%d" % (dst, rowpart, colpart))
        for b in range(3, 0, -1):
            e("v_add_u32 v%d, %d, v%d" % (dst + b, BIAS + b * (rs - BLK), dst))
        e("v_add_u32 v%d, %d, v%d" % (dst, BIAS, dst))

    srdb(SRD_X, KA_X, NB_X)
    srdb(SRD_WQ, KA_WQ, NB_W)
    lane_offs(LV_X, 4, 3, 1024)
    lane_offs(LV_WQ, 5, 2, 8192)
    e("s_getreg_b32 %s, hwreg(HW_REG_XCC_ID)" % sr(SL_THR))
    e("s_and_b32 %s, %s, 1" % (sr(SL_THR), sr(SL_THR)))
    if cfg.deven < cfg.dodd:
        e("s_xor_b32 %s, %s, 1" % (sr(SL_THR), sr(SL_THR)))
    e("v_mov_b32 v%d, %d" % (LV_LADDR, FLAG_L))
    e("v_mov_b32 v%d, %d" % (LV_FADDR, FLAG_F))
    e("v_mov_b32 v%d, 0" % LV_T)
    e("ds_write_b32 v%d, v%d" % (LV_LADDR, LV_T))
    e("s_mov_b32 %s, 0" % sr(SL_ISS))
    e("s_mov_b32 %s, 0" % sr(SL_PUB))
    e("s_mov_b32 %s, 0" % sr(SL_FMIN))
    e("s_mov_b32 %s, 0" % sr(SL_SLOT))
    e("s_mov_b32 %s, -1" % sr(SL_NEED))
    e("s_mov_b32 %s, 0" % sr(SL_WFC))
    e("s_add_u32 %s, %s, %s" % (sr(SL_ROT), sr(S_B4), sr(S_M)))
    e("s_and_b32 %s, %s, 3" % (sr(SL_ROT), sr(SL_ROT)))
    if cfg.noload:
        e("v_mov_b32 v%d, 100000" % LV_T)
        e("s_waitcnt lgkmcnt(0)")
        e("ds_write_b32 v%d, v%d" % (LV_LADDR, LV_T))
        e("s_waitcnt lgkmcnt(0)")
        e("s_barrier")
        e("s_branch L_fin")

    ool = []

    def publish_nb():
        e("s_getreg_b32 %s, hwreg(HW_REG_IB_STS)" % sr(S_T0))
        e("s_lshr_b32 %s, %s, 18" % (sr(S_T1), sr(S_T0)))
        e("s_and_b32 %s, %s, 15" % (sr(S_T0), sr(S_T0)))
        e("s_and_b32 %s, %s, 0x30" % (sr(S_T1), sr(S_T1)))
        e("s_add_u32 %s, %s, %s" % (sr(S_T0), sr(S_T0), sr(S_T1)))
        e("s_add_u32 %s, %s, 7" % (sr(S_T0), sr(S_T0)))
        e("s_lshr_b32 %s, %s, 3" % (sr(S_T0), sr(S_T0)))
        e("s_sub_i32 %s, %s, %s" % (sr(SL_PUB), sr(SL_ISS), sr(S_T0)))
        e("v_mov_b32 v%d, %s" % (LV_T, sr(SL_PUB)))
        e("ds_write_b32 v%d, v%d" % (LV_LADDR, LV_T))

    def issue_tile(srdreg, voff, rs, flags, wrap, nowait=False, check=True):
        if check:
            e("s_cmp_ge_i32 %s, %s" % (sr(SL_FMIN), sr(SL_NEED)))
            slow = a.newlab("lslow")
            ok = a.newlab("ok")
            e("s_cbranch_scc0 %s" % slow)
            a.lab(ok)
            ool.append((slow, ok))

        def ld(b):
            e("buffer_load_dwordx4 v%d, %s, %s offen offset:%d %s lds" % (
                voff + (b & 3), sr(srdreg, 4), sr(SL_OFF if b < 4 else SL_OFF2), (b & 3) * BLK, flags))
        e("s_mov_b32 m0, %s" % sr(SL_SLOT))
        e("s_add_u32 %s, %s, %d" % (sr(SL_OFF2), sr(SL_OFF), 16 * rs))
        ld(0)
        ld(1)
        ld(2)
        e("s_add_u32 %s, %s, 1" % (sr(SL_ISS), sr(SL_ISS)))
        ld(3)
        e("s_add_u32 m0, %s, %d" % (sr(SL_SLOT), 4 * BLK))
        e("s_add_u32 %s, %s, %d" % (sr(SL_SLOT), sr(SL_SLOT), SLOT))
        ld(4)
        e("s_cmp_lt_u32 %s, %d" % (sr(SL_SLOT), wrap))
        e("s_cselect_b32 %s, %s, 0" % (sr(SL_SLOT), sr(SL_SLOT)))
        ld(5)
        e("s_sub_i32 %s, %s, %s" % (sr(SL_NEED), sr(SL_ISS), sr(SL_NADJ)))
        ld(6)
        if cfg.deven != cfg.dodd:
            e("s_cmp_eq_u32 %s, 0" % sr(SL_THR))
        ld(7)
        if not nowait:
            dmax, dmin = max(cfg.deven, cfg.dodd), min(cfg.deven, cfg.dodd)
            e("s_waitcnt vmcnt(%d)" % (8 * dmax))
            if dmin != dmax:
                sk = a.newlab("thr")
                e("s_cbranch_scc1 %s" % sk)
                e("s_waitcnt vmcnt(%d)" % (8 * dmin))
                a.lab(sk)
            publish_nb()

    def qp_round(first_nowait=0):
        n = 0

        def after():
            if first_nowait and n == first_nowait:
                e("s_waitcnt lgkmcnt(0)")
                e("s_barrier")
        for st in range(2):
            for w in range(3):
                e("s_add_u32 %s, %s, %d" % (sr(SL_OFF), sr(SL_XB), st * 4 * 96 * 1024 + w * 32 * 1024))
                issue_tile(SRD_X, LV_X, 1024, cfg.xflags, NQ * SLOT, nowait=(n < first_nowait))
                n += 1
                after()
        for j in range(4):
            e("s_add_u32 %s, %s, %d" % (sr(SL_OFF), sr(SL_WB), j * 32 * 8192))
            issue_tile(SRD_WQ, LV_WQ, 8192, cfg.wflags, NQ * SLOT, nowait=(n < first_nowait))
            n += 1
            after()

    def qp_bases():
        e("s_add_u32 %s, %s, %s" % (sr(S_T1), sr(SL_ROT), sr(SL_CNT)))
        e("s_and_b32 %s, %s, 3" % (sr(S_T1), sr(S_T1)))
        e("s_lshl_b32 %s, %s, 8" % (sr(S_T2), sr(S_T1)))
        e("s_mul_i32 %s, %s, %d" % (sr(SL_XB), sr(S_B4), 96 * 1024))
        e("s_add_u32 %s, %s, %s" % (sr(SL_XB), sr(SL_XB), sr(S_T2)))
        e("s_lshl_b32 %s, %s, 20" % (sr(S_T2), sr(S_T1)))
        e("s_lshl_b32 %s, %s, 8" % (sr(SL_WB), sr(S_H)))
        e("s_add_u32 %s, %s, %s" % (sr(SL_WB), sr(SL_WB), sr(S_T2)))

    kvf = "" if cfg.kvsame else cfg.kvflags
    e("s_mov_b32 %s, %d" % (sr(SL_NADJ), NQ - 1))
    e("s_mov_b32 %s, 0" % sr(SL_CNT))
    qp_bases()
    qp_round(first_nowait=D)
    srdb(SRD_K, KA_K, NB_KV)
    srdb(SRD_V, KA_V, NB_KV)
    srdb(SRD_WO, KA_WO, NB_W)
    lane_offs(LV_K, 6, 3, 256)
    lane_offs(LV_V, 6, 2, 256)
    lane_offs(LV_WO, 4, 2, 1024)
    e("v_lshlrev_b32 v7, 4, v0")
    for b in range(3, 0, -1):
        e("v_add_u32 v%d, %d, v7" % (LV_O + b, BIAS + b * (1024 - BLK)))
    e("v_add_u32 v%d, %d, v7" % (LV_O, BIAS))
    e("v_min_u32 v7, 11, v0")
    e("v_lshrrev_b32 v%d, 2, v7" % LV_FA)
    e("v_lshlrev_b32 v%d, 7, v%d" % (LV_FA, LV_FA))
    e("v_and_b32 v7, 3, v7")
    e("v_lshlrev_b32 v7, 3, v7")
    e("v_add_u32 v%d, v%d, v7" % (LV_FA, LV_FA))
    e("v_add_u32 v%d, %d, v%d" % (LV_FA, BIAS, LV_FA))
    e("s_lshl_b32 %s, %s, 5" % (sr(S_T1), sr(S_B4)))
    e("s_add_u32 %s, %s, %s" % (sr(S_T1), sr(S_T1), sr(S_H)))
    e("s_lshl_b32 %s, %s, 18" % (sr(SL_KOFF), sr(S_T1)))
    stamp("q3")

    def early_tiles():
        e("s_mov_b32 %s, %s" % (sr(SL_QSLOT), sr(SL_SLOT)))
        e("s_mov_b32 %s, %d" % (sr(SL_SLOT), NQ * SLOT))
        seq = [("K", 0), ("K", 1), ("V", 0)]
        t = 0
        while len(seq) < E:
            seq += [("K", t + 2), ("V", t + 1)]
            t += 1
        assert len(seq) == E
        for kind, t in seq:
            e("s_add_u32 %s, %s, %d" % (sr(SL_OFF), sr(SL_KOFF), 0 if cfg.kvsame else t * 8192))
            if kind == "K":
                issue_tile(SRD_K, LV_K, 256, kvf, RING, check=False)
            else:
                issue_tile(SRD_V, LV_V, 256, kvf, RING, check=False)
        e("s_mov_b32 %s, %s" % (sr(SL_SLOT), sr(SL_QSLOT)))

    npairs_early = (E - 3) // 2
    if cfg.ytype == 1:
        e("s_and_b32 %s, %s, 1" % (sr(S_T3), sr(S_M)))
        e("s_cmp_eq_u32 %s, 0" % sr(S_T3))
        e("s_cbranch_scc1 L_ld_x1")
    if cfg.ytype in (1, 2):
        early_tiles()
        e("s_mov_b32 %s, %d" % (sr(SL_NADJ), NQ - 1 + E))
        e("s_sub_i32 %s, %s, %s" % (sr(SL_NEED), sr(SL_ISS), sr(SL_NADJ)))
    a.lab("L_ld_x1")
    e("s_mov_b32 %s, 1" % sr(SL_CNT))
    a.lab("L_ld_qp1")
    qp_bases()
    qp_round()
    if cfg.stamps:
        for rr in (1, 2, 3):
            nm = "q%d" % (4 * rr + 3)
            if nm in stl:
                sk = a.newlab("sk")
                e("s_cmp_eq_u32 %s, %d" % (sr(SL_CNT), rr))
                e("s_cbranch_scc0 %s" % sk)
                stamp(nm)
                a.lab(sk)
    e("s_add_u32 %s, %s, 1" % (sr(SL_CNT), sr(SL_CNT)))
    e("s_cmp_lt_u32 %s, 4" % sr(SL_CNT))
    e("s_cbranch_scc1 L_ld_qp1")
    if cfg.ytype == 1:
        e("s_and_b32 %s, %s, 1" % (sr(S_T3), sr(S_M)))
        e("s_cmp_eq_u32 %s, 0" % sr(S_T3))
        e("s_cbranch_scc0 L_ld_y2")
    if cfg.ytype in (0, 1):
        early_tiles()
    a.lab("L_ld_y2")
    stamp("qp")
    cnt("cq")
    e("s_mov_b32 %s, 0" % sr(SL_SLOT))
    e("s_mov_b32 %s, %d" % (sr(SL_NADJ), NS - 1))
    e("s_mov_b32 %s, %d" % (sr(SL_NEED), NQT))
    srdb(SRD_X, KA_WS, WS_USED)
    e("v_mov_b32 v7, 0")
    e("global_load_dwordx2 %s, v7, %s sc1" % (vr(LV_NON, 2), sr(KA_DBG, 2)))
    e("s_mov_b32 %s, 0" % sr(SL_EVM))
    e("s_mov_b32 %s, 0" % sr(SL_CNT2))
    e("s_add_u32 %s, %s, %d" % (sr(SL_VOFF), sr(SL_KOFF), 0 if cfg.kvsame else npairs_early * 8192))
    e("s_mov_b32 %s, %d" % (sr(SL_CNT), npairs_early))
    e("s_branch L_ld_kv")
    a.lab("L_ld_head")
    e("s_mov_b32 %s, %s" % (sr(SL_OFF), sr(SL_KOFF)))
    issue_tile(SRD_K, LV_K, 256, kvf, RING)
    e("s_add_u32 %s, %s, 8192" % (sr(SL_OFF), sr(SL_KOFF)))
    issue_tile(SRD_K, LV_K, 256, kvf, RING)
    e("s_mov_b32 %s, %s" % (sr(SL_OFF), sr(SL_KOFF)))
    issue_tile(SRD_V, LV_V, 256, kvf, RING)
    e("s_mov_b32 %s, %s" % (sr(SL_VOFF), sr(SL_KOFF)))
    e("s_mov_b32 %s, 0" % sr(SL_CNT))
    a.lab("L_ld_kv")
    e("s_add_u32 %s, %s, 16384" % (sr(SL_OFF), sr(SL_VOFF)))
    issue_tile(SRD_K, LV_K, 256, kvf, RING)
    e("s_add_u32 %s, %s, 8192" % (sr(SL_OFF), sr(SL_VOFF)))
    issue_tile(SRD_V, LV_V, 256, kvf, RING)
    if not cfg.kvsame:
        e("s_add_u32 %s, %s, 8192" % (sr(SL_VOFF), sr(SL_VOFF)))
    e("s_add_u32 %s, %s, 1" % (sr(SL_CNT), sr(SL_CNT)))
    e("s_bitcmp1_b32 %s, %s" % (sr(SL_EVM), sr(SL_CNT)))
    e("s_cbranch_scc1 L_ld_disp")
    a.lab("L_ld_evret")
    e("s_cmp_lt_u32 %s, 30" % sr(SL_CNT))
    e("s_cbranch_scc1 L_ld_kv")
    e("s_add_u32 %s, %s, 8192" % (sr(SL_OFF), sr(SL_VOFF)))
    issue_tile(SRD_V, LV_V, 256, kvf, RING)
    e("s_cmp_eq_u32 %s, 0" % sr(SL_CNT2))
    e("s_cbranch_scc0 L_ld_tail")
    stamp("h0")
    cnt("c0")
    e("s_add_u32 %s, %s, %d" % (sr(SL_KOFF), sr(SL_KOFF), 4 * 32 * 262144))
    e("s_lshl_b32 %s, %s, 1" % (sr(S_T1), sr(S_TAU)))
    e("s_lshl_b32 %s, 1, %s" % (sr(SL_EVM), sr(S_T1)))
    if cfg.prefetch:
        e("s_or_b32 %s, %s, 0x%x" % (sr(SL_EVM), sr(SL_EVM), 1 << cfg.pft))
    if not cfg.noxchg and not cfg.nocompute:
        e("s_lshl_b32 %s, 1, %s" % (sr(S_T2), sr(S_T1)))
        e("s_lshr_b32 %s, %s, %d" % (sr(S_T2), sr(S_T2), cfg.polllead))
        e("s_or_b32 %s, %s, %s" % (sr(SL_EVM), sr(SL_EVM), sr(S_T2)))
        okn = a.newlab("lnok")
        e("v_readfirstlane_b32 %s, v%d" % (sr(SL_NONCE), LV_NON))
        e("v_readfirstlane_b32 %s, v%d" % (sr(SL_NONCE + 1), LV_NON + 1))
        e("s_nop 3")
        e("s_cmp_lg_u32 %s, 0" % sr(SL_NONCE))
        e("s_cbranch_scc1 %s" % okn)
        lpn = a.newlab("lnlp")
        a.lab(lpn)
        e("v_mov_b32 v7, 0")
        e("global_load_dwordx2 %s, v7, %s sc1" % (vr(LV_NON, 2), sr(KA_DBG, 2)))
        e("s_waitcnt vmcnt(0)")
        e("v_readfirstlane_b32 %s, v%d" % (sr(SL_NONCE), LV_NON))
        e("v_readfirstlane_b32 %s, v%d" % (sr(SL_NONCE + 1), LV_NON + 1))
        e("s_sub_u32 %s, %s, 1" % (sr(S_SPIN), sr(S_SPIN)))
        e("s_cmp_eq_u32 %s, 0" % sr(S_SPIN))
        e("s_cbranch_scc1 L_end")
        e("s_cmp_eq_u32 %s, 0" % sr(SL_NONCE))
        e("s_cbranch_scc1 %s" % lpn)
        a.lab(okn)
    e("s_mov_b32 %s, 1" % sr(SL_CNT2))
    e("s_branch L_ld_head")
    a.lab("L_ld_tail")
    stamp("h1")
    cnt("c1")
    e("s_mov_b32 %s, 0" % sr(SL_XB))
    a.lab("L_ld_wo_r")
    e("s_add_u32 %s, %s, %s" % (sr(S_T1), sr(S_M), sr(SL_XB)))
    e("s_and_b32 %s, %s, 3" % (sr(S_T1), sr(S_T1)))
    e("s_lshl_b32 %s, %s, 17" % (sr(S_T1), sr(S_T1)))
    e("s_lshl_b32 %s, %s, 19" % (sr(SL_WB), sr(S_X)))
    e("s_add_u32 %s, %s, %s" % (sr(SL_WB), sr(SL_WB), sr(S_T1)))
    e("s_lshl_b32 %s, %s, 8" % (sr(S_T1), sr(S_M)))
    e("s_add_u32 %s, %s, %s" % (sr(SL_WB), sr(SL_WB), sr(S_T1)))
    for j in range(4):
        e("s_add_u32 %s, %s, %d" % (sr(SL_OFF), sr(SL_WB), j * 32 * 1024))
        issue_tile(SRD_WO, LV_WO, 1024, cfg.woflags, RING)
    e("s_add_u32 %s, %s, 1" % (sr(SL_XB), sr(SL_XB)))
    e("s_cmp_lt_u32 %s, 4" % sr(SL_XB))
    e("s_cbranch_scc1 L_ld_wo_r")
    a.lab("L_ld_drain")
    publish_nb()
    e("s_cmp_lt_i32 %s, %s" % (sr(SL_PUB), sr(SL_ISS)))
    e("s_cbranch_scc1 L_ld_drain")
    e("s_waitcnt lgkmcnt(0)")
    stamp("t2")
    e("s_branch L_fin")

    def pf_tile(srdreg, voff, rs, flags, vdst):
        e("s_add_u32 %s, %s, %d" % (sr(SL_OFF2), sr(SL_OFF), 16 * rs))
        for b in range(8):
            e("buffer_load_dwordx4 %s, v%d, %s, %s offen offset:%d %s" % (
                vr(vdst + 4 * b, 4), voff + (b & 3), sr(srdreg, 4), sr(SL_OFF if b < 4 else SL_OFF2),
                (b & 3) * BLK, flags))

    def flag_poll_issue_l():
        e("s_lshl_b32 %s, %s, 9" % (sr(S_T1), sr(S_QUAD)))
        e("buffer_load_dwordx2 %s, v%d, %s, %s offen sc1" % (vr(LV_FL, 2), LV_FA, sr(SRD_X, 4), sr(S_T1)))

    def flag_check_l(tgt_ok):
        e("v_cmp_ne_u32 vcc, %s, v%d" % (sr(SL_NONCE), LV_FL))
        e("v_cmp_ne_u32 s[28:29], %s, v%d" % (sr(SL_NONCE + 1), LV_FL + 1))
        e("s_nop 3")
        e("s_or_b64 vcc, vcc, s[28:29]")
        e("s_cbranch_scc0 %s" % tgt_ok)

    a.lab("L_ld_disp")
    e("s_lshl_b32 %s, %s, 1" % (sr(S_T3), sr(S_TAU)))
    if cfg.prefetch:
        nx1 = a.newlab("pfn")
        e("s_cmp_eq_u32 %s, %d" % (sr(SL_CNT), cfg.pft))
        e("s_cbranch_scc0 %s" % nx1)
        e("s_lshl_b32 %s, %s, 19" % (sr(SL_OFF), sr(S_X)))
        e("s_lshl_b32 %s, %s, 17" % (sr(S_T1), sr(S_B4)))
        e("s_add_u32 %s, %s, %s" % (sr(SL_OFF), sr(SL_OFF), sr(S_T1)))
        e("s_lshl_b32 %s, %s, 8" % (sr(S_T1), sr(S_M)))
        e("s_add_u32 %s, %s, %s" % (sr(SL_OFF), sr(SL_OFF), sr(S_T1)))
        for t in range(4):
            pf_tile(SRD_WO, LV_WO, 1024, cfg.woflags, 40 + 32 * t)
            if t < 3:
                e("s_add_u32 %s, %s, %d" % (sr(SL_OFF), sr(SL_OFF), 32 * 1024))
        a.lab(nx1)
    if not cfg.noxchg and not cfg.nocompute:
        nx2 = a.newlab("pfn")
        e("s_sub_u32 %s, %s, %d" % (sr(S_T2), sr(S_T3), cfg.polllead))
        e("s_cmp_eq_u32 %s, %s" % (sr(SL_CNT), sr(S_T2)))
        e("s_cbranch_scc0 %s" % nx2)
        flag_poll_issue_l()
        a.lab(nx2)
    e("s_lshl_b32 %s, %s, 1" % (sr(S_T3), sr(S_TAU)))
    e("s_cmp_eq_u32 %s, %s" % (sr(SL_CNT), sr(S_T3)))
    e("s_cbranch_scc0 L_ld_evret")
    stamp("e2")
    if not cfg.noxchg and not cfg.nocompute:
        okf = a.newlab("lfok")
        flag_check_l(okf)
        lpf = a.newlab("lfl")
        a.lab(lpf)
        flag_poll_issue_l()
        e("s_waitcnt vmcnt(0)")
        e("s_sub_u32 %s, %s, 1" % (sr(S_SPIN), sr(S_SPIN)))
        e("s_cmp_eq_u32 %s, 0" % sr(S_SPIN))
        e("s_cbranch_scc1 L_end")
        flag_check_l(okf)
        e("s_branch %s" % lpf)
        a.lab(okf)
    for k in range(1, 4):
        e("s_add_u32 %s, %s, %d" % (sr(S_T2), sr(S_M), k))
        e("s_and_b32 %s, %s, 3" % (sr(S_T2), sr(S_T2)))
        e("s_lshl_b32 %s, %s, 2" % (sr(S_T3), sr(S_QUAD)))
        e("s_add_u32 %s, %s, %s" % (sr(S_T2), sr(S_T2), sr(S_T3)))
        e("s_mul_i32 %s, %s, 24576" % (sr(S_T2), sr(S_T2)))
        e("s_add_u32 %s, %s, %d" % (sr(SL_KOFF), sr(S_T2), WS_OBUF))
        for w in range(3):
            e("s_add_u32 %s, %s, %d" % (sr(SL_OFF), sr(SL_KOFF), w * 8192))
            issue_tile(SRD_X, LV_O, 256, "sc1", RING)
    e("s_add_u32 %s, %s, %d" % (sr(SL_OFF), sr(SL_KOFF), 2 * 8192))
    issue_tile(SRD_X, LV_O, 256, "sc1", RING)
    stamp("e3")
    e("s_branch L_ld_evret")

    for slow, ok in ool:
        a.lab(slow)
        e("s_call_b64 %s, L_waitfree" % sr(S_RET, 2))
        e("s_branch %s" % ok)
    a.lab("L_waitfree")
    if cfg.stamps:
        e("s_add_u32 %s, %s, 1" % (sr(SL_WFC), sr(SL_WFC)))
    e("ds_read_b96 v[%d:%d], v%d" % (LV_F, LV_F + 2, LV_FADDR))
    publish_nb()
    e("s_waitcnt lgkmcnt(1)")
    e("v_min3_u32 v%d, v%d, v%d, v%d" % (LV_F, LV_F, LV_F + 1, LV_F + 2))
    e("s_sub_u32 %s, %s, 1" % (sr(S_SPIN), sr(S_SPIN)))
    e("v_readfirstlane_b32 %s, v%d" % (sr(SL_FMIN), LV_F))
    e("s_cmp_eq_u32 %s, 0" % sr(S_SPIN))
    e("s_cbranch_scc1 L_end")
    e("s_nop 1")
    e("s_cmp_ge_i32 %s, %s" % (sr(SL_FMIN), sr(SL_NEED)))
    e("s_cbranch_scc0 L_waitfree")
    e("s_setpc_b64 %s" % sr(S_RET, 2))

    if cfg.noxchg:
        a.filt = lambda sx: (sx.startswith("buffer_") or sx.startswith("global_load")
                             or sx.startswith("global_store_dwordx2"))
    a.lab("L_compute")
    e("v_and_b32 v1, 3, v0")
    e("v_lshrrev_b32 v2, 5, v0")
    e("v_lshrrev_b32 v3, 4, v0")
    e("v_and_b32 v3, 1, v3")
    e("v_lshrrev_b32 v4, 2, v0")
    e("v_and_b32 v4, 3, v4")
    e("v_lshlrev_b32 v5, 2, v3")
    e("v_add_u32 v5, v5, v1")
    e("s_movk_i32 %s, %d" % (sr(S_T0), BLK))
    e("v_mul_lo_u32 v5, v5, %s" % sr(S_T0))
    e("v_lshlrev_b32 v6, 8, v4")
    e("v_add_u32 v5, v5, v6")
    for par in range(2):
        e("v_add_u32 v6, %d, v2" % (2 * par))
        e("v_xor_b32 v6, v6, v4")
        e("v_lshlrev_b32 v6, 4, v6")
        e("v_add_u32 v%d, v5, v6" % (V_KB + par))
    e("v_lshrrev_b32 v6, 1, v1")
    e("v_and_b32 v7, 1, v1")
    e("v_lshlrev_b32 v7, 1, v7")
    e("v_or_b32 v6, v6, v7")
    e("v_lshlrev_b32 v6, 3, v6")
    e("v_lshlrev_b32 v7, 5, v3")
    e("v_add_u32 v6, v6, v7")
    e("v_mul_lo_u32 v7, v4, %s" % sr(S_T0))
    e("v_add_u32 v6, v6, v7")
    e("v_lshlrev_b32 v7, 8, v2")
    e("v_add_u32 v%d, v6, v7" % V_VB)
    e("v_add_u32 v%d, v%d, v7" % (V_WB, V_VB))
    e("v_add_u32 v%d, %d, v%d" % (V_VB2, SLOT, V_VB))
    e("v_mov_b32 v%d, %d" % (V_LADDR, FLAG_L))
    e("s_lshl_b32 %s, %s, 2" % (sr(S_T0), sr(S_WAVE)))
    e("s_add_u32 %s, %s, %d" % (sr(S_T0), sr(S_T0), FLAG_F))
    e("v_mov_b32 v%d, %s" % (V_FADDR, sr(S_T0)))
    e("v_mov_b32 v%d, %d" % (V_FV, 100000 if cfg.nocompute else 0))
    e("ds_write_b32 v%d, v%d" % (V_FADDR, V_FV))
    e("v_lshlrev_b32 v%d, 4, v0" % V_L16)
    e("s_mov_b32 %s, 0" % sr(SC_L))
    e("s_mov_b32 %s, 0" % sr(SC_SWC))
    c = (128 ** -0.5) * math.log2(math.e)
    e("s_mov_b32 %s, 0x%x" % (sr(SC_T), f32bits(cfg.T_LOG2)))
    e("s_mov_b32 %s, 0" % sr(SC_IDX))
    e("s_mov_b32 %s, 0" % sr(SC_SLOT))
    e("s_mov_b32 %s, %d" % (sr(SC_WRAP), NQ * SLOT))
    if cfg.ytype == 1:
        e("s_and_b32 %s, %s, 1" % (sr(S_T1), sr(S_M)))
        e("s_mul_i32 %s, %s, %d" % (sr(SC_PADJ), sr(S_T1), E))
    else:
        e("s_mov_b32 %s, %d" % (sr(SC_PADJ), E if cfg.ytype == 2 else 0))
    e("s_mov_b32 %s, 0" % sr(SC_ADJ))
    srd(SRD_WS, KA_WS, WS_USED)
    srd(SRD_OUT, KA_OUT, 8 * 96 * 1024 * 2)
    e("s_or_b32 %s, %s, %s" % (sr(S_T0), sr(S_WG), sr(S_WAVE)))
    e("s_cmp_eq_u32 %s, 0" % sr(S_T0))
    e("s_cbranch_scc0 L_nononce")
    e("s_memrealtime %s" % sr(SC_NONCE, 2))
    e("s_waitcnt lgkmcnt(0)")
    e("s_or_b32 %s, %s, 1" % (sr(SC_NONCE), sr(SC_NONCE)))
    e("v_mov_b32 v2, %s" % sr(SC_NONCE))
    e("v_mov_b32 v3, %s" % sr(SC_NONCE + 1))
    e("v_mov_b32 v1, 0")
    e("global_store_dwordx2 v1, v[2:3], %s sc1" % sr(KA_DBG, 2))
    a.lab("L_nononce")
    e("s_waitcnt lgkmcnt(0)")
    e("s_barrier")
    stamp("bar")
    if cfg.nocompute:
        e("s_branch L_fin")

    slowwaits = []

    def wait_landed_l(delta, adj=False):
        slow = a.newlab("lw_slow")
        back = a.newlab("lw_back")
        slowwaits.append((slow, back))
        out = ["s_add_u32 %s, %s, %d" % (sr(SC_NEED), sr(SC_IDX), delta)]
        if adj:
            out.append("s_add_u32 %s, %s, %s" % (sr(SC_NEED), sr(SC_NEED), sr(SC_ADJ)))
        out += ["s_cmp_lt_u32 %s, %s" % (sr(SC_L), sr(SC_NEED)),
                "s_cbranch_scc1 %s" % slow,
                back + ":"]
        return out

    def wait_landed(delta, adj=False):
        a.extend(wait_landed_l(delta, adj))

    def slot_adv_l(dst, src, n):
        return ["s_add_u32 %s, %s, %d" % (sr(dst), sr(src), n * SLOT),
                "s_sub_u32 %s, %s, %s" % (sr(S_T0), sr(dst), sr(SC_WRAP)),
                "s_cmp_lt_u32 %s, %s" % (sr(dst), sr(SC_WRAP)),
                "s_cselect_b32 %s, %s, %s" % (sr(dst), sr(dst), sr(S_T0))]

    def slot_adv(dst, src, n):
        a.extend(slot_adv_l(dst, src, n))

    def release_l(sg):
        return ["v_mov_b32 v%d, %s" % (V_FV, sr(sg)), "ds_write_b32 v%d, v%d" % (V_FADDR, V_FV)]

    def k_addr(slot):
        return ["v_add_u32 v%d, %s, v%d" % (V_KA + p, sr(slot), V_KB + p) for p in range(2)]

    def k_reads(dst_a):
        return ["ds_read_b128 %s, v%d offset:%d" % (ar(dst_a + 4 * s, 4), V_KA + (s & 1), (s >> 1) * 64)
                for s in range(8)]

    def v_addr(slot, base):
        return ["v_add_u32 v%d, %s, v%d" % (V_VA, sr(slot), base)]

    def v_reads(dst_a, isw):
        out = []
        for ks in range(2):
            for db in range(4):
                base = dst_a + (ks * 4 + db) * 4
                o2 = 256 if isw else 512
                o = ks * 4 * BLK + db * 64
                out.append("ds_read_b64_tr_b16 %s, v%d offset:%d" % (ar(base, 2), V_VA, o))
                out.append("ds_read_b64_tr_b16 %s, v%d offset:%d" % (ar(base + 2, 2), V_VA, o + o2))
        return out

    def wave_slot(dst, n):
        return ["s_mul_i32 %s, %s, %d" % (sr(S_T1), sr(S_WAVE), SLOT),
                "s_add_u32 %s, %s, %s" % (sr(dst), sr(SC_SLOT), sr(S_T1))] + slot_adv_l(dst, dst, n)

    ACCS = [V_O, V_ACCQ]

    def x_fetch(buf):
        out = []
        for st in range(2):
            out += wave_slot(SC_SLOT2, 3 * st) + k_addr(SC_SLOT2) + k_reads(A_XF[buf][st])
        out += slot_adv_l(SC_SLOT, SC_SLOT, 6)
        return out

    wait_landed(7, True)
    a.extend(x_fetch(0))
    a.extend(v_addr(SC_SLOT, V_WB))
    a.extend(v_reads(A_AF[0], True))
    e("s_add_u32 %s, %s, 7" % (sr(SC_IDX), sr(SC_IDX)))
    slot_adv(SC_SLOT, SC_SLOT, 1)
    for cidx in range(16):
        r, j = divmod(cidx, 4)
        e("s_waitcnt lgkmcnt(0)")
        mf = []
        for ks in range(2):
            for db in range(4):
                for st in range(2):
                    acc = ACCS[st] + 16 * db
                    cin = "0" if (cidx == 0 and ks == 0) else vr(acc, 16)
                    mf.append("%s %s, %s, %s, %s" % (
                        MFMA, vr(acc, 16), ar(A_AF[cidx & 1] + (ks * 4 + db) * 4, 4),
                        ar(A_XF[r & 1][st] + (2 * j + ks) * 4, 4), cin))
        fill = release_l(SC_IDX)
        if cidx < 15:
            nx = 6 if j == 3 else 0
            if cidx == 3:
                fill += ["s_mov_b32 %s, %s" % (sr(SC_ADJ), sr(SC_PADJ))]
            fill += wait_landed_l(nx + 1, True)
            if nx:
                fill += x_fetch((r + 1) & 1)
            fill += v_addr(SC_SLOT, V_WB) + v_reads(A_AF[(cidx + 1) & 1], True)
            fill += ["s_add_u32 %s, %s, %d" % (sr(SC_IDX), sr(SC_IDX), nx + 1)] + slot_adv_l(SC_SLOT, SC_SLOT, 1)
        ng = 14
        per = [[] for _ in range(16)]
        items = [x for x in fill]
        n = len(items)
        pos = 0
        for g in range(ng):
            tgt = max((n * (g + 1)) // ng, pos)
            while tgt < n and items[tgt].endswith(":"):
                tgt += 1
            per[g] = items[pos:tgt]
            pos = tgt
        a.extend(gaps(mf, per))
        if cfg.stamps and ("q%d" % cidx) in stl:
            stamp("q%d" % cidx)
    e("s_nop 7")
    e("s_nop 3")
    e("s_mov_b32 %s, 0x%x" % (sr(S_T1), f32bits(c)))
    for st, dst in ((0, V_Q1), (1, V_Q2)):
        for i in range(32):
            e("v_mul_f32 v%d, %s, v%d" % (ACCS[st] + 2 * i, sr(S_T1), ACCS[st] + 2 * i))
            e("v_mul_f32 v%d, %s, v%d" % (ACCS[st] + 2 * i + 1, sr(S_T1), ACCS[st] + 2 * i + 1))
            e("v_cvt_pk_bf16_f32 v%d, v%d, v%d" % (dst + i, ACCS[st] + 2 * i, ACCS[st] + 2 * i + 1))
    if cfg.dumpq:
        e("s_mul_i32 %s, %s, 49152" % (sr(S_T1), sr(S_WG)))
        e("s_lshl_b32 %s, %s, 14" % (sr(S_T2), sr(S_WAVE)))
        e("s_add_u32 %s, %s, %s" % (sr(S_T1), sr(S_T1), sr(S_T2)))
        e("s_add_u32 %s, %s, %d" % (sr(S_T1), sr(S_T1), 32 << 20))
        for st, src in ((0, V_Q1), (1, V_Q2)):
            for s_ in range(8):
                e("s_add_u32 %s, %s, %d" % (sr(S_T2), sr(S_T1), st * 8192 + s_ * 1024))
                e("buffer_store_dwordx4 %s, v%d, %s, %s offen" % (vr(src + 4 * s_, 4), V_L16, sr(SRD_WS, 4), sr(S_T2)))
        e("s_waitcnt vmcnt(0)")
    e("s_mov_b32 %s, %d" % (sr(SC_SLOT), NQ * SLOT))
    e("s_mov_b32 %s, %d" % (sr(SC_WRAP), RING))
    stamp("qp")

    def qk_mfmas(sdst, qbase, cin):
        return ["%s %s, %s, %s, %s" % (MFMA, vr(sdst, 16), ar(A_KF + 4 * s, 4), vr(qbase + 4 * s, 4),
                                       cin if s == 0 else vr(sdst, 16)) for s in range(8)]

    def softmax_gaps(sc):
        g = []
        for k in range(8):
            l = ["v_exp_f32 v%d, v%d" % (sc + 2 * k, sc + 2 * k),
                 "v_exp_f32 v%d, v%d" % (sc + 2 * k + 1, sc + 2 * k + 1)]
            if k > 0:
                p = k - 1
                l += ["v_add_f32 v%d, v%d, v%d" % (V_LSUM, V_LSUM, sc + 2 * p),
                      "v_add_f32 v%d, v%d, v%d" % (V_LS2, V_LS2, sc + 2 * p + 1),
                      "v_cvt_pk_bf16_f32 v%d, v%d, v%d" % (V_PF + p, sc + 2 * p, sc + 2 * p + 1)]
            g.append(l)
        tail = ["v_add_f32 v%d, v%d, v%d" % (V_LSUM, V_LSUM, sc + 14),
                "v_add_f32 v%d, v%d, v%d" % (V_LS2, V_LS2, sc + 15),
                "v_cvt_pk_bf16_f32 v%d, v%d, v%d" % (V_PF + 7, sc + 14, sc + 15)]
        return g, tail

    def pv_mfmas(vf):
        out = []
        for ks in range(2):
            for db in range(4):
                out.append("%s %s, %s, %s, %s" % (
                    MFMA, vr(V_O + 16 * db, 16), ar(vf + (ks * 4 + db) * 4, 4), vr(V_PF + 4 * ks, 4),
                    vr(V_O + 16 * db, 16)))
        return out

    def max_valu(sn):
        out = ["v_max3_f32 v%d, v%d, v%d, v%d" % (V_TMAX, sn, sn + 1, sn + 2)]
        for i in range(3, 15, 2):
            out.append("v_max3_f32 v%d, v%d, v%d, v%d" % (V_TMAX, V_TMAX, sn + i, sn + i + 1))
        out.append("v_max_f32 v%d, v%d, v%d" % (V_TMAX, V_TMAX, sn + 15))
        return out

    def cross_half_max():
        e("v_mov_b32 v1, v%d" % V_TMAX)
        e("s_nop 1")
        e("v_permlane32_swap_b32 v%d, v1" % V_TMAX)
        e("s_nop 1")
        e("v_max_f32 v%d, v%d, v1" % (V_TMAX, V_TMAX))

    def rare_path(lab, back, sn):
        a.lab(lab)
        cross_half_max()
        e("v_max_f32 v%d, 0, v%d" % (V_TMAX, V_TMAX))
        e("v_sub_f32 v%d, 0, v%d" % (V_ALPHA, V_TMAX))
        e("v_exp_f32 v%d, v%d" % (V_ALPHA, V_ALPHA))
        for i in range(16):
            e("v_sub_f32 v%d, v%d, v%d" % (sn + i, sn + i, V_TMAX))
        for i in range(16):
            e("v_sub_f32 v%d, v%d, v%d" % (V_NEGM + i, V_NEGM + i, V_TMAX))
        e("v_mul_f32 v%d, v%d, v%d" % (V_LSUM, V_LSUM, V_ALPHA))
        e("v_mul_f32 v%d, v%d, v%d" % (V_LS2, V_LS2, V_ALPHA))
        for i in range(64):
            e("v_mul_f32 v%d, v%d, v%d" % (V_O + i, V_O + i, V_ALPHA))
        e("s_branch %s" % back)

    rare = []
    dispatchers = []

    def get_nonce():
        if cfg.noxchg:
            return
        lp = a.newlab("nonce")
        a.lab(lp)
        e("v_mov_b32 v1, 0")
        e("global_load_dwordx2 v[2:3], v1, %s sc1" % sr(KA_DBG, 2))
        e("s_waitcnt vmcnt(0)")
        e("v_readfirstlane_b32 %s, v2" % sr(SC_NONCE))
        e("v_readfirstlane_b32 %s, v3" % sr(SC_NONCE + 1))
        e("s_sub_u32 %s, %s, 1" % (sr(S_SPIN), sr(S_SPIN)))
        e("s_cmp_eq_u32 %s, 0" % sr(S_SPIN))
        e("s_cbranch_scc1 L_end")
        e("s_cmp_eq_u32 %s, 0" % sr(SC_NONCE))
        e("s_cbranch_scc1 %s" % lp)

    def flag_store(off_sgpr, local=False, hi=None):
        e("v_mov_b32 v2, %s" % sr(SC_NONCE))
        e("v_mov_b32 v3, %s" % sr(SC_NONCE + 1 if hi is None else hi))
        e("v_mov_b32 v1, 0")
        e("s_mov_b64 s[34:35], exec")
        e("s_mov_b64 exec, 1")
        if local and cfg.local:
            gl = a.newlab("fsg")
            dn = a.newlab("fsd")
            e("s_cmp_eq_u32 %s, 0" % sr(SC_LOCAL))
            e("s_cbranch_scc1 %s" % gl)
            e("buffer_store_dwordx2 v[2:3], v1, %s, %s offen" % (sr(SRD_WS, 4), sr(off_sgpr)))
            e("s_branch %s" % dn)
            a.lab(gl)
            e("buffer_store_dwordx2 v[2:3], v1, %s, %s offen sc1" % (sr(SRD_WS, 4), sr(off_sgpr)))
            a.lab(dn)
        else:
            e("buffer_store_dwordx2 v[2:3], v1, %s, %s offen sc1" % (sr(SRD_WS, 4), sr(off_sgpr)))
        e("s_mov_b64 exec, s[34:35]")

    def flag_poll(off_sgpr, n):
        if cfg.noxchg:
            return
        lp = a.newlab("poll")
        e("v_min_u32 v1, %d, v0" % (n - 1))
        e("v_lshlrev_b32 v1, 3, v1")
        a.lab(lp)
        e("buffer_load_dwordx2 v[2:3], v1, %s, %s offen sc1" % (sr(SRD_WS, 4), sr(off_sgpr)))
        e("s_waitcnt vmcnt(0)")
        e("v_cmp_ne_u32 vcc, %s, v2" % sr(SC_NONCE))
        e("v_cmp_ne_u32 s[34:35], %s, v3" % sr(SC_NONCE + 1))
        e("s_sub_u32 %s, %s, 1" % (sr(S_SPIN), sr(S_SPIN)))
        e("s_cmp_eq_u32 %s, 0" % sr(S_SPIN))
        e("s_cbranch_scc1 L_end")
        e("s_or_b64 vcc, vcc, s[34:35]")
        e("s_cbranch_scc1 %s" % lp)

    def flago_off(dst, ph, with_m):
        e("s_lshl_b32 %s, %s, 2" % (sr(dst), sr(S_QUAD)))
        e("s_add_u32 %s, %s, %s" % (sr(dst), sr(dst), sr(S_WAVE)))
        e("s_lshl_b32 %s, %s, 7" % (sr(dst), sr(dst)))
        e("s_add_u32 %s, %s, %d" % (sr(dst), sr(dst), WS_FLAGO + ph * 64 * 4 * 128))
        if with_m:
            e("s_lshl_b32 %s, %s, 3" % (sr(S_T0), sr(S_M)))
            e("s_add_u32 %s, %s, %s" % (sr(dst), sr(dst), sr(S_T0)))

    def load_o(ph, regs, ks):
        e("s_lshl_b32 %s, %s, 2" % (sr(S_T1), sr(S_QUAD)))
        e("s_add_u32 %s, %s, %d" % (sr(S_T1), sr(S_T1), ph * 256))
        e("s_mul_i32 %s, %s, 24576" % (sr(S_T1), sr(S_T1)))
        e("s_lshl_b32 %s, %s, 13" % (sr(S_T2), sr(S_WAVE)))
        e("s_add_u32 %s, %s, %s" % (sr(S_T1), sr(S_T1), sr(S_T2)))
        e("s_add_u32 %s, %s, %d" % (sr(S_T1), sr(S_T1), WS_OBUF))
        for k in ks:
            e("s_add_u32 %s, %s, %d" % (sr(S_T2), sr(S_M), k))
            e("s_and_b32 %s, %s, 3" % (sr(S_T2), sr(S_T2)))
            e("s_mul_i32 %s, %s, 24576" % (sr(S_T2), sr(S_T2)))
            e("s_add_u32 %s, %s, %s" % (sr(S_T2), sr(S_T2), sr(S_T1)))
            e("s_add_u32 %s, %s, 4096" % (sr(S_T3), sr(S_T2)))
            for s in range(8):
                e("buffer_load_dwordx4 %s, v%d, %s, %s offen offset:%d sc1" % (
                    ar(regs[k] + 4 * s, 4), V_L16, sr(SRD_WS, 4), sr(S_T2 if s < 4 else S_T3), (s & 3) * 1024))

    def poff(dst, ph, kq_sgpr):
        e("s_add_u32 %s, %s, %d" % (sr(dst), sr(S_G8), ph * 8))
        e("s_lshl_b32 %s, %s, 2" % (sr(dst), sr(dst)))
        e("s_add_u32 %s, %s, %s" % (sr(dst), sr(dst), sr(S_M)))
        e("s_lshl_b32 %s, %s, 3" % (sr(dst), sr(dst)))
        if kq_sgpr is not None:
            e("s_add_u32 %s, %s, %s" % (sr(dst), sr(dst), sr(kq_sgpr)))
        e("s_mul_i32 %s, %s, 24576" % (sr(dst), sr(dst)))
        e("s_lshl_b32 %s, %s, 13" % (sr(S_T0), sr(S_WAVE)))
        e("s_add_u32 %s, %s, %s" % (sr(dst), sr(dst), sr(S_T0)))
        e("s_add_u32 %s, %s, %d" % (sr(dst), sr(dst), WS_PBUF))

    def flagp_off(dst, ph, with_kq):
        e("s_add_u32 %s, %s, %d" % (sr(dst), sr(S_G8), ph * 8))
        e("s_lshl_b32 %s, %s, 2" % (sr(dst), sr(dst)))
        e("s_add_u32 %s, %s, %s" % (sr(dst), sr(dst), sr(S_M)))
        e("s_lshl_b32 %s, %s, 2" % (sr(dst), sr(dst)))
        e("s_add_u32 %s, %s, %s" % (sr(dst), sr(dst), sr(S_WAVE)))
        e("s_lshl_b32 %s, %s, 7" % (sr(dst), sr(dst)))
        e("s_add_u32 %s, %s, %d" % (sr(dst), sr(dst), WS_FLAGP))
        if with_kq:
            e("s_lshl_b32 %s, %s, 3" % (sr(S_T0), sr(S_X)))
            e("s_add_u32 %s, %s, %s" % (sr(dst), sr(dst), sr(S_T0)))

    def partial_store(acc, ph):
        poff(SC_POFF, ph, S_X)
        e("s_add_u32 %s, %s, 4096" % (sr(S_T1), sr(SC_POFF)))
        e("s_nop 3")
        for cch in range(8):
            for i in range(4):
                k = 4 * cch + i
                e("v_cvt_pk_bf16_f32 v%d, v%d, v%d" % (acc + k, acc + 2 * k, acc + 2 * k + 1))
            e("buffer_store_dwordx4 %s, v%d, %s, %s offen offset:%d sc1" % (
                vr(acc + 4 * cch, 4), V_L16, sr(SRD_WS, 4), sr(SC_POFF if cch < 4 else S_T1), (cch & 3) * 1024))

    def reduce(ph, regs):
        flagp_off(SC_FOFF, ph, False)
        flag_poll(SC_FOFF, 8)
        poff(SC_POFF, ph, None)
        e("s_lshl_b32 %s, %s, 10" % (sr(S_T1), sr(S_X)))
        e("s_add_u32 %s, %s, %s" % (sr(SC_POFF), sr(SC_POFF), sr(S_T1)))
        for kq in range(8):
            e("s_add_u32 %s, %s, %d" % (sr(S_T1), sr(SC_POFF), kq * 24576))
            e("buffer_load_dwordx4 %s, v%d, %s, %s offen sc1" % (
                vr(regs + 4 * kq, 4), V_L16, sr(SRD_WS, 4), sr(S_T1)))
        e("v_and_b32 v1, 31, v0")
        e("v_lshlrev_b32 v1, 11, v1")
        e("v_lshrrev_b32 v2, 5, v0")
        e("v_lshlrev_b32 v2, 4, v2")
        e("v_add_u32 v1, v1, v2")
        e("s_add_u32 %s, %s, %d" % (sr(S_T1), sr(S_B4), 4 * ph))
        e("s_mul_i32 %s, %s, 96" % (sr(S_T1), sr(S_T1)))
        e("s_lshl_b32 %s, %s, 5" % (sr(S_T2), sr(S_WAVE)))
        e("s_add_u32 %s, %s, %s" % (sr(S_T1), sr(S_T1), sr(S_T2)))
        e("s_lshl_b32 %s, %s, 11" % (sr(S_T1), sr(S_T1)))
        e("s_lshl_b32 %s, %s, 10" % (sr(S_T2), sr(S_BR)))
        e("s_add_u32 %s, %s, %s" % (sr(S_T1), sr(S_T1), sr(S_T2)))
        e("s_lshl_b32 %s, %s, 8" % (sr(S_T2), sr(S_M)))
        e("s_add_u32 %s, %s, %s" % (sr(S_T1), sr(S_T1), sr(S_T2)))
        e("s_lshl_b32 %s, %s, 5" % (sr(S_T2), sr(S_X)))
        e("s_add_u32 %s, %s, %s" % (sr(S_T1), sr(S_T1), sr(S_T2)))
        acc = regs + 32
        for kq in range(8):
            e("s_waitcnt vmcnt(%d)" % (7 - kq))
            for i in range(4):
                r = regs + 4 * kq + i
                if kq == 0:
                    e("v_lshlrev_b32 v%d, 16, v%d" % (acc + 2 * i, r))
                    e("v_and_b32 v%d, 0xffff0000, v%d" % (acc + 2 * i + 1, r))
                else:
                    e("v_lshlrev_b32 v%d, 16, v%d" % (acc + 8, r))
                    e("v_and_b32 v%d, 0xffff0000, v%d" % (r, r))
                    e("v_add_f32 v%d, v%d, v%d" % (acc + 2 * i, acc + 2 * i, acc + 8))
                    e("v_add_f32 v%d, v%d, v%d" % (acc + 2 * i + 1, acc + 2 * i + 1, r))
        for i in range(4):
            e("v_cvt_pk_bf16_f32 v%d, v%d, v%d" % (4 + i, acc + 2 * i, acc + 2 * i + 1))
        e("buffer_store_dwordx4 v[4:7], v1, %s, %s offen" % (sr(SRD_OUT, 4), sr(S_T1)))

    def head(ph):
        qbase = V_Q1 if ph == 0 else V_Q2
        stg = V_STG if ph == 0 else V_Q1
        for i in range(64):
            e("v_mov_b32 v%d, 0" % (V_O + i))
        e("v_mov_b32 v%d, 0" % V_LSUM)
        e("v_mov_b32 v%d, 0" % V_LS2)
        wait_landed(1)
        a.extend(k_addr(SC_SLOT))
        a.extend(k_reads(A_KF))
        e("s_waitcnt lgkmcnt(0)")
        a.extend(qk_mfmas(V_SA, qbase, "0"))
        slot_adv(SC_SLOT, SC_SLOT, 1)
        wait_landed(3)
        a.extend(k_addr(SC_SLOT))
        slot_adv(SC_SLOT, SC_SLOT, 1)
        a.extend(v_addr(SC_SLOT, V_VB))
        a.extend(k_reads(A_KF))
        a.extend(v_reads(A_VF[0], False))
        slot_adv(SC_SLOT, SC_SLOT, 1)
        e("s_add_u32 %s, %s, 3" % (sr(SC_IDX), sr(SC_IDX)))
        a.extend(max_valu(V_SA))
        cross_half_max()
        for i in range(16):
            e("v_sub_f32 v%d, v%d, v%d" % (V_SA + i, V_SA + i, V_TMAX))
        e("v_sub_f32 v%d, 0, v%d" % (V_NEGM, V_TMAX))
        for i in range(1, 16):
            e("v_mov_b32 v%d, v%d" % (V_NEGM + i, V_NEGM))

        def iteration(par, kind):
            scur = V_SA if par == 0 else V_SB
            snext = V_SB if par == 0 else V_SA
            ex = ["v_exp_f32 v%d, v%d" % (scur + i, scur + i) for i in range(16)]
            ad = ["v_add_f32 v%d, v%d, v%d" % ((V_LSUM, V_LS2)[i & 1], (V_LSUM, V_LS2)[i & 1], scur + i)
                  for i in range(16)]
            cv = ["v_cvt_pk_bf16_f32 v%d, v%d, v%d" % (V_PF + k, scur + 2 * k, scur + 2 * k + 1) for k in range(8)]
            pv = pv_mfmas(A_VF[par])
            rel = release_l(SC_IDX)
            e("s_waitcnt lgkmcnt(%d)" % (15 if kind == "full" else 0))
            if kind == "full":
                qk = qk_mfmas(snext, qbase, vr(V_NEGM, 16))
                kr = k_reads(A_KF)
                r = v_reads(A_VF[par ^ 1], False)
                mx = max_valu(snext)
                cmp_ = ["v_cmp_lt_f32 vcc, %s, v%d" % (sr(SC_T), V_TMAX)]
                book = ["s_add_u32 %s, %s, %d" % (sr(SC_SLOT), sr(SC_SLOT), 2 * SLOT),
                        "s_add_u32 %s, %s, 2" % (sr(SC_IDX), sr(SC_IDX)),
                        "s_cmp_lt_u32 %s, %d" % (sr(SC_SLOT), RING),
                        "s_cselect_b32 %s, %s, 0" % (sr(SC_SLOT), sr(SC_SLOT))]
                ka = k_addr(SC_SLOT)
                va = v_addr(SC_SLOT, V_VB2)
                per = [
                    [ex[0], ex[1]] + wait_landed_l(2),
                    [ex[2], ex[3], cv[0], ka[0]],
                    [ex[4], ex[5], cv[1], ka[1]],
                    [ex[6], ex[7], cv[2], va[0]],
                    [ex[8], ex[9], cv[3], rel[0]],
                    [ex[10], ex[11], cv[4], book[0]],
                    [ex[12], ex[13], cv[5], book[1]],
                    [ex[14], ex[15], cv[6], cv[7], "s_waitcnt lgkmcnt(0)"],
                    [rel[1]] + kr[0:4] + [ad[0]],
                    kr[4:8] + [ad[1]],
                    r[0:4] + ad[2:4],
                    r[4:8] + ad[4:6],
                    r[8:12] + ad[6:8],
                    r[12:16] + ad[8:10],
                    mx[0:4] + ad[10:12] + book[2:4],
                    mx[4:8] + cmp_ + ad[12:16],
                ]
                a.extend(gaps(qk + pv, per))
            else:
                g, tl = softmax_gaps(scur)
                if kind == "lastk":
                    a.extend(wait_landed_l(1) + v_addr(SC_SLOT, V_VB))
                    vrr = v_reads(A_VF[par ^ 1], False)
                    g = [l + vrr[2 * k:2 * k + 2] for k, l in enumerate(g)]
                    a.extend(gaps(qk_mfmas(snext, qbase, vr(V_NEGM, 16)), g))
                    a.extend(tl)
                    mx = max_valu(snext) + ["v_cmp_lt_f32 vcc, %s, v%d" % (sr(SC_T), V_TMAX)]
                    book = ["s_add_u32 %s, %s, 1" % (sr(SC_IDX), sr(SC_IDX))] + slot_adv_l(SC_SLOT, SC_SLOT, 1)
                    per = [rel, [], [], mx[0:2], mx[2:4] + book[0:1], mx[4:6] + book[1:3], mx[6:8] + book[3:5],
                           mx[8:9]]
                    a.extend(gaps(pv, per))
                else:
                    for l in g:
                        a.extend(l)
                    a.extend(tl)
                    a.extend(rel)
                    a.extend(pv)
            if kind != "final":
                r_ = a.newlab("rare")
                b_ = a.newlab("back")
                e("s_cbranch_vccnz %s" % r_)
                a.lab(b_)
                rare.append((r_, b_, snext))

        acts = []
        mask = [0]

        def at_pass(n, body):
            mask[0] |= 1 << n
            acts.append((n, body))

        if cfg.stamps:
            for nm in stl:
                if nm[0] == "ab"[ph] and nm[1:].isdigit():
                    at_pass(int(nm[1:]), lambda nm=nm: stamp(nm))
        if ph == 0:
            def nonce_issue():
                e("v_mov_b32 v1, 0")
                e("global_load_dwordx2 %s, v1, %s sc1" % (vr(V_NON, 2), sr(KA_DBG, 2)))

            def nonce_get():
                ok = a.newlab("nok")
                e("s_waitcnt vmcnt(0)")
                e("v_readfirstlane_b32 %s, v%d" % (sr(SC_NONCE), V_NON))
                e("v_readfirstlane_b32 %s, v%d" % (sr(SC_NONCE + 1), V_NON + 1))
                e("s_nop 3")
                e("s_cmp_lg_u32 %s, 0" % sr(SC_NONCE))
                e("s_cbranch_scc1 %s" % ok)
                get_nonce()
                a.lab(ok)
                e("s_getreg_b32 %s, hwreg(HW_REG_XCC_ID)" % sr(SC_XCC))
                e("s_and_b32 %s, %s, 15" % (sr(SC_XCC), sr(SC_XCC)))
                e("s_add_u32 %s, %s, %s" % (sr(SC_XCC), sr(SC_XCC), sr(SC_NONCE + 1)))
                e("s_lshl_b32 %s, %s, 7" % (sr(SC_IDOFF), sr(S_QUAD)))
                e("s_add_u32 %s, %s, %d" % (sr(SC_IDOFF), sr(SC_IDOFF), WS_FLAGI))
                e("s_mov_b32 %s, 0" % sr(SC_LOCAL))
                if cfg.local:
                    sk = a.newlab("idsk")
                    e("s_cmp_eq_u32 %s, 0" % sr(S_WAVE))
                    e("s_cbranch_scc0 %s" % sk)
                    e("s_lshl_b32 %s, %s, 3" % (sr(S_T1), sr(S_M)))
                    e("s_add_u32 %s, %s, %s" % (sr(S_T1), sr(S_T1), sr(SC_IDOFF)))
                    flag_store(S_T1, hi=SC_XCC)
                    a.lab(sk)

            def id_issue():
                e("v_min_u32 v1, 3, v0")
                e("v_lshlrev_b32 v1, 3, v1")
                e("buffer_load_dwordx2 %s, v1, %s, %s offen sc1" % (vr(V_NON, 2), sr(SRD_WS, 4), sr(SC_IDOFF)))

            def id_check():
                e("s_waitcnt vmcnt(0)")
                e("v_cmp_ne_u32 vcc, %s, v%d" % (sr(SC_NONCE), V_NON))
                e("v_cmp_ne_u32 s[34:35], %s, v%d" % (sr(SC_XCC), V_NON + 1))
                e("s_nop 3")
                e("s_or_b64 vcc, vcc, s[34:35]")
                e("s_cselect_b32 %s, 0, 1" % sr(SC_LOCAL))
            if not cfg.noxchg:
                at_pass(1, nonce_issue)
                at_pass(4, nonce_get)
                if cfg.local:
                    at_pass(10, id_issue)
                    at_pass(13, id_check)
        else:
            def p1b():
                stamp("g0")
                e("s_waitcnt vmcnt(0)")
                flago_off(SC_FOFF, 0, True)
                flag_store(SC_FOFF, local=True)
                stamp("g1")
            if not cfg.noxchg:
                at_pass(2, p1b)
        if ph == 1:
            e("s_lshl_b32 %s, 1, %s" % (sr(SC_EVM), sr(S_TAU)))
            e("s_or_b32 %s, %s, 0x%x" % (sr(SC_EVM), sr(SC_EVM), mask[0]))
        else:
            e("s_mov_b32 %s, 0x%x" % (sr(SC_EVM), mask[0]))
        e("s_mov_b32 %s, 0" % sr(SC_IT))
        lp = a.newlab("attn")
        a.lab(lp)
        iteration(0, "full")
        iteration(1, "full")
        e("s_add_u32 %s, %s, 1" % (sr(SC_IT), sr(SC_IT)))
        evd = a.newlab("evdisp")
        evdb = a.newlab("evdback")
        e("s_bitcmp1_b32 %s, %s" % (sr(SC_EVM), sr(SC_IT)))
        e("s_cbranch_scc1 %s" % evd)
        a.lab(evdb)
        e("s_cmp_lt_u32 %s, 15" % sr(SC_IT))
        e("s_cbranch_scc1 %s" % lp)

        def dispatcher(ph=ph, evd=evd, evdb=evdb, acts=acts):
            a.lab(evd)
            for n, body in acts:
                sk = a.newlab("noev")
                e("s_cmp_eq_u32 %s, %d" % (sr(SC_IT), n))
                e("s_cbranch_scc0 %s" % sk)
                body()
                a.lab(sk)
            if ph == 1:
                sk = a.newlab("noev")
                e("s_cmp_eq_u32 %s, %s" % (sr(SC_IT), sr(S_TAU)))
                e("s_cbranch_scc0 %s" % sk)
                stamp("e2")
                for k in range(1, 4):
                    wait_landed(3 * k)
                    a.extend(wave_slot(SC_SLOT2, 3 * (k - 1)))
                    e("v_add_u32 v%d, %s, v%d" % (V_KA, sr(SC_SLOT2), V_L16))
                    for s_ in range(8):
                        e("ds_read_b128 %s, v%d offset:%d" % (ar(A_OF1[k] + 4 * s_, 4), V_KA, s_ * BLK))
                e("s_add_u32 %s, %s, 10" % (sr(SC_IDX), sr(SC_IDX)))
                slot_adv(SC_SLOT, SC_SLOT, 10)
                e("s_waitcnt lgkmcnt(0)")
                a.extend(release_l(SC_IDX))
                stamp("e3")
                a.lab(sk)
            e("s_branch %s" % evdb)
        dispatchers.append(dispatcher)

        iteration(0, "lastk")
        iteration(1, "final")
        stamp("f%d" % ph)
        e("v_add_f32 v%d, v%d, v%d" % (V_LSUM, V_LSUM, V_LS2))
        e("v_mov_b32 v%d, v%d" % (V_LS2, V_LSUM))
        e("s_nop 1")
        e("v_permlane32_swap_b32 v%d, v%d" % (V_LSUM, V_LS2))
        e("s_nop 1")
        e("v_add_f32 v%d, v%d, v%d" % (V_LSUM, V_LSUM, V_LS2))
        e("v_rcp_f32 v%d, v%d" % (V_ALPHA, V_LSUM))
        e("s_lshl_b32 %s, %s, 2" % (sr(S_T1), sr(S_QUAD)))
        e("s_add_u32 %s, %s, %s" % (sr(S_T1), sr(S_T1), sr(S_M)))
        e("s_add_u32 %s, %s, %d" % (sr(S_T1), sr(S_T1), ph * 256))
        e("s_mul_i32 %s, %s, 24576" % (sr(S_T1), sr(S_T1)))
        e("s_lshl_b32 %s, %s, 13" % (sr(S_T2), sr(S_WAVE)))
        e("s_add_u32 %s, %s, %s" % (sr(S_T1), sr(S_T1), sr(S_T2)))
        e("s_add_u32 %s, %s, %d" % (sr(SC_OOFF), sr(S_T1), WS_OBUF))
        e("s_add_u32 %s, %s, 4096" % (sr(SC_OOFF2), sr(SC_OOFF)))
        e("s_nop 3")

        def ostores(flav):
            for s in range(8):
                for k in range(4):
                    i = 4 * s + k
                    e("v_mul_f32 v%d, v%d, v%d" % (V_O + 2 * i, V_O + 2 * i, V_ALPHA))
                    e("v_mul_f32 v%d, v%d, v%d" % (V_O + 2 * i + 1, V_O + 2 * i + 1, V_ALPHA))
                    e("v_cvt_pk_bf16_f32 v%d, v%d, v%d" % (stg + i, V_O + 2 * i, V_O + 2 * i + 1))
                e("buffer_store_dwordx4 %s, v%d, %s, %s offen offset:%d %s" % (
                    vr(stg + 4 * s, 4), V_L16, sr(SRD_WS, 4), sr(SC_OOFF if s < 4 else SC_OOFF2),
                    (s & 3) * 1024, flav))
        if cfg.local:
            gl = a.newlab("osg")
            dn = a.newlab("osd")
            e("s_cmp_eq_u32 %s, 0" % sr(SC_LOCAL))
            e("s_cbranch_scc1 %s" % gl)
            ostores("")
            e("s_branch %s" % dn)
            a.lab(gl)
            ostores("sc1")
            a.lab(dn)
        else:
            ostores("sc1")

    def ccnt(name):
        if cfg.stamps:
            for k, nm in enumerate(stl):
                if nm == name:
                    e("s_mov_b32 %s, %s" % (sr(S_ST + 2 * k), sr(SC_SWC)))
    ccnt("cq")
    head(0)
    stamp("h0")
    ccnt("c0")
    head(1)
    stamp("h1")
    ccnt("c1")

    def task(acc, bfrag, first, hooks):
        if first:
            wait_landed(1)
        a.extend(v_addr(SC_SLOT, V_WB))
        a.extend(v_reads(A_AF[0], True))
        e("s_add_u32 %s, %s, 1" % (sr(SC_IDX), sr(SC_IDX)))
        slot_adv(SC_SLOT, SC_SLOT, 1)
        fullwait = True
        for cidx in range(16):
            r, j = divmod(cidx, 4)
            mf = []
            for ks in range(2):
                for db in range(4):
                    cin = "0" if (cidx == 0 and ks == 0) else vr(acc + 16 * db, 16)
                    mf.append("%s %s, %s, %s, %s" % (
                        MFMA, vr(acc + 16 * db, 16), ar(A_AF[cidx & 1] + (ks * 4 + db) * 4, 4),
                        bfrag(r, 2 * j + ks), cin))
            per = [[] for _ in range(8)]
            if cidx == 15:
                fullwait = True
            if fullwait:
                e("s_waitcnt lgkmcnt(0)")
            if cidx < 15:
                wr = v_reads(A_AF[(cidx + 1) & 1], True)
                adv = ["s_add_u32 %s, %s, 1" % (sr(SC_IDX), sr(SC_IDX))] + slot_adv_l(SC_SLOT, SC_SLOT, 1)
                chk = wait_landed_l(1) if first else []
                per[0] = chk + v_addr(SC_SLOT, V_WB) + wr[0:2]
                per[1] = wr[2:4] + adv[0:2]
                per[2] = wr[4:6] + adv[2:4]
                per[3] = wr[6:8] + adv[4:5]
                per[4] = wr[8:10]
                per[5] = wr[10:12]
                per[6] = wr[12:14]
                per[7] = wr[14:16]
            if not fullwait:
                for g in (1, 3, 5):
                    per[g] = per[g] + ["s_waitcnt lgkmcnt(12)"]
                e("s_waitcnt lgkmcnt(12)")
            a.extend(gaps(mf, per))
            fullwait = False
            if hooks.get(cidx):
                hooks[cidx]()
                fullwait = True

    ACC1, ACC2 = V_O, 128
    e("s_mov_b32 %s, %s" % (sr(SC_SAVE), sr(SC_SLOT)))

    def hk_flag_o2():
        stamp("o0")
        e("s_waitcnt vmcnt(0)")
        stamp("o1")
        flago_off(SC_FOFF, 1, True)
        flag_store(SC_FOFF, local=True)

    def hk_load_o2():
        stamp("o2")
        flago_off(SC_FOFF, 1, False)
        flag_poll(SC_FOFF, 4)
        load_o(1, A_OF2, [1, 2, 3])
        stamp("t1")

    task(ACC1, lambda r, s: vr(V_STG + 4 * s, 4) if r == 0 else ar(A_OF1[r] + 4 * s, 4), True,
         {3: hk_flag_o2, 7: hk_load_o2})
    stamp("u0")
    e("s_nop 7")
    partial_store(ACC1, 0)
    stamp("u1")
    e("s_mov_b32 %s, %s" % (sr(SC_SLOT), sr(SC_SAVE)))

    def hk_flag_p1():
        stamp("p0")
        e("s_waitcnt vmcnt(0)")
        stamp("p1")
        flagp_off(SC_FOFF, 0, True)
        flag_store(SC_FOFF)

    task(ACC2, lambda r, s: vr(V_Q1 + 4 * s, 4) if r == 0 else ar(A_OF2[r] + 4 * s, 4), False,
         {3: hk_flag_p1})
    e("s_nop 7")
    partial_store(ACC2, 1)
    stamp("t2")
    e("s_waitcnt vmcnt(0)")
    stamp("w0")
    flagp_off(SC_FOFF, 1, True)
    flag_store(SC_FOFF)
    reduce(0, V_O)
    stamp("r0")
    reduce(1, V_O)
    e("s_waitcnt vmcnt(0)")
    stamp("r1")

    a.lab("L_fin")
    savef = a.filt
    a.filt = None
    if cfg.dbgstamps:
        dsk = a.newlab("dbgsk")
        e("s_waitcnt lgkmcnt(0)")
        e("s_mov_b32 s28, -1")
        e("s_cmp_eq_u32 s2, 0")
        e("s_cselect_b32 s28, 0, s28")
        e("s_cmp_eq_u32 s2, 129")
        e("s_cselect_b32 s28, 1, s28")
        e("s_cmp_eq_u32 s28, -1")
        e("s_cbranch_scc1 %s" % dsk)
        e("s_cmp_eq_u32 %s, 0" % sr(S_WAVE))
        e("s_cbranch_scc1 %s" % (dsk + "a"))
        e("s_cmp_eq_u32 %s, 3" % sr(S_WAVE))
        e("s_cbranch_scc0 %s" % dsk)
        e("s_cmp_eq_u32 s28, 0")
        e("s_cbranch_scc0 %s" % dsk)
        e("s_mov_b32 s28, 2")
        a.lab(dsk + "a")
        e("s_lshl_b32 s28, s28, 4")
        e("s_add_u32 s28, s28, 16")
        e("v_mov_b32 v1, s28")
        for j in range(4):
            e("s_sub_u32 s29, s%d, s%d" % (S_ST + 2 * (j + 1) + (2 * 3 if j == 3 else 0), S_ST))
            e("v_mov_b32 v%d, s29" % (4 + j))
        e("s_mov_b64 exec, 1")
        e("global_store_dwordx4 v1, v[4:7], %s" % sr(KA_DBG, 2))
        e("s_waitcnt vmcnt(0)")
        a.lab(dsk)
        e("s_branch L_end")
    if cfg.stamps:
        e("s_waitcnt lgkmcnt(0)")
        for k, nm in enumerate(stl):
            if nm == "loc":
                e("s_mov_b32 %s, %s" % (sr(S_ST + 2 * k), sr(SC_LOCAL)))
        e("s_lshl_b32 s28, s2, 9")
        e("s_lshl_b32 s29, %s, 7" % sr(S_WAVE))
        e("s_add_u32 s28, s28, s29")
        e("s_add_u32 s28, s28, 0x%x" % WS_STAMP)
        e("v_mov_b32 v1, s28")
        e("s_getreg_b32 s30, hwreg(HW_REG_XCC_ID)")
        e("s_mov_b64 exec, 1")
        for k in range(4):
            for j in range(4):
                e("v_mov_b32 v%d, s%d" % (4 + j, S_ST + 4 * k + j))
            e("global_store_dwordx4 v1, v[4:7], %s offset:%d" % (sr(KA_WS, 2), 16 * k))
            e("s_waitcnt vmcnt(0)")
        e("v_mov_b32 v4, s30")
        e("global_store_dword v1, v4, %s offset:64" % sr(KA_WS, 2))
        e("s_waitcnt vmcnt(0)")
    a.lab("L_end")
    e("s_endpgm")
    a.filt = savef

    for r, b, sn in rare:
        rare_path(r, b, sn)
    for d in dispatchers:
        d()
    for slow, back in slowwaits:
        a.lab(slow)
        if cfg.stamps:
            e("s_add_u32 %s, %s, 1" % (sr(SC_SWC), sr(SC_SWC)))
        e("ds_read_b32 v%d, v%d" % (V_LRD, V_LADDR))
        e("s_waitcnt lgkmcnt(0)")
        e("v_readfirstlane_b32 %s, v%d" % (sr(SC_L), V_LRD))
        e("s_sub_u32 %s, %s, 1" % (sr(S_SPIN), sr(S_SPIN)))
        e("s_cmp_eq_u32 %s, 0" % sr(S_SPIN))
        e("s_cbranch_scc1 L_end")
        e("s_cmp_lt_u32 %s, %s" % (sr(SC_L), sr(SC_NEED)))
        if cfg.psleep:
            e("s_cbranch_scc0 %s" % back)
            e("s_sleep %d" % cfg.psleep)
            e("s_branch %s" % slow)
        else:
            e("s_cbranch_scc1 %s" % slow)
            e("s_branch %s" % back)
    txt = a.text()

    kd = []
    kd.append('.section .rodata,"a"')
    kd.append(".p2align 6")
    kd.append(".amdhsa_kernel %s_kernel" % NAME)
    kd.append("  .amdhsa_next_free_vgpr 512")
    kd.append("  .amdhsa_next_free_sgpr 102")
    kd.append("  .amdhsa_accum_offset 256")
    kd.append("  .amdhsa_group_segment_fixed_size 0")
    kd.append("  .amdhsa_kernarg_size 104")
    kd.append("  .amdhsa_user_sgpr_count 2")
    kd.append("  .amdhsa_user_sgpr_kernarg_segment_ptr 1")
    kd.append("  .amdhsa_system_sgpr_workgroup_id_x 1")
    kd.append(".end_amdhsa_kernel")
    return "\n".join(hdr) + "\n" + txt + "\n".join(kd) + "\n"


if __name__ == "__main__":
    import argparse
    ap = argparse.ArgumentParser()
    ap.add_argument("-o", default="cdna_kernels/%s.s" % NAME)
    ap.add_argument("--stamps", action="store_true")
    ap.add_argument("--set", action="append", default=[])
    args = ap.parse_args()
    cfg = Cfg()
    cfg.stamps = args.stamps
    for kv in args.set:
        k, v = kv.split("=", 1)
        cur = getattr(cfg, k)
        if isinstance(cur, bool):
            v = v in ("1", "True", "true")
        elif isinstance(cur, int):
            v = int(v)
        elif isinstance(cur, float):
            v = float(v)
        setattr(cfg, k, v)
    open(args.o, "w").write(build(cfg))
    print("wrote", args.o)
```

```python
import math
import struct

NAME = "concat_heads__mha_block_cached__gqa_block_cached__near_ridge"


def f32bits(x):
    return struct.unpack("<I", struct.pack("<f", x))[0]


class Cfg:
    NS = 18
    NQ = 11
    E = 7
    D = 5
    deven = 5
    dodd = 5
    polllead = 3
    stamps = False
    T_LOG2 = 8.0
    kvflags = "nt"
    wflags = ""
    woflags = ""
    xflags = ""
    kvsame = False
    noload = False
    nocompute = False
    noxchg = False
    stamplist = "start,qp,h0,h1,t1,t2,r0,r1"
    po_base = 10
    po_mul = 4
    pft = 20
    prefetch = True
    ytype = 1
    spin = 0x80000
    local = True
    psleep = 0
    dumpq = False
    flagpass = 2
    mix = 0
    dbgstamps = False
    ablate = ""


BLK = 1088
SLOT = 8 * BLK
NQT = 28
WS_FLAGO = 0
WS_FLAGP = 65536
WS_FLAGI = 131072
WS_OBUF = 1 << 20
WS_PBUF = 16 << 20
WS_STAMP = 48 << 20
WS_USED = 56 << 20


def vr(base, n=1):
    return "v%d" % base if n == 1 else "v[%d:%d]" % (base, base + n - 1)


def ar(base, n=1):
    return "a%d" % base if n == 1 else "a[%d:%d]" % (base, base + n - 1)


def sr(base, n=1):
    return "s%d" % base if n == 1 else "s[%d:%d]" % (base, base + n - 1)


class Asm:
    def __init__(self):
        self.L = []
        self.nlab = 0
        self.filt = None

    def e(self, s):
        if self.filt and self.filt(s):
            return
        self.L.append("  " + s)

    def lab(self, name):
        self.L.append(name + ":")

    def newlab(self, base):
        self.nlab += 1
        return "L%s_%d" % (base, self.nlab)

    def extend(self, lst):
        for s in lst:
            if s.endswith(":"):
                self.lab(s[:-1])
            else:
                self.e(s)

    def text(self):
        return "\n".join(self.L) + "\n"


def gaps(primary, per_gap):
    out = []
    for p, f in zip(primary, per_gap):
        out.append(p)
        out.extend(f)
    return out


S_WG = 2
S_WAVE = 3
S_X, S_M, S_G8, S_QUAD, S_H = 20, 21, 22, 24, 25
S_SPIN = 26
S_TAU = 27
S_T0, S_T1, S_T2, S_T3 = 28, 29, 30, 31
S_RET = 32
KA_X, KA_K, KA_V, KA_WQ, KA_WO = 36, 38, 40, 42, 44
S_B4, S_BR = 46, 47
KA_OUT, KA_DBG, KA_WS = 56, 58, 60
SL_ISS, SL_PUB, SL_FMIN, SL_SLOT, SL_NEED, SL_OFF, SL_OFF2, SL_CNT, SL_CNT2, SL_KOFF, SL_VOFF, SL_ROT = range(4, 16)
SL_RET2 = 16
SL_XB, SL_WB = 18, 19
SL_NADJ = 23
SL_QSLOT = 48
SL_EVM = 49
SL_NONCE = 34
SL_THR = 50
SL_WFC = 51
SL_RND = 52
SRD_X, SRD_K, SRD_V, SRD_WQ, SRD_WO = 64, 68, 72, 76, 80
SC_L, SC_SLOT, SC_IDX, SC_IT, SC_T, SC_NEED, SC_SLOT2, SC_ADJ = range(4, 12)
SC_OOFF, SC_OOFF2, SC_FOFF, SC_POFF = 12, 13, 14, 15
SC_NONCE = 16
SC_RET2 = 18
SC_WRAP, SC_LOCAL, SC_XCC, SC_IDOFF, SC_EVM, SC_PADJ, SC_SAVE, SC_SWC = 72, 73, 74, 75, 76, 77, 78, 79
SRD_WS, SRD_OUT = 64, 68
S_ST = 84

V_KB = 8
V_VB = 10
V_WB = 11
V_KA = 12
V_VA = 14
V_L16 = 15
V_LSUM, V_LS2, V_TMAX, V_ALPHA, V_FV, V_LADDR, V_FADDR, V_LRD = range(17, 25)
V_VB2 = 25
V_NON = 26
V_PF = 32
V_NEGM = 48
V_O = 64
V_SA = 128
V_SB = 144
V_ACCQ = 160
V_Q2 = 160
V_STG = 192
V_Q1 = 224
V_ACC1 = 192
A_AF = [0, 32]
A_KF = 64
A_VF = [96, 128]
A_XF = [160, 192]
A_OF2 = [None, 64, 96, 128]
MFMA = "v_mfma_f32_32x32x16_bf16"


def build(cfg):
    NS, D, NQ, E = cfg.NS, cfg.D, cfg.NQ, cfg.E
    assert NS == NQ + E and NS % 2 == 0 and (NQ + 3) % 2 == 0
    RING = NS * SLOT
    FLAG_L = RING
    FLAG_F = RING + 16
    LDS_BYTES = RING + 64
    a = Asm()
    e = a.e
    hdr = []
    hdr.append("; @launch grid=(256,1,1) block=(256,1,1) lds=%d" % LDS_BYTES)
    hdr.append('.amdgcn_target "amdgcn-amd-amdhsa--gfx950"')
    hdr.append(".text")
    hdr.append(".globl %s_kernel" % NAME)
    hdr.append(".p2align 8")
    hdr.append(".type %s_kernel,@function" % NAME)
    hdr.append("%s_kernel:" % NAME)
    stl = cfg.stamplist.split(",")

    def stamp(name):
        if cfg.stamps:
            for k, nm in enumerate(stl):
                if nm == name:
                    e("s_memrealtime %s" % sr(S_ST + 2 * k, 2))
                if nm == name + ".c":
                    e("s_memtime %s" % sr(S_ST + 2 * k, 2))

    def cnt(name):
        if cfg.stamps:
            for k, nm in enumerate(stl):
                if nm == name:
                    e("s_mov_b32 %s, %s" % (sr(S_ST + 2 * k), sr(SL_WFC)))

    e("s_cmp_ge_u32 s2, 256")
    e("s_cbranch_scc1 L_end")
    e("s_load_dwordx16 s[36:51], s[0:1], 0")
    e("s_load_dwordx4 s[52:55], s[0:1], 64")
    e("s_load_dwordx4 s[56:59], s[0:1], 80")
    e("s_load_dwordx2 s[60:61], s[0:1], 96")
    stamp("start")
    e("v_lshrrev_b32 v1, 6, v0")
    e("v_and_b32 v0, 63, v0")
    e("s_and_b32 %s, s2, 7" % sr(S_X))
    e("v_readfirstlane_b32 %s, v1" % sr(S_WAVE))
    e("s_lshr_b32 s28, s2, 3")
    e("s_and_b32 %s, s28, 3" % sr(S_M))
    e("s_lshr_b32 %s, s28, 2" % sr(S_G8))
    e("s_lshl_b32 %s, %s, 2" % (sr(S_H), sr(S_X)))
    e("s_add_u32 %s, %s, %s" % (sr(S_H), sr(S_H), sr(S_M)))
    e("s_lshl_b32 %s, %s, 3" % (sr(S_QUAD), sr(S_G8)))
    e("s_add_u32 %s, %s, %s" % (sr(S_QUAD), sr(S_QUAD), sr(S_X)))
    e("s_mov_b32 %s, 0x%x" % (sr(S_SPIN), cfg.spin))
    e("s_lshl_b32 %s, %s, 1" % (sr(S_TAU), sr(S_M)))
    e("s_and_b32 s29, %s, 1" % sr(S_X))
    e("s_add_u32 %s, %s, s29" % (sr(S_TAU), sr(S_TAU)))
    e("s_mul_i32 %s, %s, %d" % (sr(S_TAU), sr(S_TAU), cfg.po_mul))
    e("s_lshr_b32 %s, %s, 3" % (sr(S_TAU), sr(S_TAU)))
    e("s_add_u32 %s, %s, %d" % (sr(S_TAU), sr(S_TAU), cfg.po_base))
    e("s_cmp_lt_u32 %s, 4" % sr(S_G8))
    e("s_waitcnt lgkmcnt(0)")
    for k in range(10):
        e("s_cselect_b32 s%d, s%d, s%d" % (36 + k, 36 + k, 46 + k))
    e("s_and_b32 %s, %s, 3" % (sr(S_B4), sr(S_G8)))
    e("s_lshr_b32 %s, %s, 2" % (sr(S_BR), sr(S_G8)))
    e("s_cmp_eq_u32 %s, 3" % sr(S_WAVE))
    e("s_cbranch_scc0 L_compute")

    def srd(dst, ptr, nbytes):
        e("s_mov_b32 %s, %s" % (sr(dst), sr(ptr)))
        e("s_mov_b32 %s, %s" % (sr(dst + 1), sr(ptr + 1)))
        e("s_mov_b32 %s, 0x%x" % (sr(dst + 2), nbytes))
        e("s_mov_b32 %s, 0x20000" % sr(dst + 3))

    a.lab("L_loader")
    e("s_setprio 3")
    LV_K, LV_V, LV_X, LV_WQ, LV_WO, LV_T, LV_LADDR, LV_FADDR, LV_F = 8, 12, 16, 20, 24, 28, 29, 30, 32
    LV_O, LV_FL, LV_NON, LV_FA = 36, 200, 202, 204
    BIAS = 4096
    NB_X, NB_KV, NB_W = 8 * 96 * 512 * 2, 8 * 32 * 1024 * 128 * 2, 512 * 4096 * 2

    def srdb(dst, ptr, nbytes):
        e("s_sub_u32 %s, %s, %d" % (sr(dst), sr(ptr), BIAS))
        e("s_subb_u32 %s, %s, 0" % (sr(dst + 1), sr(ptr + 1)))
        e("s_mov_b32 %s, 0x%x" % (sr(dst + 2), nbytes + BIAS))
        e("s_mov_b32 %s, 0x20000" % sr(dst + 3))

    e("v_lshrrev_b32 v1, 4, v0")
    e("v_and_b32 v2, 15, v0")
    e("v_xor_b32 v3, v2, v1")
    e("v_lshlrev_b32 v3, 4, v3")
    e("v_lshlrev_b32 v2, 4, v2")
    e("v_lshlrev_b32 v4, 12, v1")
    e("v_lshlrev_b32 v5, 15, v1")
    e("v_lshlrev_b32 v6, 10, v1")

    def lane_offs(dst, rowpart, colpart, rs):
        e("v_add_u32 v%d, v%d, v%d" % (dst, rowpart, colpart))
        for b in range(3, 0, -1):
            e("v_add_u32 v%d, %d, v%d" % (dst + b, BIAS + b * (rs - BLK), dst))
        e("v_add_u32 v%d, %d, v%d" % (dst, BIAS, dst))

    srdb(SRD_X, KA_X, NB_X)
    srdb(SRD_WQ, KA_WQ, NB_W)
    lane_offs(LV_X, 4, 3, 1024)
    lane_offs(LV_WQ, 5, 2, 8192)
    e("s_getreg_b32 %s, hwreg(HW_REG_XCC_ID)" % sr(SL_THR))
    e("s_and_b32 %s, %s, 1" % (sr(SL_THR), sr(SL_THR)))
    if cfg.deven < cfg.dodd:
        e("s_xor_b32 %s, %s, 1" % (sr(SL_THR), sr(SL_THR)))
    e("v_mov_b32 v%d, %d" % (LV_LADDR, FLAG_L))
    e("v_mov_b32 v%d, %d" % (LV_FADDR, FLAG_F))
    e("v_mov_b32 v%d, 0" % LV_T)
    e("ds_write_b32 v%d, v%d" % (LV_LADDR, LV_T))
    e("s_mov_b32 %s, 0" % sr(SL_ISS))
    e("s_mov_b32 %s, 0" % sr(SL_PUB))
    e("s_mov_b32 %s, 0" % sr(SL_FMIN))
    e("s_mov_b32 %s, 0" % sr(SL_SLOT))
    e("s_mov_b32 %s, -1" % sr(SL_NEED))
    e("s_mov_b32 %s, 0" % sr(SL_WFC))
    e("s_add_u32 %s, %s, %s" % (sr(SL_ROT), sr(S_B4), sr(S_M)))
    e("s_and_b32 %s, %s, 3" % (sr(SL_ROT), sr(SL_ROT)))
    if cfg.noload:
        e("v_mov_b32 v%d, 100000" % LV_T)
        e("s_waitcnt lgkmcnt(0)")
        e("ds_write_b32 v%d, v%d" % (LV_LADDR, LV_T))
        e("s_waitcnt lgkmcnt(0)")
        e("s_barrier")
        e("s_branch L_fin")

    ool = []

    def publish_nb():
        e("s_getreg_b32 %s, hwreg(HW_REG_IB_STS)" % sr(S_T0))
        e("s_lshr_b32 %s, %s, 18" % (sr(S_T1), sr(S_T0)))
        e("s_and_b32 %s, %s, 15" % (sr(S_T0), sr(S_T0)))
        e("s_and_b32 %s, %s, 0x30" % (sr(S_T1), sr(S_T1)))
        e("s_add_u32 %s, %s, %s" % (sr(S_T0), sr(S_T0), sr(S_T1)))
        e("s_add_u32 %s, %s, 7" % (sr(S_T0), sr(S_T0)))
        e("s_lshr_b32 %s, %s, 3" % (sr(S_T0), sr(S_T0)))
        e("s_sub_i32 %s, %s, %s" % (sr(SL_PUB), sr(SL_ISS), sr(S_T0)))
        e("v_mov_b32 v%d, %s" % (LV_T, sr(SL_PUB)))
        e("ds_write_b32 v%d, v%d" % (LV_LADDR, LV_T))

    def issue_tile(srdreg, voff, rs, flags, wrap, nowait=False, check=True):
        if check:
            e("s_cmp_ge_i32 %s, %s" % (sr(SL_FMIN), sr(SL_NEED)))
            slow = a.newlab("lslow")
            ok = a.newlab("ok")
            e("s_cbranch_scc0 %s" % slow)
            a.lab(ok)
            ool.append((slow, ok))

        def ld(b):
            e("buffer_load_dwordx4 v%d, %s, %s offen offset:%d %s lds" % (
                voff + (b & 3), sr(srdreg, 4), sr(SL_OFF if b < 4 else SL_OFF2), (b & 3) * BLK, flags))
        e("s_mov_b32 m0, %s" % sr(SL_SLOT))
        e("s_add_u32 %s, %s, %d" % (sr(SL_OFF2), sr(SL_OFF), 16 * rs))
        ld(0)
        ld(1)
        ld(2)
        e("s_add_u32 %s, %s, 1" % (sr(SL_ISS), sr(SL_ISS)))
        ld(3)
        e("s_add_u32 m0, %s, %d" % (sr(SL_SLOT), 4 * BLK))
        e("s_add_u32 %s, %s, %d" % (sr(SL_SLOT), sr(SL_SLOT), SLOT))
        ld(4)
        e("s_cmp_lt_u32 %s, %d" % (sr(SL_SLOT), wrap))
        e("s_cselect_b32 %s, %s, 0" % (sr(SL_SLOT), sr(SL_SLOT)))
        ld(5)
        e("s_sub_i32 %s, %s, %s" % (sr(SL_NEED), sr(SL_ISS), sr(SL_NADJ)))
        ld(6)
        if cfg.deven != cfg.dodd:
            e("s_cmp_eq_u32 %s, 0" % sr(SL_THR))
        ld(7)
        if not nowait:
            dmax, dmin = max(cfg.deven, cfg.dodd), min(cfg.deven, cfg.dodd)
            e("s_waitcnt vmcnt(%d)" % (8 * dmax))
            if dmin != dmax:
                sk = a.newlab("thr")
                e("s_cbranch_scc1 %s" % sk)
                e("s_waitcnt vmcnt(%d)" % (8 * dmin))
                a.lab(sk)
            publish_nb()

    def qp_round(first_nowait=0):
        n = 0

        def after():
            if first_nowait and n == first_nowait:
                e("s_waitcnt lgkmcnt(0)")
                e("s_barrier")
        for w in range(3):
            e("s_add_u32 %s, %s, %d" % (sr(SL_OFF), sr(SL_XB), w * 32 * 1024))
            issue_tile(SRD_X, LV_X, 1024, cfg.xflags, NQ * SLOT, nowait=(n < first_nowait))
            n += 1
            after()
        for j in range(4):
            e("s_add_u32 %s, %s, %d" % (sr(SL_OFF), sr(SL_WB), j * 32 * 8192))
            issue_tile(SRD_WQ, LV_WQ, 8192, cfg.wflags, NQ * SLOT, nowait=(n < first_nowait))
            n += 1
            after()

    def qp_bases(ph, rnd):
        e("s_add_u32 %s, %s, %s" % (sr(S_T1), sr(SL_ROT), sr(rnd)))
        e("s_and_b32 %s, %s, 3" % (sr(S_T1), sr(S_T1)))
        e("s_lshl_b32 %s, %s, 8" % (sr(S_T2), sr(S_T1)))
        e("s_mul_i32 %s, %s, %d" % (sr(SL_XB), sr(S_B4), 96 * 1024))
        e("s_add_u32 %s, %s, %s" % (sr(SL_XB), sr(SL_XB), sr(S_T2)))
        if ph:
            e("s_add_u32 %s, %s, %d" % (sr(SL_XB), sr(SL_XB), 4 * 96 * 1024))
        e("s_lshl_b32 %s, %s, 20" % (sr(S_T2), sr(S_T1)))
        e("s_lshl_b32 %s, %s, 8" % (sr(SL_WB), sr(S_H)))
        e("s_add_u32 %s, %s, %s" % (sr(SL_WB), sr(SL_WB), sr(S_T2)))

    kvf = "" if cfg.kvsame else cfg.kvflags
    e("s_mov_b32 %s, %d" % (sr(SL_NADJ), NQ - 1))
    e("s_mov_b32 %s, 0" % sr(SL_CNT))
    qp_bases(0, SL_CNT)
    qp_round(first_nowait=D)
    srdb(SRD_K, KA_K, NB_KV)
    srdb(SRD_V, KA_V, NB_KV)
    srdb(SRD_WO, KA_WO, NB_W)
    lane_offs(LV_K, 6, 3, 256)
    lane_offs(LV_V, 6, 2, 256)
    lane_offs(LV_WO, 4, 2, 1024)
    e("v_lshlrev_b32 v7, 4, v0")
    for b in range(3, 0, -1):
        e("v_add_u32 v%d, %d, v7" % (LV_O + b, BIAS + b * (1024 - BLK)))
    e("v_add_u32 v%d, %d, v7" % (LV_O, BIAS))
    e("v_min_u32 v7, 11, v0")
    e("v_lshrrev_b32 v%d, 2, v7" % LV_FA)
    e("v_lshlrev_b32 v%d, 7, v%d" % (LV_FA, LV_FA))
    e("v_and_b32 v7, 3, v7")
    e("v_lshlrev_b32 v7, 3, v7")
    e("v_add_u32 v%d, v%d, v7" % (LV_FA, LV_FA))
    e("v_add_u32 v%d, %d, v%d" % (LV_FA, BIAS, LV_FA))
    e("s_lshl_b32 %s, %s, 5" % (sr(S_T1), sr(S_B4)))
    e("s_add_u32 %s, %s, %s" % (sr(S_T1), sr(S_T1), sr(S_H)))
    e("s_lshl_b32 %s, %s, 18" % (sr(SL_KOFF), sr(S_T1)))
    stamp("q3")

    def early_tiles():
        e("s_mov_b32 %s, %s" % (sr(SL_QSLOT), sr(SL_SLOT)))
        e("s_mov_b32 %s, %d" % (sr(SL_SLOT), NQ * SLOT))
        seq = [("K", 0), ("K", 1), ("V", 0)]
        t = 0
        while len(seq) < E:
            seq += [("K", t + 2), ("V", t + 1)]
            t += 1
        assert len(seq) == E
        for kind, t in seq:
            e("s_add_u32 %s, %s, %d" % (sr(SL_OFF), sr(SL_KOFF), 0 if cfg.kvsame else t * 8192))
            if kind == "K":
                issue_tile(SRD_K, LV_K, 256, kvf, RING, check=False)
            else:
                issue_tile(SRD_V, LV_V, 256, kvf, RING, check=False)
        e("s_mov_b32 %s, %s" % (sr(SL_SLOT), sr(SL_QSLOT)))

    npairs_early = (E - 3) // 2
    if cfg.ytype == 1:
        e("s_and_b32 %s, %s, 1" % (sr(S_T3), sr(S_M)))
        e("s_cmp_eq_u32 %s, 0" % sr(S_T3))
        e("s_cbranch_scc1 L_ld_x1")
    if cfg.ytype in (1, 2):
        early_tiles()
        e("s_mov_b32 %s, %d" % (sr(SL_NADJ), NQ - 1 + E))
        e("s_sub_i32 %s, %s, %s" % (sr(SL_NEED), sr(SL_ISS), sr(SL_NADJ)))
    a.lab("L_ld_x1")
    e("s_mov_b32 %s, 1" % sr(SL_CNT))
    a.lab("L_ld_qp1")
    qp_bases(0, SL_CNT)
    qp_round()
    if cfg.stamps:
        for rr in (1, 2, 3):
            nm = "q%d" % (4 * rr + 3)
            if nm in stl:
                sk = a.newlab("sk")
                e("s_cmp_eq_u32 %s, %d" % (sr(SL_CNT), rr))
                e("s_cbranch_scc0 %s" % sk)
                stamp(nm)
                a.lab(sk)
    e("s_add_u32 %s, %s, 1" % (sr(SL_CNT), sr(SL_CNT)))
    e("s_cmp_lt_u32 %s, 4" % sr(SL_CNT))
    e("s_cbranch_scc1 L_ld_qp1")
    if cfg.ytype == 1:
        e("s_and_b32 %s, %s, 1" % (sr(S_T3), sr(S_M)))
        e("s_cmp_eq_u32 %s, 0" % sr(S_T3))
        e("s_cbranch_scc0 L_ld_y2")
    if cfg.ytype in (0, 1):
        early_tiles()
    a.lab("L_ld_y2")
    stamp("qp")
    cnt("cq")
    e("s_mov_b32 %s, 0" % sr(SL_SLOT))
    e("s_mov_b32 %s, %d" % (sr(SL_NADJ), NS - 1))
    e("s_mov_b32 %s, %d" % (sr(SL_NEED), NQT))
    e("v_mov_b32 v7, 0")
    e("global_load_dwordx2 %s, v7, %s sc1" % (vr(LV_NON, 2), sr(KA_DBG, 2)))
    e("s_mov_b32 %s, 0x44444444" % sr(SL_EVM))
    e("s_mov_b32 %s, 0" % sr(SL_CNT2))
    e("s_add_u32 %s, %s, %d" % (sr(SL_VOFF), sr(SL_KOFF), 0 if cfg.kvsame else npairs_early * 8192))
    e("s_mov_b32 %s, %d" % (sr(SL_CNT), npairs_early))
    assert npairs_early == 2
    e("s_branch L_ld_disp")
    a.lab("L_ld_head")
    e("s_mov_b32 %s, %s" % (sr(SL_OFF), sr(SL_KOFF)))
    issue_tile(SRD_K, LV_K, 256, kvf, RING)
    e("s_add_u32 %s, %s, 8192" % (sr(SL_OFF), sr(SL_KOFF)))
    issue_tile(SRD_K, LV_K, 256, kvf, RING)
    e("s_mov_b32 %s, %s" % (sr(SL_OFF), sr(SL_KOFF)))
    issue_tile(SRD_V, LV_V, 256, kvf, RING)
    e("s_mov_b32 %s, %s" % (sr(SL_VOFF), sr(SL_KOFF)))
    e("s_mov_b32 %s, 0" % sr(SL_CNT))
    a.lab("L_ld_kv")
    e("s_add_u32 %s, %s, 16384" % (sr(SL_OFF), sr(SL_VOFF)))
    issue_tile(SRD_K, LV_K, 256, kvf, RING)
    e("s_add_u32 %s, %s, 8192" % (sr(SL_OFF), sr(SL_VOFF)))
    issue_tile(SRD_V, LV_V, 256, kvf, RING)
    if not cfg.kvsame:
        e("s_add_u32 %s, %s, 8192" % (sr(SL_VOFF), sr(SL_VOFF)))
    e("s_add_u32 %s, %s, 1" % (sr(SL_CNT), sr(SL_CNT)))
    e("s_bitcmp1_b32 %s, %s" % (sr(SL_EVM), sr(SL_CNT)))
    e("s_cbranch_scc1 L_ld_disp")
    a.lab("L_ld_evret")
    e("s_cmp_lt_u32 %s, 30" % sr(SL_CNT))
    e("s_cbranch_scc1 L_ld_kv")
    e("s_add_u32 %s, %s, 8192" % (sr(SL_OFF), sr(SL_VOFF)))
    issue_tile(SRD_V, LV_V, 256, kvf, RING)
    e("s_cmp_eq_u32 %s, 0" % sr(SL_CNT2))
    e("s_cbranch_scc0 L_ld_tail")
    stamp("h0")
    cnt("c0")
    e("s_add_u32 %s, %s, %d" % (sr(SL_KOFF), sr(SL_KOFF), 4 * 32 * 262144))
    srdb(SRD_X, KA_WS, WS_USED)
    if not cfg.noxchg and not cfg.nocompute:
        okn = a.newlab("lnok")
        e("v_readfirstlane_b32 %s, v%d" % (sr(SL_NONCE), LV_NON))
        e("v_readfirstlane_b32 %s, v%d" % (sr(SL_NONCE + 1), LV_NON + 1))
        e("s_nop 3")
        e("s_cmp_lg_u32 %s, 0" % sr(SL_NONCE))
        e("s_cbranch_scc1 %s" % okn)
        lpn = a.newlab("lnlp")
        a.lab(lpn)
        e("v_mov_b32 v7, 0")
        e("global_load_dwordx2 %s, v7, %s sc1" % (vr(LV_NON, 2), sr(KA_DBG, 2)))
        e("s_waitcnt vmcnt(0)")
        e("v_readfirstlane_b32 %s, v%d" % (sr(SL_NONCE), LV_NON))
        e("v_readfirstlane_b32 %s, v%d" % (sr(SL_NONCE + 1), LV_NON + 1))
        e("s_sub_u32 %s, %s, 1" % (sr(S_SPIN), sr(S_SPIN)))
        e("s_cmp_eq_u32 %s, 0" % sr(S_SPIN))
        e("s_cbranch_scc1 L_end")
        e("s_cmp_eq_u32 %s, 0" % sr(SL_NONCE))
        e("s_cbranch_scc1 %s" % lpn)
        a.lab(okn)
    e("s_mov_b32 %s, 1" % sr(SL_CNT2))
    e("s_branch L_ld_head")
    a.lab("L_ld_tail")
    stamp("h1")
    cnt("c1")
    e("s_mov_b32 %s, 0" % sr(SL_XB))
    a.lab("L_ld_wo_r")
    e("s_add_u32 %s, %s, %s" % (sr(S_T1), sr(S_M), sr(SL_XB)))
    e("s_and_b32 %s, %s, 3" % (sr(S_T1), sr(S_T1)))
    e("s_lshl_b32 %s, %s, 17" % (sr(S_T1), sr(S_T1)))
    e("s_lshl_b32 %s, %s, 19" % (sr(SL_WB), sr(S_X)))
    e("s_add_u32 %s, %s, %s" % (sr(SL_WB), sr(SL_WB), sr(S_T1)))
    e("s_lshl_b32 %s, %s, 8" % (sr(S_T1), sr(S_M)))
    e("s_add_u32 %s, %s, %s" % (sr(SL_WB), sr(SL_WB), sr(S_T1)))
    for j in range(4):
        e("s_add_u32 %s, %s, %d" % (sr(SL_OFF), sr(SL_WB), j * 32 * 1024))
        issue_tile(SRD_WO, LV_WO, 1024, cfg.woflags, RING)
    e("s_add_u32 %s, %s, 1" % (sr(SL_XB), sr(SL_XB)))
    e("s_cmp_lt_u32 %s, 4" % sr(SL_XB))
    e("s_cbranch_scc1 L_ld_wo_r")
    a.lab("L_ld_drain")
    publish_nb()
    e("s_cmp_lt_i32 %s, %s" % (sr(SL_PUB), sr(SL_ISS)))
    e("s_cbranch_scc1 L_ld_drain")
    e("s_waitcnt lgkmcnt(0)")
    stamp("t2")
    e("s_branch L_fin")

    def pf_tile(srdreg, voff, rs, flags, vdst):
        e("s_add_u32 %s, %s, %d" % (sr(SL_OFF2), sr(SL_OFF), 16 * rs))
        for b in range(8):
            e("buffer_load_dwordx4 %s, v%d, %s, %s offen offset:%d %s" % (
                vr(vdst + 4 * b, 4), voff + (b & 3), sr(srdreg, 4), sr(SL_OFF if b < 4 else SL_OFF2),
                (b & 3) * BLK, flags))

    def flag_poll_issue_l():
        e("s_lshl_b32 %s, %s, 9" % (sr(S_T1), sr(S_QUAD)))
        e("buffer_load_dwordx2 %s, v%d, %s, %s offen sc1" % (vr(LV_FL, 2), LV_FA, sr(SRD_X, 4), sr(S_T1)))

    def flag_check_l(tgt_ok):
        e("v_cmp_ne_u32 vcc, %s, v%d" % (sr(SL_NONCE), LV_FL))
        e("v_cmp_ne_u32 s[28:29], %s, v%d" % (sr(SL_NONCE + 1), LV_FL + 1))
        e("s_nop 3")
        e("s_or_b64 vcc, vcc, s[28:29]")
        e("s_cbranch_scc0 %s" % tgt_ok)

    a.lab("L_ld_disp")
    e("s_bitcmp1_b32 %s, 2" % sr(SL_CNT))
    e("s_cbranch_scc1 L_ld_blkB")
    e("s_lshr_b32 %s, %s, 3" % (sr(SL_RND), sr(SL_CNT)))
    e("s_cmp_eq_u32 %s, 0" % sr(SL_CNT2))
    e("s_cbranch_scc0 L_ld_blkA2")
    qp_bases(1, SL_RND)
    for w in (0, 1, 2, 2):
        e("s_add_u32 %s, %s, %d" % (sr(SL_OFF), sr(SL_XB), w * 32 * 1024))
        issue_tile(SRD_X, LV_X, 1024, cfg.xflags, RING)
    for j in range(2):
        e("s_add_u32 %s, %s, %d" % (sr(SL_OFF), sr(SL_WB), j * 32 * 8192))
        issue_tile(SRD_WQ, LV_WQ, 8192, cfg.wflags, RING)
    e("s_branch L_ld_dret")
    a.lab("L_ld_blkA2")
    e("s_add_u32 %s, %s, %s" % (sr(S_T2), sr(S_M), sr(SL_RND)))
    e("s_and_b32 %s, %s, 3" % (sr(S_T2), sr(S_T2)))
    e("s_lshl_b32 %s, %s, 17" % (sr(S_T1), sr(S_T2)))
    e("s_lshl_b32 %s, %s, 19" % (sr(SL_WB), sr(S_X)))
    e("s_add_u32 %s, %s, %s" % (sr(SL_WB), sr(SL_WB), sr(S_T1)))
    e("s_lshl_b32 %s, %s, 8" % (sr(S_T1), sr(S_M)))
    e("s_add_u32 %s, %s, %s" % (sr(SL_WB), sr(SL_WB), sr(S_T1)))
    e("s_lshl_b32 %s, %s, 2" % (sr(S_T3), sr(S_QUAD)))
    e("s_add_u32 %s, %s, %s" % (sr(S_T2), sr(S_T2), sr(S_T3)))
    e("s_mul_i32 %s, %s, 24576" % (sr(S_T2), sr(S_T2)))
    e("s_add_u32 %s, %s, %d" % (sr(SL_XB), sr(S_T2), WS_OBUF))
    e("s_cmp_eq_u32 %s, 0" % sr(SL_RND))
    e("s_cbranch_scc1 L_ld_noo")
    if not cfg.noxchg and not cfg.nocompute:
        okf = a.newlab("lfok")
        e("s_cmp_eq_u32 %s, 1" % sr(SL_RND))
        e("s_cbranch_scc0 %s" % okf)
        flag_check_l(okf)
        lpf = a.newlab("lfl")
        a.lab(lpf)
        flag_poll_issue_l()
        e("s_waitcnt vmcnt(0)")
        e("s_sub_u32 %s, %s, 1" % (sr(S_SPIN), sr(S_SPIN)))
        e("s_cmp_eq_u32 %s, 0" % sr(S_SPIN))
        e("s_cbranch_scc1 L_end")
        flag_check_l(okf)
        e("s_branch %s" % lpf)
        a.lab(okf)
    for w in (0, 1, 2, 2):
        e("s_add_u32 %s, %s, %d" % (sr(SL_OFF), sr(SL_XB), w * 8192))
        issue_tile(SRD_X, LV_O, 256, "sc1", RING)
    a.lab("L_ld_noo")
    for j in range(2):
        e("s_add_u32 %s, %s, %d" % (sr(SL_OFF), sr(SL_WB), j * 32 * 1024))
        issue_tile(SRD_WO, LV_WO, 1024, cfg.woflags, RING)
    e("s_branch L_ld_dret")
    a.lab("L_ld_blkB")
    e("s_cmp_eq_u32 %s, 0" % sr(SL_CNT2))
    e("s_cbranch_scc0 L_ld_blkB2")
    for j in range(2, 4):
        e("s_add_u32 %s, %s, %d" % (sr(SL_OFF), sr(SL_WB), j * 32 * 8192))
        issue_tile(SRD_WQ, LV_WQ, 8192, cfg.wflags, RING)
    e("s_branch L_ld_dret")
    a.lab("L_ld_blkB2")
    if not cfg.noxchg and not cfg.nocompute:
        skp = a.newlab("skp")
        e("s_cmp_eq_u32 %s, 6" % sr(SL_CNT))
        e("s_cbranch_scc0 %s" % skp)
        flag_poll_issue_l()
        a.lab(skp)
    for j in range(2, 4):
        e("s_add_u32 %s, %s, %d" % (sr(SL_OFF), sr(SL_WB), j * 32 * 1024))
        issue_tile(SRD_WO, LV_WO, 1024, cfg.woflags, RING)
    a.lab("L_ld_dret")
    e("s_branch L_ld_evret")

    for slow, ok in ool:
        a.lab(slow)
        e("s_call_b64 %s, L_waitfree" % sr(S_RET, 2))
        e("s_branch %s" % ok)
    a.lab("L_waitfree")
    if cfg.stamps:
        e("s_add_u32 %s, %s, 1" % (sr(SL_WFC), sr(SL_WFC)))
    e("ds_read_b96 v[%d:%d], v%d" % (LV_F, LV_F + 2, LV_FADDR))
    publish_nb()
    e("s_waitcnt lgkmcnt(1)")
    e("v_min3_u32 v%d, v%d, v%d, v%d" % (LV_F, LV_F, LV_F + 1, LV_F + 2))
    e("s_sub_u32 %s, %s, 1" % (sr(S_SPIN), sr(S_SPIN)))
    e("v_readfirstlane_b32 %s, v%d" % (sr(SL_FMIN), LV_F))
    e("s_cmp_eq_u32 %s, 0" % sr(S_SPIN))
    e("s_cbranch_scc1 L_end")
    e("s_nop 1")
    e("s_cmp_ge_i32 %s, %s" % (sr(SL_FMIN), sr(SL_NEED)))
    e("s_cbranch_scc0 L_waitfree")
    e("s_setpc_b64 %s" % sr(S_RET, 2))

    if cfg.noxchg:
        a.filt = lambda sx: (sx.startswith("buffer_") or sx.startswith("global_load")
                             or sx.startswith("global_store_dwordx2"))
    a.lab("L_compute")
    e("v_and_b32 v1, 3, v0")
    e("v_lshrrev_b32 v2, 5, v0")
    e("v_lshrrev_b32 v3, 4, v0")
    e("v_and_b32 v3, 1, v3")
    e("v_lshrrev_b32 v4, 2, v0")
    e("v_and_b32 v4, 3, v4")
    e("v_lshlrev_b32 v5, 2, v3")
    e("v_add_u32 v5, v5, v1")
    e("s_movk_i32 %s, %d" % (sr(S_T0), BLK))
    e("v_mul_lo_u32 v5, v5, %s" % sr(S_T0))
    e("v_lshlrev_b32 v6, 8, v4")
    e("v_add_u32 v5, v5, v6")
    for par in range(2):
        e("v_add_u32 v6, %d, v2" % (2 * par))
        e("v_xor_b32 v6, v6, v4")
        e("v_lshlrev_b32 v6, 4, v6")
        e("v_add_u32 v%d, v5, v6" % (V_KB + par))
    e("v_lshrrev_b32 v6, 1, v1")
    e("v_and_b32 v7, 1, v1")
    e("v_lshlrev_b32 v7, 1, v7")
    e("v_or_b32 v6, v6, v7")
    e("v_lshlrev_b32 v6, 3, v6")
    e("v_lshlrev_b32 v7, 5, v3")
    e("v_add_u32 v6, v6, v7")
    e("v_mul_lo_u32 v7, v4, %s" % sr(S_T0))
    e("v_add_u32 v6, v6, v7")
    e("v_lshlrev_b32 v7, 8, v2")
    e("v_add_u32 v%d, v6, v7" % V_VB)
    e("v_add_u32 v%d, v%d, v7" % (V_WB, V_VB))
    e("v_add_u32 v%d, %d, v%d" % (V_VB2, SLOT, V_VB))
    e("v_mov_b32 v%d, %d" % (V_LADDR, FLAG_L))
    e("s_lshl_b32 %s, %s, 2" % (sr(S_T0), sr(S_WAVE)))
    e("s_add_u32 %s, %s, %d" % (sr(S_T0), sr(S_T0), FLAG_F))
    e("v_mov_b32 v%d, %s" % (V_FADDR, sr(S_T0)))
    e("v_mov_b32 v%d, %d" % (V_FV, 100000 if cfg.nocompute else 0))
    e("ds_write_b32 v%d, v%d" % (V_FADDR, V_FV))
    e("v_lshlrev_b32 v%d, 4, v0" % V_L16)
    e("s_mov_b32 %s, 0" % sr(SC_L))
    e("s_mov_b32 %s, 0" % sr(SC_SWC))
    c = (128 ** -0.5) * math.log2(math.e)
    e("s_mov_b32 %s, 0x%x" % (sr(SC_T), f32bits(cfg.T_LOG2)))
    e("s_mov_b32 %s, 0" % sr(SC_IDX))
    e("s_mov_b32 %s, 0" % sr(SC_SLOT))
    e("s_mov_b32 %s, %d" % (sr(SC_WRAP), NQ * SLOT))
    if cfg.ytype == 1:
        e("s_and_b32 %s, %s, 1" % (sr(S_T1), sr(S_M)))
        e("s_mul_i32 %s, %s, %d" % (sr(SC_PADJ), sr(S_T1), E))
    else:
        e("s_mov_b32 %s, %d" % (sr(SC_PADJ), E if cfg.ytype == 2 else 0))
    e("s_mov_b32 %s, 0" % sr(SC_ADJ))
    srd(SRD_WS, KA_WS, WS_USED)
    srd(SRD_OUT, KA_OUT, 8 * 96 * 1024 * 2)
    e("s_or_b32 %s, %s, %s" % (sr(S_T0), sr(S_WG), sr(S_WAVE)))
    e("s_cmp_eq_u32 %s, 0" % sr(S_T0))
    e("s_cbranch_scc0 L_nononce")
    e("s_memrealtime %s" % sr(SC_NONCE, 2))
    e("s_waitcnt lgkmcnt(0)")
    e("s_or_b32 %s, %s, 1" % (sr(SC_NONCE), sr(SC_NONCE)))
    e("v_mov_b32 v2, %s" % sr(SC_NONCE))
    e("v_mov_b32 v3, %s" % sr(SC_NONCE + 1))
    e("v_mov_b32 v1, 0")
    e("global_store_dwordx2 v1, v[2:3], %s sc1" % sr(KA_DBG, 2))
    a.lab("L_nononce")
    e("s_waitcnt lgkmcnt(0)")
    e("s_barrier")
    stamp("bar")
    if cfg.nocompute:
        e("s_branch L_fin")

    slowwaits = []

    def wait_landed_l(delta, adj=False):
        slow = a.newlab("lw_slow")
        back = a.newlab("lw_back")
        slowwaits.append((slow, back))
        out = ["s_add_u32 %s, %s, %d" % (sr(SC_NEED), sr(SC_IDX), delta)]
        if adj:
            out.append("s_add_u32 %s, %s, %s" % (sr(SC_NEED), sr(SC_NEED), sr(SC_ADJ)))
        out += ["s_cmp_lt_u32 %s, %s" % (sr(SC_L), sr(SC_NEED)),
                "s_cbranch_scc1 %s" % slow,
                back + ":"]
        return out

    def wait_landed(delta, adj=False):
        a.extend(wait_landed_l(delta, adj))

    def slot_adv_l(dst, src, n):
        return ["s_add_u32 %s, %s, %d" % (sr(dst), sr(src), n * SLOT),
                "s_sub_u32 %s, %s, %s" % (sr(S_T0), sr(dst), sr(SC_WRAP)),
                "s_cmp_lt_u32 %s, %s" % (sr(dst), sr(SC_WRAP)),
                "s_cselect_b32 %s, %s, %s" % (sr(dst), sr(dst), sr(S_T0))]

    def slot_adv(dst, src, n):
        a.extend(slot_adv_l(dst, src, n))

    def release_l(sg):
        return ["v_mov_b32 v%d, %s" % (V_FV, sr(sg)), "ds_write_b32 v%d, v%d" % (V_FADDR, V_FV)]

    def k_addr(slot):
        return ["v_add_u32 v%d, %s, v%d" % (V_KA + p, sr(slot), V_KB + p) for p in range(2)]

    def k_reads(dst_a):
        return ["ds_read_b128 %s, v%d offset:%d" % (ar(dst_a + 4 * s, 4), V_KA + (s & 1), (s >> 1) * 64)
                for s in range(8)]

    def v_addr(slot, base):
        return ["v_add_u32 v%d, %s, v%d" % (V_VA, sr(slot), base)]

    def v_reads(dst_a, isw):
        out = []
        for ks in range(2):
            for db in range(4):
                base = dst_a + (ks * 4 + db) * 4
                o2 = 256 if isw else 512
                o = ks * 4 * BLK + db * 64
                out.append("ds_read_b64_tr_b16 %s, v%d offset:%d" % (ar(base, 2), V_VA, o))
                out.append("ds_read_b64_tr_b16 %s, v%d offset:%d" % (ar(base + 2, 2), V_VA, o + o2))
        return out

    def wave_slot(dst, n):
        return ["s_mul_i32 %s, %s, %d" % (sr(S_T1), sr(S_WAVE), SLOT),
                "s_add_u32 %s, %s, %s" % (sr(dst), sr(SC_SLOT), sr(S_T1))] + slot_adv_l(dst, dst, n)

    def x_fetch(buf):
        out = wave_slot(SC_SLOT2, 0) + k_addr(SC_SLOT2) + k_reads(A_XF[buf])
        out += slot_adv_l(SC_SLOT, SC_SLOT, 3)
        return out

    wait_landed(4, True)
    a.extend(x_fetch(0))
    a.extend(v_addr(SC_SLOT, V_WB))
    a.extend(v_reads(A_AF[0], True))
    e("s_add_u32 %s, %s, 4" % (sr(SC_IDX), sr(SC_IDX)))
    slot_adv(SC_SLOT, SC_SLOT, 1)
    for cidx in range(16):
        r, j = divmod(cidx, 4)
        e("s_waitcnt lgkmcnt(0)")
        mf = []
        for ks in range(2):
            for db in range(4):
                acc = V_ACCQ + 16 * db
                cin = "0" if (cidx == 0 and ks == 0) else vr(acc, 16)
                mf.append("%s %s, %s, %s, %s" % (
                    MFMA, vr(acc, 16), ar(A_AF[cidx & 1] + (ks * 4 + db) * 4, 4),
                    ar(A_XF[r & 1] + (2 * j + ks) * 4, 4), cin))
        fill = []
        if cidx < 15:
            nx = 3 if j == 3 else 0
            if cidx == 3:
                fill += ["s_mov_b32 %s, %s" % (sr(SC_ADJ), sr(SC_PADJ))]
            fill += wait_landed_l(nx + 1, True)
            if nx:
                fill += x_fetch((r + 1) & 1)
            fill += v_addr(SC_SLOT, V_WB) + v_reads(A_AF[(cidx + 1) & 1], True)
            fill += release_l(SC_IDX)
            fill += ["s_add_u32 %s, %s, %d" % (sr(SC_IDX), sr(SC_IDX), nx + 1)] + slot_adv_l(SC_SLOT, SC_SLOT, 1)
        else:
            fill += release_l(SC_IDX)
        ng = 6
        per = [[] for _ in range(8)]
        items = fill
        n = len(items)
        pos = 0
        for g in range(ng):
            tgt = max((n * (g + 1)) // ng, pos)
            while tgt < n and items[tgt].endswith(":"):
                tgt += 1
            per[g] = items[pos:tgt]
            pos = tgt
        a.extend(gaps(mf, per))
        if cfg.stamps and ("q%d" % cidx) in stl:
            stamp("q%d" % cidx)

    def q_convert(dst):
        e("s_nop 7")
        e("s_nop 3")
        e("s_mov_b32 %s, 0x%x" % (sr(S_T1), f32bits(c)))
        for i in range(32):
            e("v_mul_f32 v%d, %s, v%d" % (V_ACCQ + 2 * i, sr(S_T1), V_ACCQ + 2 * i))
            e("v_mul_f32 v%d, %s, v%d" % (V_ACCQ + 2 * i + 1, sr(S_T1), V_ACCQ + 2 * i + 1))
            e("v_cvt_pk_bf16_f32 v%d, v%d, v%d" % (dst + i, V_ACCQ + 2 * i, V_ACCQ + 2 * i + 1))
    q_convert(V_Q1)
    e("s_mov_b32 %s, %d" % (sr(SC_SLOT), NQ * SLOT))
    e("s_mov_b32 %s, %d" % (sr(SC_WRAP), RING))
    stamp("qp")

    def qk_mfmas(sdst, qbase, cin):
        return ["%s %s, %s, %s, %s" % (MFMA, vr(sdst, 16), ar(A_KF + 4 * s, 4), vr(qbase + 4 * s, 4),
                                       cin if s == 0 else vr(sdst, 16)) for s in range(8)]

    def softmax_gaps(sc):
        g = []
        for k in range(8):
            l = ["v_exp_f32 v%d, v%d" % (sc + 2 * k, sc + 2 * k),
                 "v_exp_f32 v%d, v%d" % (sc + 2 * k + 1, sc + 2 * k + 1)]
            if k > 0:
                p = k - 1
                l += ["v_add_f32 v%d, v%d, v%d" % (V_LSUM, V_LSUM, sc + 2 * p),
                      "v_add_f32 v%d, v%d, v%d" % (V_LS2, V_LS2, sc + 2 * p + 1),
                      "v_cvt_pk_bf16_f32 v%d, v%d, v%d" % (V_PF + p, sc + 2 * p, sc + 2 * p + 1)]
            g.append(l)
        tail = ["v_add_f32 v%d, v%d, v%d" % (V_LSUM, V_LSUM, sc + 14),
                "v_add_f32 v%d, v%d, v%d" % (V_LS2, V_LS2, sc + 15),
                "v_cvt_pk_bf16_f32 v%d, v%d, v%d" % (V_PF + 7, sc + 14, sc + 15)]
        return g, tail

    def pv_mfmas(vf):
        out = []
        for ks in range(2):
            for db in range(4):
                out.append("%s %s, %s, %s, %s" % (
                    MFMA, vr(V_O + 16 * db, 16), ar(vf + (ks * 4 + db) * 4, 4), vr(V_PF + 4 * ks, 4),
                    vr(V_O + 16 * db, 16)))
        return out

    def max_valu(sn):
        out = ["v_max3_f32 v%d, v%d, v%d, v%d" % (V_TMAX, sn, sn + 1, sn + 2)]
        for i in range(3, 15, 2):
            out.append("v_max3_f32 v%d, v%d, v%d, v%d" % (V_TMAX, V_TMAX, sn + i, sn + i + 1))
        out.append("v_max_f32 v%d, v%d, v%d" % (V_TMAX, V_TMAX, sn + 15))
        return out

    def cross_half_max():
        e("v_mov_b32 v1, v%d" % V_TMAX)
        e("s_nop 1")
        e("v_permlane32_swap_b32 v%d, v1" % V_TMAX)
        e("s_nop 1")
        e("v_max_f32 v%d, v%d, v1" % (V_TMAX, V_TMAX))

    def rare_path(lab, back, sn):
        a.lab(lab)
        cross_half_max()
        e("v_max_f32 v%d, 0, v%d" % (V_TMAX, V_TMAX))
        e("v_sub_f32 v%d, 0, v%d" % (V_ALPHA, V_TMAX))
        e("v_exp_f32 v%d, v%d" % (V_ALPHA, V_ALPHA))
        for i in range(16):
            e("v_sub_f32 v%d, v%d, v%d" % (sn + i, sn + i, V_TMAX))
        for i in range(16):
            e("v_sub_f32 v%d, v%d, v%d" % (V_NEGM + i, V_NEGM + i, V_TMAX))
        e("v_mul_f32 v%d, v%d, v%d" % (V_LSUM, V_LSUM, V_ALPHA))
        e("v_mul_f32 v%d, v%d, v%d" % (V_LS2, V_LS2, V_ALPHA))
        for i in range(64):
            e("v_mul_f32 v%d, v%d, v%d" % (V_O + i, V_O + i, V_ALPHA))
        e("s_branch %s" % back)

    rare = []
    dispatchers = []

    def get_nonce():
        if cfg.noxchg:
            return
        lp = a.newlab("nonce")
        a.lab(lp)
        e("v_mov_b32 v1, 0")
        e("global_load_dwordx2 v[2:3], v1, %s sc1" % sr(KA_DBG, 2))
        e("s_waitcnt vmcnt(0)")
        e("v_readfirstlane_b32 %s, v2" % sr(SC_NONCE))
        e("v_readfirstlane_b32 %s, v3" % sr(SC_NONCE + 1))
        e("s_sub_u32 %s, %s, 1" % (sr(S_SPIN), sr(S_SPIN)))
        e("s_cmp_eq_u32 %s, 0" % sr(S_SPIN))
        e("s_cbranch_scc1 L_end")
        e("s_cmp_eq_u32 %s, 0" % sr(SC_NONCE))
        e("s_cbranch_scc1 %s" % lp)

    def flag_store(off_sgpr, local=False, hi=None):
        e("v_mov_b32 v2, %s" % sr(SC_NONCE))
        e("v_mov_b32 v3, %s" % sr(SC_NONCE + 1 if hi is None else hi))
        e("v_mov_b32 v1, 0")
        e("s_mov_b64 s[34:35], exec")
        e("s_mov_b64 exec, 1")
        if local and cfg.local:
            gl = a.newlab("fsg")
            dn = a.newlab("fsd")
            e("s_cmp_eq_u32 %s, 0" % sr(SC_LOCAL))
            e("s_cbranch_scc1 %s" % gl)
            e("buffer_store_dwordx2 v[2:3], v1, %s, %s offen" % (sr(SRD_WS, 4), sr(off_sgpr)))
            e("s_branch %s" % dn)
            a.lab(gl)
            e("buffer_store_dwordx2 v[2:3], v1, %s, %s offen sc1" % (sr(SRD_WS, 4), sr(off_sgpr)))
            a.lab(dn)
        else:
            e("buffer_store_dwordx2 v[2:3], v1, %s, %s offen sc1" % (sr(SRD_WS, 4), sr(off_sgpr)))
        e("s_mov_b64 exec, s[34:35]")

    def flag_poll(off_sgpr, n):
        if cfg.noxchg:
            return
        lp = a.newlab("poll")
        e("v_min_u32 v1, %d, v0" % (n - 1))
        e("v_lshlrev_b32 v1, 3, v1")
        a.lab(lp)
        e("buffer_load_dwordx2 v[2:3], v1, %s, %s offen sc1" % (sr(SRD_WS, 4), sr(off_sgpr)))
        e("s_waitcnt vmcnt(0)")
        e("v_cmp_ne_u32 vcc, %s, v2" % sr(SC_NONCE))
        e("v_cmp_ne_u32 s[34:35], %s, v3" % sr(SC_NONCE + 1))
        e("s_sub_u32 %s, %s, 1" % (sr(S_SPIN), sr(S_SPIN)))
        e("s_cmp_eq_u32 %s, 0" % sr(S_SPIN))
        e("s_cbranch_scc1 L_end")
        e("s_or_b64 vcc, vcc, s[34:35]")
        e("s_cbranch_scc1 %s" % lp)

    def flago_off(dst, ph, with_m):
        e("s_lshl_b32 %s, %s, 2" % (sr(dst), sr(S_QUAD)))
        e("s_add_u32 %s, %s, %s" % (sr(dst), sr(dst), sr(S_WAVE)))
        e("s_lshl_b32 %s, %s, 7" % (sr(dst), sr(dst)))
        e("s_add_u32 %s, %s, %d" % (sr(dst), sr(dst), WS_FLAGO + ph * 64 * 4 * 128))
        if with_m:
            e("s_lshl_b32 %s, %s, 3" % (sr(S_T0), sr(S_M)))
            e("s_add_u32 %s, %s, %s" % (sr(dst), sr(dst), sr(S_T0)))

    def load_o(ph, regs, ks):
        e("s_lshl_b32 %s, %s, 2" % (sr(S_T1), sr(S_QUAD)))
        e("s_add_u32 %s, %s, %d" % (sr(S_T1), sr(S_T1), ph * 256))
        e("s_mul_i32 %s, %s, 24576" % (sr(S_T1), sr(S_T1)))
        e("s_lshl_b32 %s, %s, 13" % (sr(S_T2), sr(S_WAVE)))
        e("s_add_u32 %s, %s, %s" % (sr(S_T1), sr(S_T1), sr(S_T2)))
        e("s_add_u32 %s, %s, %d" % (sr(S_T1), sr(S_T1), WS_OBUF))
        for k in ks:
            e("s_add_u32 %s, %s, %d" % (sr(S_T2), sr(S_M), k))
            e("s_and_b32 %s, %s, 3" % (sr(S_T2), sr(S_T2)))
            e("s_mul_i32 %s, %s, 24576" % (sr(S_T2), sr(S_T2)))
            e("s_add_u32 %s, %s, %s" % (sr(S_T2), sr(S_T2), sr(S_T1)))
            e("s_add_u32 %s, %s, 4096" % (sr(S_T3), sr(S_T2)))
            for s in range(8):
                e("buffer_load_dwordx4 %s, v%d, %s, %s offen offset:%d sc1" % (
                    ar(regs[k] + 4 * s, 4), V_L16, sr(SRD_WS, 4), sr(S_T2 if s < 4 else S_T3), (s & 3) * 1024))

    def poff(dst, ph, kq_sgpr):
        e("s_add_u32 %s, %s, %d" % (sr(dst), sr(S_G8), ph * 8))
        e("s_lshl_b32 %s, %s, 2" % (sr(dst), sr(dst)))
        e("s_add_u32 %s, %s, %s" % (sr(dst), sr(dst), sr(S_M)))
        e("s_lshl_b32 %s, %s, 3" % (sr(dst), sr(dst)))
        if kq_sgpr is not None:
            e("s_add_u32 %s, %s, %s" % (sr(dst), sr(dst), sr(kq_sgpr)))
        e("s_mul_i32 %s, %s, 24576" % (sr(dst), sr(dst)))
        e("s_lshl_b32 %s, %s, 13" % (sr(S_T0), sr(S_WAVE)))
        e("s_add_u32 %s, %s, %s" % (sr(dst), sr(dst), sr(S_T0)))
        e("s_add_u32 %s, %s, %d" % (sr(dst), sr(dst), WS_PBUF))

    def flagp_off(dst, ph, with_kq):
        e("s_add_u32 %s, %s, %d" % (sr(dst), sr(S_G8), ph * 8))
        e("s_lshl_b32 %s, %s, 2" % (sr(dst), sr(dst)))
        e("s_add_u32 %s, %s, %s" % (sr(dst), sr(dst), sr(S_M)))
        e("s_lshl_b32 %s, %s, 2" % (sr(dst), sr(dst)))
        e("s_add_u32 %s, %s, %s" % (sr(dst), sr(dst), sr(S_WAVE)))
        e("s_lshl_b32 %s, %s, 7" % (sr(dst), sr(dst)))
        e("s_add_u32 %s, %s, %d" % (sr(dst), sr(dst), WS_FLAGP))
        if with_kq:
            e("s_lshl_b32 %s, %s, 3" % (sr(S_T0), sr(S_X)))
            e("s_add_u32 %s, %s, %s" % (sr(dst), sr(dst), sr(S_T0)))

    def partial_store(acc, ph):
        poff(SC_POFF, ph, S_X)
        e("s_add_u32 %s, %s, 4096" % (sr(S_T1), sr(SC_POFF)))
        e("s_nop 3")
        for cch in range(8):
            for i in range(4):
                k = 4 * cch + i
                e("v_cvt_pk_bf16_f32 v%d, v%d, v%d" % (acc + k, acc + 2 * k, acc + 2 * k + 1))
            e("buffer_store_dwordx4 %s, v%d, %s, %s offen offset:%d sc1" % (
                vr(acc + 4 * cch, 4), V_L16, sr(SRD_WS, 4), sr(SC_POFF if cch < 4 else S_T1), (cch & 3) * 1024))

    def reduce(ph, regs):
        flagp_off(SC_FOFF, ph, False)
        flag_poll(SC_FOFF, 8)
        poff(SC_POFF, ph, None)
        e("s_lshl_b32 %s, %s, 10" % (sr(S_T1), sr(S_X)))
        e("s_add_u32 %s, %s, %s" % (sr(SC_POFF), sr(SC_POFF), sr(S_T1)))
        for kq in range(8):
            e("s_add_u32 %s, %s, %d" % (sr(S_T1), sr(SC_POFF), kq * 24576))
            e("buffer_load_dwordx4 %s, v%d, %s, %s offen sc1" % (
                vr(regs + 4 * kq, 4), V_L16, sr(SRD_WS, 4), sr(S_T1)))
        e("v_and_b32 v1, 31, v0")
        e("v_lshlrev_b32 v1, 11, v1")
        e("v_lshrrev_b32 v2, 5, v0")
        e("v_lshlrev_b32 v2, 4, v2")
        e("v_add_u32 v1, v1, v2")
        e("s_add_u32 %s, %s, %d" % (sr(S_T1), sr(S_B4), 4 * ph))
        e("s_mul_i32 %s, %s, 96" % (sr(S_T1), sr(S_T1)))
        e("s_lshl_b32 %s, %s, 5" % (sr(S_T2), sr(S_WAVE)))
        e("s_add_u32 %s, %s, %s" % (sr(S_T1), sr(S_T1), sr(S_T2)))
        e("s_lshl_b32 %s, %s, 11" % (sr(S_T1), sr(S_T1)))
        e("s_lshl_b32 %s, %s, 10" % (sr(S_T2), sr(S_BR)))
        e("s_add_u32 %s, %s, %s" % (sr(S_T1), sr(S_T1), sr(S_T2)))
        e("s_lshl_b32 %s, %s, 8" % (sr(S_T2), sr(S_M)))
        e("s_add_u32 %s, %s, %s" % (sr(S_T1), sr(S_T1), sr(S_T2)))
        e("s_lshl_b32 %s, %s, 5" % (sr(S_T2), sr(S_X)))
        e("s_add_u32 %s, %s, %s" % (sr(S_T1), sr(S_T1), sr(S_T2)))
        acc = regs + 32
        for kq in range(8):
            e("s_waitcnt vmcnt(%d)" % (7 - kq))
            for i in range(4):
                r = regs + 4 * kq + i
                if kq == 0:
                    e("v_lshlrev_b32 v%d, 16, v%d" % (acc + 2 * i, r))
                    e("v_and_b32 v%d, 0xffff0000, v%d" % (acc + 2 * i + 1, r))
                else:
                    e("v_lshlrev_b32 v%d, 16, v%d" % (acc + 8, r))
                    e("v_and_b32 v%d, 0xffff0000, v%d" % (r, r))
                    e("v_add_f32 v%d, v%d, v%d" % (acc + 2 * i, acc + 2 * i, acc + 8))
                    e("v_add_f32 v%d, v%d, v%d" % (acc + 2 * i + 1, acc + 2 * i + 1, r))
        for i in range(4):
            e("v_cvt_pk_bf16_f32 v%d, v%d, v%d" % (4 + i, acc + 2 * i, acc + 2 * i + 1))
        e("buffer_store_dwordx4 v[4:7], v1, %s, %s offen" % (sr(SRD_OUT, 4), sr(S_T1)))

    def head(ph):
        qbase = V_Q1 if ph == 0 else V_Q2
        stg = V_STG if ph == 0 else V_Q1
        xacc = V_ACCQ if ph == 0 else V_ACC1
        for i in range(64):
            e("v_mov_b32 v%d, 0" % (V_O + i))
        for i in range(64):
            e("v_mov_b32 v%d, 0" % (xacc + i))
        e("v_mov_b32 v%d, 0" % V_LSUM)
        e("v_mov_b32 v%d, 0" % V_LS2)
        wait_landed(1)
        a.extend(k_addr(SC_SLOT))
        a.extend(k_reads(A_KF))
        e("s_waitcnt lgkmcnt(0)")
        a.extend(qk_mfmas(V_SA, qbase, "0"))
        slot_adv(SC_SLOT, SC_SLOT, 1)
        wait_landed(3)
        a.extend(k_addr(SC_SLOT))
        slot_adv(SC_SLOT, SC_SLOT, 1)
        a.extend(v_addr(SC_SLOT, V_VB))
        a.extend(k_reads(A_KF))
        a.extend(v_reads(A_VF[0], False))
        slot_adv(SC_SLOT, SC_SLOT, 1)
        e("s_add_u32 %s, %s, 3" % (sr(SC_IDX), sr(SC_IDX)))
        a.extend(max_valu(V_SA))
        cross_half_max()
        for i in range(16):
            e("v_sub_f32 v%d, v%d, v%d" % (V_SA + i, V_SA + i, V_TMAX))
        e("v_sub_f32 v%d, 0, v%d" % (V_NEGM, V_TMAX))
        for i in range(1, 16):
            e("v_mov_b32 v%d, v%d" % (V_NEGM + i, V_NEGM))

        def iteration(par, kind):
            scur = V_SA if par == 0 else V_SB
            snext = V_SB if par == 0 else V_SA
            ex = ["v_exp_f32 v%d, v%d" % (scur + i, scur + i) for i in range(16)]
            ad = ["v_add_f32 v%d, v%d, v%d" % ((V_LSUM, V_LS2)[i & 1], (V_LSUM, V_LS2)[i & 1], scur + i)
                  for i in range(16)]
            cv = ["v_cvt_pk_bf16_f32 v%d, v%d, v%d" % (V_PF + k, scur + 2 * k, scur + 2 * k + 1) for k in range(8)]
            pv = pv_mfmas(A_VF[par])
            rel = release_l(SC_IDX)
            e("s_waitcnt lgkmcnt(%d)" % (15 if kind == "full" else 0))
            if kind == "full":
                qk = qk_mfmas(snext, qbase, vr(V_NEGM, 16))
                kr = k_reads(A_KF)
                r = v_reads(A_VF[par ^ 1], False)
                mx = max_valu(snext)
                cmp_ = ["v_cmp_lt_f32 vcc, %s, v%d" % (sr(SC_T), V_TMAX)]
                book = ["s_add_u32 %s, %s, %d" % (sr(SC_SLOT), sr(SC_SLOT), 2 * SLOT),
                        "s_add_u32 %s, %s, 2" % (sr(SC_IDX), sr(SC_IDX)),
                        "s_cmp_lt_u32 %s, %d" % (sr(SC_SLOT), RING),
                        "s_cselect_b32 %s, %s, 0" % (sr(SC_SLOT), sr(SC_SLOT))]
                ka = k_addr(SC_SLOT)
                va = v_addr(SC_SLOT, V_VB2)
                per = [
                    [ex[0], ex[1]] + wait_landed_l(2),
                    [ex[2], ex[3], cv[0], ka[0]],
                    [ex[4], ex[5], cv[1], ka[1]],
                    [ex[6], ex[7], cv[2], va[0]],
                    [ex[8], ex[9], cv[3], rel[0]],
                    [ex[10], ex[11], cv[4], book[0]],
                    [ex[12], ex[13], cv[5], book[1]],
                    [ex[14], ex[15], cv[6], cv[7], "s_waitcnt lgkmcnt(0)"],
                    [rel[1]] + kr[0:3] + ad[0:2],
                    kr[3:6] + ad[2:4] + book[2:3],
                    kr[6:8] + r[0:1] + ad[4:6] + book[3:4],
                    r[1:4] + ad[6:8] + mx[0:1],
                    r[4:7] + ad[8:10] + mx[1:2],
                    r[7:10] + ad[10:12] + mx[2:3],
                    r[10:13] + ad[12:14] + mx[3:5],
                    r[13:16] + ad[14:16] + mx[5:8] + cmp_,
                ]
                a.extend(gaps(qk + pv, per))
            else:
                g, tl = softmax_gaps(scur)
                if kind == "lastk":
                    a.extend(wait_landed_l(1) + v_addr(SC_SLOT, V_VB))
                    vrr = v_reads(A_VF[par ^ 1], False)
                    g = [l + vrr[2 * k:2 * k + 2] for k, l in enumerate(g)]
                    a.extend(gaps(qk_mfmas(snext, qbase, vr(V_NEGM, 16)), g))
                    a.extend(tl)
                    mx = max_valu(snext) + ["v_cmp_lt_f32 vcc, %s, v%d" % (sr(SC_T), V_TMAX)]
                    book = ["s_add_u32 %s, %s, 1" % (sr(SC_IDX), sr(SC_IDX))] + slot_adv_l(SC_SLOT, SC_SLOT, 1)
                    per = [rel, [], [], mx[0:2], mx[2:4] + book[0:1], mx[4:6] + book[1:3], mx[6:8] + book[3:5],
                           mx[8:9]]
                    a.extend(gaps(pv, per))
                else:
                    for l in g:
                        a.extend(l)
                    a.extend(tl)
                    a.extend(rel)
                    a.extend(pv)
            if kind != "final":
                r_ = a.newlab("rare")
                b_ = a.newlab("back")
                e("s_cbranch_vccnz %s" % r_)
                a.lab(b_)
                rare.append((r_, b_, snext))

        acts = []
        mask = [0]

        def at_pass(n, body):
            mask[0] |= 1 << n
            acts.append((n, body))

        if cfg.stamps:
            for nm in stl:
                if nm[0] == "ab"[ph] and nm[1:].isdigit():
                    at_pass(int(nm[1:]), lambda nm=nm: stamp(nm))
        if ph == 0:
            def nonce_issue():
                e("v_mov_b32 v1, 0")
                e("global_load_dwordx2 %s, v1, %s sc1" % (vr(V_NON, 2), sr(KA_DBG, 2)))

            def nonce_get():
                ok = a.newlab("nok")
                e("s_waitcnt vmcnt(0)")
                e("v_readfirstlane_b32 %s, v%d" % (sr(SC_NONCE), V_NON))
                e("v_readfirstlane_b32 %s, v%d" % (sr(SC_NONCE + 1), V_NON + 1))
                e("s_nop 3")
                e("s_cmp_lg_u32 %s, 0" % sr(SC_NONCE))
                e("s_cbranch_scc1 %s" % ok)
                get_nonce()
                a.lab(ok)
                e("s_getreg_b32 %s, hwreg(HW_REG_XCC_ID)" % sr(SC_XCC))
                e("s_and_b32 %s, %s, 15" % (sr(SC_XCC), sr(SC_XCC)))
                e("s_add_u32 %s, %s, %s" % (sr(SC_XCC), sr(SC_XCC), sr(SC_NONCE + 1)))
                e("s_lshl_b32 %s, %s, 7" % (sr(SC_IDOFF), sr(S_QUAD)))
                e("s_add_u32 %s, %s, %d" % (sr(SC_IDOFF), sr(SC_IDOFF), WS_FLAGI))
                e("s_mov_b32 %s, 0" % sr(SC_LOCAL))
                if cfg.local:
                    sk = a.newlab("idsk")
                    e("s_cmp_eq_u32 %s, 0" % sr(S_WAVE))
                    e("s_cbranch_scc0 %s" % sk)
                    e("s_lshl_b32 %s, %s, 3" % (sr(S_T1), sr(S_M)))
                    e("s_add_u32 %s, %s, %s" % (sr(S_T1), sr(S_T1), sr(SC_IDOFF)))
                    flag_store(S_T1, hi=SC_XCC)
                    a.lab(sk)

            def id_issue():
                e("v_min_u32 v1, 3, v0")
                e("v_lshlrev_b32 v1, 3, v1")
                e("buffer_load_dwordx2 %s, v1, %s, %s offen sc1" % (vr(V_NON, 2), sr(SRD_WS, 4), sr(SC_IDOFF)))

            def id_check():
                e("s_waitcnt vmcnt(0)")
                e("v_cmp_ne_u32 vcc, %s, v%d" % (sr(SC_NONCE), V_NON))
                e("v_cmp_ne_u32 s[34:35], %s, v%d" % (sr(SC_XCC), V_NON + 1))
                e("s_nop 3")
                e("s_or_b64 vcc, vcc, s[34:35]")
                e("s_cselect_b32 %s, 0, 1" % sr(SC_LOCAL))
            if not cfg.noxchg:
                at_pass(1, nonce_issue)
                at_pass(4, nonce_get)
                if cfg.local:
                    at_pass(10, id_issue)
                    at_pass(13, id_check)
        else:
            def p1b():
                stamp("g0")
                e("s_waitcnt vmcnt(0)")
                flago_off(SC_FOFF, 0, True)
                flag_store(SC_FOFF, local=True)
                stamp("g1")
            if not cfg.noxchg:
                at_pass(cfg.flagpass, p1b)
        e("s_mov_b32 %s, 0x%x" % (sr(SC_EVM), mask[0]))
        e("s_mov_b32 %s, 0" % sr(SC_IT))
        lp = a.newlab("attn")
        a.lab(lp)
        iteration(0, "full")
        iteration(1, "full")
        e("s_add_u32 %s, %s, 1" % (sr(SC_IT), sr(SC_IT)))
        evd = a.newlab("evdisp")
        evdb = a.newlab("evdback")
        blk = a.newlab("blk")
        blkr = a.newlab("blkret")
        e("s_bitcmp1_b32 %s, 0" % sr(SC_IT))
        e("s_cbranch_scc1 %s" % blk)
        a.lab(blkr)
        e("s_bitcmp1_b32 %s, %s" % (sr(SC_EVM), sr(SC_IT)))
        e("s_cbranch_scc1 %s" % evd)
        a.lab(evdb)
        e("s_cmp_lt_u32 %s, 15" % sr(SC_IT))
        e("s_cbranch_scc1 %s" % lp)

        def dispatcher(ph=ph, evd=evd, evdb=evdb, acts=acts, blk=blk, blkr=blkr):
            a.lab(evd)
            for n, body in acts:
                sk = a.newlab("noev")
                e("s_cmp_eq_u32 %s, %d" % (sr(SC_IT), n))
                e("s_cbranch_scc0 %s" % sk)
                body()
                a.lab(sk)
            e("s_branch %s" % evdb)
            a.lab(blk)
            xacc = V_ACCQ if ph == 0 else V_ACC1
            blkb = a.newlab("blkB")

            def double_chunk(j0):
                def mfs(q):
                    return ["%s %s, %s, %s, %s" % (
                        MFMA, vr(xacc + 16 * db, 16), ar(A_AF[q] + (ks * 4 + db) * 4, 4),
                        ar(A_XF[0] + (2 * (j0 + q) + ks) * 4, 4), vr(xacc + 16 * db, 16))
                        for ks in range(2) for db in range(4)]
                wait_landed(2)
                a.extend(v_addr(SC_SLOT, V_WB))
                ra = v_reads(A_AF[0], True)
                a.extend(ra)
                slot_adv(SC_SLOT, SC_SLOT, 1)
                e("s_waitcnt lgkmcnt(8)")
                rb = v_reads(A_AF[1], True)
                m0 = mfs(0)
                per = [v_addr(SC_SLOT, V_WB) if False else [] for _ in range(8)]
                per[0] = v_addr(SC_SLOT, V_WB) + rb[0:2]
                per[1] = rb[2:4] + ["s_waitcnt lgkmcnt(4)"]
                per[2] = rb[4:7]
                per[3] = rb[7:10]
                per[4] = rb[10:13]
                per[5] = rb[13:16]
                adv = slot_adv_l(SC_SLOT, SC_SLOT, 1) + ["s_add_u32 %s, %s, 2" % (sr(SC_IDX), sr(SC_IDX))]
                per[6] = adv[0:3]
                per[7] = adv[3:5]
                a.extend(gaps(m0, per))
                e("s_waitcnt lgkmcnt(0)")
                m1 = mfs(1)
                a.extend(gaps(m1, [release_l(SC_IDX)] + [[] for _ in range(7)]))
            e("s_bitcmp1_b32 %s, 1" % sr(SC_IT))
            e("s_cbranch_scc1 %s" % blkb)
            nox = a.newlab("nox")
            if ph == 1:
                e("s_cmp_eq_u32 %s, 1" % sr(SC_IT))
                e("s_cbranch_scc1 %s" % nox)
            wait_landed(3)
            a.extend(wave_slot(SC_SLOT2, 0))
            if ph == 0:
                a.extend(k_addr(SC_SLOT2))
                a.extend(k_reads(A_XF[0]))
            else:
                e("v_add_u32 v%d, %s, v%d" % (V_KA, sr(SC_SLOT2), V_L16))
                for s_ in range(8):
                    e("ds_read_b128 %s, v%d offset:%d" % (ar(A_XF[0] + 4 * s_, 4), V_KA, s_ * BLK))
            e("s_add_u32 %s, %s, 4" % (sr(SC_IDX), sr(SC_IDX)))
            slot_adv(SC_SLOT, SC_SLOT, 4)
            a.lab(nox)
            double_chunk(0)
            e("s_branch %s" % blkr)
            a.lab(blkb)
            double_chunk(2)
            e("s_branch %s" % blkr)
        dispatchers.append(dispatcher)
        if ph == 0:
            q_convert(V_Q2)
        else:
            e("s_nop 7")
            partial_store(V_ACC1, 0)
        iteration(0, "lastk")
        iteration(1, "final")
        stamp("f%d" % ph)
        e("v_add_f32 v%d, v%d, v%d" % (V_LSUM, V_LSUM, V_LS2))
        e("v_mov_b32 v%d, v%d" % (V_LS2, V_LSUM))
        e("s_nop 1")
        e("v_permlane32_swap_b32 v%d, v%d" % (V_LSUM, V_LS2))
        e("s_nop 1")
        e("v_add_f32 v%d, v%d, v%d" % (V_LSUM, V_LSUM, V_LS2))
        e("v_rcp_f32 v%d, v%d" % (V_ALPHA, V_LSUM))
        e("s_lshl_b32 %s, %s, 2" % (sr(S_T1), sr(S_QUAD)))
        e("s_add_u32 %s, %s, %s" % (sr(S_T1), sr(S_T1), sr(S_M)))
        e("s_add_u32 %s, %s, %d" % (sr(S_T1), sr(S_T1), ph * 256))
        e("s_mul_i32 %s, %s, 24576" % (sr(S_T1), sr(S_T1)))
        e("s_lshl_b32 %s, %s, 13" % (sr(S_T2), sr(S_WAVE)))
        e("s_add_u32 %s, %s, %s" % (sr(S_T1), sr(S_T1), sr(S_T2)))
        e("s_add_u32 %s, %s, %d" % (sr(SC_OOFF), sr(S_T1), WS_OBUF))
        e("s_add_u32 %s, %s, 4096" % (sr(SC_OOFF2), sr(SC_OOFF)))
        e("s_nop 3")

        def ostores(flav):
            for s in range(8):
                for k in range(4):
                    i = 4 * s + k
                    e("v_mul_f32 v%d, v%d, v%d" % (V_O + 2 * i, V_O + 2 * i, V_ALPHA))
                    e("v_mul_f32 v%d, v%d, v%d" % (V_O + 2 * i + 1, V_O + 2 * i + 1, V_ALPHA))
                    e("v_cvt_pk_bf16_f32 v%d, v%d, v%d" % (stg + i, V_O + 2 * i, V_O + 2 * i + 1))
                e("buffer_store_dwordx4 %s, v%d, %s, %s offen offset:%d %s" % (
                    vr(stg + 4 * s, 4), V_L16, sr(SRD_WS, 4), sr(SC_OOFF if s < 4 else SC_OOFF2),
                    (s & 3) * 1024, flav))
        if cfg.local:
            gl = a.newlab("osg")
            dn = a.newlab("osd")
            e("s_cmp_eq_u32 %s, 0" % sr(SC_LOCAL))
            e("s_cbranch_scc1 %s" % gl)
            ostores("")
            e("s_branch %s" % dn)
            a.lab(gl)
            ostores("sc1")
            a.lab(dn)
        else:
            ostores("sc1")

    def ccnt(name):
        if cfg.stamps:
            for k, nm in enumerate(stl):
                if nm == name:
                    e("s_mov_b32 %s, %s" % (sr(S_ST + 2 * k), sr(SC_SWC)))
    ccnt("cq")
    head(0)
    for i in range(32):
        e("v_accvgpr_write_b32 a%d, v%d" % (A_XF[0] + i, V_STG + i))
    stamp("h0")
    ccnt("c0")
    head(1)
    stamp("h1")
    ccnt("c1")

    def task(acc, bfrag, first, hooks):
        if first:
            wait_landed(1)
        a.extend(v_addr(SC_SLOT, V_WB))
        a.extend(v_reads(A_AF[0], True))
        e("s_add_u32 %s, %s, 1" % (sr(SC_IDX), sr(SC_IDX)))
        slot_adv(SC_SLOT, SC_SLOT, 1)
        fullwait = True
        for cidx in range(16):
            r, j = divmod(cidx, 4)
            mf = []
            for ks in range(2):
                for db in range(4):
                    cin = "0" if (cidx == 0 and ks == 0) else vr(acc + 16 * db, 16)
                    mf.append("%s %s, %s, %s, %s" % (
                        MFMA, vr(acc + 16 * db, 16), ar(A_AF[cidx & 1] + (ks * 4 + db) * 4, 4),
                        bfrag(r, 2 * j + ks), cin))
            per = [[] for _ in range(8)]
            if cidx == 15:
                fullwait = True
            if fullwait:
                e("s_waitcnt lgkmcnt(0)")
            if cidx < 15:
                wr = v_reads(A_AF[(cidx + 1) & 1], True)
                adv = ["s_add_u32 %s, %s, 1" % (sr(SC_IDX), sr(SC_IDX))] + slot_adv_l(SC_SLOT, SC_SLOT, 1)
                chk = wait_landed_l(1) if first else []
                per[0] = chk + v_addr(SC_SLOT, V_WB) + wr[0:2]
                per[1] = wr[2:4] + adv[0:2]
                per[2] = wr[4:6] + adv[2:4]
                per[3] = wr[6:8] + adv[4:5]
                per[4] = wr[8:10]
                per[5] = wr[10:12]
                per[6] = wr[12:14]
                per[7] = wr[14:16]
            if not fullwait:
                for g in (1, 3, 5):
                    per[g] = per[g] + ["s_waitcnt lgkmcnt(12)"]
                e("s_waitcnt lgkmcnt(12)")
            a.extend(gaps(mf, per))
            fullwait = False
            if hooks.get(cidx):
                hooks[cidx]()
                fullwait = True

    ACC2 = 128

    def hk_after_round0():
        e("s_waitcnt vmcnt(0)")
        flago_off(SC_FOFF, 1, True)
        flag_store(SC_FOFF, local=True)
        flagp_off(SC_FOFF, 0, True)
        flag_store(SC_FOFF)
        flago_off(SC_FOFF, 1, False)
        flag_poll(SC_FOFF, 4)
        load_o(1, A_OF2, [1, 2, 3])
        e("s_waitcnt vmcnt(16)")
        stamp("t1")

    task(ACC2, lambda r, s: vr(V_Q1 + 4 * s, 4) if r == 0 else ar(A_OF2[r] + 4 * s, 4), True,
         {3: hk_after_round0, 7: lambda: e("s_waitcnt vmcnt(8)"), 11: lambda: e("s_waitcnt vmcnt(0)")})
    e("s_nop 7")
    partial_store(ACC2, 1)
    stamp("t2")
    e("s_waitcnt vmcnt(0)")
    stamp("w0")
    flagp_off(SC_FOFF, 1, True)
    flag_store(SC_FOFF)
    reduce(0, V_O)
    stamp("r0")
    reduce(1, V_O)
    e("s_waitcnt vmcnt(0)")
    stamp("r1")

    a.lab("L_fin")
    savef = a.filt
    a.filt = None
    if cfg.dbgstamps:
        dsk = a.newlab("dbgsk")
        e("s_waitcnt lgkmcnt(0)")
        e("s_mov_b32 s28, -1")
        e("s_cmp_eq_u32 s2, 0")
        e("s_cselect_b32 s28, 0, s28")
        e("s_cmp_eq_u32 s2, 129")
        e("s_cselect_b32 s28, 1, s28")
        e("s_cmp_eq_u32 s28, -1")
        e("s_cbranch_scc1 %s" % dsk)
        e("s_cmp_eq_u32 %s, 0" % sr(S_WAVE))
        e("s_cbranch_scc1 %s" % (dsk + "a"))
        e("s_cmp_eq_u32 %s, 3" % sr(S_WAVE))
        e("s_cbranch_scc0 %s" % dsk)
        e("s_cmp_eq_u32 s28, 0")
        e("s_cbranch_scc0 %s" % dsk)
        e("s_mov_b32 s28, 2")
        a.lab(dsk + "a")
        e("s_lshl_b32 s28, s28, 4")
        e("s_add_u32 s28, s28, 16")
        e("v_mov_b32 v1, s28")
        for j in range(4):
            e("s_sub_u32 s29, s%d, s%d" % (S_ST + 2 * (j + 1) + (2 * 3 if j == 3 else 0), S_ST))
            e("v_mov_b32 v%d, s29" % (4 + j))
        e("s_mov_b64 exec, 1")
        e("global_store_dwordx4 v1, v[4:7], %s" % sr(KA_DBG, 2))
        e("s_waitcnt vmcnt(0)")
        a.lab(dsk)
        e("s_branch L_end")
    if cfg.stamps:
        e("s_waitcnt lgkmcnt(0)")
        for k, nm in enumerate(stl):
            if nm == "loc":
                e("s_mov_b32 %s, %s" % (sr(S_ST + 2 * k), sr(SC_LOCAL)))
        e("s_lshl_b32 s28, s2, 9")
        e("s_lshl_b32 s29, %s, 7" % sr(S_WAVE))
        e("s_add_u32 s28, s28, s29")
        e("s_add_u32 s28, s28, 0x%x" % WS_STAMP)
        e("v_mov_b32 v1, s28")
        e("s_getreg_b32 s30, hwreg(HW_REG_XCC_ID)")
        e("s_mov_b64 exec, 1")
        for k in range(4):
            for j in range(4):
                e("v_mov_b32 v%d, s%d" % (4 + j, S_ST + 4 * k + j))
            e("global_store_dwordx4 v1, v[4:7], %s offset:%d" % (sr(KA_WS, 2), 16 * k))
            e("s_waitcnt vmcnt(0)")
        e("v_mov_b32 v4, s30")
        e("global_store_dword v1, v4, %s offset:64" % sr(KA_WS, 2))
        e("s_waitcnt vmcnt(0)")
    a.lab("L_end")
    e("s_endpgm")
    a.filt = savef

    for r, b, sn in rare:
        rare_path(r, b, sn)
    for d in dispatchers:
        d()
    for slow, back in slowwaits:
        a.lab(slow)
        if cfg.stamps:
            e("s_add_u32 %s, %s, 1" % (sr(SC_SWC), sr(SC_SWC)))
        e("ds_read_b32 v%d, v%d" % (V_LRD, V_LADDR))
        e("s_waitcnt lgkmcnt(0)")
        e("v_readfirstlane_b32 %s, v%d" % (sr(SC_L), V_LRD))
        e("s_sub_u32 %s, %s, 1" % (sr(S_SPIN), sr(S_SPIN)))
        e("s_cmp_eq_u32 %s, 0" % sr(S_SPIN))
        e("s_cbranch_scc1 L_end")
        e("s_cmp_lt_u32 %s, %s" % (sr(SC_L), sr(SC_NEED)))
        if cfg.psleep:
            e("s_cbranch_scc0 %s" % back)
            e("s_sleep %d" % cfg.psleep)
            e("s_branch %s" % slow)
        else:
            e("s_cbranch_scc1 %s" % slow)
            e("s_branch %s" % back)
    txt = a.text()

    kd = []
    kd.append('.section .rodata,"a"')
    kd.append(".p2align 6")
    kd.append(".amdhsa_kernel %s_kernel" % NAME)
    kd.append("  .amdhsa_next_free_vgpr 512")
    kd.append("  .amdhsa_next_free_sgpr 102")
    kd.append("  .amdhsa_accum_offset 256")
    kd.append("  .amdhsa_group_segment_fixed_size 0")
    kd.append("  .amdhsa_kernarg_size 104")
    kd.append("  .amdhsa_user_sgpr_count 2")
    kd.append("  .amdhsa_user_sgpr_kernarg_segment_ptr 1")
    kd.append("  .amdhsa_system_sgpr_workgroup_id_x 1")
    kd.append(".end_amdhsa_kernel")
    return "\n".join(hdr) + "\n" + txt + "\n".join(kd) + "\n"


if __name__ == "__main__":
    import argparse
    ap = argparse.ArgumentParser()
    ap.add_argument("-o", default="cdna_kernels/%s.s" % NAME)
    ap.add_argument("--stamps", action="store_true")
    ap.add_argument("--set", action="append", default=[])
    args = ap.parse_args()
    cfg = Cfg()
    cfg.stamps = args.stamps
    for kv in args.set:
        k, v = kv.split("=", 1)
        cur = getattr(cfg, k)
        if isinstance(cur, bool):
            v = v in ("1", "True", "true")
        elif isinstance(cur, int):
            v = int(v)
        elif isinstance(cur, float):
            v = float(v)
        setattr(cfg, k, v)
    open(args.o, "w").write(build(cfg))
    print("wrote", args.o)
```

```python
import math
import struct

NAME = "concat_heads__mha_block_cached__gqa_block_cached__near_ridge"


def f32bits(x):
    return struct.unpack("<I", struct.pack("<f", x))[0]


class Cfg:
    NS = 18
    NQ = 11
    E = 7
    D = 5
    deven = 5
    dodd = 5
    polllead = 3
    stamps = False
    T_LOG2 = 8.0
    kvflags = "nt"
    wflags = ""
    woflags = ""
    xflags = ""
    kvsame = False
    noload = False
    nocompute = False
    noxchg = False
    stamplist = "start,qp,h0,h1,t1,t2,r0,r1"
    po_base = 10
    po_mul = 4
    pft = 20
    prefetch = True
    ytype = 1
    spin = 0x80000
    local = True
    psleep = 0
    dumpq = False
    wsbase = 0
    oflags = "sc1"
    wo2flags = ""
    wq2flags = ""
    x2flags = ""
    stflags = "sc1"
    flagpass = 2
    mix = 0
    dbgstamps = False
    ablate = ""


BLK = 1088
SLOT = 8 * BLK
NQT = 28
WS_FLAGO = 0
WS_FLAGP = 65536
WS_FLAGI = 131072
WS_OBUF = 1 << 20
WS_PBUF = 16 << 20
WS_STAMP = 28 << 20
WS_USED = 32 << 20


def vr(base, n=1):
    return "v%d" % base if n == 1 else "v[%d:%d]" % (base, base + n - 1)


def ar(base, n=1):
    return "a%d" % base if n == 1 else "a[%d:%d]" % (base, base + n - 1)


def sr(base, n=1):
    return "s%d" % base if n == 1 else "s[%d:%d]" % (base, base + n - 1)


class Asm:
    def __init__(self):
        self.L = []
        self.nlab = 0
        self.filt = None

    def e(self, s):
        if self.filt and self.filt(s):
            return
        self.L.append("  " + s)

    def lab(self, name):
        self.L.append(name + ":")

    def newlab(self, base):
        self.nlab += 1
        return "L%s_%d" % (base, self.nlab)

    def extend(self, lst):
        for s in lst:
            if s.endswith(":"):
                self.lab(s[:-1])
            else:
                self.e(s)

    def text(self):
        return "\n".join(self.L) + "\n"


def gaps(primary, per_gap):
    out = []
    for p, f in zip(primary, per_gap):
        out.append(p)
        out.extend(f)
    return out


S_WG = 2
S_WAVE = 3
S_X, S_M, S_G8, S_QUAD, S_H = 20, 21, 22, 24, 25
S_SPIN = 26
S_TAU = 27
S_T0, S_T1, S_T2, S_T3 = 28, 29, 30, 31
S_RET = 32
KA_X, KA_K, KA_V, KA_WQ, KA_WO = 36, 38, 40, 42, 44
S_B4, S_BR = 46, 47
KA_OUT, KA_DBG, KA_WS = 56, 58, 60
SL_ISS, SL_PUB, SL_FMIN, SL_SLOT, SL_NEED, SL_OFF, SL_OFF2, SL_CNT, SL_CNT2, SL_KOFF, SL_VOFF, SL_ROT = range(4, 16)
SL_RET2 = 16
SL_XB, SL_WB = 18, 19
SL_NADJ = 23
SL_QSLOT = 48
SL_EVM = 49
SL_NONCE = 34
SL_THR = 50
SL_WFC = 51
SL_RND = 52
SRD_X, SRD_K, SRD_V, SRD_WQ, SRD_WO = 64, 68, 72, 76, 80
SC_L, SC_SLOT, SC_IDX, SC_IT, SC_T, SC_NEED, SC_SLOT2, SC_ADJ = range(4, 12)
SC_OOFF, SC_OOFF2, SC_FOFF, SC_POFF = 12, 13, 14, 15
SC_NONCE = 16
SC_RET2 = 18
SC_WRAP, SC_LOCAL, SC_XCC, SC_IDOFF, SC_EVM, SC_PADJ, SC_SAVE, SC_SWC = 72, 73, 74, 75, 76, 77, 78, 79
SRD_WS, SRD_OUT = 64, 68
S_ST = 84

V_KB = 8
V_VB = 10
V_WB = 11
V_KA = 12
V_VA = 14
V_L16 = 15
V_LSUM, V_LS2, V_TMAX, V_ALPHA, V_FV, V_LADDR, V_FADDR, V_LRD = range(17, 25)
V_VB2 = 25
V_NON = 26
V_PF = 32
V_NEGM = 48
V_O = 64
V_SA = 128
V_SB = 144
V_ACCQ = 160
V_Q2 = 160
V_STG = 192
V_Q1 = 224
V_ACC1 = 192
A_AF = [0, 32]
A_KF = 64
A_VF = [96, 128]
A_XF = [160, 192]
A_OF2 = [None, 64, 96, 128]
MFMA = "v_mfma_f32_32x32x16_bf16"


def build(cfg):
    NS, D, NQ, E = cfg.NS, cfg.D, cfg.NQ, cfg.E
    assert NS == NQ + E and NS % 2 == 0 and (NQ + 3) % 2 == 0
    RING = NS * SLOT
    FLAG_L = RING
    FLAG_F = RING + 16
    LDS_BYTES = RING + 64
    a = Asm()
    e = a.e
    hdr = []
    hdr.append("; @launch grid=(256,1,1) block=(256,1,1) lds=%d" % LDS_BYTES)
    hdr.append('.amdgcn_target "amdgcn-amd-amdhsa--gfx950"')
    hdr.append(".text")
    hdr.append(".globl %s_kernel" % NAME)
    hdr.append(".p2align 8")
    hdr.append(".type %s_kernel,@function" % NAME)
    hdr.append("%s_kernel:" % NAME)
    stl = cfg.stamplist.split(",")

    def stamp(name):
        if cfg.stamps:
            for k, nm in enumerate(stl):
                if nm == name:
                    e("s_memrealtime %s" % sr(S_ST + 2 * k, 2))
                if nm == name + ".c":
                    e("s_memtime %s" % sr(S_ST + 2 * k, 2))

    def cnt(name):
        if cfg.stamps:
            for k, nm in enumerate(stl):
                if nm == name:
                    e("s_mov_b32 %s, %s" % (sr(S_ST + 2 * k), sr(SL_WFC)))

    e("s_cmp_ge_u32 s2, 256")
    e("s_cbranch_scc1 L_end")
    e("s_load_dwordx16 s[36:51], s[0:1], 0")
    e("s_load_dwordx4 s[52:55], s[0:1], 64")
    e("s_load_dwordx4 s[56:59], s[0:1], 80")
    e("s_load_dwordx2 s[60:61], s[0:1], 96")
    stamp("start")
    e("v_lshrrev_b32 v1, 6, v0")
    e("v_and_b32 v0, 63, v0")
    e("s_and_b32 %s, s2, 7" % sr(S_X))
    e("v_readfirstlane_b32 %s, v1" % sr(S_WAVE))
    e("s_lshr_b32 s28, s2, 3")
    e("s_and_b32 %s, s28, 3" % sr(S_M))
    e("s_lshr_b32 %s, s28, 2" % sr(S_G8))
    e("s_lshl_b32 %s, %s, 2" % (sr(S_H), sr(S_X)))
    e("s_add_u32 %s, %s, %s" % (sr(S_H), sr(S_H), sr(S_M)))
    e("s_lshl_b32 %s, %s, 3" % (sr(S_QUAD), sr(S_G8)))
    e("s_add_u32 %s, %s, %s" % (sr(S_QUAD), sr(S_QUAD), sr(S_X)))
    e("s_mov_b32 %s, 0x%x" % (sr(S_SPIN), cfg.spin))
    e("s_lshl_b32 %s, %s, 1" % (sr(S_TAU), sr(S_M)))
    e("s_and_b32 s29, %s, 1" % sr(S_X))
    e("s_add_u32 %s, %s, s29" % (sr(S_TAU), sr(S_TAU)))
    e("s_mul_i32 %s, %s, %d" % (sr(S_TAU), sr(S_TAU), cfg.po_mul))
    e("s_lshr_b32 %s, %s, 3" % (sr(S_TAU), sr(S_TAU)))
    e("s_add_u32 %s, %s, %d" % (sr(S_TAU), sr(S_TAU), cfg.po_base))
    e("s_cmp_lt_u32 %s, 4" % sr(S_G8))
    e("s_waitcnt lgkmcnt(0)")
    for k in range(10):
        e("s_cselect_b32 s%d, s%d, s%d" % (36 + k, 36 + k, 46 + k))
    e("s_and_b32 %s, %s, 3" % (sr(S_B4), sr(S_G8)))
    e("s_lshr_b32 %s, %s, 2" % (sr(S_BR), sr(S_G8)))
    e("s_cmp_eq_u32 %s, 3" % sr(S_WAVE))
    e("s_cbranch_scc0 L_compute")

    def srd(dst, ptr, nbytes):
        e("s_mov_b32 %s, %s" % (sr(dst), sr(ptr)))
        e("s_mov_b32 %s, %s" % (sr(dst + 1), sr(ptr + 1)))
        e("s_mov_b32 %s, 0x%x" % (sr(dst + 2), nbytes))
        e("s_mov_b32 %s, 0x20000" % sr(dst + 3))

    a.lab("L_loader")
    e("s_setprio 3")
    LV_K, LV_V, LV_X, LV_WQ, LV_WO, LV_T, LV_LADDR, LV_FADDR, LV_F = 8, 12, 16, 20, 24, 28, 29, 30, 32
    LV_O, LV_FL, LV_NON, LV_FA = 36, 200, 202, 204
    BIAS = 4096
    NB_X, NB_KV, NB_W = 8 * 96 * 512 * 2, 8 * 32 * 1024 * 128 * 2, 512 * 4096 * 2

    def srdb(dst, ptr, nbytes):
        e("s_sub_u32 %s, %s, %d" % (sr(dst), sr(ptr), BIAS))
        e("s_subb_u32 %s, %s, 0" % (sr(dst + 1), sr(ptr + 1)))
        e("s_mov_b32 %s, 0x%x" % (sr(dst + 2), nbytes + BIAS))
        e("s_mov_b32 %s, 0x20000" % sr(dst + 3))

    e("v_lshrrev_b32 v1, 4, v0")
    e("v_and_b32 v2, 15, v0")
    e("v_xor_b32 v3, v2, v1")
    e("v_lshlrev_b32 v3, 4, v3")
    e("v_lshlrev_b32 v2, 4, v2")
    e("v_lshlrev_b32 v4, 12, v1")
    e("v_lshlrev_b32 v5, 15, v1")
    e("v_lshlrev_b32 v6, 10, v1")

    def lane_offs(dst, rowpart, colpart, rs):
        e("v_add_u32 v%d, v%d, v%d" % (dst, rowpart, colpart))
        for b in range(3, 0, -1):
            e("v_add_u32 v%d, %d, v%d" % (dst + b, BIAS + b * (rs - BLK), dst))
        e("v_add_u32 v%d, %d, v%d" % (dst, BIAS, dst))

    srdb(SRD_X, KA_X, NB_X)
    srdb(SRD_WQ, KA_WQ, NB_W)
    lane_offs(LV_X, 4, 3, 1024)
    lane_offs(LV_WQ, 5, 2, 8192)
    e("s_getreg_b32 %s, hwreg(HW_REG_XCC_ID)" % sr(SL_THR))
    e("s_and_b32 %s, %s, 1" % (sr(SL_THR), sr(SL_THR)))
    if cfg.deven < cfg.dodd:
        e("s_xor_b32 %s, %s, 1" % (sr(SL_THR), sr(SL_THR)))
    e("v_mov_b32 v%d, %d" % (LV_LADDR, FLAG_L))
    e("v_mov_b32 v%d, %d" % (LV_FADDR, FLAG_F))
    e("v_mov_b32 v%d, 0" % LV_T)
    e("ds_write_b32 v%d, v%d" % (LV_LADDR, LV_T))
    e("s_mov_b32 %s, 0" % sr(SL_ISS))
    e("s_mov_b32 %s, 0" % sr(SL_PUB))
    e("s_mov_b32 %s, 0" % sr(SL_FMIN))
    e("s_mov_b32 %s, 0" % sr(SL_SLOT))
    e("s_mov_b32 %s, -1" % sr(SL_NEED))
    e("s_mov_b32 %s, 0" % sr(SL_WFC))
    e("s_add_u32 %s, %s, %s" % (sr(SL_ROT), sr(S_B4), sr(S_M)))
    e("s_and_b32 %s, %s, 3" % (sr(SL_ROT), sr(SL_ROT)))
    if cfg.noload:
        e("v_mov_b32 v%d, 100000" % LV_T)
        e("s_waitcnt lgkmcnt(0)")
        e("ds_write_b32 v%d, v%d" % (LV_LADDR, LV_T))
        e("s_waitcnt lgkmcnt(0)")
        e("s_barrier")
        e("s_branch L_fin")

    ool = []

    def publish_nb():
        e("s_getreg_b32 %s, hwreg(HW_REG_IB_STS)" % sr(S_T0))
        e("s_lshr_b32 %s, %s, 18" % (sr(S_T1), sr(S_T0)))
        e("s_and_b32 %s, %s, 15" % (sr(S_T0), sr(S_T0)))
        e("s_and_b32 %s, %s, 0x30" % (sr(S_T1), sr(S_T1)))
        e("s_add_u32 %s, %s, %s" % (sr(S_T0), sr(S_T0), sr(S_T1)))
        e("s_add_u32 %s, %s, 7" % (sr(S_T0), sr(S_T0)))
        e("s_lshr_b32 %s, %s, 3" % (sr(S_T0), sr(S_T0)))
        e("s_sub_i32 %s, %s, %s" % (sr(SL_PUB), sr(SL_ISS), sr(S_T0)))
        e("v_mov_b32 v%d, %s" % (LV_T, sr(SL_PUB)))
        e("ds_write_b32 v%d, v%d" % (LV_LADDR, LV_T))

    def issue_tile(srdreg, voff, rs, flags, wrap, nowait=False, check=True):
        if check:
            e("s_cmp_ge_i32 %s, %s" % (sr(SL_FMIN), sr(SL_NEED)))
            slow = a.newlab("lslow")
            ok = a.newlab("ok")
            e("s_cbranch_scc0 %s" % slow)
            a.lab(ok)
            ool.append((slow, ok))

        def ld(b):
            e("buffer_load_dwordx4 v%d, %s, %s offen offset:%d %s lds" % (
                voff + (b & 3), sr(srdreg, 4), sr(SL_OFF if b < 4 else SL_OFF2), (b & 3) * BLK, flags))
        e("s_mov_b32 m0, %s" % sr(SL_SLOT))
        e("s_add_u32 %s, %s, %d" % (sr(SL_OFF2), sr(SL_OFF), 16 * rs))
        ld(0)
        ld(1)
        ld(2)
        e("s_add_u32 %s, %s, 1" % (sr(SL_ISS), sr(SL_ISS)))
        ld(3)
        e("s_add_u32 m0, %s, %d" % (sr(SL_SLOT), 4 * BLK))
        e("s_add_u32 %s, %s, %d" % (sr(SL_SLOT), sr(SL_SLOT), SLOT))
        ld(4)
        e("s_cmp_lt_u32 %s, %d" % (sr(SL_SLOT), wrap))
        e("s_cselect_b32 %s, %s, 0" % (sr(SL_SLOT), sr(SL_SLOT)))
        ld(5)
        e("s_sub_i32 %s, %s, %s" % (sr(SL_NEED), sr(SL_ISS), sr(SL_NADJ)))
        ld(6)
        if cfg.deven != cfg.dodd:
            e("s_cmp_eq_u32 %s, 0" % sr(SL_THR))
        ld(7)
        if not nowait:
            dmax, dmin = max(cfg.deven, cfg.dodd), min(cfg.deven, cfg.dodd)
            e("s_waitcnt vmcnt(%d)" % (8 * dmax))
            if dmin != dmax:
                sk = a.newlab("thr")
                e("s_cbranch_scc1 %s" % sk)
                e("s_waitcnt vmcnt(%d)" % (8 * dmin))
                a.lab(sk)
            publish_nb()

    def qp_round(first_nowait=0):
        n = 0

        def after():
            if first_nowait and n == first_nowait:
                e("s_waitcnt lgkmcnt(0)")
                e("s_barrier")
        for w in range(3):
            e("s_add_u32 %s, %s, %d" % (sr(SL_OFF), sr(SL_XB), w * 32 * 1024))
            issue_tile(SRD_X, LV_X, 1024, cfg.xflags, NQ * SLOT, nowait=(n < first_nowait))
            n += 1
            after()
        for j in range(4):
            e("s_add_u32 %s, %s, %d" % (sr(SL_OFF), sr(SL_WB), j * 32 * 8192))
            issue_tile(SRD_WQ, LV_WQ, 8192, cfg.wflags, NQ * SLOT, nowait=(n < first_nowait))
            n += 1
            after()

    def qp_bases(ph, rnd):
        e("s_add_u32 %s, %s, %s" % (sr(S_T1), sr(SL_ROT), sr(rnd)))
        e("s_and_b32 %s, %s, 3" % (sr(S_T1), sr(S_T1)))
        e("s_lshl_b32 %s, %s, 8" % (sr(S_T2), sr(S_T1)))
        e("s_mul_i32 %s, %s, %d" % (sr(SL_XB), sr(S_B4), 96 * 1024))
        e("s_add_u32 %s, %s, %s" % (sr(SL_XB), sr(SL_XB), sr(S_T2)))
        if ph:
            e("s_add_u32 %s, %s, %d" % (sr(SL_XB), sr(SL_XB), 4 * 96 * 1024))
        e("s_lshl_b32 %s, %s, 20" % (sr(S_T2), sr(S_T1)))
        e("s_lshl_b32 %s, %s, 8" % (sr(SL_WB), sr(S_H)))
        e("s_add_u32 %s, %s, %s" % (sr(SL_WB), sr(SL_WB), sr(S_T2)))

    kvf = "" if cfg.kvsame else cfg.kvflags
    e("s_mov_b32 %s, %d" % (sr(SL_NADJ), NQ - 1))
    e("s_mov_b32 %s, 0" % sr(SL_CNT))
    qp_bases(0, SL_CNT)
    qp_round(first_nowait=D)
    srdb(SRD_K, KA_K, NB_KV)
    srdb(SRD_V, KA_V, NB_KV)
    srdb(SRD_WO, KA_WO, NB_W)
    lane_offs(LV_K, 6, 3, 256)
    lane_offs(LV_V, 6, 2, 256)
    lane_offs(LV_WO, 4, 2, 1024)
    e("v_lshlrev_b32 v7, 4, v0")
    for b in range(3, 0, -1):
        e("v_add_u32 v%d, %d, v7" % (LV_O + b, BIAS + b * (1024 - BLK)))
    e("v_add_u32 v%d, %d, v7" % (LV_O, BIAS))
    e("v_min_u32 v7, 11, v0")
    e("v_lshrrev_b32 v%d, 2, v7" % LV_FA)
    e("v_lshlrev_b32 v%d, 7, v%d" % (LV_FA, LV_FA))
    e("v_and_b32 v7, 3, v7")
    e("v_lshlrev_b32 v7, 3, v7")
    e("v_add_u32 v%d, v%d, v7" % (LV_FA, LV_FA))
    e("v_add_u32 v%d, %d, v%d" % (LV_FA, BIAS, LV_FA))
    e("s_lshl_b32 %s, %s, 5" % (sr(S_T1), sr(S_B4)))
    e("s_add_u32 %s, %s, %s" % (sr(S_T1), sr(S_T1), sr(S_H)))
    e("s_lshl_b32 %s, %s, 18" % (sr(SL_KOFF), sr(S_T1)))
    stamp("q3")

    def early_tiles():
        e("s_mov_b32 %s, %s" % (sr(SL_QSLOT), sr(SL_SLOT)))
        e("s_mov_b32 %s, %d" % (sr(SL_SLOT), NQ * SLOT))
        seq = [("K", 0), ("K", 1), ("V", 0)]
        t = 0
        while len(seq) < E:
            seq += [("K", t + 2), ("V", t + 1)]
            t += 1
        assert len(seq) == E
        for kind, t in seq:
            e("s_add_u32 %s, %s, %d" % (sr(SL_OFF), sr(SL_KOFF), 0 if cfg.kvsame else t * 8192))
            if kind == "K":
                issue_tile(SRD_K, LV_K, 256, kvf, RING, check=False)
            else:
                issue_tile(SRD_V, LV_V, 256, kvf, RING, check=False)
        e("s_mov_b32 %s, %s" % (sr(SL_SLOT), sr(SL_QSLOT)))

    npairs_early = (E - 3) // 2
    if cfg.ytype == 1:
        e("s_and_b32 %s, %s, 1" % (sr(S_T3), sr(S_M)))
        e("s_cmp_eq_u32 %s, 0" % sr(S_T3))
        e("s_cbranch_scc1 L_ld_x1")
    if cfg.ytype in (1, 2):
        early_tiles()
        e("s_mov_b32 %s, %d" % (sr(SL_NADJ), NQ - 1 + E))
        e("s_sub_i32 %s, %s, %s" % (sr(SL_NEED), sr(SL_ISS), sr(SL_NADJ)))
    a.lab("L_ld_x1")
    e("s_mov_b32 %s, 1" % sr(SL_CNT))
    a.lab("L_ld_qp1")
    qp_bases(0, SL_CNT)
    qp_round()
    if cfg.stamps:
        for rr in (1, 2, 3):
            nm = "q%d" % (4 * rr + 3)
            if nm in stl:
                sk = a.newlab("sk")
                e("s_cmp_eq_u32 %s, %d" % (sr(SL_CNT), rr))
                e("s_cbranch_scc0 %s" % sk)
                stamp(nm)
                a.lab(sk)
    e("s_add_u32 %s, %s, 1" % (sr(SL_CNT), sr(SL_CNT)))
    e("s_cmp_lt_u32 %s, 4" % sr(SL_CNT))
    e("s_cbranch_scc1 L_ld_qp1")
    if cfg.ytype == 1:
        e("s_and_b32 %s, %s, 1" % (sr(S_T3), sr(S_M)))
        e("s_cmp_eq_u32 %s, 0" % sr(S_T3))
        e("s_cbranch_scc0 L_ld_y2")
    if cfg.ytype in (0, 1):
        early_tiles()
    a.lab("L_ld_y2")
    stamp("qp")
    cnt("cq")
    e("s_mov_b32 %s, 0" % sr(SL_SLOT))
    e("s_mov_b32 %s, %d" % (sr(SL_NADJ), NS - 1))
    e("s_mov_b32 %s, %d" % (sr(SL_NEED), NQT))
    e("v_mov_b32 v7, 0")
    e("global_load_dwordx2 %s, v7, %s sc1" % (vr(LV_NON, 2), sr(KA_DBG, 2)))
    e("s_mov_b32 %s, 0x44444444" % sr(SL_EVM))
    e("s_mov_b32 %s, 0" % sr(SL_CNT2))
    e("s_add_u32 %s, %s, %d" % (sr(SL_VOFF), sr(SL_KOFF), 0 if cfg.kvsame else npairs_early * 8192))
    e("s_mov_b32 %s, %d" % (sr(SL_CNT), npairs_early))
    assert npairs_early == 2
    e("s_branch L_ld_disp")
    a.lab("L_ld_head")
    e("s_mov_b32 %s, %s" % (sr(SL_OFF), sr(SL_KOFF)))
    issue_tile(SRD_K, LV_K, 256, kvf, RING)
    e("s_add_u32 %s, %s, 8192" % (sr(SL_OFF), sr(SL_KOFF)))
    issue_tile(SRD_K, LV_K, 256, kvf, RING)
    e("s_mov_b32 %s, %s" % (sr(SL_OFF), sr(SL_KOFF)))
    issue_tile(SRD_V, LV_V, 256, kvf, RING)
    e("s_mov_b32 %s, %s" % (sr(SL_VOFF), sr(SL_KOFF)))
    e("s_mov_b32 %s, 0" % sr(SL_CNT))
    a.lab("L_ld_kv")
    e("s_add_u32 %s, %s, 16384" % (sr(SL_OFF), sr(SL_VOFF)))
    issue_tile(SRD_K, LV_K, 256, kvf, RING)
    e("s_add_u32 %s, %s, 8192" % (sr(SL_OFF), sr(SL_VOFF)))
    issue_tile(SRD_V, LV_V, 256, kvf, RING)
    if not cfg.kvsame:
        e("s_add_u32 %s, %s, 8192" % (sr(SL_VOFF), sr(SL_VOFF)))
    e("s_add_u32 %s, %s, 1" % (sr(SL_CNT), sr(SL_CNT)))
    e("s_bitcmp1_b32 %s, %s" % (sr(SL_EVM), sr(SL_CNT)))
    e("s_cbranch_scc1 L_ld_disp")
    a.lab("L_ld_evret")
    e("s_cmp_lt_u32 %s, 30" % sr(SL_CNT))
    e("s_cbranch_scc1 L_ld_kv")
    e("s_add_u32 %s, %s, 8192" % (sr(SL_OFF), sr(SL_VOFF)))
    issue_tile(SRD_V, LV_V, 256, kvf, RING)
    e("s_cmp_eq_u32 %s, 0" % sr(SL_CNT2))
    e("s_cbranch_scc0 L_ld_tail")
    stamp("h0")
    cnt("c0")
    e("s_add_u32 %s, %s, %d" % (sr(SL_KOFF), sr(SL_KOFF), 4 * 32 * 262144))
    if cfg.wsbase:
        e("s_add_u32 %s, %s, 0x%x" % (sr(KA_WS), sr(KA_WS), cfg.wsbase << 20))
        e("s_addc_u32 %s, %s, 0" % (sr(KA_WS + 1), sr(KA_WS + 1)))
    srdb(SRD_X, KA_WS, WS_USED)
    if not cfg.noxchg and not cfg.nocompute:
        okn = a.newlab("lnok")
        e("v_readfirstlane_b32 %s, v%d" % (sr(SL_NONCE), LV_NON))
        e("v_readfirstlane_b32 %s, v%d" % (sr(SL_NONCE + 1), LV_NON + 1))
        e("s_nop 3")
        e("s_cmp_lg_u32 %s, 0" % sr(SL_NONCE))
        e("s_cbranch_scc1 %s" % okn)
        lpn = a.newlab("lnlp")
        a.lab(lpn)
        e("v_mov_b32 v7, 0")
        e("global_load_dwordx2 %s, v7, %s sc1" % (vr(LV_NON, 2), sr(KA_DBG, 2)))
        e("s_waitcnt vmcnt(0)")
        e("v_readfirstlane_b32 %s, v%d" % (sr(SL_NONCE), LV_NON))
        e("v_readfirstlane_b32 %s, v%d" % (sr(SL_NONCE + 1), LV_NON + 1))
        e("s_sub_u32 %s, %s, 1" % (sr(S_SPIN), sr(S_SPIN)))
        e("s_cmp_eq_u32 %s, 0" % sr(S_SPIN))
        e("s_cbranch_scc1 L_end")
        e("s_cmp_eq_u32 %s, 0" % sr(SL_NONCE))
        e("s_cbranch_scc1 %s" % lpn)
        a.lab(okn)
    e("s_mov_b32 %s, 1" % sr(SL_CNT2))
    e("s_branch L_ld_head")
    a.lab("L_ld_tail")
    stamp("h1")
    cnt("c1")
    e("s_mov_b32 %s, 0" % sr(SL_XB))
    a.lab("L_ld_wo_r")
    e("s_add_u32 %s, %s, %s" % (sr(S_T1), sr(S_M), sr(SL_XB)))
    e("s_and_b32 %s, %s, 3" % (sr(S_T1), sr(S_T1)))
    e("s_lshl_b32 %s, %s, 17" % (sr(S_T1), sr(S_T1)))
    e("s_lshl_b32 %s, %s, 19" % (sr(SL_WB), sr(S_X)))
    e("s_add_u32 %s, %s, %s" % (sr(SL_WB), sr(SL_WB), sr(S_T1)))
    e("s_lshl_b32 %s, %s, 8" % (sr(S_T1), sr(S_M)))
    e("s_add_u32 %s, %s, %s" % (sr(SL_WB), sr(SL_WB), sr(S_T1)))
    for j in range(4):
        e("s_add_u32 %s, %s, %d" % (sr(SL_OFF), sr(SL_WB), j * 32 * 1024))
        issue_tile(SRD_WO, LV_WO, 1024, cfg.wo2flags, RING)
    e("s_add_u32 %s, %s, 1" % (sr(SL_XB), sr(SL_XB)))
    e("s_cmp_lt_u32 %s, 4" % sr(SL_XB))
    e("s_cbranch_scc1 L_ld_wo_r")
    a.lab("L_ld_drain")
    publish_nb()
    e("s_cmp_lt_i32 %s, %s" % (sr(SL_PUB), sr(SL_ISS)))
    e("s_cbranch_scc1 L_ld_drain")
    e("s_waitcnt lgkmcnt(0)")
    stamp("t2")
    e("s_branch L_fin")

    def pf_tile(srdreg, voff, rs, flags, vdst):
        e("s_add_u32 %s, %s, %d" % (sr(SL_OFF2), sr(SL_OFF), 16 * rs))
        for b in range(8):
            e("buffer_load_dwordx4 %s, v%d, %s, %s offen offset:%d %s" % (
                vr(vdst + 4 * b, 4), voff + (b & 3), sr(srdreg, 4), sr(SL_OFF if b < 4 else SL_OFF2),
                (b & 3) * BLK, flags))

    def flag_poll_issue_l():
        e("s_lshl_b32 %s, %s, 9" % (sr(S_T1), sr(S_QUAD)))
        e("buffer_load_dwordx2 %s, v%d, %s, %s offen sc1" % (vr(LV_FL, 2), LV_FA, sr(SRD_X, 4), sr(S_T1)))

    def flag_check_l(tgt_ok):
        e("v_cmp_ne_u32 vcc, %s, v%d" % (sr(SL_NONCE), LV_FL))
        e("v_cmp_ne_u32 s[28:29], %s, v%d" % (sr(SL_NONCE + 1), LV_FL + 1))
        e("s_nop 3")
        e("s_or_b64 vcc, vcc, s[28:29]")
        e("s_cbranch_scc0 %s" % tgt_ok)

    a.lab("L_ld_disp")
    e("s_bitcmp1_b32 %s, 2" % sr(SL_CNT))
    e("s_cbranch_scc1 L_ld_blkB")
    e("s_lshr_b32 %s, %s, 3" % (sr(SL_RND), sr(SL_CNT)))
    e("s_cmp_eq_u32 %s, 0" % sr(SL_CNT2))
    e("s_cbranch_scc0 L_ld_blkA2")
    qp_bases(1, SL_RND)
    for w in (0, 1, 2, 2):
        e("s_add_u32 %s, %s, %d" % (sr(SL_OFF), sr(SL_XB), w * 32 * 1024))
        issue_tile(SRD_X, LV_X, 1024, cfg.x2flags, RING)
    for j in range(2):
        e("s_add_u32 %s, %s, %d" % (sr(SL_OFF), sr(SL_WB), j * 32 * 8192))
        issue_tile(SRD_WQ, LV_WQ, 8192, cfg.wq2flags, RING)
    e("s_branch L_ld_dret")
    a.lab("L_ld_blkA2")
    e("s_add_u32 %s, %s, %s" % (sr(S_T2), sr(S_M), sr(SL_RND)))
    e("s_and_b32 %s, %s, 3" % (sr(S_T2), sr(S_T2)))
    e("s_lshl_b32 %s, %s, 17" % (sr(S_T1), sr(S_T2)))
    e("s_lshl_b32 %s, %s, 19" % (sr(SL_WB), sr(S_X)))
    e("s_add_u32 %s, %s, %s" % (sr(SL_WB), sr(SL_WB), sr(S_T1)))
    e("s_lshl_b32 %s, %s, 8" % (sr(S_T1), sr(S_M)))
    e("s_add_u32 %s, %s, %s" % (sr(SL_WB), sr(SL_WB), sr(S_T1)))
    e("s_lshl_b32 %s, %s, 2" % (sr(S_T3), sr(S_QUAD)))
    e("s_add_u32 %s, %s, %s" % (sr(S_T2), sr(S_T2), sr(S_T3)))
    e("s_mul_i32 %s, %s, 24576" % (sr(S_T2), sr(S_T2)))
    e("s_add_u32 %s, %s, %d" % (sr(SL_XB), sr(S_T2), WS_OBUF))
    e("s_cmp_eq_u32 %s, 0" % sr(SL_RND))
    e("s_cbranch_scc1 L_ld_noo")
    if not cfg.noxchg and not cfg.nocompute:
        okf = a.newlab("lfok")
        e("s_cmp_eq_u32 %s, 1" % sr(SL_RND))
        e("s_cbranch_scc0 %s" % okf)
        flag_check_l(okf)
        lpf = a.newlab("lfl")
        a.lab(lpf)
        flag_poll_issue_l()
        e("s_waitcnt vmcnt(0)")
        e("s_sub_u32 %s, %s, 1" % (sr(S_SPIN), sr(S_SPIN)))
        e("s_cmp_eq_u32 %s, 0" % sr(S_SPIN))
        e("s_cbranch_scc1 L_end")
        flag_check_l(okf)
        e("s_branch %s" % lpf)
        a.lab(okf)
    for w in (0, 1, 2, 2):
        e("s_add_u32 %s, %s, %d" % (sr(SL_OFF), sr(SL_XB), w * 8192))
        issue_tile(SRD_X, LV_O, 256, cfg.oflags, RING)
    a.lab("L_ld_noo")
    for j in range(2):
        e("s_add_u32 %s, %s, %d" % (sr(SL_OFF), sr(SL_WB), j * 32 * 1024))
        issue_tile(SRD_WO, LV_WO, 1024, cfg.woflags, RING)
    e("s_branch L_ld_dret")
    a.lab("L_ld_blkB")
    e("s_cmp_eq_u32 %s, 0" % sr(SL_CNT2))
    e("s_cbranch_scc0 L_ld_blkB2")
    for j in range(2, 4):
        e("s_add_u32 %s, %s, %d" % (sr(SL_OFF), sr(SL_WB), j * 32 * 8192))
        issue_tile(SRD_WQ, LV_WQ, 8192, cfg.wq2flags, RING)
    e("s_branch L_ld_dret")
    a.lab("L_ld_blkB2")
    if not cfg.noxchg and not cfg.nocompute:
        skp = a.newlab("skp")
        e("s_cmp_eq_u32 %s, 6" % sr(SL_CNT))
        e("s_cbranch_scc0 %s" % skp)
        flag_poll_issue_l()
        a.lab(skp)
    for j in range(2, 4):
        e("s_add_u32 %s, %s, %d" % (sr(SL_OFF), sr(SL_WB), j * 32 * 1024))
        issue_tile(SRD_WO, LV_WO, 1024, cfg.woflags, RING)
    a.lab("L_ld_dret")
    e("s_branch L_ld_evret")

    for slow, ok in ool:
        a.lab(slow)
        e("s_call_b64 %s, L_waitfree" % sr(S_RET, 2))
        e("s_branch %s" % ok)
    a.lab("L_waitfree")
    if cfg.stamps:
        e("s_add_u32 %s, %s, 1" % (sr(SL_WFC), sr(SL_WFC)))
    e("ds_read_b96 v[%d:%d], v%d" % (LV_F, LV_F + 2, LV_FADDR))
    publish_nb()
    e("s_waitcnt lgkmcnt(1)")
    e("v_min3_u32 v%d, v%d, v%d, v%d" % (LV_F, LV_F, LV_F + 1, LV_F + 2))
    e("s_sub_u32 %s, %s, 1" % (sr(S_SPIN), sr(S_SPIN)))
    e("v_readfirstlane_b32 %s, v%d" % (sr(SL_FMIN), LV_F))
    e("s_cmp_eq_u32 %s, 0" % sr(S_SPIN))
    e("s_cbranch_scc1 L_end")
    e("s_nop 1")
    e("s_cmp_ge_i32 %s, %s" % (sr(SL_FMIN), sr(SL_NEED)))
    e("s_cbranch_scc0 L_waitfree")
    e("s_setpc_b64 %s" % sr(S_RET, 2))

    if cfg.noxchg:
        a.filt = lambda sx: (sx.startswith("buffer_") or sx.startswith("global_load")
                             or sx.startswith("global_store_dwordx2"))
    a.lab("L_compute")
    e("v_and_b32 v1, 3, v0")
    e("v_lshrrev_b32 v2, 5, v0")
    e("v_lshrrev_b32 v3, 4, v0")
    e("v_and_b32 v3, 1, v3")
    e("v_lshrrev_b32 v4, 2, v0")
    e("v_and_b32 v4, 3, v4")
    e("v_lshlrev_b32 v5, 2, v3")
    e("v_add_u32 v5, v5, v1")
    e("s_movk_i32 %s, %d" % (sr(S_T0), BLK))
    e("v_mul_lo_u32 v5, v5, %s" % sr(S_T0))
    e("v_lshlrev_b32 v6, 8, v4")
    e("v_add_u32 v5, v5, v6")
    for par in range(2):
        e("v_add_u32 v6, %d, v2" % (2 * par))
        e("v_xor_b32 v6, v6, v4")
        e("v_lshlrev_b32 v6, 4, v6")
        e("v_add_u32 v%d, v5, v6" % (V_KB + par))
    e("v_lshrrev_b32 v6, 1, v1")
    e("v_and_b32 v7, 1, v1")
    e("v_lshlrev_b32 v7, 1, v7")
    e("v_or_b32 v6, v6, v7")
    e("v_lshlrev_b32 v6, 3, v6")
    e("v_lshlrev_b32 v7, 5, v3")
    e("v_add_u32 v6, v6, v7")
    e("v_mul_lo_u32 v7, v4, %s" % sr(S_T0))
    e("v_add_u32 v6, v6, v7")
    e("v_lshlrev_b32 v7, 8, v2")
    e("v_add_u32 v%d, v6, v7" % V_VB)
    e("v_add_u32 v%d, v%d, v7" % (V_WB, V_VB))
    e("v_add_u32 v%d, %d, v%d" % (V_VB2, SLOT, V_VB))
    e("v_mov_b32 v%d, %d" % (V_LADDR, FLAG_L))
    e("s_lshl_b32 %s, %s, 2" % (sr(S_T0), sr(S_WAVE)))
    e("s_add_u32 %s, %s, %d" % (sr(S_T0), sr(S_T0), FLAG_F))
    e("v_mov_b32 v%d, %s" % (V_FADDR, sr(S_T0)))
    e("v_mov_b32 v%d, %d" % (V_FV, 100000 if cfg.nocompute else 0))
    e("ds_write_b32 v%d, v%d" % (V_FADDR, V_FV))
    e("v_lshlrev_b32 v%d, 4, v0" % V_L16)
    e("s_mov_b32 %s, 0" % sr(SC_L))
    e("s_mov_b32 %s, 0" % sr(SC_SWC))
    c = (128 ** -0.5) * math.log2(math.e)
    e("s_mov_b32 %s, 0x%x" % (sr(SC_T), f32bits(cfg.T_LOG2)))
    e("s_mov_b32 %s, 0" % sr(SC_IDX))
    e("s_mov_b32 %s, 0" % sr(SC_SLOT))
    e("s_mov_b32 %s, %d" % (sr(SC_WRAP), NQ * SLOT))
    if cfg.ytype == 1:
        e("s_and_b32 %s, %s, 1" % (sr(S_T1), sr(S_M)))
        e("s_mul_i32 %s, %s, %d" % (sr(SC_PADJ), sr(S_T1), E))
    else:
        e("s_mov_b32 %s, %d" % (sr(SC_PADJ), E if cfg.ytype == 2 else 0))
    e("s_mov_b32 %s, 0" % sr(SC_ADJ))
    if cfg.wsbase:
        e("s_add_u32 %s, %s, 0x%x" % (sr(KA_WS), sr(KA_WS), cfg.wsbase << 20))
        e("s_addc_u32 %s, %s, 0" % (sr(KA_WS + 1), sr(KA_WS + 1)))
    srd(SRD_WS, KA_WS, WS_USED)
    srd(SRD_OUT, KA_OUT, 8 * 96 * 1024 * 2)
    e("s_or_b32 %s, %s, %s" % (sr(S_T0), sr(S_WG), sr(S_WAVE)))
    e("s_cmp_eq_u32 %s, 0" % sr(S_T0))
    e("s_cbranch_scc0 L_nononce")
    e("s_memrealtime %s" % sr(SC_NONCE, 2))
    e("s_waitcnt lgkmcnt(0)")
    e("s_or_b32 %s, %s, 1" % (sr(SC_NONCE), sr(SC_NONCE)))
    e("v_mov_b32 v2, %s" % sr(SC_NONCE))
    e("v_mov_b32 v3, %s" % sr(SC_NONCE + 1))
    e("v_mov_b32 v1, 0")
    e("global_store_dwordx2 v1, v[2:3], %s sc1" % sr(KA_DBG, 2))
    a.lab("L_nononce")
    e("s_waitcnt lgkmcnt(0)")
    e("s_barrier")
    stamp("bar")
    if cfg.nocompute:
        e("s_branch L_fin")

    slowwaits = []

    def wait_landed_l(delta, adj=False):
        slow = a.newlab("lw_slow")
        back = a.newlab("lw_back")
        slowwaits.append((slow, back))
        out = ["s_add_u32 %s, %s, %d" % (sr(SC_NEED), sr(SC_IDX), delta)]
        if adj:
            out.append("s_add_u32 %s, %s, %s" % (sr(SC_NEED), sr(SC_NEED), sr(SC_ADJ)))
        out += ["s_cmp_lt_u32 %s, %s" % (sr(SC_L), sr(SC_NEED)),
                "s_cbranch_scc1 %s" % slow,
                back + ":"]
        return out

    def wait_landed(delta, adj=False):
        a.extend(wait_landed_l(delta, adj))

    def slot_adv_l(dst, src, n):
        return ["s_add_u32 %s, %s, %d" % (sr(dst), sr(src), n * SLOT),
                "s_sub_u32 %s, %s, %s" % (sr(S_T0), sr(dst), sr(SC_WRAP)),
                "s_cmp_lt_u32 %s, %s" % (sr(dst), sr(SC_WRAP)),
                "s_cselect_b32 %s, %s, %s" % (sr(dst), sr(dst), sr(S_T0))]

    def slot_adv(dst, src, n):
        a.extend(slot_adv_l(dst, src, n))

    def release_l(sg):
        return ["v_mov_b32 v%d, %s" % (V_FV, sr(sg)), "ds_write_b32 v%d, v%d" % (V_FADDR, V_FV)]

    def k_addr(slot):
        return ["v_add_u32 v%d, %s, v%d" % (V_KA + p, sr(slot), V_KB + p) for p in range(2)]

    def k_reads(dst_a):
        return ["ds_read_b128 %s, v%d offset:%d" % (ar(dst_a + 4 * s, 4), V_KA + (s & 1), (s >> 1) * 64)
                for s in range(8)]

    def v_addr(slot, base):
        return ["v_add_u32 v%d, %s, v%d" % (V_VA, sr(slot), base)]

    def v_reads(dst_a, isw):
        out = []
        for ks in range(2):
            for db in range(4):
                base = dst_a + (ks * 4 + db) * 4
                o2 = 256 if isw else 512
                o = ks * 4 * BLK + db * 64
                out.append("ds_read_b64_tr_b16 %s, v%d offset:%d" % (ar(base, 2), V_VA, o))
                out.append("ds_read_b64_tr_b16 %s, v%d offset:%d" % (ar(base + 2, 2), V_VA, o + o2))
        return out

    def wave_slot(dst, n):
        return ["s_mul_i32 %s, %s, %d" % (sr(S_T1), sr(S_WAVE), SLOT),
                "s_add_u32 %s, %s, %s" % (sr(dst), sr(SC_SLOT), sr(S_T1))] + slot_adv_l(dst, dst, n)

    def x_fetch(buf):
        out = wave_slot(SC_SLOT2, 0) + k_addr(SC_SLOT2) + k_reads(A_XF[buf])
        out += slot_adv_l(SC_SLOT, SC_SLOT, 3)
        return out

    wait_landed(4, True)
    a.extend(x_fetch(0))
    a.extend(v_addr(SC_SLOT, V_WB))
    a.extend(v_reads(A_AF[0], True))
    e("s_add_u32 %s, %s, 4" % (sr(SC_IDX), sr(SC_IDX)))
    slot_adv(SC_SLOT, SC_SLOT, 1)
    for cidx in range(16):
        r, j = divmod(cidx, 4)
        e("s_waitcnt lgkmcnt(0)")
        mf = []
        for ks in range(2):
            for db in range(4):
                acc = V_ACCQ + 16 * db
                cin = "0" if (cidx == 0 and ks == 0) else vr(acc, 16)
                mf.append("%s %s, %s, %s, %s" % (
                    MFMA, vr(acc, 16), ar(A_AF[cidx & 1] + (ks * 4 + db) * 4, 4),
                    ar(A_XF[r & 1] + (2 * j + ks) * 4, 4), cin))
        fill = []
        if cidx < 15:
            nx = 3 if j == 3 else 0
            if cidx == 3:
                fill += ["s_mov_b32 %s, %s" % (sr(SC_ADJ), sr(SC_PADJ))]
            fill += wait_landed_l(nx + 1, True)
            if nx:
                fill += x_fetch((r + 1) & 1)
            fill += v_addr(SC_SLOT, V_WB) + v_reads(A_AF[(cidx + 1) & 1], True)
            fill += release_l(SC_IDX)
            fill += ["s_add_u32 %s, %s, %d" % (sr(SC_IDX), sr(SC_IDX), nx + 1)] + slot_adv_l(SC_SLOT, SC_SLOT, 1)
        else:
            fill += release_l(SC_IDX)
        ng = 6
        per = [[] for _ in range(8)]
        items = fill
        n = len(items)
        pos = 0
        for g in range(ng):
            tgt = max((n * (g + 1)) // ng, pos)
            while tgt < n and items[tgt].endswith(":"):
                tgt += 1
            per[g] = items[pos:tgt]
            pos = tgt
        a.extend(gaps(mf, per))
        if cfg.stamps and ("q%d" % cidx) in stl:
            stamp("q%d" % cidx)

    def q_convert(dst):
        e("s_nop 7")
        e("s_nop 3")
        e("s_mov_b32 %s, 0x%x" % (sr(S_T1), f32bits(c)))
        for i in range(32):
            e("v_mul_f32 v%d, %s, v%d" % (V_ACCQ + 2 * i, sr(S_T1), V_ACCQ + 2 * i))
            e("v_mul_f32 v%d, %s, v%d" % (V_ACCQ + 2 * i + 1, sr(S_T1), V_ACCQ + 2 * i + 1))
            e("v_cvt_pk_bf16_f32 v%d, v%d, v%d" % (dst + i, V_ACCQ + 2 * i, V_ACCQ + 2 * i + 1))
    q_convert(V_Q1)
    e("s_mov_b32 %s, %d" % (sr(SC_SLOT), NQ * SLOT))
    e("s_mov_b32 %s, %d" % (sr(SC_WRAP), RING))
    stamp("qp")

    def qk_mfmas(sdst, qbase, cin):
        return ["%s %s, %s, %s, %s" % (MFMA, vr(sdst, 16), ar(A_KF + 4 * s, 4), vr(qbase + 4 * s, 4),
                                       cin if s == 0 else vr(sdst, 16)) for s in range(8)]

    def softmax_gaps(sc):
        g = []
        for k in range(8):
            l = ["v_exp_f32 v%d, v%d" % (sc + 2 * k, sc + 2 * k),
                 "v_exp_f32 v%d, v%d" % (sc + 2 * k + 1, sc + 2 * k + 1)]
            if k > 0:
                p = k - 1
                l += ["v_add_f32 v%d, v%d, v%d" % (V_LSUM, V_LSUM, sc + 2 * p),
                      "v_add_f32 v%d, v%d, v%d" % (V_LS2, V_LS2, sc + 2 * p + 1),
                      "v_cvt_pk_bf16_f32 v%d, v%d, v%d" % (V_PF + p, sc + 2 * p, sc + 2 * p + 1)]
            g.append(l)
        tail = ["v_add_f32 v%d, v%d, v%d" % (V_LSUM, V_LSUM, sc + 14),
                "v_add_f32 v%d, v%d, v%d" % (V_LS2, V_LS2, sc + 15),
                "v_cvt_pk_bf16_f32 v%d, v%d, v%d" % (V_PF + 7, sc + 14, sc + 15)]
        return g, tail

    def pv_mfmas(vf):
        out = []
        for ks in range(2):
            for db in range(4):
                out.append("%s %s, %s, %s, %s" % (
                    MFMA, vr(V_O + 16 * db, 16), ar(vf + (ks * 4 + db) * 4, 4), vr(V_PF + 4 * ks, 4),
                    vr(V_O + 16 * db, 16)))
        return out

    def max_valu(sn):
        out = ["v_max3_f32 v%d, v%d, v%d, v%d" % (V_TMAX, sn, sn + 1, sn + 2)]
        for i in range(3, 15, 2):
            out.append("v_max3_f32 v%d, v%d, v%d, v%d" % (V_TMAX, V_TMAX, sn + i, sn + i + 1))
        out.append("v_max_f32 v%d, v%d, v%d" % (V_TMAX, V_TMAX, sn + 15))
        return out

    def cross_half_max():
        e("v_mov_b32 v1, v%d" % V_TMAX)
        e("s_nop 1")
        e("v_permlane32_swap_b32 v%d, v1" % V_TMAX)
        e("s_nop 1")
        e("v_max_f32 v%d, v%d, v1" % (V_TMAX, V_TMAX))

    def rare_path(lab, back, sn):
        a.lab(lab)
        cross_half_max()
        e("v_max_f32 v%d, 0, v%d" % (V_TMAX, V_TMAX))
        e("v_sub_f32 v%d, 0, v%d" % (V_ALPHA, V_TMAX))
        e("v_exp_f32 v%d, v%d" % (V_ALPHA, V_ALPHA))
        for i in range(16):
            e("v_sub_f32 v%d, v%d, v%d" % (sn + i, sn + i, V_TMAX))
        for i in range(16):
            e("v_sub_f32 v%d, v%d, v%d" % (V_NEGM + i, V_NEGM + i, V_TMAX))
        e("v_mul_f32 v%d, v%d, v%d" % (V_LSUM, V_LSUM, V_ALPHA))
        e("v_mul_f32 v%d, v%d, v%d" % (V_LS2, V_LS2, V_ALPHA))
        for i in range(64):
            e("v_mul_f32 v%d, v%d, v%d" % (V_O + i, V_O + i, V_ALPHA))
        e("s_branch %s" % back)

    rare = []
    dispatchers = []

    def get_nonce():
        if cfg.noxchg:
            return
        lp = a.newlab("nonce")
        a.lab(lp)
        e("v_mov_b32 v1, 0")
        e("global_load_dwordx2 v[2:3], v1, %s sc1" % sr(KA_DBG, 2))
        e("s_waitcnt vmcnt(0)")
        e("v_readfirstlane_b32 %s, v2" % sr(SC_NONCE))
        e("v_readfirstlane_b32 %s, v3" % sr(SC_NONCE + 1))
        e("s_sub_u32 %s, %s, 1" % (sr(S_SPIN), sr(S_SPIN)))
        e("s_cmp_eq_u32 %s, 0" % sr(S_SPIN))
        e("s_cbranch_scc1 L_end")
        e("s_cmp_eq_u32 %s, 0" % sr(SC_NONCE))
        e("s_cbranch_scc1 %s" % lp)

    def flag_store(off_sgpr, local=False, hi=None):
        e("v_mov_b32 v2, %s" % sr(SC_NONCE))
        e("v_mov_b32 v3, %s" % sr(SC_NONCE + 1 if hi is None else hi))
        e("v_mov_b32 v1, 0")
        e("s_mov_b64 s[34:35], exec")
        e("s_mov_b64 exec, 1")
        if local and cfg.local:
            gl = a.newlab("fsg")
            dn = a.newlab("fsd")
            e("s_cmp_eq_u32 %s, 0" % sr(SC_LOCAL))
            e("s_cbranch_scc1 %s" % gl)
            e("buffer_store_dwordx2 v[2:3], v1, %s, %s offen" % (sr(SRD_WS, 4), sr(off_sgpr)))
            e("s_branch %s" % dn)
            a.lab(gl)
            e("buffer_store_dwordx2 v[2:3], v1, %s, %s offen sc1" % (sr(SRD_WS, 4), sr(off_sgpr)))
            a.lab(dn)
        else:
            e("buffer_store_dwordx2 v[2:3], v1, %s, %s offen sc1" % (sr(SRD_WS, 4), sr(off_sgpr)))
        e("s_mov_b64 exec, s[34:35]")

    def flag_poll(off_sgpr, n):
        if cfg.noxchg:
            return
        lp = a.newlab("poll")
        e("v_min_u32 v1, %d, v0" % (n - 1))
        e("v_lshlrev_b32 v1, 3, v1")
        a.lab(lp)
        e("buffer_load_dwordx2 v[2:3], v1, %s, %s offen sc1" % (sr(SRD_WS, 4), sr(off_sgpr)))
        e("s_waitcnt vmcnt(0)")
        e("v_cmp_ne_u32 vcc, %s, v2" % sr(SC_NONCE))
        e("v_cmp_ne_u32 s[34:35], %s, v3" % sr(SC_NONCE + 1))
        e("s_sub_u32 %s, %s, 1" % (sr(S_SPIN), sr(S_SPIN)))
        e("s_cmp_eq_u32 %s, 0" % sr(S_SPIN))
        e("s_cbranch_scc1 L_end")
        e("s_or_b64 vcc, vcc, s[34:35]")
        e("s_cbranch_scc1 %s" % lp)

    def flago_off(dst, ph, with_m):
        e("s_lshl_b32 %s, %s, 2" % (sr(dst), sr(S_QUAD)))
        e("s_add_u32 %s, %s, %s" % (sr(dst), sr(dst), sr(S_WAVE)))
        e("s_lshl_b32 %s, %s, 7" % (sr(dst), sr(dst)))
        e("s_add_u32 %s, %s, %d" % (sr(dst), sr(dst), WS_FLAGO + ph * 64 * 4 * 128))
        if with_m:
            e("s_lshl_b32 %s, %s, 3" % (sr(S_T0), sr(S_M)))
            e("s_add_u32 %s, %s, %s" % (sr(dst), sr(dst), sr(S_T0)))

    def load_o(ph, regs, ks):
        e("s_lshl_b32 %s, %s, 2" % (sr(S_T1), sr(S_QUAD)))
        e("s_add_u32 %s, %s, %d" % (sr(S_T1), sr(S_T1), ph * 256))
        e("s_mul_i32 %s, %s, 24576" % (sr(S_T1), sr(S_T1)))
        e("s_lshl_b32 %s, %s, 13" % (sr(S_T2), sr(S_WAVE)))
        e("s_add_u32 %s, %s, %s" % (sr(S_T1), sr(S_T1), sr(S_T2)))
        e("s_add_u32 %s, %s, %d" % (sr(S_T1), sr(S_T1), WS_OBUF))
        for k in ks:
            e("s_add_u32 %s, %s, %d" % (sr(S_T2), sr(S_M), k))
            e("s_and_b32 %s, %s, 3" % (sr(S_T2), sr(S_T2)))
            e("s_mul_i32 %s, %s, 24576" % (sr(S_T2), sr(S_T2)))
            e("s_add_u32 %s, %s, %s" % (sr(S_T2), sr(S_T2), sr(S_T1)))
            e("s_add_u32 %s, %s, 4096" % (sr(S_T3), sr(S_T2)))
            for s in range(8):
                e("buffer_load_dwordx4 %s, v%d, %s, %s offen offset:%d sc1" % (
                    ar(regs[k] + 4 * s, 4), V_L16, sr(SRD_WS, 4), sr(S_T2 if s < 4 else S_T3), (s & 3) * 1024))

    def poff(dst, ph, kq_sgpr):
        e("s_add_u32 %s, %s, %d" % (sr(dst), sr(S_G8), ph * 8))
        e("s_lshl_b32 %s, %s, 2" % (sr(dst), sr(dst)))
        e("s_add_u32 %s, %s, %s" % (sr(dst), sr(dst), sr(S_M)))
        e("s_lshl_b32 %s, %s, 3" % (sr(dst), sr(dst)))
        if kq_sgpr is not None:
            e("s_add_u32 %s, %s, %s" % (sr(dst), sr(dst), sr(kq_sgpr)))
        e("s_mul_i32 %s, %s, 24576" % (sr(dst), sr(dst)))
        e("s_lshl_b32 %s, %s, 13" % (sr(S_T0), sr(S_WAVE)))
        e("s_add_u32 %s, %s, %s" % (sr(dst), sr(dst), sr(S_T0)))
        e("s_add_u32 %s, %s, %d" % (sr(dst), sr(dst), WS_PBUF))

    def flagp_off(dst, ph, with_kq):
        e("s_add_u32 %s, %s, %d" % (sr(dst), sr(S_G8), ph * 8))
        e("s_lshl_b32 %s, %s, 2" % (sr(dst), sr(dst)))
        e("s_add_u32 %s, %s, %s" % (sr(dst), sr(dst), sr(S_M)))
        e("s_lshl_b32 %s, %s, 2" % (sr(dst), sr(dst)))
        e("s_add_u32 %s, %s, %s" % (sr(dst), sr(dst), sr(S_WAVE)))
        e("s_lshl_b32 %s, %s, 7" % (sr(dst), sr(dst)))
        e("s_add_u32 %s, %s, %d" % (sr(dst), sr(dst), WS_FLAGP))
        if with_kq:
            e("s_lshl_b32 %s, %s, 3" % (sr(S_T0), sr(S_X)))
            e("s_add_u32 %s, %s, %s" % (sr(dst), sr(dst), sr(S_T0)))

    def partial_store(acc, ph):
        poff(SC_POFF, ph, S_X)
        e("s_add_u32 %s, %s, 4096" % (sr(S_T1), sr(SC_POFF)))
        e("s_nop 3")
        for cch in range(8):
            for i in range(4):
                k = 4 * cch + i
                e("v_cvt_pk_bf16_f32 v%d, v%d, v%d" % (acc + k, acc + 2 * k, acc + 2 * k + 1))
            e("buffer_store_dwordx4 %s, v%d, %s, %s offen offset:%d %s" % (
                vr(acc + 4 * cch, 4), V_L16, sr(SRD_WS, 4), sr(SC_POFF if cch < 4 else S_T1), (cch & 3) * 1024,
                cfg.stflags))

    def reduce(ph, regs):
        flagp_off(SC_FOFF, ph, False)
        flag_poll(SC_FOFF, 8)
        poff(SC_POFF, ph, None)
        e("s_lshl_b32 %s, %s, 10" % (sr(S_T1), sr(S_X)))
        e("s_add_u32 %s, %s, %s" % (sr(SC_POFF), sr(SC_POFF), sr(S_T1)))
        for kq in range(8):
            e("s_add_u32 %s, %s, %d" % (sr(S_T1), sr(SC_POFF), kq * 24576))
            e("buffer_load_dwordx4 %s, v%d, %s, %s offen sc1" % (
                vr(regs + 4 * kq, 4), V_L16, sr(SRD_WS, 4), sr(S_T1)))
        e("v_and_b32 v1, 31, v0")
        e("v_lshlrev_b32 v1, 11, v1")
        e("v_lshrrev_b32 v2, 5, v0")
        e("v_lshlrev_b32 v2, 4, v2")
        e("v_add_u32 v1, v1, v2")
        e("s_add_u32 %s, %s, %d" % (sr(S_T1), sr(S_B4), 4 * ph))
        e("s_mul_i32 %s, %s, 96" % (sr(S_T1), sr(S_T1)))
        e("s_lshl_b32 %s, %s, 5" % (sr(S_T2), sr(S_WAVE)))
        e("s_add_u32 %s, %s, %s" % (sr(S_T1), sr(S_T1), sr(S_T2)))
        e("s_lshl_b32 %s, %s, 11" % (sr(S_T1), sr(S_T1)))
        e("s_lshl_b32 %s, %s, 10" % (sr(S_T2), sr(S_BR)))
        e("s_add_u32 %s, %s, %s" % (sr(S_T1), sr(S_T1), sr(S_T2)))
        e("s_lshl_b32 %s, %s, 8" % (sr(S_T2), sr(S_M)))
        e("s_add_u32 %s, %s, %s" % (sr(S_T1), sr(S_T1), sr(S_T2)))
        e("s_lshl_b32 %s, %s, 5" % (sr(S_T2), sr(S_X)))
        e("s_add_u32 %s, %s, %s" % (sr(S_T1), sr(S_T1), sr(S_T2)))
        acc = regs + 32
        for kq in range(8):
            e("s_waitcnt vmcnt(%d)" % (7 - kq))
            for i in range(4):
                r = regs + 4 * kq + i
                if kq == 0:
                    e("v_lshlrev_b32 v%d, 16, v%d" % (acc + 2 * i, r))
                    e("v_and_b32 v%d, 0xffff0000, v%d" % (acc + 2 * i + 1, r))
                else:
                    e("v_lshlrev_b32 v%d, 16, v%d" % (acc + 8, r))
                    e("v_and_b32 v%d, 0xffff0000, v%d" % (r, r))
                    e("v_add_f32 v%d, v%d, v%d" % (acc + 2 * i, acc + 2 * i, acc + 8))
                    e("v_add_f32 v%d, v%d, v%d" % (acc + 2 * i + 1, acc + 2 * i + 1, r))
        for i in range(4):
            e("v_cvt_pk_bf16_f32 v%d, v%d, v%d" % (4 + i, acc + 2 * i, acc + 2 * i + 1))
        e("buffer_store_dwordx4 v[4:7], v1, %s, %s offen" % (sr(SRD_OUT, 4), sr(S_T1)))

    def head(ph):
        qbase = V_Q1 if ph == 0 else V_Q2
        stg = V_STG if ph == 0 else V_Q1
        xacc = V_ACCQ if ph == 0 else V_ACC1
        for i in range(64):
            e("v_mov_b32 v%d, 0" % (V_O + i))
        for i in range(64):
            e("v_mov_b32 v%d, 0" % (xacc + i))
        e("v_mov_b32 v%d, 0" % V_LSUM)
        e("v_mov_b32 v%d, 0" % V_LS2)
        wait_landed(1)
        a.extend(k_addr(SC_SLOT))
        a.extend(k_reads(A_KF))
        e("s_waitcnt lgkmcnt(0)")
        a.extend(qk_mfmas(V_SA, qbase, "0"))
        slot_adv(SC_SLOT, SC_SLOT, 1)
        wait_landed(3)
        a.extend(k_addr(SC_SLOT))
        slot_adv(SC_SLOT, SC_SLOT, 1)
        a.extend(v_addr(SC_SLOT, V_VB))
        a.extend(k_reads(A_KF))
        a.extend(v_reads(A_VF[0], False))
        slot_adv(SC_SLOT, SC_SLOT, 1)
        e("s_add_u32 %s, %s, 3" % (sr(SC_IDX), sr(SC_IDX)))
        a.extend(max_valu(V_SA))
        cross_half_max()
        for i in range(16):
            e("v_sub_f32 v%d, v%d, v%d" % (V_SA + i, V_SA + i, V_TMAX))
        e("v_sub_f32 v%d, 0, v%d" % (V_NEGM, V_TMAX))
        for i in range(1, 16):
            e("v_mov_b32 v%d, v%d" % (V_NEGM + i, V_NEGM))

        def iteration(par, kind):
            scur = V_SA if par == 0 else V_SB
            snext = V_SB if par == 0 else V_SA
            ex = ["v_exp_f32 v%d, v%d" % (scur + i, scur + i) for i in range(16)]
            ad = ["v_add_f32 v%d, v%d, v%d" % ((V_LSUM, V_LS2)[i & 1], (V_LSUM, V_LS2)[i & 1], scur + i)
                  for i in range(16)]
            cv = ["v_cvt_pk_bf16_f32 v%d, v%d, v%d" % (V_PF + k, scur + 2 * k, scur + 2 * k + 1) for k in range(8)]
            pv = pv_mfmas(A_VF[par])
            rel = release_l(SC_IDX)
            e("s_waitcnt lgkmcnt(%d)" % (15 if kind == "full" else 0))
            if kind == "full":
                qk = qk_mfmas(snext, qbase, vr(V_NEGM, 16))
                kr = k_reads(A_KF)
                r = v_reads(A_VF[par ^ 1], False)
                mx = max_valu(snext)
                cmp_ = ["v_cmp_lt_f32 vcc, %s, v%d" % (sr(SC_T), V_TMAX)]
                book = ["s_add_u32 %s, %s, %d" % (sr(SC_SLOT), sr(SC_SLOT), 2 * SLOT),
                        "s_add_u32 %s, %s, 2" % (sr(SC_IDX), sr(SC_IDX)),
                        "s_cmp_lt_u32 %s, %d" % (sr(SC_SLOT), RING),
                        "s_cselect_b32 %s, %s, 0" % (sr(SC_SLOT), sr(SC_SLOT))]
                ka = k_addr(SC_SLOT)
                va = v_addr(SC_SLOT, V_VB2)
                per = [
                    [ex[0], ex[1]] + wait_landed_l(2),
                    [ex[2], ex[3], cv[0], ka[0]],
                    [ex[4], ex[5], cv[1], ka[1]],
                    [ex[6], ex[7], cv[2], va[0]],
                    [ex[8], ex[9], cv[3], rel[0]],
                    [ex[10], ex[11], cv[4], book[0]],
                    [ex[12], ex[13], cv[5], book[1]],
                    [ex[14], ex[15], cv[6], cv[7], "s_waitcnt lgkmcnt(0)"],
                    [rel[1]] + kr[0:3] + ad[0:2],
                    kr[3:6] + ad[2:4] + book[2:3],
                    kr[6:8] + r[0:1] + ad[4:6] + book[3:4],
                    r[1:4] + ad[6:8] + mx[0:1],
                    r[4:7] + ad[8:10] + mx[1:2],
                    r[7:10] + ad[10:12] + mx[2:3],
                    r[10:13] + ad[12:14] + mx[3:5],
                    r[13:16] + ad[14:16] + mx[5:8] + cmp_,
                ]
                a.extend(gaps(qk + pv, per))
            else:
                g, tl = softmax_gaps(scur)
                if kind == "lastk":
                    a.extend(wait_landed_l(1) + v_addr(SC_SLOT, V_VB))
                    vrr = v_reads(A_VF[par ^ 1], False)
                    g = [l + vrr[2 * k:2 * k + 2] for k, l in enumerate(g)]
                    a.extend(gaps(qk_mfmas(snext, qbase, vr(V_NEGM, 16)), g))
                    a.extend(tl)
                    mx = max_valu(snext) + ["v_cmp_lt_f32 vcc, %s, v%d" % (sr(SC_T), V_TMAX)]
                    book = ["s_add_u32 %s, %s, 1" % (sr(SC_IDX), sr(SC_IDX))] + slot_adv_l(SC_SLOT, SC_SLOT, 1)
                    per = [rel, [], [], mx[0:2], mx[2:4] + book[0:1], mx[4:6] + book[1:3], mx[6:8] + book[3:5],
                           mx[8:9]]
                    a.extend(gaps(pv, per))
                else:
                    for l in g:
                        a.extend(l)
                    a.extend(tl)
                    a.extend(rel)
                    a.extend(pv)
            if kind != "final":
                r_ = a.newlab("rare")
                b_ = a.newlab("back")
                e("s_cbranch_vccnz %s" % r_)
                a.lab(b_)
                rare.append((r_, b_, snext))

        acts = []
        mask = [0]

        def at_pass(n, body):
            mask[0] |= 1 << n
            acts.append((n, body))

        if cfg.stamps:
            for nm in stl:
                if nm[0] == "ab"[ph] and nm[1:].isdigit():
                    at_pass(int(nm[1:]), lambda nm=nm: stamp(nm))
        if ph == 0:
            def nonce_issue():
                e("v_mov_b32 v1, 0")
                e("global_load_dwordx2 %s, v1, %s sc1" % (vr(V_NON, 2), sr(KA_DBG, 2)))

            def nonce_get():
                ok = a.newlab("nok")
                e("s_waitcnt vmcnt(0)")
                e("v_readfirstlane_b32 %s, v%d" % (sr(SC_NONCE), V_NON))
                e("v_readfirstlane_b32 %s, v%d" % (sr(SC_NONCE + 1), V_NON + 1))
                e("s_nop 3")
                e("s_cmp_lg_u32 %s, 0" % sr(SC_NONCE))
                e("s_cbranch_scc1 %s" % ok)
                get_nonce()
                a.lab(ok)
                e("s_getreg_b32 %s, hwreg(HW_REG_XCC_ID)" % sr(SC_XCC))
                e("s_and_b32 %s, %s, 15" % (sr(SC_XCC), sr(SC_XCC)))
                e("s_add_u32 %s, %s, %s" % (sr(SC_XCC), sr(SC_XCC), sr(SC_NONCE + 1)))
                e("s_lshl_b32 %s, %s, 7" % (sr(SC_IDOFF), sr(S_QUAD)))
                e("s_add_u32 %s, %s, %d" % (sr(SC_IDOFF), sr(SC_IDOFF), WS_FLAGI))
                e("s_mov_b32 %s, 0" % sr(SC_LOCAL))
                if cfg.local:
                    sk = a.newlab("idsk")
                    e("s_cmp_eq_u32 %s, 0" % sr(S_WAVE))
                    e("s_cbranch_scc0 %s" % sk)
                    e("s_lshl_b32 %s, %s, 3" % (sr(S_T1), sr(S_M)))
                    e("s_add_u32 %s, %s, %s" % (sr(S_T1), sr(S_T1), sr(SC_IDOFF)))
                    flag_store(S_T1, hi=SC_XCC)
                    a.lab(sk)

            def id_issue():
                e("v_min_u32 v1, 3, v0")
                e("v_lshlrev_b32 v1, 3, v1")
                e("buffer_load_dwordx2 %s, v1, %s, %s offen sc1" % (vr(V_NON, 2), sr(SRD_WS, 4), sr(SC_IDOFF)))

            def id_check():
                e("s_waitcnt vmcnt(0)")
                e("v_cmp_ne_u32 vcc, %s, v%d" % (sr(SC_NONCE), V_NON))
                e("v_cmp_ne_u32 s[34:35], %s, v%d" % (sr(SC_XCC), V_NON + 1))
                e("s_nop 3")
                e("s_or_b64 vcc, vcc, s[34:35]")
                e("s_cselect_b32 %s, 0, 1" % sr(SC_LOCAL))
            if not cfg.noxchg:
                at_pass(1, nonce_issue)
                at_pass(4, nonce_get)
                if cfg.local:
                    at_pass(10, id_issue)
                    at_pass(13, id_check)
        else:
            def p1b():
                stamp("g0")
                e("s_waitcnt vmcnt(0)")
                flago_off(SC_FOFF, 0, True)
                flag_store(SC_FOFF, local=True)
                stamp("g1")
            if not cfg.noxchg:
                at_pass(cfg.flagpass, p1b)
        e("s_mov_b32 %s, 0x%x" % (sr(SC_EVM), mask[0]))
        e("s_mov_b32 %s, 0" % sr(SC_IT))
        lp = a.newlab("attn")
        a.lab(lp)
        iteration(0, "full")
        iteration(1, "full")
        e("s_add_u32 %s, %s, 1" % (sr(SC_IT), sr(SC_IT)))
        evd = a.newlab("evdisp")
        evdb = a.newlab("evdback")
        blk = a.newlab("blk")
        blkr = a.newlab("blkret")
        e("s_bitcmp1_b32 %s, 0" % sr(SC_IT))
        e("s_cbranch_scc1 %s" % blk)
        a.lab(blkr)
        e("s_bitcmp1_b32 %s, %s" % (sr(SC_EVM), sr(SC_IT)))
        e("s_cbranch_scc1 %s" % evd)
        a.lab(evdb)
        e("s_cmp_lt_u32 %s, 15" % sr(SC_IT))
        e("s_cbranch_scc1 %s" % lp)

        def dispatcher(ph=ph, evd=evd, evdb=evdb, acts=acts, blk=blk, blkr=blkr):
            a.lab(evd)
            for n, body in acts:
                sk = a.newlab("noev")
                e("s_cmp_eq_u32 %s, %d" % (sr(SC_IT), n))
                e("s_cbranch_scc0 %s" % sk)
                body()
                a.lab(sk)
            e("s_branch %s" % evdb)
            a.lab(blk)
            xacc = V_ACCQ if ph == 0 else V_ACC1
            blkb = a.newlab("blkB")

            def double_chunk(j0):
                def mfs(q):
                    return ["%s %s, %s, %s, %s" % (
                        MFMA, vr(xacc + 16 * db, 16), ar(A_AF[q] + (ks * 4 + db) * 4, 4),
                        ar(A_XF[0] + (2 * (j0 + q) + ks) * 4, 4), vr(xacc + 16 * db, 16))
                        for ks in range(2) for db in range(4)]
                wait_landed(2)
                a.extend(v_addr(SC_SLOT, V_WB))
                ra = v_reads(A_AF[0], True)
                a.extend(ra)
                slot_adv(SC_SLOT, SC_SLOT, 1)
                e("s_waitcnt lgkmcnt(8)")
                rb = v_reads(A_AF[1], True)
                m0 = mfs(0)
                per = [v_addr(SC_SLOT, V_WB) if False else [] for _ in range(8)]
                per[0] = v_addr(SC_SLOT, V_WB) + rb[0:2]
                per[1] = rb[2:4] + ["s_waitcnt lgkmcnt(4)"]
                per[2] = rb[4:7]
                per[3] = rb[7:10]
                per[4] = rb[10:13]
                per[5] = rb[13:16]
                adv = slot_adv_l(SC_SLOT, SC_SLOT, 1) + ["s_add_u32 %s, %s, 2" % (sr(SC_IDX), sr(SC_IDX))]
                per[6] = adv[0:3]
                per[7] = adv[3:5]
                a.extend(gaps(m0, per))
                e("s_waitcnt lgkmcnt(0)")
                m1 = mfs(1)
                a.extend(gaps(m1, [release_l(SC_IDX)] + [[] for _ in range(7)]))
            e("s_bitcmp1_b32 %s, 1" % sr(SC_IT))
            e("s_cbranch_scc1 %s" % blkb)
            nox = a.newlab("nox")
            if ph == 1:
                e("s_cmp_eq_u32 %s, 1" % sr(SC_IT))
                e("s_cbranch_scc1 %s" % nox)
            wait_landed(3)
            a.extend(wave_slot(SC_SLOT2, 0))
            if ph == 0:
                a.extend(k_addr(SC_SLOT2))
                a.extend(k_reads(A_XF[0]))
            else:
                e("v_add_u32 v%d, %s, v%d" % (V_KA, sr(SC_SLOT2), V_L16))
                for s_ in range(8):
                    e("ds_read_b128 %s, v%d offset:%d" % (ar(A_XF[0] + 4 * s_, 4), V_KA, s_ * BLK))
            e("s_add_u32 %s, %s, 4" % (sr(SC_IDX), sr(SC_IDX)))
            slot_adv(SC_SLOT, SC_SLOT, 4)
            a.lab(nox)
            double_chunk(0)
            e("s_branch %s" % blkr)
            a.lab(blkb)
            double_chunk(2)
            e("s_branch %s" % blkr)
        dispatchers.append(dispatcher)
        if ph == 0:
            q_convert(V_Q2)
        else:
            e("s_nop 7")
            partial_store(V_ACC1, 0)
        iteration(0, "lastk")
        iteration(1, "final")
        stamp("f%d" % ph)
        e("v_add_f32 v%d, v%d, v%d" % (V_LSUM, V_LSUM, V_LS2))
        e("v_mov_b32 v%d, v%d" % (V_LS2, V_LSUM))
        e("s_nop 1")
        e("v_permlane32_swap_b32 v%d, v%d" % (V_LSUM, V_LS2))
        e("s_nop 1")
        e("v_add_f32 v%d, v%d, v%d" % (V_LSUM, V_LSUM, V_LS2))
        e("v_rcp_f32 v%d, v%d" % (V_ALPHA, V_LSUM))
        e("s_lshl_b32 %s, %s, 2" % (sr(S_T1), sr(S_QUAD)))
        e("s_add_u32 %s, %s, %s" % (sr(S_T1), sr(S_T1), sr(S_M)))
        e("s_add_u32 %s, %s, %d" % (sr(S_T1), sr(S_T1), ph * 256))
        e("s_mul_i32 %s, %s, 24576" % (sr(S_T1), sr(S_T1)))
        e("s_lshl_b32 %s, %s, 13" % (sr(S_T2), sr(S_WAVE)))
        e("s_add_u32 %s, %s, %s" % (sr(S_T1), sr(S_T1), sr(S_T2)))
        e("s_add_u32 %s, %s, %d" % (sr(SC_OOFF), sr(S_T1), WS_OBUF))
        e("s_add_u32 %s, %s, 4096" % (sr(SC_OOFF2), sr(SC_OOFF)))
        e("s_nop 3")

        def ostores(flav):
            for s in range(8):
                for k in range(4):
                    i = 4 * s + k
                    e("v_mul_f32 v%d, v%d, v%d" % (V_O + 2 * i, V_O + 2 * i, V_ALPHA))
                    e("v_mul_f32 v%d, v%d, v%d" % (V_O + 2 * i + 1, V_O + 2 * i + 1, V_ALPHA))
                    e("v_cvt_pk_bf16_f32 v%d, v%d, v%d" % (stg + i, V_O + 2 * i, V_O + 2 * i + 1))
                e("buffer_store_dwordx4 %s, v%d, %s, %s offen offset:%d %s" % (
                    vr(stg + 4 * s, 4), V_L16, sr(SRD_WS, 4), sr(SC_OOFF if s < 4 else SC_OOFF2),
                    (s & 3) * 1024, flav))
        if cfg.local:
            gl = a.newlab("osg")
            dn = a.newlab("osd")
            e("s_cmp_eq_u32 %s, 0" % sr(SC_LOCAL))
            e("s_cbranch_scc1 %s" % gl)
            ostores("")
            e("s_branch %s" % dn)
            a.lab(gl)
            ostores(cfg.stflags)
            a.lab(dn)
        else:
            ostores(cfg.stflags)

    def ccnt(name):
        if cfg.stamps:
            for k, nm in enumerate(stl):
                if nm == name:
                    e("s_mov_b32 %s, %s" % (sr(S_ST + 2 * k), sr(SC_SWC)))
    ccnt("cq")
    head(0)
    for i in range(32):
        e("v_accvgpr_write_b32 a%d, v%d" % (A_XF[0] + i, V_STG + i))
    stamp("h0")
    ccnt("c0")
    head(1)
    stamp("h1")
    ccnt("c1")

    def task(acc, bfrag, first, hooks):
        if first:
            wait_landed(1)
        a.extend(v_addr(SC_SLOT, V_WB))
        a.extend(v_reads(A_AF[0], True))
        e("s_add_u32 %s, %s, 1" % (sr(SC_IDX), sr(SC_IDX)))
        slot_adv(SC_SLOT, SC_SLOT, 1)
        fullwait = True
        for cidx in range(16):
            r, j = divmod(cidx, 4)
            mf = []
            for ks in range(2):
                for db in range(4):
                    cin = "0" if (cidx == 0 and ks == 0) else vr(acc + 16 * db, 16)
                    mf.append("%s %s, %s, %s, %s" % (
                        MFMA, vr(acc + 16 * db, 16), ar(A_AF[cidx & 1] + (ks * 4 + db) * 4, 4),
                        bfrag(r, 2 * j + ks), cin))
            per = [[] for _ in range(8)]
            if cidx == 15:
                fullwait = True
            if fullwait:
                e("s_waitcnt lgkmcnt(0)")
            if cidx < 15:
                wr = v_reads(A_AF[(cidx + 1) & 1], True)
                adv = ["s_add_u32 %s, %s, 1" % (sr(SC_IDX), sr(SC_IDX))] + slot_adv_l(SC_SLOT, SC_SLOT, 1)
                chk = wait_landed_l(1) if first else []
                per[0] = chk + v_addr(SC_SLOT, V_WB) + wr[0:2]
                per[1] = wr[2:4] + adv[0:2]
                per[2] = wr[4:6] + adv[2:4]
                per[3] = wr[6:8] + adv[4:5]
                per[4] = wr[8:10]
                per[5] = wr[10:12]
                per[6] = wr[12:14]
                per[7] = wr[14:16]
            if not fullwait:
                for g in (1, 3, 5):
                    per[g] = per[g] + ["s_waitcnt lgkmcnt(12)"]
                e("s_waitcnt lgkmcnt(12)")
            a.extend(gaps(mf, per))
            fullwait = False
            if hooks.get(cidx):
                hooks[cidx]()
                fullwait = True

    ACC2 = 128

    def hk_after_round0():
        e("s_waitcnt vmcnt(0)")
        flago_off(SC_FOFF, 1, True)
        flag_store(SC_FOFF, local=True)
        flagp_off(SC_FOFF, 0, True)
        flag_store(SC_FOFF)
        flago_off(SC_FOFF, 1, False)
        flag_poll(SC_FOFF, 4)
        load_o(1, A_OF2, [1, 2, 3])
        e("s_waitcnt vmcnt(16)")
        stamp("t1")

    task(ACC2, lambda r, s: vr(V_Q1 + 4 * s, 4) if r == 0 else ar(A_OF2[r] + 4 * s, 4), True,
         {3: hk_after_round0, 7: lambda: e("s_waitcnt vmcnt(8)"), 11: lambda: e("s_waitcnt vmcnt(0)")})
    e("s_nop 7")
    partial_store(ACC2, 1)
    stamp("t2")
    e("s_waitcnt vmcnt(0)")
    stamp("w0")
    flagp_off(SC_FOFF, 1, True)
    flag_store(SC_FOFF)
    reduce(0, V_O)
    stamp("r0")
    reduce(1, V_O)
    e("s_waitcnt vmcnt(0)")
    stamp("r1")

    a.lab("L_fin")
    savef = a.filt
    a.filt = None
    if cfg.dbgstamps:
        dsk = a.newlab("dbgsk")
        e("s_waitcnt lgkmcnt(0)")
        e("s_mov_b32 s28, -1")
        e("s_cmp_eq_u32 s2, 0")
        e("s_cselect_b32 s28, 0, s28")
        e("s_cmp_eq_u32 s2, 129")
        e("s_cselect_b32 s28, 1, s28")
        e("s_cmp_eq_u32 s28, -1")
        e("s_cbranch_scc1 %s" % dsk)
        e("s_cmp_eq_u32 %s, 0" % sr(S_WAVE))
        e("s_cbranch_scc1 %s" % (dsk + "a"))
        e("s_cmp_eq_u32 %s, 3" % sr(S_WAVE))
        e("s_cbranch_scc0 %s" % dsk)
        e("s_cmp_eq_u32 s28, 0")
        e("s_cbranch_scc0 %s" % dsk)
        e("s_mov_b32 s28, 2")
        a.lab(dsk + "a")
        e("s_lshl_b32 s28, s28, 4")
        e("s_add_u32 s28, s28, 16")
        e("v_mov_b32 v1, s28")
        for j in range(4):
            e("s_sub_u32 s29, s%d, s%d" % (S_ST + 2 * (j + 1) + (2 * 3 if j == 3 else 0), S_ST))
            e("v_mov_b32 v%d, s29" % (4 + j))
        e("s_mov_b64 exec, 1")
        e("global_store_dwordx4 v1, v[4:7], %s" % sr(KA_DBG, 2))
        e("s_waitcnt vmcnt(0)")
        a.lab(dsk)
        e("s_branch L_end")
    if cfg.stamps:
        e("s_waitcnt lgkmcnt(0)")
        for k, nm in enumerate(stl):
            if nm == "loc":
                e("s_mov_b32 %s, %s" % (sr(S_ST + 2 * k), sr(SC_LOCAL)))
        e("s_lshl_b32 s28, s2, 9")
        e("s_lshl_b32 s29, %s, 7" % sr(S_WAVE))
        e("s_add_u32 s28, s28, s29")
        e("s_add_u32 s28, s28, 0x%x" % WS_STAMP)
        e("v_mov_b32 v1, s28")
        e("s_getreg_b32 s30, hwreg(HW_REG_XCC_ID)")
        e("s_mov_b64 exec, 1")
        for k in range(4):
            for j in range(4):
                e("v_mov_b32 v%d, s%d" % (4 + j, S_ST + 4 * k + j))
            e("global_store_dwordx4 v1, v[4:7], %s offset:%d" % (sr(KA_WS, 2), 16 * k))
            e("s_waitcnt vmcnt(0)")
        e("v_mov_b32 v4, s30")
        e("global_store_dword v1, v4, %s offset:64" % sr(KA_WS, 2))
        e("s_waitcnt vmcnt(0)")
    a.lab("L_end")
    e("s_endpgm")
    a.filt = savef

    for r, b, sn in rare:
        rare_path(r, b, sn)
    for d in dispatchers:
        d()
    for slow, back in slowwaits:
        a.lab(slow)
        if cfg.stamps:
            e("s_add_u32 %s, %s, 1" % (sr(SC_SWC), sr(SC_SWC)))
        e("ds_read_b32 v%d, v%d" % (V_LRD, V_LADDR))
        e("s_waitcnt lgkmcnt(0)")
        e("v_readfirstlane_b32 %s, v%d" % (sr(SC_L), V_LRD))
        e("s_sub_u32 %s, %s, 1" % (sr(S_SPIN), sr(S_SPIN)))
        e("s_cmp_eq_u32 %s, 0" % sr(S_SPIN))
        e("s_cbranch_scc1 L_end")
        e("s_cmp_lt_u32 %s, %s" % (sr(SC_L), sr(SC_NEED)))
        if cfg.psleep:
            e("s_cbranch_scc0 %s" % back)
            e("s_sleep %d" % cfg.psleep)
            e("s_branch %s" % slow)
        else:
            e("s_cbranch_scc1 %s" % slow)
            e("s_branch %s" % back)
    txt = a.text()

    kd = []
    kd.append('.section .rodata,"a"')
    kd.append(".p2align 6")
    kd.append(".amdhsa_kernel %s_kernel" % NAME)
    kd.append("  .amdhsa_next_free_vgpr 512")
    kd.append("  .amdhsa_next_free_sgpr 102")
    kd.append("  .amdhsa_accum_offset 256")
    kd.append("  .amdhsa_group_segment_fixed_size 0")
    kd.append("  .amdhsa_kernarg_size 104")
    kd.append("  .amdhsa_user_sgpr_count 2")
    kd.append("  .amdhsa_user_sgpr_kernarg_segment_ptr 1")
    kd.append("  .amdhsa_system_sgpr_workgroup_id_x 1")
    kd.append(".end_amdhsa_kernel")
    return "\n".join(hdr) + "\n" + txt + "\n".join(kd) + "\n"


if __name__ == "__main__":
    import argparse
    ap = argparse.ArgumentParser()
    ap.add_argument("-o", default="cdna_kernels/%s.s" % NAME)
    ap.add_argument("--stamps", action="store_true")
    ap.add_argument("--set", action="append", default=[])
    args = ap.parse_args()
    cfg = Cfg()
    cfg.stamps = args.stamps
    for kv in args.set:
        k, v = kv.split("=", 1)
        cur = getattr(cfg, k)
        if isinstance(cur, bool):
            v = v in ("1", "True", "true")
        elif isinstance(cur, int):
            v = int(v)
        elif isinstance(cur, float):
            v = float(v)
        setattr(cfg, k, v)
    open(args.o, "w").write(build(cfg))
    print("wrote", args.o)
```

```python
import math
import struct

NAME = "concat_heads__mha_block_cached__gqa_block_cached__near_ridge"


def f32bits(x):
    return struct.unpack("<I", struct.pack("<f", x))[0]


class Cfg:
    NS = 18
    NQ = 11
    E = 7
    D = 5
    deven = 5
    dodd = 5
    polllead = 3
    stamps = False
    T_LOG2 = 8.0
    kvflags = "nt"
    wflags = ""
    woflags = "nt"
    xflags = ""
    kvsame = False
    noload = False
    nocompute = False
    noxchg = False
    stamplist = "start,qp,h0,h1,t1,t2,r0,r1"
    po_base = 10
    po_mul = 4
    pft = 20
    prefetch = True
    ytype = 1
    spin = 0x80000
    local = False
    psleep = 0
    dumpq = False
    skipo = False
    skipwo = False
    skipq2 = False
    wsbase = 0
    oflags = "sc1"
    wo2flags = "nt"
    wq2flags = ""
    x2flags = ""
    stflags = "sc1"
    flagpass = 2
    mix = 0
    dbgstamps = False
    ablate = ""


BLK = 1088
SLOT = 8 * BLK
NQT = 28
WS_FLAGO = 0
WS_FLAGP = 65536
WS_FLAGI = 131072
WS_OBUF = 1 << 20
WS_PBUF = 16 << 20
WS_STAMP = 28 << 20
WS_USED = 32 << 20


def vr(base, n=1):
    return "v%d" % base if n == 1 else "v[%d:%d]" % (base, base + n - 1)


def ar(base, n=1):
    return "a%d" % base if n == 1 else "a[%d:%d]" % (base, base + n - 1)


def sr(base, n=1):
    return "s%d" % base if n == 1 else "s[%d:%d]" % (base, base + n - 1)


class Asm:
    def __init__(self):
        self.L = []
        self.nlab = 0
        self.filt = None

    def e(self, s):
        if self.filt and self.filt(s):
            return
        self.L.append("  " + s)

    def lab(self, name):
        self.L.append(name + ":")

    def newlab(self, base):
        self.nlab += 1
        return "L%s_%d" % (base, self.nlab)

    def extend(self, lst):
        for s in lst:
            if s.endswith(":"):
                self.lab(s[:-1])
            else:
                self.e(s)

    def text(self):
        return "\n".join(self.L) + "\n"


def gaps(primary, per_gap):
    out = []
    for p, f in zip(primary, per_gap):
        out.append(p)
        out.extend(f)
    return out


S_WG = 2
S_WAVE = 3
S_X, S_M, S_G8, S_QUAD, S_H = 20, 21, 22, 24, 25
S_SPIN = 26
S_TAU = 27
S_T0, S_T1, S_T2, S_T3 = 28, 29, 30, 31
S_RET = 32
KA_X, KA_K, KA_V, KA_WQ, KA_WO = 36, 38, 40, 42, 44
S_B4, S_BR = 46, 47
KA_OUT, KA_DBG, KA_WS = 56, 58, 60
SL_ISS, SL_PUB, SL_FMIN, SL_SLOT, SL_NEED, SL_OFF, SL_OFF2, SL_CNT, SL_CNT2, SL_KOFF, SL_VOFF, SL_ROT = range(4, 16)
SL_RET2 = 16
SL_XB, SL_WB = 18, 19
SL_NADJ = 23
SL_QSLOT = 48
SL_EVM = 49
SL_NONCE = 34
SL_THR = 50
SL_WFC = 51
SL_RND = 52
SL_PP, SL_JJ = 53, 54
SRD_X, SRD_K, SRD_V, SRD_WQ, SRD_WO = 64, 68, 72, 76, 80
SC_L, SC_SLOT, SC_IDX, SC_IT, SC_T, SC_NEED, SC_SLOT2, SC_ADJ = range(4, 12)
SC_OOFF, SC_OOFF2, SC_FOFF, SC_POFF = 12, 13, 14, 15
SC_NONCE = 16
SC_RET2 = 18
SC_WRAP, SC_LOCAL, SC_XCC, SC_IDOFF, SC_EVM, SC_PADJ, SC_SAVE, SC_SWC = 72, 73, 74, 75, 76, 77, 78, 79
SRD_WS, SRD_OUT = 64, 68
S_ST = 84

V_KB = 8
V_VB = 10
V_WB = 11
V_KA = 12
V_VA = 14
V_L16 = 15
V_LSUM, V_LS2, V_TMAX, V_ALPHA, V_FV, V_LADDR, V_FADDR, V_LRD = range(17, 25)
V_VB2 = 25
V_NON = 26
V_PF = 32
V_NEGM = 48
V_O = 64
V_SA = 128
V_SB = 144
V_ACCQ = 160
V_Q2 = 160
V_STG = 192
V_Q1 = 224
V_ACC1 = 192
A_AF = [0, 32]
A_KF = 64
A_VF = [96, 128]
A_XF = [160, 192]
A_OF2 = [None, 64, 96, 128]
MFMA = "v_mfma_f32_32x32x16_bf16"


def build(cfg):
    NS, D, NQ, E = cfg.NS, cfg.D, cfg.NQ, cfg.E
    assert NS == NQ + E and NS % 2 == 0 and (NQ + 3) % 2 == 0
    RING = NS * SLOT
    FLAG_L = RING
    FLAG_F = RING + 16
    LDS_BYTES = RING + 64
    a = Asm()
    e = a.e
    hdr = []
    hdr.append("; @launch grid=(256,1,1) block=(256,1,1) lds=%d" % LDS_BYTES)
    hdr.append('.amdgcn_target "amdgcn-amd-amdhsa--gfx950"')
    hdr.append(".text")
    hdr.append(".globl %s_kernel" % NAME)
    hdr.append(".p2align 8")
    hdr.append(".type %s_kernel,@function" % NAME)
    hdr.append("%s_kernel:" % NAME)
    stl = cfg.stamplist.split(",")

    def stamp(name):
        if cfg.stamps:
            for k, nm in enumerate(stl):
                if nm == name:
                    e("s_memrealtime %s" % sr(S_ST + 2 * k, 2))
                if nm == name + ".c":
                    e("s_memtime %s" % sr(S_ST + 2 * k, 2))

    def cnt(name):
        if cfg.stamps:
            for k, nm in enumerate(stl):
                if nm == name:
                    e("s_mov_b32 %s, %s" % (sr(S_ST + 2 * k), sr(SL_WFC)))

    e("s_cmp_ge_u32 s2, 256")
    e("s_cbranch_scc1 L_end")
    e("s_load_dwordx16 s[36:51], s[0:1], 0")
    e("s_load_dwordx4 s[52:55], s[0:1], 64")
    e("s_load_dwordx4 s[56:59], s[0:1], 80")
    e("s_load_dwordx2 s[60:61], s[0:1], 96")
    stamp("start")
    e("v_lshrrev_b32 v1, 6, v0")
    e("v_and_b32 v0, 63, v0")
    e("s_and_b32 %s, s2, 7" % sr(S_X))
    e("v_readfirstlane_b32 %s, v1" % sr(S_WAVE))
    e("s_lshr_b32 s28, s2, 3")
    e("s_and_b32 %s, s28, 3" % sr(S_M))
    e("s_lshr_b32 %s, s28, 2" % sr(S_G8))
    e("s_lshl_b32 %s, %s, 2" % (sr(S_H), sr(S_X)))
    e("s_add_u32 %s, %s, %s" % (sr(S_H), sr(S_H), sr(S_M)))
    e("s_lshl_b32 %s, %s, 3" % (sr(S_QUAD), sr(S_G8)))
    e("s_add_u32 %s, %s, %s" % (sr(S_QUAD), sr(S_QUAD), sr(S_X)))
    e("s_mov_b32 %s, 0x%x" % (sr(S_SPIN), cfg.spin))
    e("s_lshl_b32 %s, %s, 1" % (sr(S_TAU), sr(S_M)))
    e("s_and_b32 s29, %s, 1" % sr(S_X))
    e("s_add_u32 %s, %s, s29" % (sr(S_TAU), sr(S_TAU)))
    e("s_mul_i32 %s, %s, %d" % (sr(S_TAU), sr(S_TAU), cfg.po_mul))
    e("s_lshr_b32 %s, %s, 3" % (sr(S_TAU), sr(S_TAU)))
    e("s_add_u32 %s, %s, %d" % (sr(S_TAU), sr(S_TAU), cfg.po_base))
    e("s_cmp_lt_u32 %s, 4" % sr(S_G8))
    e("s_waitcnt lgkmcnt(0)")
    for k in range(10):
        e("s_cselect_b32 s%d, s%d, s%d" % (36 + k, 36 + k, 46 + k))
    e("s_and_b32 %s, %s, 3" % (sr(S_B4), sr(S_G8)))
    e("s_lshr_b32 %s, %s, 2" % (sr(S_BR), sr(S_G8)))
    e("s_cmp_eq_u32 %s, 3" % sr(S_WAVE))
    e("s_cbranch_scc0 L_compute")

    def srd(dst, ptr, nbytes):
        e("s_mov_b32 %s, %s" % (sr(dst), sr(ptr)))
        e("s_mov_b32 %s, %s" % (sr(dst + 1), sr(ptr + 1)))
        e("s_mov_b32 %s, 0x%x" % (sr(dst + 2), nbytes))
        e("s_mov_b32 %s, 0x20000" % sr(dst + 3))

    a.lab("L_loader")
    e("s_setprio 3")
    LV_K, LV_V, LV_X, LV_WQ, LV_WO, LV_T, LV_LADDR, LV_FADDR, LV_F = 8, 12, 16, 20, 24, 28, 29, 30, 32
    LV_O, LV_FL, LV_NON, LV_FA = 36, 200, 202, 204
    BIAS = 4096
    NB_X, NB_KV, NB_W = 8 * 96 * 512 * 2, 8 * 32 * 1024 * 128 * 2, 512 * 4096 * 2

    def srdb(dst, ptr, nbytes):
        e("s_sub_u32 %s, %s, %d" % (sr(dst), sr(ptr), BIAS))
        e("s_subb_u32 %s, %s, 0" % (sr(dst + 1), sr(ptr + 1)))
        e("s_mov_b32 %s, 0x%x" % (sr(dst + 2), nbytes + BIAS))
        e("s_mov_b32 %s, 0x20000" % sr(dst + 3))

    e("v_lshrrev_b32 v1, 4, v0")
    e("v_and_b32 v2, 15, v0")
    e("v_xor_b32 v3, v2, v1")
    e("v_lshlrev_b32 v3, 4, v3")
    e("v_lshlrev_b32 v2, 4, v2")
    e("v_lshlrev_b32 v4, 12, v1")
    e("v_lshlrev_b32 v5, 15, v1")
    e("v_lshlrev_b32 v6, 10, v1")

    def lane_offs(dst, rowpart, colpart, rs):
        e("v_add_u32 v%d, v%d, v%d" % (dst, rowpart, colpart))
        for b in range(3, 0, -1):
            e("v_add_u32 v%d, %d, v%d" % (dst + b, BIAS + b * (rs - BLK), dst))
        e("v_add_u32 v%d, %d, v%d" % (dst, BIAS, dst))

    srdb(SRD_X, KA_X, NB_X)
    srdb(SRD_WQ, KA_WQ, NB_W)
    lane_offs(LV_X, 4, 3, 1024)
    lane_offs(LV_WQ, 5, 2, 8192)
    e("s_getreg_b32 %s, hwreg(HW_REG_XCC_ID)" % sr(SL_THR))
    e("s_and_b32 %s, %s, 1" % (sr(SL_THR), sr(SL_THR)))
    if cfg.deven < cfg.dodd:
        e("s_xor_b32 %s, %s, 1" % (sr(SL_THR), sr(SL_THR)))
    e("v_mov_b32 v%d, %d" % (LV_LADDR, FLAG_L))
    e("v_mov_b32 v%d, %d" % (LV_FADDR, FLAG_F))
    e("v_mov_b32 v%d, 0" % LV_T)
    e("ds_write_b32 v%d, v%d" % (LV_LADDR, LV_T))
    e("s_mov_b32 %s, 0" % sr(SL_ISS))
    e("s_mov_b32 %s, 0" % sr(SL_PUB))
    e("s_mov_b32 %s, 0" % sr(SL_FMIN))
    e("s_mov_b32 %s, 0" % sr(SL_SLOT))
    e("s_mov_b32 %s, -1" % sr(SL_NEED))
    e("s_mov_b32 %s, 0" % sr(SL_WFC))
    e("s_add_u32 %s, %s, %s" % (sr(SL_ROT), sr(S_B4), sr(S_M)))
    e("s_and_b32 %s, %s, 3" % (sr(SL_ROT), sr(SL_ROT)))
    if cfg.noload:
        e("v_mov_b32 v%d, 100000" % LV_T)
        e("s_waitcnt lgkmcnt(0)")
        e("ds_write_b32 v%d, v%d" % (LV_LADDR, LV_T))
        e("s_waitcnt lgkmcnt(0)")
        e("s_barrier")
        e("s_branch L_fin")

    ool = []

    def publish_nb():
        e("s_getreg_b32 %s, hwreg(HW_REG_IB_STS)" % sr(S_T0))
        e("s_lshr_b32 %s, %s, 18" % (sr(S_T1), sr(S_T0)))
        e("s_and_b32 %s, %s, 15" % (sr(S_T0), sr(S_T0)))
        e("s_and_b32 %s, %s, 0x30" % (sr(S_T1), sr(S_T1)))
        e("s_add_u32 %s, %s, %s" % (sr(S_T0), sr(S_T0), sr(S_T1)))
        e("s_add_u32 %s, %s, 7" % (sr(S_T0), sr(S_T0)))
        e("s_lshr_b32 %s, %s, 3" % (sr(S_T0), sr(S_T0)))
        e("s_sub_i32 %s, %s, %s" % (sr(SL_PUB), sr(SL_ISS), sr(S_T0)))
        e("v_mov_b32 v%d, %s" % (LV_T, sr(SL_PUB)))
        e("ds_write_b32 v%d, v%d" % (LV_LADDR, LV_T))

    def issue_tile(srdreg, voff, rs, flags, wrap, nowait=False, check=True):
        if check:
            e("s_cmp_ge_i32 %s, %s" % (sr(SL_FMIN), sr(SL_NEED)))
            slow = a.newlab("lslow")
            ok = a.newlab("ok")
            e("s_cbranch_scc0 %s" % slow)
            a.lab(ok)
            ool.append((slow, ok))

        def ld(b):
            e("buffer_load_dwordx4 v%d, %s, %s offen offset:%d %s lds" % (
                voff + (b & 3), sr(srdreg, 4), sr(SL_OFF if b < 4 else SL_OFF2), (b & 3) * BLK, flags))
        e("s_mov_b32 m0, %s" % sr(SL_SLOT))
        e("s_add_u32 %s, %s, %d" % (sr(SL_OFF2), sr(SL_OFF), 16 * rs))
        ld(0)
        ld(1)
        ld(2)
        e("s_add_u32 %s, %s, 1" % (sr(SL_ISS), sr(SL_ISS)))
        ld(3)
        e("s_add_u32 m0, %s, %d" % (sr(SL_SLOT), 4 * BLK))
        e("s_add_u32 %s, %s, %d" % (sr(SL_SLOT), sr(SL_SLOT), SLOT))
        ld(4)
        e("s_cmp_lt_u32 %s, %d" % (sr(SL_SLOT), wrap))
        e("s_cselect_b32 %s, %s, 0" % (sr(SL_SLOT), sr(SL_SLOT)))
        ld(5)
        e("s_sub_i32 %s, %s, %s" % (sr(SL_NEED), sr(SL_ISS), sr(SL_NADJ)))
        ld(6)
        if cfg.deven != cfg.dodd:
            e("s_cmp_eq_u32 %s, 0" % sr(SL_THR))
        ld(7)
        if not nowait:
            dmax, dmin = max(cfg.deven, cfg.dodd), min(cfg.deven, cfg.dodd)
            e("s_waitcnt vmcnt(%d)" % (8 * dmax))
            if dmin != dmax:
                sk = a.newlab("thr")
                e("s_cbranch_scc1 %s" % sk)
                e("s_waitcnt vmcnt(%d)" % (8 * dmin))
                a.lab(sk)
            publish_nb()

    def qp_round(first_nowait=0):
        n = 0

        def after():
            if first_nowait and n == first_nowait:
                e("s_waitcnt lgkmcnt(0)")
                e("s_barrier")
        for w in range(3):
            e("s_add_u32 %s, %s, %d" % (sr(SL_OFF), sr(SL_XB), w * 32 * 1024))
            issue_tile(SRD_X, LV_X, 1024, cfg.xflags, NQ * SLOT, nowait=(n < first_nowait))
            n += 1
            after()
        for j in range(4):
            e("s_add_u32 %s, %s, %d" % (sr(SL_OFF), sr(SL_WB), j * 32 * 8192))
            issue_tile(SRD_WQ, LV_WQ, 8192, cfg.wflags, NQ * SLOT, nowait=(n < first_nowait))
            n += 1
            after()

    def qp_bases(ph, rnd):
        e("s_add_u32 %s, %s, %s" % (sr(S_T1), sr(SL_ROT), sr(rnd)))
        e("s_and_b32 %s, %s, 3" % (sr(S_T1), sr(S_T1)))
        e("s_lshl_b32 %s, %s, 8" % (sr(S_T2), sr(S_T1)))
        e("s_mul_i32 %s, %s, %d" % (sr(SL_XB), sr(S_B4), 96 * 1024))
        e("s_add_u32 %s, %s, %s" % (sr(SL_XB), sr(SL_XB), sr(S_T2)))
        if ph:
            e("s_add_u32 %s, %s, %d" % (sr(SL_XB), sr(SL_XB), 4 * 96 * 1024))
        e("s_lshl_b32 %s, %s, 20" % (sr(S_T2), sr(S_T1)))
        e("s_lshl_b32 %s, %s, 8" % (sr(SL_WB), sr(S_H)))
        e("s_add_u32 %s, %s, %s" % (sr(SL_WB), sr(SL_WB), sr(S_T2)))

    kvf = "" if cfg.kvsame else cfg.kvflags
    e("s_mov_b32 %s, %d" % (sr(SL_NADJ), NQ - 1))
    e("s_mov_b32 %s, 0" % sr(SL_CNT))
    qp_bases(0, SL_CNT)
    qp_round(first_nowait=D)
    srdb(SRD_K, KA_K, NB_KV)
    srdb(SRD_V, KA_V, NB_KV)
    srdb(SRD_WO, KA_WO, NB_W)
    lane_offs(LV_K, 6, 3, 256)
    lane_offs(LV_V, 6, 2, 256)
    lane_offs(LV_WO, 4, 2, 1024)
    e("v_lshlrev_b32 v7, 4, v0")
    for b in range(3, 0, -1):
        e("v_add_u32 v%d, %d, v7" % (LV_O + b, BIAS + b * (1024 - BLK)))
    e("v_add_u32 v%d, %d, v7" % (LV_O, BIAS))
    e("v_min_u32 v7, 11, v0")
    e("v_lshrrev_b32 v%d, 2, v7" % LV_FA)
    e("v_lshlrev_b32 v%d, 7, v%d" % (LV_FA, LV_FA))
    e("v_and_b32 v7, 3, v7")
    e("v_lshlrev_b32 v7, 3, v7")
    e("v_add_u32 v%d, v%d, v7" % (LV_FA, LV_FA))
    e("v_add_u32 v%d, %d, v%d" % (LV_FA, BIAS, LV_FA))
    e("s_lshl_b32 %s, %s, 5" % (sr(S_T1), sr(S_B4)))
    e("s_add_u32 %s, %s, %s" % (sr(S_T1), sr(S_T1), sr(S_H)))
    e("s_lshl_b32 %s, %s, 18" % (sr(SL_KOFF), sr(S_T1)))
    stamp("q3")

    def early_tiles():
        e("s_mov_b32 %s, %s" % (sr(SL_QSLOT), sr(SL_SLOT)))
        e("s_mov_b32 %s, %d" % (sr(SL_SLOT), NQ * SLOT))
        seq = [("K", 0), ("K", 1), ("V", 0)]
        t = 0
        while len(seq) < E:
            seq += [("K", t + 2), ("V", t + 1)]
            t += 1
        assert len(seq) == E
        for kind, t in seq:
            e("s_add_u32 %s, %s, %d" % (sr(SL_OFF), sr(SL_KOFF), 0 if cfg.kvsame else t * 8192))
            if kind == "K":
                issue_tile(SRD_K, LV_K, 256, kvf, RING, check=False)
            else:
                issue_tile(SRD_V, LV_V, 256, kvf, RING, check=False)
        e("s_mov_b32 %s, %s" % (sr(SL_SLOT), sr(SL_QSLOT)))

    npairs_early = (E - 3) // 2
    if cfg.ytype == 1:
        e("s_and_b32 %s, %s, 1" % (sr(S_T3), sr(S_M)))
        e("s_cmp_eq_u32 %s, 0" % sr(S_T3))
        e("s_cbranch_scc1 L_ld_x1")
    if cfg.ytype in (1, 2):
        early_tiles()
        e("s_mov_b32 %s, %d" % (sr(SL_NADJ), NQ - 1 + E))
        e("s_sub_i32 %s, %s, %s" % (sr(SL_NEED), sr(SL_ISS), sr(SL_NADJ)))
    a.lab("L_ld_x1")
    e("s_mov_b32 %s, 1" % sr(SL_CNT))
    a.lab("L_ld_qp1")
    qp_bases(0, SL_CNT)
    qp_round()
    if cfg.stamps:
        for rr in (1, 2, 3):
            nm = "q%d" % (4 * rr + 3)
            if nm in stl:
                sk = a.newlab("sk")
                e("s_cmp_eq_u32 %s, %d" % (sr(SL_CNT), rr))
                e("s_cbranch_scc0 %s" % sk)
                stamp(nm)
                a.lab(sk)
    e("s_add_u32 %s, %s, 1" % (sr(SL_CNT), sr(SL_CNT)))
    e("s_cmp_lt_u32 %s, 4" % sr(SL_CNT))
    e("s_cbranch_scc1 L_ld_qp1")
    if cfg.ytype == 1:
        e("s_and_b32 %s, %s, 1" % (sr(S_T3), sr(S_M)))
        e("s_cmp_eq_u32 %s, 0" % sr(S_T3))
        e("s_cbranch_scc0 L_ld_y2")
    if cfg.ytype in (0, 1):
        early_tiles()
    a.lab("L_ld_y2")
    stamp("qp")
    cnt("cq")
    e("s_mov_b32 %s, 0" % sr(SL_SLOT))
    e("s_mov_b32 %s, %d" % (sr(SL_NADJ), NS - 1))
    e("s_mov_b32 %s, %d" % (sr(SL_NEED), NQT))
    e("v_mov_b32 v7, 0")
    e("global_load_dwordx2 %s, v7, %s sc1" % (vr(LV_NON, 2), sr(KA_DBG, 2)))
    e("s_mov_b32 %s, 0x55555554" % sr(SL_EVM))
    e("s_mov_b32 %s, 0" % sr(SL_CNT2))
    e("s_add_u32 %s, %s, %d" % (sr(SL_VOFF), sr(SL_KOFF), 0 if cfg.kvsame else npairs_early * 8192))
    e("s_mov_b32 %s, %d" % (sr(SL_CNT), npairs_early))
    assert npairs_early == 2
    e("s_branch L_ld_disp")
    a.lab("L_ld_head")
    e("s_mov_b32 %s, %s" % (sr(SL_OFF), sr(SL_KOFF)))
    issue_tile(SRD_K, LV_K, 256, kvf, RING)
    e("s_add_u32 %s, %s, 8192" % (sr(SL_OFF), sr(SL_KOFF)))
    issue_tile(SRD_K, LV_K, 256, kvf, RING)
    e("s_mov_b32 %s, %s" % (sr(SL_OFF), sr(SL_KOFF)))
    issue_tile(SRD_V, LV_V, 256, kvf, RING)
    e("s_mov_b32 %s, %s" % (sr(SL_VOFF), sr(SL_KOFF)))
    e("s_mov_b32 %s, 0" % sr(SL_CNT))
    a.lab("L_ld_kv")
    e("s_add_u32 %s, %s, 16384" % (sr(SL_OFF), sr(SL_VOFF)))
    issue_tile(SRD_K, LV_K, 256, kvf, RING)
    e("s_add_u32 %s, %s, 8192" % (sr(SL_OFF), sr(SL_VOFF)))
    issue_tile(SRD_V, LV_V, 256, kvf, RING)
    if not cfg.kvsame:
        e("s_add_u32 %s, %s, 8192" % (sr(SL_VOFF), sr(SL_VOFF)))
    e("s_add_u32 %s, %s, 1" % (sr(SL_CNT), sr(SL_CNT)))
    e("s_bitcmp1_b32 %s, %s" % (sr(SL_EVM), sr(SL_CNT)))
    e("s_cbranch_scc1 L_ld_disp")
    a.lab("L_ld_evret")
    e("s_cmp_lt_u32 %s, 30" % sr(SL_CNT))
    e("s_cbranch_scc1 L_ld_kv")
    e("s_add_u32 %s, %s, 8192" % (sr(SL_OFF), sr(SL_VOFF)))
    issue_tile(SRD_V, LV_V, 256, kvf, RING)
    e("s_cmp_eq_u32 %s, 0" % sr(SL_CNT2))
    e("s_cbranch_scc0 L_ld_tail")
    stamp("h0")
    cnt("c0")
    e("s_add_u32 %s, %s, %d" % (sr(SL_KOFF), sr(SL_KOFF), 4 * 32 * 262144))
    if cfg.wsbase:
        e("s_add_u32 %s, %s, 0x%x" % (sr(KA_WS), sr(KA_WS), cfg.wsbase << 20))
        e("s_addc_u32 %s, %s, 0" % (sr(KA_WS + 1), sr(KA_WS + 1)))
    srdb(SRD_X, KA_WS, WS_USED)
    if not cfg.noxchg and not cfg.nocompute:
        okn = a.newlab("lnok")
        e("v_readfirstlane_b32 %s, v%d" % (sr(SL_NONCE), LV_NON))
        e("v_readfirstlane_b32 %s, v%d" % (sr(SL_NONCE + 1), LV_NON + 1))
        e("s_nop 3")
        e("s_cmp_lg_u32 %s, 0" % sr(SL_NONCE))
        e("s_cbranch_scc1 %s" % okn)
        lpn = a.newlab("lnlp")
        a.lab(lpn)
        e("v_mov_b32 v7, 0")
        e("global_load_dwordx2 %s, v7, %s sc1" % (vr(LV_NON, 2), sr(KA_DBG, 2)))
        e("s_waitcnt vmcnt(0)")
        e("v_readfirstlane_b32 %s, v%d" % (sr(SL_NONCE), LV_NON))
        e("v_readfirstlane_b32 %s, v%d" % (sr(SL_NONCE + 1), LV_NON + 1))
        e("s_sub_u32 %s, %s, 1" % (sr(S_SPIN), sr(S_SPIN)))
        e("s_cmp_eq_u32 %s, 0" % sr(S_SPIN))
        e("s_cbranch_scc1 L_end")
        e("s_cmp_eq_u32 %s, 0" % sr(SL_NONCE))
        e("s_cbranch_scc1 %s" % lpn)
        a.lab(okn)
    e("s_mov_b32 %s, 1" % sr(SL_CNT2))
    e("s_branch L_ld_head")
    a.lab("L_ld_tail")
    stamp("h1")
    cnt("c1")
    e("s_mov_b32 %s, 0" % sr(SL_XB))
    a.lab("L_ld_wo_r")
    e("s_add_u32 %s, %s, %s" % (sr(S_T1), sr(S_M), sr(SL_XB)))
    e("s_and_b32 %s, %s, 3" % (sr(S_T1), sr(S_T1)))
    e("s_lshl_b32 %s, %s, 17" % (sr(S_T1), sr(S_T1)))
    e("s_lshl_b32 %s, %s, 19" % (sr(SL_WB), sr(S_X)))
    e("s_add_u32 %s, %s, %s" % (sr(SL_WB), sr(SL_WB), sr(S_T1)))
    e("s_lshl_b32 %s, %s, 8" % (sr(S_T1), sr(S_M)))
    e("s_add_u32 %s, %s, %s" % (sr(SL_WB), sr(SL_WB), sr(S_T1)))
    for j in range(4):
        e("s_add_u32 %s, %s, %d" % (sr(SL_OFF), sr(SL_WB), j * 32 * 1024))
        issue_tile(SRD_WO, LV_WO, 1024, cfg.wo2flags, RING)
    e("s_add_u32 %s, %s, 1" % (sr(SL_XB), sr(SL_XB)))
    e("s_cmp_lt_u32 %s, 4" % sr(SL_XB))
    e("s_cbranch_scc1 L_ld_wo_r")
    a.lab("L_ld_drain")
    publish_nb()
    e("s_cmp_lt_i32 %s, %s" % (sr(SL_PUB), sr(SL_ISS)))
    e("s_cbranch_scc1 L_ld_drain")
    e("s_waitcnt lgkmcnt(0)")
    stamp("t2")
    e("s_branch L_fin")

    def pf_tile(srdreg, voff, rs, flags, vdst):
        e("s_add_u32 %s, %s, %d" % (sr(SL_OFF2), sr(SL_OFF), 16 * rs))
        for b in range(8):
            e("buffer_load_dwordx4 %s, v%d, %s, %s offen offset:%d %s" % (
                vr(vdst + 4 * b, 4), voff + (b & 3), sr(srdreg, 4), sr(SL_OFF if b < 4 else SL_OFF2),
                (b & 3) * BLK, flags))

    def flag_poll_issue_l():
        e("s_lshl_b32 %s, %s, 9" % (sr(S_T1), sr(S_QUAD)))
        e("buffer_load_dwordx2 %s, v%d, %s, %s offen sc1" % (vr(LV_FL, 2), LV_FA, sr(SRD_X, 4), sr(S_T1)))

    def flag_check_l(tgt_ok):
        e("v_cmp_ne_u32 vcc, %s, v%d" % (sr(SL_NONCE), LV_FL))
        e("v_cmp_ne_u32 s[28:29], %s, v%d" % (sr(SL_NONCE + 1), LV_FL + 1))
        e("s_nop 3")
        e("s_or_b64 vcc, vcc, s[28:29]")
        e("s_cbranch_scc0 %s" % tgt_ok)

    a.lab("L_ld_disp")
    e("s_lshr_b32 %s, %s, 1" % (sr(SL_PP), sr(SL_CNT)))
    e("s_sub_u32 %s, %s, 1" % (sr(SL_PP), sr(SL_PP)))
    e("s_lshr_b32 %s, %s, 2" % (sr(SL_RND), sr(SL_PP)))
    e("s_and_b32 %s, %s, 3" % (sr(SL_JJ), sr(SL_PP)))
    e("s_cmp_eq_u32 %s, 0" % sr(SL_CNT2))
    e("s_cbranch_scc0 L_ld_x2")
    e("s_cmp_eq_u32 %s, 0" % sr(SL_JJ))
    e("s_cbranch_scc0 L_ld_w1")
    qp_bases(1, SL_RND)
    for w in range(3):
        e("s_add_u32 %s, %s, %d" % (sr(SL_OFF), sr(SL_XB), w * 32 * 1024))
        issue_tile(SRD_X, LV_X, 1024, cfg.x2flags, RING)
    a.lab("L_ld_w1")
    e("s_lshl_b32 %s, %s, 18" % (sr(SL_OFF), sr(SL_JJ)))
    e("s_add_u32 %s, %s, %s" % (sr(SL_OFF), sr(SL_OFF), sr(SL_WB)))
    issue_tile(SRD_WQ, LV_WQ, 8192, cfg.wq2flags, RING)
    e("s_cmp_eq_u32 %s, 14" % sr(SL_PP))
    e("s_cbranch_scc0 L_ld_evret")
    e("s_add_u32 %s, %s, %d" % (sr(SL_OFF), sr(SL_WB), 3 * 32 * 8192))
    issue_tile(SRD_WQ, LV_WQ, 8192, cfg.wq2flags, RING)
    e("s_branch L_ld_evret")
    a.lab("L_ld_x2")
    if not cfg.noxchg and not cfg.nocompute:
        skp = a.newlab("skp")
        e("s_cmp_eq_u32 %s, 2" % sr(SL_PP))
        e("s_cbranch_scc0 %s" % skp)
        flag_poll_issue_l()
        a.lab(skp)
    e("s_cmp_eq_u32 %s, 0" % sr(SL_JJ))
    e("s_cbranch_scc0 L_ld_w2")
    e("s_add_u32 %s, %s, %s" % (sr(S_T2), sr(S_M), sr(SL_RND)))
    e("s_and_b32 %s, %s, 3" % (sr(S_T2), sr(S_T2)))
    e("s_lshl_b32 %s, %s, 17" % (sr(S_T1), sr(S_T2)))
    e("s_lshl_b32 %s, %s, 19" % (sr(SL_WB), sr(S_X)))
    e("s_add_u32 %s, %s, %s" % (sr(SL_WB), sr(SL_WB), sr(S_T1)))
    e("s_lshl_b32 %s, %s, 8" % (sr(S_T1), sr(S_M)))
    e("s_add_u32 %s, %s, %s" % (sr(SL_WB), sr(SL_WB), sr(S_T1)))
    e("s_lshl_b32 %s, %s, 2" % (sr(S_T3), sr(S_QUAD)))
    e("s_add_u32 %s, %s, %s" % (sr(S_T2), sr(S_T2), sr(S_T3)))
    e("s_mul_i32 %s, %s, 24576" % (sr(S_T2), sr(S_T2)))
    e("s_add_u32 %s, %s, %d" % (sr(SL_XB), sr(S_T2), WS_OBUF))
    e("s_cmp_eq_u32 %s, 0" % sr(SL_RND))
    e("s_cbranch_scc1 L_ld_w2")
    if not cfg.noxchg and not cfg.nocompute:
        okf = a.newlab("lfok")
        e("s_cmp_eq_u32 %s, 1" % sr(SL_RND))
        e("s_cbranch_scc0 %s" % okf)
        flag_check_l(okf)
        lpf = a.newlab("lfl")
        a.lab(lpf)
        flag_poll_issue_l()
        e("s_waitcnt vmcnt(0)")
        e("s_sub_u32 %s, %s, 1" % (sr(S_SPIN), sr(S_SPIN)))
        e("s_cmp_eq_u32 %s, 0" % sr(S_SPIN))
        e("s_cbranch_scc1 L_end")
        flag_check_l(okf)
        e("s_branch %s" % lpf)
        a.lab(okf)
    for w in range(3):
        e("s_add_u32 %s, %s, %d" % (sr(SL_OFF), sr(SL_XB), w * 8192))
        issue_tile(SRD_X, LV_O, 256, cfg.oflags, RING)
    a.lab("L_ld_w2")
    e("s_lshl_b32 %s, %s, 15" % (sr(SL_OFF), sr(SL_JJ)))
    e("s_add_u32 %s, %s, %s" % (sr(SL_OFF), sr(SL_OFF), sr(SL_WB)))
    issue_tile(SRD_WO, LV_WO, 1024, cfg.woflags, RING)
    e("s_cmp_eq_u32 %s, 14" % sr(SL_PP))
    e("s_cbranch_scc0 L_ld_evret")
    e("s_add_u32 %s, %s, %d" % (sr(SL_OFF), sr(SL_WB), 3 * 32 * 1024))
    issue_tile(SRD_WO, LV_WO, 1024, cfg.woflags, RING)
    e("s_branch L_ld_evret")

    for slow, ok in ool:
        a.lab(slow)
        e("s_call_b64 %s, L_waitfree" % sr(S_RET, 2))
        e("s_branch %s" % ok)
    a.lab("L_waitfree")
    if cfg.stamps:
        e("s_add_u32 %s, %s, 1" % (sr(SL_WFC), sr(SL_WFC)))
    e("ds_read_b96 v[%d:%d], v%d" % (LV_F, LV_F + 2, LV_FADDR))
    publish_nb()
    e("s_waitcnt lgkmcnt(1)")
    e("v_min3_u32 v%d, v%d, v%d, v%d" % (LV_F, LV_F, LV_F + 1, LV_F + 2))
    e("s_sub_u32 %s, %s, 1" % (sr(S_SPIN), sr(S_SPIN)))
    e("v_readfirstlane_b32 %s, v%d" % (sr(SL_FMIN), LV_F))
    e("s_cmp_eq_u32 %s, 0" % sr(S_SPIN))
    e("s_cbranch_scc1 L_end")
    e("s_nop 1")
    e("s_cmp_ge_i32 %s, %s" % (sr(SL_FMIN), sr(SL_NEED)))
    e("s_cbranch_scc0 L_waitfree")
    e("s_setpc_b64 %s" % sr(S_RET, 2))

    if cfg.noxchg:
        a.filt = lambda sx: (sx.startswith("buffer_") or sx.startswith("global_load")
                             or sx.startswith("global_store_dwordx2"))
    a.lab("L_compute")
    e("v_and_b32 v1, 3, v0")
    e("v_lshrrev_b32 v2, 5, v0")
    e("v_lshrrev_b32 v3, 4, v0")
    e("v_and_b32 v3, 1, v3")
    e("v_lshrrev_b32 v4, 2, v0")
    e("v_and_b32 v4, 3, v4")
    e("v_lshlrev_b32 v5, 2, v3")
    e("v_add_u32 v5, v5, v1")
    e("s_movk_i32 %s, %d" % (sr(S_T0), BLK))
    e("v_mul_lo_u32 v5, v5, %s" % sr(S_T0))
    e("v_lshlrev_b32 v6, 8, v4")
    e("v_add_u32 v5, v5, v6")
    for par in range(2):
        e("v_add_u32 v6, %d, v2" % (2 * par))
        e("v_xor_b32 v6, v6, v4")
        e("v_lshlrev_b32 v6, 4, v6")
        e("v_add_u32 v%d, v5, v6" % (V_KB + par))
    e("v_lshrrev_b32 v6, 1, v1")
    e("v_and_b32 v7, 1, v1")
    e("v_lshlrev_b32 v7, 1, v7")
    e("v_or_b32 v6, v6, v7")
    e("v_lshlrev_b32 v6, 3, v6")
    e("v_lshlrev_b32 v7, 5, v3")
    e("v_add_u32 v6, v6, v7")
    e("v_mul_lo_u32 v7, v4, %s" % sr(S_T0))
    e("v_add_u32 v6, v6, v7")
    e("v_lshlrev_b32 v7, 8, v2")
    e("v_add_u32 v%d, v6, v7" % V_VB)
    e("v_add_u32 v%d, v%d, v7" % (V_WB, V_VB))
    e("v_add_u32 v%d, %d, v%d" % (V_VB2, SLOT, V_VB))
    e("v_mov_b32 v%d, %d" % (V_LADDR, FLAG_L))
    e("s_lshl_b32 %s, %s, 2" % (sr(S_T0), sr(S_WAVE)))
    e("s_add_u32 %s, %s, %d" % (sr(S_T0), sr(S_T0), FLAG_F))
    e("v_mov_b32 v%d, %s" % (V_FADDR, sr(S_T0)))
    e("v_mov_b32 v%d, %d" % (V_FV, 100000 if cfg.nocompute else 0))
    e("ds_write_b32 v%d, v%d" % (V_FADDR, V_FV))
    e("v_lshlrev_b32 v%d, 4, v0" % V_L16)
    e("s_mov_b32 %s, 0" % sr(SC_L))
    e("s_mov_b32 %s, 0" % sr(SC_SWC))
    c = (128 ** -0.5) * math.log2(math.e)
    e("s_mov_b32 %s, 0x%x" % (sr(SC_T), f32bits(cfg.T_LOG2)))
    e("s_mov_b32 %s, 0" % sr(SC_IDX))
    e("s_mov_b32 %s, 0" % sr(SC_SLOT))
    e("s_mov_b32 %s, %d" % (sr(SC_WRAP), NQ * SLOT))
    if cfg.ytype == 1:
        e("s_and_b32 %s, %s, 1" % (sr(S_T1), sr(S_M)))
        e("s_mul_i32 %s, %s, %d" % (sr(SC_PADJ), sr(S_T1), E))
    else:
        e("s_mov_b32 %s, %d" % (sr(SC_PADJ), E if cfg.ytype == 2 else 0))
    e("s_mov_b32 %s, 0" % sr(SC_ADJ))
    if cfg.wsbase:
        e("s_add_u32 %s, %s, 0x%x" % (sr(KA_WS), sr(KA_WS), cfg.wsbase << 20))
        e("s_addc_u32 %s, %s, 0" % (sr(KA_WS + 1), sr(KA_WS + 1)))
    srd(SRD_WS, KA_WS, WS_USED)
    srd(SRD_OUT, KA_OUT, 8 * 96 * 1024 * 2)
    e("s_or_b32 %s, %s, %s" % (sr(S_T0), sr(S_WG), sr(S_WAVE)))
    e("s_cmp_eq_u32 %s, 0" % sr(S_T0))
    e("s_cbranch_scc0 L_nononce")
    e("s_memrealtime %s" % sr(SC_NONCE, 2))
    e("s_waitcnt lgkmcnt(0)")
    e("s_or_b32 %s, %s, 1" % (sr(SC_NONCE), sr(SC_NONCE)))
    e("v_mov_b32 v2, %s" % sr(SC_NONCE))
    e("v_mov_b32 v3, %s" % sr(SC_NONCE + 1))
    e("v_mov_b32 v1, 0")
    e("global_store_dwordx2 v1, v[2:3], %s sc1" % sr(KA_DBG, 2))
    a.lab("L_nononce")
    e("s_waitcnt lgkmcnt(0)")
    e("s_barrier")
    stamp("bar")
    if cfg.nocompute:
        e("s_branch L_fin")

    slowwaits = []

    def wait_landed_l(delta, adj=False):
        slow = a.newlab("lw_slow")
        back = a.newlab("lw_back")
        slowwaits.append((slow, back))
        out = ["s_add_u32 %s, %s, %d" % (sr(SC_NEED), sr(SC_IDX), delta)]
        if adj:
            out.append("s_add_u32 %s, %s, %s" % (sr(SC_NEED), sr(SC_NEED), sr(SC_ADJ)))
        out += ["s_cmp_lt_u32 %s, %s" % (sr(SC_L), sr(SC_NEED)),
                "s_cbranch_scc1 %s" % slow,
                back + ":"]
        return out

    def wait_landed(delta, adj=False):
        a.extend(wait_landed_l(delta, adj))

    def slot_adv_l(dst, src, n):
        return ["s_add_u32 %s, %s, %d" % (sr(dst), sr(src), n * SLOT),
                "s_sub_u32 %s, %s, %s" % (sr(S_T0), sr(dst), sr(SC_WRAP)),
                "s_cmp_lt_u32 %s, %s" % (sr(dst), sr(SC_WRAP)),
                "s_cselect_b32 %s, %s, %s" % (sr(dst), sr(dst), sr(S_T0))]

    def slot_adv(dst, src, n):
        a.extend(slot_adv_l(dst, src, n))

    def release_l(sg):
        return ["v_mov_b32 v%d, %s" % (V_FV, sr(sg)), "ds_write_b32 v%d, v%d" % (V_FADDR, V_FV)]

    def k_addr(slot):
        return ["v_add_u32 v%d, %s, v%d" % (V_KA + p, sr(slot), V_KB + p) for p in range(2)]

    def k_reads(dst_a):
        return ["ds_read_b128 %s, v%d offset:%d" % (ar(dst_a + 4 * s, 4), V_KA + (s & 1), (s >> 1) * 64)
                for s in range(8)]

    def v_addr(slot, base):
        return ["v_add_u32 v%d, %s, v%d" % (V_VA, sr(slot), base)]

    def v_reads(dst_a, isw):
        out = []
        for ks in range(2):
            for db in range(4):
                base = dst_a + (ks * 4 + db) * 4
                o2 = 256 if isw else 512
                o = ks * 4 * BLK + db * 64
                out.append("ds_read_b64_tr_b16 %s, v%d offset:%d" % (ar(base, 2), V_VA, o))
                out.append("ds_read_b64_tr_b16 %s, v%d offset:%d" % (ar(base + 2, 2), V_VA, o + o2))
        return out

    def wave_slot(dst, n):
        return ["s_mul_i32 %s, %s, %d" % (sr(S_T1), sr(S_WAVE), SLOT),
                "s_add_u32 %s, %s, %s" % (sr(dst), sr(SC_SLOT), sr(S_T1))] + slot_adv_l(dst, dst, n)

    def x_fetch(buf):
        out = wave_slot(SC_SLOT2, 0) + k_addr(SC_SLOT2) + k_reads(A_XF[buf])
        out += slot_adv_l(SC_SLOT, SC_SLOT, 3)
        return out

    wait_landed(4, True)
    a.extend(x_fetch(0))
    a.extend(v_addr(SC_SLOT, V_WB))
    a.extend(v_reads(A_AF[0], True))
    e("s_add_u32 %s, %s, 4" % (sr(SC_IDX), sr(SC_IDX)))
    slot_adv(SC_SLOT, SC_SLOT, 1)
    for cidx in range(16):
        r, j = divmod(cidx, 4)
        e("s_waitcnt lgkmcnt(0)")
        mf = []
        for ks in range(2):
            for db in range(4):
                acc = V_ACCQ + 16 * db
                cin = "0" if (cidx == 0 and ks == 0) else vr(acc, 16)
                mf.append("%s %s, %s, %s, %s" % (
                    MFMA, vr(acc, 16), ar(A_AF[cidx & 1] + (ks * 4 + db) * 4, 4),
                    ar(A_XF[r & 1] + (2 * j + ks) * 4, 4), cin))
        fill = []
        if cidx < 15:
            nx = 3 if j == 3 else 0
            if cidx == 3:
                fill += ["s_mov_b32 %s, %s" % (sr(SC_ADJ), sr(SC_PADJ))]
            fill += wait_landed_l(nx + 1, True)
            if nx:
                fill += x_fetch((r + 1) & 1)
            fill += v_addr(SC_SLOT, V_WB) + v_reads(A_AF[(cidx + 1) & 1], True)
            fill += release_l(SC_IDX)
            fill += ["s_add_u32 %s, %s, %d" % (sr(SC_IDX), sr(SC_IDX), nx + 1)] + slot_adv_l(SC_SLOT, SC_SLOT, 1)
        else:
            fill += release_l(SC_IDX)
        ng = 6
        per = [[] for _ in range(8)]
        items = fill
        n = len(items)
        pos = 0
        for g in range(ng):
            tgt = max((n * (g + 1)) // ng, pos)
            while tgt < n and items[tgt].endswith(":"):
                tgt += 1
            per[g] = items[pos:tgt]
            pos = tgt
        a.extend(gaps(mf, per))
        if cfg.stamps and ("q%d" % cidx) in stl:
            stamp("q%d" % cidx)

    def q_convert(dst):
        e("s_nop 7")
        e("s_nop 3")
        e("s_mov_b32 %s, 0x%x" % (sr(S_T1), f32bits(c)))
        for i in range(32):
            e("v_mul_f32 v%d, %s, v%d" % (V_ACCQ + 2 * i, sr(S_T1), V_ACCQ + 2 * i))
            e("v_mul_f32 v%d, %s, v%d" % (V_ACCQ + 2 * i + 1, sr(S_T1), V_ACCQ + 2 * i + 1))
            e("v_cvt_pk_bf16_f32 v%d, v%d, v%d" % (dst + i, V_ACCQ + 2 * i, V_ACCQ + 2 * i + 1))
    q_convert(V_Q1)
    e("s_mov_b32 %s, %d" % (sr(SC_SLOT), NQ * SLOT))
    e("s_mov_b32 %s, %d" % (sr(SC_WRAP), RING))
    stamp("qp")

    def qk_mfmas(sdst, qbase, cin):
        return ["%s %s, %s, %s, %s" % (MFMA, vr(sdst, 16), ar(A_KF + 4 * s, 4), vr(qbase + 4 * s, 4),
                                       cin if s == 0 else vr(sdst, 16)) for s in range(8)]

    def softmax_gaps(sc):
        g = []
        for k in range(8):
            l = ["v_exp_f32 v%d, v%d" % (sc + 2 * k, sc + 2 * k),
                 "v_exp_f32 v%d, v%d" % (sc + 2 * k + 1, sc + 2 * k + 1)]
            if k > 0:
                p = k - 1
                l += ["v_add_f32 v%d, v%d, v%d" % (V_LSUM, V_LSUM, sc + 2 * p),
                      "v_add_f32 v%d, v%d, v%d" % (V_LS2, V_LS2, sc + 2 * p + 1),
                      "v_cvt_pk_bf16_f32 v%d, v%d, v%d" % (V_PF + p, sc + 2 * p, sc + 2 * p + 1)]
            g.append(l)
        tail = ["v_add_f32 v%d, v%d, v%d" % (V_LSUM, V_LSUM, sc + 14),
                "v_add_f32 v%d, v%d, v%d" % (V_LS2, V_LS2, sc + 15),
                "v_cvt_pk_bf16_f32 v%d, v%d, v%d" % (V_PF + 7, sc + 14, sc + 15)]
        return g, tail

    def pv_mfmas(vf):
        out = []
        for ks in range(2):
            for db in range(4):
                out.append("%s %s, %s, %s, %s" % (
                    MFMA, vr(V_O + 16 * db, 16), ar(vf + (ks * 4 + db) * 4, 4), vr(V_PF + 4 * ks, 4),
                    vr(V_O + 16 * db, 16)))
        return out

    def max_valu(sn):
        out = ["v_max3_f32 v%d, v%d, v%d, v%d" % (V_TMAX, sn, sn + 1, sn + 2)]
        for i in range(3, 15, 2):
            out.append("v_max3_f32 v%d, v%d, v%d, v%d" % (V_TMAX, V_TMAX, sn + i, sn + i + 1))
        out.append("v_max_f32 v%d, v%d, v%d" % (V_TMAX, V_TMAX, sn + 15))
        return out

    def cross_half_max():
        e("v_mov_b32 v1, v%d" % V_TMAX)
        e("s_nop 1")
        e("v_permlane32_swap_b32 v%d, v1" % V_TMAX)
        e("s_nop 1")
        e("v_max_f32 v%d, v%d, v1" % (V_TMAX, V_TMAX))

    def rare_path(lab, back, sn):
        a.lab(lab)
        cross_half_max()
        e("v_max_f32 v%d, 0, v%d" % (V_TMAX, V_TMAX))
        e("v_sub_f32 v%d, 0, v%d" % (V_ALPHA, V_TMAX))
        e("v_exp_f32 v%d, v%d" % (V_ALPHA, V_ALPHA))
        for i in range(16):
            e("v_sub_f32 v%d, v%d, v%d" % (sn + i, sn + i, V_TMAX))
        for i in range(16):
            e("v_sub_f32 v%d, v%d, v%d" % (V_NEGM + i, V_NEGM + i, V_TMAX))
        e("v_mul_f32 v%d, v%d, v%d" % (V_LSUM, V_LSUM, V_ALPHA))
        e("v_mul_f32 v%d, v%d, v%d" % (V_LS2, V_LS2, V_ALPHA))
        for i in range(64):
            e("v_mul_f32 v%d, v%d, v%d" % (V_O + i, V_O + i, V_ALPHA))
        e("s_branch %s" % back)

    rare = []
    dispatchers = []

    def get_nonce():
        if cfg.noxchg:
            return
        lp = a.newlab("nonce")
        a.lab(lp)
        e("v_mov_b32 v1, 0")
        e("global_load_dwordx2 v[2:3], v1, %s sc1" % sr(KA_DBG, 2))
        e("s_waitcnt vmcnt(0)")
        e("v_readfirstlane_b32 %s, v2" % sr(SC_NONCE))
        e("v_readfirstlane_b32 %s, v3" % sr(SC_NONCE + 1))
        e("s_sub_u32 %s, %s, 1" % (sr(S_SPIN), sr(S_SPIN)))
        e("s_cmp_eq_u32 %s, 0" % sr(S_SPIN))
        e("s_cbranch_scc1 L_end")
        e("s_cmp_eq_u32 %s, 0" % sr(SC_NONCE))
        e("s_cbranch_scc1 %s" % lp)

    def flag_store(off_sgpr, local=False, hi=None):
        e("v_mov_b32 v2, %s" % sr(SC_NONCE))
        e("v_mov_b32 v3, %s" % sr(SC_NONCE + 1 if hi is None else hi))
        e("v_mov_b32 v1, 0")
        e("s_mov_b64 s[34:35], exec")
        e("s_mov_b64 exec, 1")
        if local and cfg.local:
            gl = a.newlab("fsg")
            dn = a.newlab("fsd")
            e("s_cmp_eq_u32 %s, 0" % sr(SC_LOCAL))
            e("s_cbranch_scc1 %s" % gl)
            e("buffer_store_dwordx2 v[2:3], v1, %s, %s offen" % (sr(SRD_WS, 4), sr(off_sgpr)))
            e("s_branch %s" % dn)
            a.lab(gl)
            e("buffer_store_dwordx2 v[2:3], v1, %s, %s offen sc1" % (sr(SRD_WS, 4), sr(off_sgpr)))
            a.lab(dn)
        else:
            e("buffer_store_dwordx2 v[2:3], v1, %s, %s offen sc1" % (sr(SRD_WS, 4), sr(off_sgpr)))
        e("s_mov_b64 exec, s[34:35]")

    def flag_poll(off_sgpr, n):
        if cfg.noxchg:
            return
        lp = a.newlab("poll")
        e("v_min_u32 v1, %d, v0" % (n - 1))
        e("v_lshlrev_b32 v1, 3, v1")
        a.lab(lp)
        e("buffer_load_dwordx2 v[2:3], v1, %s, %s offen sc1" % (sr(SRD_WS, 4), sr(off_sgpr)))
        e("s_waitcnt vmcnt(0)")
        e("v_cmp_ne_u32 vcc, %s, v2" % sr(SC_NONCE))
        e("v_cmp_ne_u32 s[34:35], %s, v3" % sr(SC_NONCE + 1))
        e("s_sub_u32 %s, %s, 1" % (sr(S_SPIN), sr(S_SPIN)))
        e("s_cmp_eq_u32 %s, 0" % sr(S_SPIN))
        e("s_cbranch_scc1 L_end")
        e("s_or_b64 vcc, vcc, s[34:35]")
        e("s_cbranch_scc1 %s" % lp)

    def flago_off(dst, ph, with_m):
        e("s_lshl_b32 %s, %s, 2" % (sr(dst), sr(S_QUAD)))
        e("s_add_u32 %s, %s, %s" % (sr(dst), sr(dst), sr(S_WAVE)))
        e("s_lshl_b32 %s, %s, 7" % (sr(dst), sr(dst)))
        e("s_add_u32 %s, %s, %d" % (sr(dst), sr(dst), WS_FLAGO + ph * 64 * 4 * 128))
        if with_m:
            e("s_lshl_b32 %s, %s, 3" % (sr(S_T0), sr(S_M)))
            e("s_add_u32 %s, %s, %s" % (sr(dst), sr(dst), sr(S_T0)))

    def load_o(ph, regs, ks):
        e("s_lshl_b32 %s, %s, 2" % (sr(S_T1), sr(S_QUAD)))
        e("s_add_u32 %s, %s, %d" % (sr(S_T1), sr(S_T1), ph * 256))
        e("s_mul_i32 %s, %s, 24576" % (sr(S_T1), sr(S_T1)))
        e("s_lshl_b32 %s, %s, 13" % (sr(S_T2), sr(S_WAVE)))
        e("s_add_u32 %s, %s, %s" % (sr(S_T1), sr(S_T1), sr(S_T2)))
        e("s_add_u32 %s, %s, %d" % (sr(S_T1), sr(S_T1), WS_OBUF))
        for k in ks:
            e("s_add_u32 %s, %s, %d" % (sr(S_T2), sr(S_M), k))
            e("s_and_b32 %s, %s, 3" % (sr(S_T2), sr(S_T2)))
            e("s_mul_i32 %s, %s, 24576" % (sr(S_T2), sr(S_T2)))
            e("s_add_u32 %s, %s, %s" % (sr(S_T2), sr(S_T2), sr(S_T1)))
            e("s_add_u32 %s, %s, 4096" % (sr(S_T3), sr(S_T2)))
            for s in range(8):
                e("buffer_load_dwordx4 %s, v%d, %s, %s offen offset:%d sc1" % (
                    ar(regs[k] + 4 * s, 4), V_L16, sr(SRD_WS, 4), sr(S_T2 if s < 4 else S_T3), (s & 3) * 1024))

    def poff(dst, ph, kq_sgpr):
        e("s_add_u32 %s, %s, %d" % (sr(dst), sr(S_G8), ph * 8))
        e("s_lshl_b32 %s, %s, 2" % (sr(dst), sr(dst)))
        e("s_add_u32 %s, %s, %s" % (sr(dst), sr(dst), sr(S_M)))
        e("s_lshl_b32 %s, %s, 3" % (sr(dst), sr(dst)))
        if kq_sgpr is not None:
            e("s_add_u32 %s, %s, %s" % (sr(dst), sr(dst), sr(kq_sgpr)))
        e("s_mul_i32 %s, %s, 24576" % (sr(dst), sr(dst)))
        e("s_lshl_b32 %s, %s, 13" % (sr(S_T0), sr(S_WAVE)))
        e("s_add_u32 %s, %s, %s" % (sr(dst), sr(dst), sr(S_T0)))
        e("s_add_u32 %s, %s, %d" % (sr(dst), sr(dst), WS_PBUF))

    def flagp_off(dst, ph, with_kq):
        e("s_add_u32 %s, %s, %d" % (sr(dst), sr(S_G8), ph * 8))
        e("s_lshl_b32 %s, %s, 2" % (sr(dst), sr(dst)))
        e("s_add_u32 %s, %s, %s" % (sr(dst), sr(dst), sr(S_M)))
        e("s_lshl_b32 %s, %s, 2" % (sr(dst), sr(dst)))
        e("s_add_u32 %s, %s, %s" % (sr(dst), sr(dst), sr(S_WAVE)))
        e("s_lshl_b32 %s, %s, 7" % (sr(dst), sr(dst)))
        e("s_add_u32 %s, %s, %d" % (sr(dst), sr(dst), WS_FLAGP))
        if with_kq:
            e("s_lshl_b32 %s, %s, 3" % (sr(S_T0), sr(S_X)))
            e("s_add_u32 %s, %s, %s" % (sr(dst), sr(dst), sr(S_T0)))

    def partial_store(acc, ph):
        poff(SC_POFF, ph, S_X)
        e("s_add_u32 %s, %s, 4096" % (sr(S_T1), sr(SC_POFF)))
        e("s_nop 3")
        for cch in range(8):
            for i in range(4):
                k = 4 * cch + i
                e("v_cvt_pk_bf16_f32 v%d, v%d, v%d" % (acc + k, acc + 2 * k, acc + 2 * k + 1))
            e("buffer_store_dwordx4 %s, v%d, %s, %s offen offset:%d %s" % (
                vr(acc + 4 * cch, 4), V_L16, sr(SRD_WS, 4), sr(SC_POFF if cch < 4 else S_T1), (cch & 3) * 1024,
                cfg.stflags))

    def reduce(ph, regs):
        flagp_off(SC_FOFF, ph, False)
        flag_poll(SC_FOFF, 8)
        poff(SC_POFF, ph, None)
        e("s_lshl_b32 %s, %s, 10" % (sr(S_T1), sr(S_X)))
        e("s_add_u32 %s, %s, %s" % (sr(SC_POFF), sr(SC_POFF), sr(S_T1)))
        for kq in range(8):
            e("s_add_u32 %s, %s, %d" % (sr(S_T1), sr(SC_POFF), kq * 24576))
            e("buffer_load_dwordx4 %s, v%d, %s, %s offen sc1" % (
                vr(regs + 4 * kq, 4), V_L16, sr(SRD_WS, 4), sr(S_T1)))
        e("v_and_b32 v1, 31, v0")
        e("v_lshlrev_b32 v1, 11, v1")
        e("v_lshrrev_b32 v2, 5, v0")
        e("v_lshlrev_b32 v2, 4, v2")
        e("v_add_u32 v1, v1, v2")
        e("s_add_u32 %s, %s, %d" % (sr(S_T1), sr(S_B4), 4 * ph))
        e("s_mul_i32 %s, %s, 96" % (sr(S_T1), sr(S_T1)))
        e("s_lshl_b32 %s, %s, 5" % (sr(S_T2), sr(S_WAVE)))
        e("s_add_u32 %s, %s, %s" % (sr(S_T1), sr(S_T1), sr(S_T2)))
        e("s_lshl_b32 %s, %s, 11" % (sr(S_T1), sr(S_T1)))
        e("s_lshl_b32 %s, %s, 10" % (sr(S_T2), sr(S_BR)))
        e("s_add_u32 %s, %s, %s" % (sr(S_T1), sr(S_T1), sr(S_T2)))
        e("s_lshl_b32 %s, %s, 8" % (sr(S_T2), sr(S_M)))
        e("s_add_u32 %s, %s, %s" % (sr(S_T1), sr(S_T1), sr(S_T2)))
        e("s_lshl_b32 %s, %s, 5" % (sr(S_T2), sr(S_X)))
        e("s_add_u32 %s, %s, %s" % (sr(S_T1), sr(S_T1), sr(S_T2)))
        acc = regs + 32
        for kq in range(8):
            e("s_waitcnt vmcnt(%d)" % (7 - kq))
            for i in range(4):
                r = regs + 4 * kq + i
                if kq == 0:
                    e("v_lshlrev_b32 v%d, 16, v%d" % (acc + 2 * i, r))
                    e("v_and_b32 v%d, 0xffff0000, v%d" % (acc + 2 * i + 1, r))
                else:
                    e("v_lshlrev_b32 v%d, 16, v%d" % (acc + 8, r))
                    e("v_and_b32 v%d, 0xffff0000, v%d" % (r, r))
                    e("v_add_f32 v%d, v%d, v%d" % (acc + 2 * i, acc + 2 * i, acc + 8))
                    e("v_add_f32 v%d, v%d, v%d" % (acc + 2 * i + 1, acc + 2 * i + 1, r))
        for i in range(4):
            e("v_cvt_pk_bf16_f32 v%d, v%d, v%d" % (4 + i, acc + 2 * i, acc + 2 * i + 1))
        e("buffer_store_dwordx4 v[4:7], v1, %s, %s offen" % (sr(SRD_OUT, 4), sr(S_T1)))

    def head(ph):
        qbase = V_Q1 if ph == 0 else V_Q2
        stg = V_STG if ph == 0 else V_SA
        xacc = V_ACCQ if ph == 0 else V_ACC1
        A_AF2 = 224
        e("v_mov_b32 v%d, 0" % V_LSUM)
        e("v_mov_b32 v%d, 0" % V_LS2)
        wait_landed(1)
        a.extend(k_addr(SC_SLOT))
        a.extend(k_reads(A_KF))
        e("s_waitcnt lgkmcnt(0)")
        zo = ["v_mov_b32 v%d, 0" % (V_O + i) for i in range(64)]
        a.extend(gaps(qk_mfmas(V_SA, qbase, "0"), [zo[8 * g:8 * g + 8] for g in range(8)]))
        slot_adv(SC_SLOT, SC_SLOT, 1)
        wait_landed(3)
        a.extend(k_addr(SC_SLOT))
        slot_adv(SC_SLOT, SC_SLOT, 1)
        a.extend(v_addr(SC_SLOT, V_VB))
        a.extend(k_reads(A_KF))
        a.extend(v_reads(A_VF[0], False))
        slot_adv(SC_SLOT, SC_SLOT, 1)
        e("s_add_u32 %s, %s, 3" % (sr(SC_IDX), sr(SC_IDX)))
        a.extend(max_valu(V_SA))
        cross_half_max()
        for i in range(16):
            e("v_sub_f32 v%d, v%d, v%d" % (V_SA + i, V_SA + i, V_TMAX))
        e("v_sub_f32 v%d, 0, v%d" % (V_NEGM, V_TMAX))
        for i in range(1, 16):
            e("v_mov_b32 v%d, v%d" % (V_NEGM + i, V_NEGM))

        def nxt(dst, src):
            return ["s_add_u32 %s, %s, %d" % (sr(dst), sr(src), SLOT),
                    "s_cmp_lt_u32 %s, %d" % (sr(dst), RING),
                    "s_cselect_b32 %s, %s, 0" % (sr(dst), sr(dst))]

        def iteration(par, kind):
            scur = V_SA if par == 0 else V_SB
            snext = V_SB if par == 0 else V_SA
            ex = ["v_exp_f32 v%d, v%d" % (scur + i, scur + i) for i in range(16)]
            ad = ["v_add_f32 v%d, v%d, v%d" % ((V_LSUM, V_LS2)[i & 1], (V_LSUM, V_LS2)[i & 1], scur + i)
                  for i in range(16)]
            cv = ["v_cvt_pk_bf16_f32 v%d, v%d, v%d" % (V_PF + k, scur + 2 * k, scur + 2 * k + 1) for k in range(8)]
            pv = pv_mfmas(A_VF[par])
            rel = release_l(SC_IDX)
            e("s_waitcnt lgkmcnt(%d)" % (15 if kind == "full" else 0))
            if kind == "full":
                qk = qk_mfmas(snext, qbase, vr(V_NEGM, 16))
                kr = k_reads(A_KF)
                r = v_reads(A_VF[par ^ 1], False)
                mx = max_valu(snext)
                cmp_ = ["v_cmp_lt_f32 vcc, %s, v%d" % (sr(SC_T), V_TMAX)]
                b = nxt(SC_SLOT2, SC_SLOT)
                c_ = nxt(SC_SLOT, SC_SLOT2)
                idx2 = ["s_add_u32 %s, %s, 2" % (sr(SC_IDX), sr(SC_IDX))]
                ka = k_addr(SC_SLOT)
                va = v_addr(SC_SLOT2, V_VB)
                per = [
                    [ex[0], ex[1]] + wait_landed_l(2),
                    [ex[2], ex[3], cv[0], ka[0], b[0]],
                    [ex[4], ex[5], cv[1], ka[1], b[1]],
                    [ex[6], ex[7], cv[2], b[2], rel[0]],
                    [ex[8], ex[9], cv[3], va[0]],
                    [ex[10], ex[11], cv[4], c_[0]],
                    [ex[12], ex[13], cv[5], c_[1]],
                    [ex[14], ex[15], cv[6], cv[7], c_[2], "s_waitcnt lgkmcnt(0)"],
                    [rel[1]] + kr[0:3] + ad[0:2],
                    kr[3:6] + ad[2:4] + idx2,
                    kr[6:8] + r[0:1] + ad[4:6],
                    r[1:4] + ad[6:8] + mx[0:1],
                    r[4:7] + ad[8:10] + mx[1:2],
                    r[7:10] + ad[10:12] + mx[2:3],
                    r[10:13] + ad[12:14] + mx[3:5],
                    r[13:16] + ad[14:16] + mx[5:8] + cmp_,
                ]
                a.extend(gaps(qk + pv, per))
            else:
                g, tl = softmax_gaps(scur)
                if kind == "lastk":
                    a.extend(wait_landed_l(1) + v_addr(SC_SLOT, V_VB))
                    vrr = v_reads(A_VF[par ^ 1], False)
                    g = [l + vrr[2 * k:2 * k + 2] for k, l in enumerate(g)]
                    a.extend(gaps(qk_mfmas(snext, qbase, vr(V_NEGM, 16)), g))
                    a.extend(tl)
                    mx = max_valu(snext) + ["v_cmp_lt_f32 vcc, %s, v%d" % (sr(SC_T), V_TMAX)]
                    book = ["s_add_u32 %s, %s, 1" % (sr(SC_IDX), sr(SC_IDX))] + nxt(SC_SLOT, SC_SLOT)
                    e("s_waitcnt lgkmcnt(15)")
                    per = [[], [], [], mx[0:2], mx[2:4] + book[0:1], mx[4:6] + book[1:3], mx[6:8] + book[3:4],
                           mx[8:9]]
                    a.extend(gaps(pv, per))
                else:
                    for l in g:
                        a.extend(l)
                    a.extend(tl)
                    a.extend(rel)
                    a.extend(pv)
            if kind != "final":
                r_ = a.newlab("rare")
                b_ = a.newlab("back")
                e("s_cbranch_vccnz %s" % r_)
                a.lab(b_)
                rare.append((r_, b_, snext))

        def ch_mfmas(af, j):
            return ["%s %s, %s, %s, %s" % (
                MFMA, vr(xacc + 16 * db, 16), ar(af + (ks * 4 + db) * 4, 4),
                ar(A_XF[0] + (2 * j + ks) * 4, 4), vr(xacc + 16 * db, 16))
                for ks in range(2) for db in range(4)]

        def x_reads():
            if ph == 0:
                return k_addr(SC_SLOT2), k_reads(A_XF[0])
            return (["v_add_u32 v%d, %s, v%d" % (V_KA, sr(SC_SLOT2), V_L16)],
                    ["ds_read_b128 %s, v%d offset:%d" % (ar(A_XF[0] + 4 * s_, 4), V_KA, s_ * BLK) for s_ in range(8)])

        def ch_slot(pos, first=False, last=False):
            afp = A_AF[(pos - 1) & 1]
            afn = A_AF[pos & 1]
            nx = 3 if (pos == 0 and not (first and ph == 1)) else 0
            chk = wait_landed_l(nx + 1 + (1 if last else 0))
            wr = v_reads(afn, True)
            fill = []
            late = []
            if nx:
                ws = wave_slot(SC_SLOT2, 0)
                xa, xr = x_reads()
                adv3 = slot_adv_l(SC_SLOT, SC_SLOT, 3)
                pre = chk + ws + xa + adv3 + v_addr(SC_SLOT, V_WB)
                body = xr[0:6] + wr
                late6, late7 = xr[6:7], xr[7:8]
            else:
                pre = chk + v_addr(SC_SLOT, V_WB)
                body = wr
                late6, late7 = [], []
            post = nxt(SC_SLOT, SC_SLOT) + ["s_add_u32 %s, %s, %d" % (sr(SC_IDX), sr(SC_IDX), nx + 1)]
            if last:
                post += v_addr(SC_SLOT, V_WB) + v_reads(A_AF2, True) + nxt(SC_SLOT, SC_SLOT)
                post += ["s_add_u32 %s, %s, 1" % (sr(SC_IDX), sr(SC_IDX))]
            if first:
                zz = ["v_mov_b32 v%d, 0" % (xacc + i) for i in range(64)]
                a.extend(pre)
                k = 0
                for x_ in body + late6 + late7:
                    a.e(x_)
                    a.extend(zz[k:k + 2])
                    k += 2
                a.extend(zz[k:])
                a.extend(post)
                return
            mf = ch_mfmas(afp, (pos - 1) & 3)
            per = [[] for _ in range(8)]
            per[0] = pre
            n = len(body)
            for g in range(1, 7):
                per[g] = body[(n * (g - 1)) // 6:(n * g) // 6]
            per[3] = per[3] + late6 if False else per[3]
            per[4] = late6 + per[4]
            per[7] = late7 + post
            a.extend(gaps(mf, per))

        acts = []
        mask = [0]

        def at_pass(n, body):
            mask[0] |= 1 << n
            acts.append((n, body))

        if cfg.stamps:
            for nm in stl:
                if nm[0] == "ab"[ph] and nm[1:].isdigit():
                    at_pass(int(nm[1:]), lambda nm=nm: stamp(nm))
        if ph == 0:
            def nonce_issue():
                e("v_mov_b32 v1, 0")
                e("global_load_dwordx2 %s, v1, %s sc1" % (vr(V_NON, 2), sr(KA_DBG, 2)))

            def nonce_get():
                ok = a.newlab("nok")
                e("s_waitcnt vmcnt(0)")
                e("v_readfirstlane_b32 %s, v%d" % (sr(SC_NONCE), V_NON))
                e("v_readfirstlane_b32 %s, v%d" % (sr(SC_NONCE + 1), V_NON + 1))
                e("s_nop 3")
                e("s_cmp_lg_u32 %s, 0" % sr(SC_NONCE))
                e("s_cbranch_scc1 %s" % ok)
                get_nonce()
                a.lab(ok)
            if not cfg.noxchg:
                at_pass(1, nonce_issue)
                at_pass(6, nonce_get)
        else:
            def p1b():
                e("s_waitcnt vmcnt(0)")
                flago_off(SC_FOFF, 0, True)
                flag_store(SC_FOFF)
            if not cfg.noxchg:
                at_pass(cfg.flagpass, p1b)
        disp = a.newlab("evdisp")

        def pass_end():
            e("s_add_u32 %s, %s, 1" % (sr(SC_IT), sr(SC_IT)))
            stub = a.newlab("evstub")
            back = a.newlab("evback")
            e("s_bitcmp1_b32 %s, %s" % (sr(SC_EVM), sr(SC_IT)))
            e("s_cbranch_scc1 %s" % stub)
            a.lab(back)
            stubs.append((stub, back, disp))

        def dispatcher(disp=disp, acts=acts):
            a.lab(disp)
            for n, body in acts:
                sk = a.newlab("noev")
                e("s_cmp_eq_u32 %s, %d" % (sr(SC_IT), n))
                e("s_cbranch_scc0 %s" % sk)
                body()
                a.lab(sk)
            e("s_setpc_b64 %s" % sr(SC_RET2, 2))
        dispatchers.append(dispatcher)

        e("s_mov_b32 %s, 0x%x" % (sr(SC_EVM), mask[0]))
        e("s_mov_b32 %s, 0" % sr(SC_IT))
        lp = a.newlab("attn")
        a.lab(lp)
        for pos in range(4):
            iteration(0, "full")
            iteration(1, "full")
            if pos == 0:
                f1 = a.newlab("chfirst")
                fb = a.newlab("chback")
                e("s_cmp_eq_u32 %s, 0" % sr(SC_IT))
                e("s_cbranch_scc1 %s" % f1)
                ch_slot(0)
                a.lab(fb)
                firsts.append((f1, fb, ch_slot))
            else:
                ch_slot(pos)
            pass_end()
        e("s_cmp_lt_u32 %s, 12" % sr(SC_IT))
        e("s_cbranch_scc1 %s" % lp)
        for pos in range(3):
            iteration(0, "full")
            iteration(1, "full")
            ch_slot(pos, last=(pos == 2))
            pass_end()
        iteration(0, "lastk")
        a.extend(ch_mfmas(A_AF[0], 2))
        iteration(1, "final")
        a.extend(ch_mfmas(A_AF2, 3))
        stamp("f%d" % ph)
        e("v_add_f32 v%d, v%d, v%d" % (V_LSUM, V_LSUM, V_LS2))
        e("v_mov_b32 v%d, v%d" % (V_LS2, V_LSUM))
        e("s_nop 1")
        e("v_permlane32_swap_b32 v%d, v%d" % (V_LSUM, V_LS2))
        e("s_nop 1")
        e("v_add_f32 v%d, v%d, v%d" % (V_LSUM, V_LSUM, V_LS2))
        e("v_rcp_f32 v%d, v%d" % (V_ALPHA, V_LSUM))
        if ph == 0:
            q_convert(V_Q2)
        e("s_lshl_b32 %s, %s, 2" % (sr(S_T1), sr(S_QUAD)))
        e("s_add_u32 %s, %s, %s" % (sr(S_T1), sr(S_T1), sr(S_M)))
        e("s_add_u32 %s, %s, %d" % (sr(S_T1), sr(S_T1), ph * 256))
        e("s_mul_i32 %s, %s, 24576" % (sr(S_T1), sr(S_T1)))
        e("s_lshl_b32 %s, %s, 13" % (sr(S_T2), sr(S_WAVE)))
        e("s_add_u32 %s, %s, %s" % (sr(S_T1), sr(S_T1), sr(S_T2)))
        e("s_add_u32 %s, %s, %d" % (sr(SC_OOFF), sr(S_T1), WS_OBUF))
        e("s_add_u32 %s, %s, 4096" % (sr(SC_OOFF2), sr(SC_OOFF)))
        e("s_nop 3")
        for s in range(8):
            for k in range(4):
                i = 4 * s + k
                e("v_mul_f32 v%d, v%d, v%d" % (V_O + 2 * i, V_O + 2 * i, V_ALPHA))
                e("v_mul_f32 v%d, v%d, v%d" % (V_O + 2 * i + 1, V_O + 2 * i + 1, V_ALPHA))
                e("v_cvt_pk_bf16_f32 v%d, v%d, v%d" % (stg + i, V_O + 2 * i, V_O + 2 * i + 1))
            e("buffer_store_dwordx4 %s, v%d, %s, %s offen offset:%d %s" % (
                vr(stg + 4 * s, 4), V_L16, sr(SRD_WS, 4), sr(SC_OOFF if s < 4 else SC_OOFF2),
                (s & 3) * 1024, cfg.stflags))
        if ph == 1:
            partial_store(V_ACC1, 0)

    stubs = []
    firsts = []

    def ccnt(name):
        if cfg.stamps:
            for k, nm in enumerate(stl):
                if nm == name:
                    e("s_mov_b32 %s, %s" % (sr(S_ST + 2 * k), sr(SC_SWC)))
    ccnt("cq")
    head(0)
    for i in range(32):
        e("v_accvgpr_write_b32 a%d, v%d" % (A_XF[0] + i, V_STG + i))
    stamp("h0")
    ccnt("c0")
    head(1)
    stamp("h1")
    ccnt("c1")

    def task(acc, bfrag, first, hooks):
        if first:
            wait_landed(1)
        a.extend(v_addr(SC_SLOT, V_WB))
        a.extend(v_reads(A_AF[0], True))
        e("s_add_u32 %s, %s, 1" % (sr(SC_IDX), sr(SC_IDX)))
        slot_adv(SC_SLOT, SC_SLOT, 1)
        fullwait = True
        for cidx in range(16):
            r, j = divmod(cidx, 4)
            mf = []
            for ks in range(2):
                for db in range(4):
                    cin = "0" if (cidx == 0 and ks == 0) else vr(acc + 16 * db, 16)
                    mf.append("%s %s, %s, %s, %s" % (
                        MFMA, vr(acc + 16 * db, 16), ar(A_AF[cidx & 1] + (ks * 4 + db) * 4, 4),
                        bfrag(r, 2 * j + ks), cin))
            per = [[] for _ in range(8)]
            if cidx == 15:
                fullwait = True
            if fullwait:
                e("s_waitcnt lgkmcnt(0)")
            if cidx < 15:
                wr = v_reads(A_AF[(cidx + 1) & 1], True)
                adv = ["s_add_u32 %s, %s, 1" % (sr(SC_IDX), sr(SC_IDX))] + slot_adv_l(SC_SLOT, SC_SLOT, 1)
                chk = wait_landed_l(1) if first else []
                per[0] = chk + v_addr(SC_SLOT, V_WB) + wr[0:2]
                per[1] = wr[2:4] + adv[0:2]
                per[2] = wr[4:6] + adv[2:4]
                per[3] = wr[6:8] + adv[4:5]
                per[4] = wr[8:10]
                per[5] = wr[10:12]
                per[6] = wr[12:14]
                per[7] = wr[14:16]
            if not fullwait:
                for g in (1, 3, 5):
                    per[g] = per[g] + ["s_waitcnt lgkmcnt(12)"]
                e("s_waitcnt lgkmcnt(12)")
            a.extend(gaps(mf, per))
            fullwait = False
            if hooks.get(cidx):
                hooks[cidx]()
                fullwait = True

    ACC2 = V_O

    def hk_after_round0():
        e("s_waitcnt vmcnt(0)")
        flago_off(SC_FOFF, 1, True)
        flag_store(SC_FOFF)
        flagp_off(SC_FOFF, 0, True)
        flag_store(SC_FOFF)
        flago_off(SC_FOFF, 1, False)
        flag_poll(SC_FOFF, 4)
        load_o(1, A_OF2, [1, 2, 3])
        e("s_waitcnt vmcnt(16)")
        stamp("t1")

    task(ACC2, lambda r, s: vr(V_SA + 4 * s, 4) if r == 0 else ar(A_OF2[r] + 4 * s, 4), True,
         {3: hk_after_round0, 7: lambda: e("s_waitcnt vmcnt(8)"), 11: lambda: e("s_waitcnt vmcnt(0)")})
    e("s_nop 7")
    partial_store(ACC2, 1)
    stamp("t2")
    e("s_waitcnt vmcnt(0)")
    stamp("w0")
    flagp_off(SC_FOFF, 1, True)
    flag_store(SC_FOFF)
    reduce(0, 160)
    stamp("r0")
    reduce(1, 160)
    e("s_waitcnt vmcnt(0)")
    stamp("r1")

    a.lab("L_fin")
    savef = a.filt
    a.filt = None
    if cfg.dbgstamps:
        dsk = a.newlab("dbgsk")
        e("s_waitcnt lgkmcnt(0)")
        e("s_mov_b32 s28, -1")
        e("s_cmp_eq_u32 s2, 0")
        e("s_cselect_b32 s28, 0, s28")
        e("s_cmp_eq_u32 s2, 129")
        e("s_cselect_b32 s28, 1, s28")
        e("s_cmp_eq_u32 s28, -1")
        e("s_cbranch_scc1 %s" % dsk)
        e("s_cmp_eq_u32 %s, 0" % sr(S_WAVE))
        e("s_cbranch_scc1 %s" % (dsk + "a"))
        e("s_cmp_eq_u32 %s, 3" % sr(S_WAVE))
        e("s_cbranch_scc0 %s" % dsk)
        e("s_cmp_eq_u32 s28, 0")
        e("s_cbranch_scc0 %s" % dsk)
        e("s_mov_b32 s28, 2")
        a.lab(dsk + "a")
        e("s_lshl_b32 s28, s28, 4")
        e("s_add_u32 s28, s28, 16")
        e("v_mov_b32 v1, s28")
        for j in range(4):
            e("s_sub_u32 s29, s%d, s%d" % (S_ST + 2 * (j + 1) + (2 * 3 if j == 3 else 0), S_ST))
            e("v_mov_b32 v%d, s29" % (4 + j))
        e("s_mov_b64 exec, 1")
        e("global_store_dwordx4 v1, v[4:7], %s" % sr(KA_DBG, 2))
        e("s_waitcnt vmcnt(0)")
        a.lab(dsk)
        e("s_branch L_end")
    if cfg.stamps:
        e("s_waitcnt lgkmcnt(0)")
        for k, nm in enumerate(stl):
            if nm == "loc":
                e("s_mov_b32 %s, %s" % (sr(S_ST + 2 * k), sr(SC_LOCAL)))
        e("s_lshl_b32 s28, s2, 9")
        e("s_lshl_b32 s29, %s, 7" % sr(S_WAVE))
        e("s_add_u32 s28, s28, s29")
        e("s_add_u32 s28, s28, 0x%x" % WS_STAMP)
        e("v_mov_b32 v1, s28")
        e("s_getreg_b32 s30, hwreg(HW_REG_XCC_ID)")
        e("s_mov_b64 exec, 1")
        for k in range(4):
            for j in range(4):
                e("v_mov_b32 v%d, s%d" % (4 + j, S_ST + 4 * k + j))
            e("global_store_dwordx4 v1, v[4:7], %s offset:%d" % (sr(KA_WS, 2), 16 * k))
            e("s_waitcnt vmcnt(0)")
        e("v_mov_b32 v4, s30")
        e("global_store_dword v1, v4, %s offset:64" % sr(KA_WS, 2))
        e("s_waitcnt vmcnt(0)")
    a.lab("L_end")
    e("s_endpgm")
    a.filt = savef

    for r, b, sn in rare:
        rare_path(r, b, sn)
    for d in dispatchers:
        d()
    for stub, back, disp in stubs:
        a.lab(stub)
        e("s_call_b64 %s, %s" % (sr(SC_RET2, 2), disp))
        e("s_branch %s" % back)
    for f1, fb, fn in firsts:
        a.lab(f1)
        fn(0, first=True)
        e("s_branch %s" % fb)
    for slow, back in slowwaits:
        a.lab(slow)
        if cfg.stamps:
            e("s_add_u32 %s, %s, 1" % (sr(SC_SWC), sr(SC_SWC)))
        e("ds_read_b32 v%d, v%d" % (V_LRD, V_LADDR))
        e("s_waitcnt lgkmcnt(0)")
        e("v_readfirstlane_b32 %s, v%d" % (sr(SC_L), V_LRD))
        e("s_sub_u32 %s, %s, 1" % (sr(S_SPIN), sr(S_SPIN)))
        e("s_cmp_eq_u32 %s, 0" % sr(S_SPIN))
        e("s_cbranch_scc1 L_end")
        e("s_cmp_lt_u32 %s, %s" % (sr(SC_L), sr(SC_NEED)))
        if cfg.psleep:
            e("s_cbranch_scc0 %s" % back)
            e("s_sleep %d" % cfg.psleep)
            e("s_branch %s" % slow)
        else:
            e("s_cbranch_scc1 %s" % slow)
            e("s_branch %s" % back)
    txt = a.text()

    kd = []
    kd.append('.section .rodata,"a"')
    kd.append(".p2align 6")
    kd.append(".amdhsa_kernel %s_kernel" % NAME)
    kd.append("  .amdhsa_next_free_vgpr 512")
    kd.append("  .amdhsa_next_free_sgpr 102")
    kd.append("  .amdhsa_accum_offset 256")
    kd.append("  .amdhsa_group_segment_fixed_size 0")
    kd.append("  .amdhsa_kernarg_size 104")
    kd.append("  .amdhsa_user_sgpr_count 2")
    kd.append("  .amdhsa_user_sgpr_kernarg_segment_ptr 1")
    kd.append("  .amdhsa_system_sgpr_workgroup_id_x 1")
    kd.append(".end_amdhsa_kernel")
    return "\n".join(hdr) + "\n" + txt + "\n".join(kd) + "\n"


if __name__ == "__main__":
    import argparse
    ap = argparse.ArgumentParser()
    ap.add_argument("-o", default="cdna_kernels/%s.s" % NAME)
    ap.add_argument("--stamps", action="store_true")
    ap.add_argument("--set", action="append", default=[])
    args = ap.parse_args()
    cfg = Cfg()
    cfg.stamps = args.stamps
    for kv in args.set:
        k, v = kv.split("=", 1)
        cur = getattr(cfg, k)
        if isinstance(cur, bool):
            v = v in ("1", "True", "true")
        elif isinstance(cur, int):
            v = int(v)
        elif isinstance(cur, float):
            v = float(v)
        setattr(cfg, k, v)
    open(args.o, "w").write(build(cfg))
    print("wrote", args.o)
```

```python
import math
import struct

NAME = "concat_heads__mha_block_cached__gqa_block_cached__near_ridge"


def f32bits(x):
    return struct.unpack("<I", struct.pack("<f", x))[0]


class Cfg:
    NS = 18
    NQ = 11
    E = 7
    D = 5
    deven = 5
    dodd = 5
    polllead = 3
    stamps = False
    T_LOG2 = 8.0
    kvflags = "nt"
    wflags = ""
    woflags = "nt"
    xflags = ""
    kvsame = False
    noload = False
    nocompute = False
    noxchg = False
    stamplist = "start,qp,h0,h1,t1,t2,r0,r1"
    po_base = 10
    po_mul = 4
    pft = 20
    prefetch = True
    ytype = 1
    spin = 0x80000
    local = False
    psleep = 0
    dumpq = False
    sched = 1
    nbflag = True
    pkmul = True
    tlbwarm = False
    owarm = False
    outflags = ""
    skipo = False
    skipwo = False
    skipq2 = False
    wsbase = 0
    oflags = "sc1"
    wo2flags = "nt"
    wq2flags = ""
    x2flags = ""
    stflags = "sc1"
    flagpass = 2
    mix = 0
    dbgstamps = False
    ablate = ""


BLK = 1088
SLOT = 8 * BLK
NQT = 28
WS_FLAGO = 0
WS_FLAGP = 65536
WS_FLAGI = 131072
WS_OBUF = 1 << 20
WS_PBUF = 16 << 20
WS_STAMP = 28 << 20
WS_USED = 32 << 20


def vr(base, n=1):
    return "v%d" % base if n == 1 else "v[%d:%d]" % (base, base + n - 1)


def ar(base, n=1):
    return "a%d" % base if n == 1 else "a[%d:%d]" % (base, base + n - 1)


def sr(base, n=1):
    return "s%d" % base if n == 1 else "s[%d:%d]" % (base, base + n - 1)


class Asm:
    def __init__(self):
        self.L = []
        self.nlab = 0
        self.filt = None

    def e(self, s):
        if self.filt and self.filt(s):
            return
        self.L.append("  " + s)

    def lab(self, name):
        self.L.append(name + ":")

    def newlab(self, base):
        self.nlab += 1
        return "L%s_%d" % (base, self.nlab)

    def extend(self, lst):
        for s in lst:
            if s.endswith(":"):
                self.lab(s[:-1])
            else:
                self.e(s)

    def text(self):
        return "\n".join(self.L) + "\n"


def gaps(primary, per_gap):
    out = []
    for p, f in zip(primary, per_gap):
        out.append(p)
        out.extend(f)
    return out


S_WG = 2
S_WAVE = 3
S_X, S_M, S_G8, S_QUAD, S_H = 20, 21, 22, 24, 25
S_SPIN = 26
S_TAU = 27
S_T0, S_T1, S_T2, S_T3 = 28, 29, 30, 31
S_RET = 32
KA_X, KA_K, KA_V, KA_WQ, KA_WO = 36, 38, 40, 42, 44
S_B4, S_BR = 46, 47
KA_OUT, KA_DBG, KA_WS = 56, 58, 60
SL_ISS, SL_PUB, SL_FMIN, SL_SLOT, SL_NEED, SL_OFF, SL_OFF2, SL_CNT, SL_CNT2, SL_KOFF, SL_VOFF, SL_ROT = range(4, 16)
SL_RET2 = 16
SL_XB, SL_WB = 18, 19
SL_NADJ = 23
SL_QSLOT = 48
SL_EVM = 49
SL_NONCE = 34
SL_THR = 50
SL_WFC = 51
SL_RND = 52
SL_PP, SL_JJ = 53, 54
SRD_X, SRD_K, SRD_V, SRD_WQ, SRD_WO = 64, 68, 72, 76, 80
SC_L, SC_SLOT, SC_IDX, SC_IT, SC_T, SC_NEED, SC_SLOT2, SC_ADJ = range(4, 12)
SC_OOFF, SC_OOFF2, SC_FOFF, SC_POFF = 12, 13, 14, 15
SC_NONCE = 16
SC_RET2 = 18
SC_WRAP, SC_LOCAL, SC_XCC, SC_IDOFF, SC_EVM, SC_PADJ, SC_SAVE, SC_SWC = 72, 73, 74, 75, 76, 77, 78, 79
SC_FOFF0, SC_O2ST = 80, 81
SRD_WS, SRD_OUT = 64, 68
S_ST = 84

V_KB = 8
V_VB = 10
V_WB = 11
V_KA = 12
V_VA = 14
V_L16 = 15
V_LSUM, V_LS2, V_TMAX, V_ALPHA, V_FV, V_LADDR, V_FADDR, V_LRD = range(17, 25)
V_VB2 = 25
V_NON = 26
V_PF = 32
V_NEGM = 48
V_O = 64
V_SA = 128
V_SB = 144
V_ACCQ = 160
V_Q2 = 160
V_STG = 192
V_Q1 = 224
V_ACC1 = 192
A_AF = [0, 32]
A_KF = 64
A_VF = [96, 128]
A_XF = [160, 192]
A_OF2 = [None, 64, 96, 128]
MFMA = "v_mfma_f32_32x32x16_bf16"


def build(cfg):
    NS, D, NQ, E = cfg.NS, cfg.D, cfg.NQ, cfg.E
    assert NS == NQ + E and NS % 2 == 0 and (NQ + 3) % 2 == 0
    RING = NS * SLOT
    FLAG_L = RING
    FLAG_F = RING + 16
    LDS_BYTES = RING + 64
    a = Asm()
    e = a.e
    hdr = []
    hdr.append("; @launch grid=(256,1,1) block=(256,1,1) lds=%d" % LDS_BYTES)
    hdr.append('.amdgcn_target "amdgcn-amd-amdhsa--gfx950"')
    hdr.append(".text")
    hdr.append(".globl %s_kernel" % NAME)
    hdr.append(".p2align 8")
    hdr.append(".type %s_kernel,@function" % NAME)
    hdr.append("%s_kernel:" % NAME)
    stl = cfg.stamplist.split(",")

    def stamp(name):
        if cfg.stamps:
            for k, nm in enumerate(stl):
                if nm == name:
                    e("s_memrealtime %s" % sr(S_ST + 2 * k, 2))
                if nm == name + ".c":
                    e("s_memtime %s" % sr(S_ST + 2 * k, 2))

    def cnt(name):
        if cfg.stamps:
            for k, nm in enumerate(stl):
                if nm == name:
                    e("s_mov_b32 %s, %s" % (sr(S_ST + 2 * k), sr(SL_WFC)))

    e("s_cmp_ge_u32 s2, 256")
    e("s_cbranch_scc1 L_end")
    e("s_load_dwordx16 s[36:51], s[0:1], 0")
    e("s_load_dwordx4 s[52:55], s[0:1], 64")
    e("s_load_dwordx4 s[56:59], s[0:1], 80")
    e("s_load_dwordx2 s[60:61], s[0:1], 96")
    stamp("start")
    e("v_lshrrev_b32 v1, 6, v0")
    e("v_and_b32 v0, 63, v0")
    e("s_and_b32 %s, s2, 7" % sr(S_X))
    e("v_readfirstlane_b32 %s, v1" % sr(S_WAVE))
    e("s_lshr_b32 s28, s2, 3")
    e("s_and_b32 %s, s28, 3" % sr(S_M))
    e("s_lshr_b32 %s, s28, 2" % sr(S_G8))
    e("s_lshl_b32 %s, %s, 2" % (sr(S_H), sr(S_X)))
    e("s_add_u32 %s, %s, %s" % (sr(S_H), sr(S_H), sr(S_M)))
    e("s_lshl_b32 %s, %s, 3" % (sr(S_QUAD), sr(S_G8)))
    e("s_add_u32 %s, %s, %s" % (sr(S_QUAD), sr(S_QUAD), sr(S_X)))
    e("s_mov_b32 %s, 0x%x" % (sr(S_SPIN), cfg.spin))
    e("s_lshl_b32 %s, %s, 1" % (sr(S_TAU), sr(S_M)))
    e("s_and_b32 s29, %s, 1" % sr(S_X))
    e("s_add_u32 %s, %s, s29" % (sr(S_TAU), sr(S_TAU)))
    e("s_mul_i32 %s, %s, %d" % (sr(S_TAU), sr(S_TAU), cfg.po_mul))
    e("s_lshr_b32 %s, %s, 3" % (sr(S_TAU), sr(S_TAU)))
    e("s_add_u32 %s, %s, %d" % (sr(S_TAU), sr(S_TAU), cfg.po_base))
    e("s_cmp_lt_u32 %s, 4" % sr(S_G8))
    e("s_waitcnt lgkmcnt(0)")
    for k in range(10):
        e("s_cselect_b32 s%d, s%d, s%d" % (36 + k, 36 + k, 46 + k))
    e("s_and_b32 %s, %s, 3" % (sr(S_B4), sr(S_G8)))
    e("s_lshr_b32 %s, %s, 2" % (sr(S_BR), sr(S_G8)))
    e("s_cmp_eq_u32 %s, 3" % sr(S_WAVE))
    e("s_cbranch_scc0 L_compute")

    def srd(dst, ptr, nbytes):
        e("s_mov_b32 %s, %s" % (sr(dst), sr(ptr)))
        e("s_mov_b32 %s, %s" % (sr(dst + 1), sr(ptr + 1)))
        e("s_mov_b32 %s, 0x%x" % (sr(dst + 2), nbytes))
        e("s_mov_b32 %s, 0x20000" % sr(dst + 3))

    a.lab("L_loader")
    e("s_setprio 3")
    LV_K, LV_V, LV_X, LV_WQ, LV_WO, LV_T, LV_LADDR, LV_FADDR, LV_F = 8, 12, 16, 20, 24, 28, 29, 30, 32
    LV_O, LV_FL, LV_NON, LV_FA = 36, 200, 202, 204
    BIAS = 4096
    NB_X, NB_KV, NB_W = 8 * 96 * 512 * 2, 8 * 32 * 1024 * 128 * 2, 512 * 4096 * 2

    def srdb(dst, ptr, nbytes):
        e("s_sub_u32 %s, %s, %d" % (sr(dst), sr(ptr), BIAS))
        e("s_subb_u32 %s, %s, 0" % (sr(dst + 1), sr(ptr + 1)))
        e("s_mov_b32 %s, 0x%x" % (sr(dst + 2), nbytes + BIAS))
        e("s_mov_b32 %s, 0x20000" % sr(dst + 3))

    e("v_lshrrev_b32 v1, 4, v0")
    e("v_and_b32 v2, 15, v0")
    e("v_xor_b32 v3, v2, v1")
    e("v_lshlrev_b32 v3, 4, v3")
    e("v_lshlrev_b32 v2, 4, v2")
    e("v_lshlrev_b32 v4, 12, v1")
    e("v_lshlrev_b32 v5, 15, v1")
    e("v_lshlrev_b32 v6, 10, v1")

    def lane_offs(dst, rowpart, colpart, rs):
        e("v_add_u32 v%d, v%d, v%d" % (dst, rowpart, colpart))
        for b in range(3, 0, -1):
            e("v_add_u32 v%d, %d, v%d" % (dst + b, BIAS + b * (rs - BLK), dst))
        e("v_add_u32 v%d, %d, v%d" % (dst, BIAS, dst))

    srdb(SRD_X, KA_X, NB_X)
    srdb(SRD_WQ, KA_WQ, NB_W)
    lane_offs(LV_X, 4, 3, 1024)
    lane_offs(LV_WQ, 5, 2, 8192)
    e("s_getreg_b32 %s, hwreg(HW_REG_XCC_ID)" % sr(SL_THR))
    e("s_and_b32 %s, %s, 1" % (sr(SL_THR), sr(SL_THR)))
    if cfg.deven < cfg.dodd:
        e("s_xor_b32 %s, %s, 1" % (sr(SL_THR), sr(SL_THR)))
    e("v_mov_b32 v%d, %d" % (LV_LADDR, FLAG_L))
    e("v_mov_b32 v%d, %d" % (LV_FADDR, FLAG_F))
    e("v_mov_b32 v%d, 0" % LV_T)
    e("ds_write_b32 v%d, v%d" % (LV_LADDR, LV_T))
    e("s_mov_b32 %s, 0" % sr(SL_ISS))
    e("s_mov_b32 %s, 0" % sr(SL_PUB))
    e("s_mov_b32 %s, 0" % sr(SL_FMIN))
    e("s_mov_b32 %s, 0" % sr(SL_SLOT))
    e("s_mov_b32 %s, -1" % sr(SL_NEED))
    e("s_mov_b32 %s, 0" % sr(SL_WFC))
    e("s_add_u32 %s, %s, %s" % (sr(SL_ROT), sr(S_B4), sr(S_M)))
    e("s_and_b32 %s, %s, 3" % (sr(SL_ROT), sr(SL_ROT)))
    if cfg.noload:
        e("v_mov_b32 v%d, 100000" % LV_T)
        e("s_waitcnt lgkmcnt(0)")
        e("ds_write_b32 v%d, v%d" % (LV_LADDR, LV_T))
        e("s_waitcnt lgkmcnt(0)")
        e("s_barrier")
        e("s_branch L_fin")

    ool = []

    def publish_nb():
        e("s_getreg_b32 %s, hwreg(HW_REG_IB_STS)" % sr(S_T0))
        e("s_lshr_b32 %s, %s, 18" % (sr(S_T1), sr(S_T0)))
        e("s_and_b32 %s, %s, 15" % (sr(S_T0), sr(S_T0)))
        e("s_and_b32 %s, %s, 0x30" % (sr(S_T1), sr(S_T1)))
        e("s_add_u32 %s, %s, %s" % (sr(S_T0), sr(S_T0), sr(S_T1)))
        e("s_add_u32 %s, %s, 7" % (sr(S_T0), sr(S_T0)))
        e("s_lshr_b32 %s, %s, 3" % (sr(S_T0), sr(S_T0)))
        e("s_sub_i32 %s, %s, %s" % (sr(SL_PUB), sr(SL_ISS), sr(S_T0)))
        e("v_mov_b32 v%d, %s" % (LV_T, sr(SL_PUB)))
        e("ds_write_b32 v%d, v%d" % (LV_LADDR, LV_T))

    def issue_tile(srdreg, voff, rs, flags, wrap, nowait=False, check=True):
        if check:
            e("s_cmp_ge_i32 %s, %s" % (sr(SL_FMIN), sr(SL_NEED)))
            slow = a.newlab("lslow")
            ok = a.newlab("ok")
            e("s_cbranch_scc0 %s" % slow)
            a.lab(ok)
            ool.append((slow, ok))

        def ld(b):
            e("buffer_load_dwordx4 v%d, %s, %s offen offset:%d %s lds" % (
                voff + (b & 3), sr(srdreg, 4), sr(SL_OFF if b < 4 else SL_OFF2), (b & 3) * BLK, flags))
        e("s_mov_b32 m0, %s" % sr(SL_SLOT))
        e("s_add_u32 %s, %s, %d" % (sr(SL_OFF2), sr(SL_OFF), 16 * rs))
        ld(0)
        ld(1)
        ld(2)
        e("s_add_u32 %s, %s, 1" % (sr(SL_ISS), sr(SL_ISS)))
        ld(3)
        e("s_add_u32 m0, %s, %d" % (sr(SL_SLOT), 4 * BLK))
        e("s_add_u32 %s, %s, %d" % (sr(SL_SLOT), sr(SL_SLOT), SLOT))
        ld(4)
        e("s_cmp_lt_u32 %s, %d" % (sr(SL_SLOT), wrap))
        e("s_cselect_b32 %s, %s, 0" % (sr(SL_SLOT), sr(SL_SLOT)))
        ld(5)
        e("s_sub_i32 %s, %s, %s" % (sr(SL_NEED), sr(SL_ISS), sr(SL_NADJ)))
        ld(6)
        if cfg.deven != cfg.dodd:
            e("s_cmp_eq_u32 %s, 0" % sr(SL_THR))
        ld(7)
        if not nowait:
            dmax, dmin = max(cfg.deven, cfg.dodd), min(cfg.deven, cfg.dodd)
            e("s_waitcnt vmcnt(%d)" % (8 * dmax))
            if dmin != dmax:
                sk = a.newlab("thr")
                e("s_cbranch_scc1 %s" % sk)
                e("s_waitcnt vmcnt(%d)" % (8 * dmin))
                a.lab(sk)
            publish_nb()

    def qp_round(first_nowait=0):
        n = 0

        def after():
            if first_nowait and n == first_nowait:
                e("s_waitcnt lgkmcnt(0)")
                e("s_barrier")
        for w in range(3):
            e("s_add_u32 %s, %s, %d" % (sr(SL_OFF), sr(SL_XB), w * 32 * 1024))
            issue_tile(SRD_X, LV_X, 1024, cfg.xflags, NQ * SLOT, nowait=(n < first_nowait))
            n += 1
            after()
        for j in range(4):
            e("s_add_u32 %s, %s, %d" % (sr(SL_OFF), sr(SL_WB), j * 32 * 8192))
            issue_tile(SRD_WQ, LV_WQ, 8192, cfg.wflags, NQ * SLOT, nowait=(n < first_nowait))
            n += 1
            after()

    def qp_bases(ph, rnd):
        e("s_add_u32 %s, %s, %s" % (sr(S_T1), sr(SL_ROT), sr(rnd)))
        e("s_and_b32 %s, %s, 3" % (sr(S_T1), sr(S_T1)))
        e("s_lshl_b32 %s, %s, 8" % (sr(S_T2), sr(S_T1)))
        e("s_mul_i32 %s, %s, %d" % (sr(SL_XB), sr(S_B4), 96 * 1024))
        e("s_add_u32 %s, %s, %s" % (sr(SL_XB), sr(SL_XB), sr(S_T2)))
        if ph:
            e("s_add_u32 %s, %s, %d" % (sr(SL_XB), sr(SL_XB), 4 * 96 * 1024))
        e("s_lshl_b32 %s, %s, 20" % (sr(S_T2), sr(S_T1)))
        e("s_lshl_b32 %s, %s, 8" % (sr(SL_WB), sr(S_H)))
        e("s_add_u32 %s, %s, %s" % (sr(SL_WB), sr(SL_WB), sr(S_T2)))

    kvf = "" if cfg.kvsame else cfg.kvflags
    e("s_mov_b32 %s, %d" % (sr(SL_NADJ), NQ - 1))
    e("s_mov_b32 %s, 0" % sr(SL_CNT))
    qp_bases(0, SL_CNT)
    qp_round(first_nowait=D)
    srdb(SRD_K, KA_K, NB_KV)
    srdb(SRD_V, KA_V, NB_KV)
    srdb(SRD_WO, KA_WO, NB_W)
    lane_offs(LV_K, 6, 3, 256)
    lane_offs(LV_V, 6, 2, 256)
    lane_offs(LV_WO, 4, 2, 1024)
    e("v_lshlrev_b32 v7, 4, v0")
    for b in range(3, 0, -1):
        e("v_add_u32 v%d, %d, v7" % (LV_O + b, BIAS + b * (1024 - BLK)))
    e("v_add_u32 v%d, %d, v7" % (LV_O, BIAS))
    e("v_min_u32 v7, 11, v0")
    e("v_lshrrev_b32 v%d, 2, v7" % LV_FA)
    e("v_lshlrev_b32 v%d, 7, v%d" % (LV_FA, LV_FA))
    e("v_and_b32 v7, 3, v7")
    e("v_lshlrev_b32 v7, 3, v7")
    e("v_add_u32 v%d, v%d, v7" % (LV_FA, LV_FA))
    e("v_add_u32 v%d, %d, v%d" % (LV_FA, BIAS, LV_FA))
    e("s_lshl_b32 %s, %s, 5" % (sr(S_T1), sr(S_B4)))
    e("s_add_u32 %s, %s, %s" % (sr(S_T1), sr(S_T1), sr(S_H)))
    e("s_lshl_b32 %s, %s, 18" % (sr(SL_KOFF), sr(S_T1)))
    stamp("q3")

    def early_tiles():
        e("s_mov_b32 %s, %s" % (sr(SL_QSLOT), sr(SL_SLOT)))
        e("s_mov_b32 %s, %d" % (sr(SL_SLOT), NQ * SLOT))
        seq = [("K", 0), ("K", 1), ("V", 0)]
        t = 0
        while len(seq) < E:
            seq += [("K", t + 2), ("V", t + 1)]
            t += 1
        assert len(seq) == E
        for kind, t in seq:
            e("s_add_u32 %s, %s, %d" % (sr(SL_OFF), sr(SL_KOFF), 0 if cfg.kvsame else t * 8192))
            if kind == "K":
                issue_tile(SRD_K, LV_K, 256, kvf, RING, check=False)
            else:
                issue_tile(SRD_V, LV_V, 256, kvf, RING, check=False)
        e("s_mov_b32 %s, %s" % (sr(SL_SLOT), sr(SL_QSLOT)))

    npairs_early = (E - 3) // 2
    if cfg.ytype == 1:
        e("s_and_b32 %s, %s, 1" % (sr(S_T3), sr(S_M)))
        e("s_cmp_eq_u32 %s, 0" % sr(S_T3))
        e("s_cbranch_scc1 L_ld_x1")
    if cfg.ytype in (1, 2):
        early_tiles()
        e("s_mov_b32 %s, %d" % (sr(SL_NADJ), NQ - 1 + E))
        e("s_sub_i32 %s, %s, %s" % (sr(SL_NEED), sr(SL_ISS), sr(SL_NADJ)))
    a.lab("L_ld_x1")
    e("s_mov_b32 %s, 1" % sr(SL_CNT))
    a.lab("L_ld_qp1")
    qp_bases(0, SL_CNT)
    qp_round()
    if cfg.stamps:
        for rr in (1, 2, 3):
            nm = "q%d" % (4 * rr + 3)
            if nm in stl:
                sk = a.newlab("sk")
                e("s_cmp_eq_u32 %s, %d" % (sr(SL_CNT), rr))
                e("s_cbranch_scc0 %s" % sk)
                stamp(nm)
                a.lab(sk)
    e("s_add_u32 %s, %s, 1" % (sr(SL_CNT), sr(SL_CNT)))
    e("s_cmp_lt_u32 %s, 4" % sr(SL_CNT))
    e("s_cbranch_scc1 L_ld_qp1")
    if cfg.ytype == 1:
        e("s_and_b32 %s, %s, 1" % (sr(S_T3), sr(S_M)))
        e("s_cmp_eq_u32 %s, 0" % sr(S_T3))
        e("s_cbranch_scc0 L_ld_y2")
    if cfg.ytype in (0, 1):
        early_tiles()
    a.lab("L_ld_y2")
    stamp("qp")
    cnt("cq")
    e("s_mov_b32 %s, 0" % sr(SL_SLOT))
    e("s_mov_b32 %s, %d" % (sr(SL_NADJ), NS - 1))
    e("s_mov_b32 %s, %d" % (sr(SL_NEED), NQT))
    e("v_mov_b32 v7, 0")
    e("global_load_dwordx2 %s, v7, %s sc1" % (vr(LV_NON, 2), sr(KA_DBG, 2)))
    e("s_mov_b32 %s, 0x55555554" % sr(SL_EVM))
    e("s_mov_b32 %s, 0" % sr(SL_CNT2))
    e("s_add_u32 %s, %s, %d" % (sr(SL_VOFF), sr(SL_KOFF), 0 if cfg.kvsame else npairs_early * 8192))
    e("s_mov_b32 %s, %d" % (sr(SL_CNT), npairs_early))
    assert npairs_early == 2
    e("s_branch L_ld_disp")
    a.lab("L_ld_head")
    e("s_mov_b32 %s, %s" % (sr(SL_OFF), sr(SL_KOFF)))
    issue_tile(SRD_K, LV_K, 256, kvf, RING)
    e("s_add_u32 %s, %s, 8192" % (sr(SL_OFF), sr(SL_KOFF)))
    issue_tile(SRD_K, LV_K, 256, kvf, RING)
    e("s_mov_b32 %s, %s" % (sr(SL_OFF), sr(SL_KOFF)))
    issue_tile(SRD_V, LV_V, 256, kvf, RING)
    e("s_mov_b32 %s, %s" % (sr(SL_VOFF), sr(SL_KOFF)))
    e("s_mov_b32 %s, 0" % sr(SL_CNT))
    a.lab("L_ld_kv")
    e("s_add_u32 %s, %s, 16384" % (sr(SL_OFF), sr(SL_VOFF)))
    issue_tile(SRD_K, LV_K, 256, kvf, RING)
    e("s_add_u32 %s, %s, 8192" % (sr(SL_OFF), sr(SL_VOFF)))
    issue_tile(SRD_V, LV_V, 256, kvf, RING)
    if not cfg.kvsame:
        e("s_add_u32 %s, %s, 8192" % (sr(SL_VOFF), sr(SL_VOFF)))
    e("s_add_u32 %s, %s, 1" % (sr(SL_CNT), sr(SL_CNT)))
    e("s_bitcmp1_b32 %s, %s" % (sr(SL_EVM), sr(SL_CNT)))
    e("s_cbranch_scc1 L_ld_disp")
    a.lab("L_ld_evret")
    e("s_cmp_lt_u32 %s, 30" % sr(SL_CNT))
    e("s_cbranch_scc1 L_ld_kv")
    e("s_add_u32 %s, %s, 8192" % (sr(SL_OFF), sr(SL_VOFF)))
    issue_tile(SRD_V, LV_V, 256, kvf, RING)
    e("s_cmp_eq_u32 %s, 0" % sr(SL_CNT2))
    e("s_cbranch_scc0 L_ld_tail")
    stamp("h0")
    cnt("c0")
    e("s_add_u32 %s, %s, %d" % (sr(SL_KOFF), sr(SL_KOFF), 4 * 32 * 262144))
    if cfg.wsbase:
        e("s_add_u32 %s, %s, 0x%x" % (sr(KA_WS), sr(KA_WS), cfg.wsbase << 20))
        e("s_addc_u32 %s, %s, 0" % (sr(KA_WS + 1), sr(KA_WS + 1)))
    srdb(SRD_X, KA_WS, WS_USED)
    if not cfg.noxchg and not cfg.nocompute:
        okn = a.newlab("lnok")
        e("v_readfirstlane_b32 %s, v%d" % (sr(SL_NONCE), LV_NON))
        e("v_readfirstlane_b32 %s, v%d" % (sr(SL_NONCE + 1), LV_NON + 1))
        e("s_nop 3")
        e("s_cmp_lg_u32 %s, 0" % sr(SL_NONCE))
        e("s_cbranch_scc1 %s" % okn)
        lpn = a.newlab("lnlp")
        a.lab(lpn)
        e("v_mov_b32 v7, 0")
        e("global_load_dwordx2 %s, v7, %s sc1" % (vr(LV_NON, 2), sr(KA_DBG, 2)))
        e("s_waitcnt vmcnt(0)")
        e("v_readfirstlane_b32 %s, v%d" % (sr(SL_NONCE), LV_NON))
        e("v_readfirstlane_b32 %s, v%d" % (sr(SL_NONCE + 1), LV_NON + 1))
        e("s_sub_u32 %s, %s, 1" % (sr(S_SPIN), sr(S_SPIN)))
        e("s_cmp_eq_u32 %s, 0" % sr(S_SPIN))
        e("s_cbranch_scc1 L_end")
        e("s_cmp_eq_u32 %s, 0" % sr(SL_NONCE))
        e("s_cbranch_scc1 %s" % lpn)
        a.lab(okn)
    e("s_mov_b32 %s, 1" % sr(SL_CNT2))
    e("s_branch L_ld_head")
    a.lab("L_ld_tail")
    stamp("h1")
    cnt("c1")
    e("s_mov_b32 %s, 0" % sr(SL_XB))
    a.lab("L_ld_wo_r")
    e("s_add_u32 %s, %s, %s" % (sr(S_T1), sr(S_M), sr(SL_XB)))
    e("s_and_b32 %s, %s, 3" % (sr(S_T1), sr(S_T1)))
    e("s_lshl_b32 %s, %s, 17" % (sr(S_T1), sr(S_T1)))
    e("s_lshl_b32 %s, %s, 19" % (sr(SL_WB), sr(S_X)))
    e("s_add_u32 %s, %s, %s" % (sr(SL_WB), sr(SL_WB), sr(S_T1)))
    e("s_lshl_b32 %s, %s, 8" % (sr(S_T1), sr(S_M)))
    e("s_add_u32 %s, %s, %s" % (sr(SL_WB), sr(SL_WB), sr(S_T1)))
    for j in range(4):
        e("s_add_u32 %s, %s, %d" % (sr(SL_OFF), sr(SL_WB), j * 32 * 1024))
        issue_tile(SRD_WO, LV_WO, 1024, cfg.wo2flags, RING)
    e("s_add_u32 %s, %s, 1" % (sr(SL_XB), sr(SL_XB)))
    e("s_cmp_lt_u32 %s, 4" % sr(SL_XB))
    e("s_cbranch_scc1 L_ld_wo_r")
    a.lab("L_ld_drain")
    publish_nb()
    e("s_cmp_lt_i32 %s, %s" % (sr(SL_PUB), sr(SL_ISS)))
    e("s_cbranch_scc1 L_ld_drain")
    e("s_waitcnt lgkmcnt(0)")
    stamp("t2")
    e("s_branch L_fin")

    def pf_tile(srdreg, voff, rs, flags, vdst):
        e("s_add_u32 %s, %s, %d" % (sr(SL_OFF2), sr(SL_OFF), 16 * rs))
        for b in range(8):
            e("buffer_load_dwordx4 %s, v%d, %s, %s offen offset:%d %s" % (
                vr(vdst + 4 * b, 4), voff + (b & 3), sr(srdreg, 4), sr(SL_OFF if b < 4 else SL_OFF2),
                (b & 3) * BLK, flags))

    def flag_poll_issue_l():
        e("s_lshl_b32 %s, %s, 9" % (sr(S_T1), sr(S_QUAD)))
        e("buffer_load_dwordx2 %s, v%d, %s, %s offen sc1" % (vr(LV_FL, 2), LV_FA, sr(SRD_X, 4), sr(S_T1)))

    def flag_check_l(tgt_ok):
        e("v_cmp_ne_u32 vcc, %s, v%d" % (sr(SL_NONCE), LV_FL))
        e("v_cmp_ne_u32 s[28:29], %s, v%d" % (sr(SL_NONCE + 1), LV_FL + 1))
        e("s_nop 3")
        e("s_or_b64 vcc, vcc, s[28:29]")
        e("s_cbranch_scc0 %s" % tgt_ok)

    a.lab("L_ld_disp")
    e("s_lshr_b32 %s, %s, 1" % (sr(SL_PP), sr(SL_CNT)))
    e("s_sub_u32 %s, %s, 1" % (sr(SL_PP), sr(SL_PP)))
    e("s_lshr_b32 %s, %s, 2" % (sr(SL_RND), sr(SL_PP)))
    e("s_and_b32 %s, %s, 3" % (sr(SL_JJ), sr(SL_PP)))
    e("s_cmp_eq_u32 %s, 0" % sr(SL_CNT2))
    e("s_cbranch_scc0 L_ld_x2")
    e("s_cmp_eq_u32 %s, 0" % sr(SL_JJ))
    e("s_cbranch_scc0 L_ld_w1")
    qp_bases(1, SL_RND)
    for w in range(3):
        e("s_add_u32 %s, %s, %d" % (sr(SL_OFF), sr(SL_XB), w * 32 * 1024))
        issue_tile(SRD_X, LV_X, 1024, cfg.x2flags, RING)
    a.lab("L_ld_w1")
    e("s_lshl_b32 %s, %s, 18" % (sr(SL_OFF), sr(SL_JJ)))
    e("s_add_u32 %s, %s, %s" % (sr(SL_OFF), sr(SL_OFF), sr(SL_WB)))
    issue_tile(SRD_WQ, LV_WQ, 8192, cfg.wq2flags, RING)
    e("s_cmp_eq_u32 %s, 14" % sr(SL_PP))
    e("s_cbranch_scc0 L_ld_evret")
    e("s_add_u32 %s, %s, %d" % (sr(SL_OFF), sr(SL_WB), 3 * 32 * 8192))
    issue_tile(SRD_WQ, LV_WQ, 8192, cfg.wq2flags, RING)
    e("s_branch L_ld_evret")
    a.lab("L_ld_x2")
    if not cfg.noxchg and not cfg.nocompute:
        skp = a.newlab("skp")
        e("s_cmp_eq_u32 %s, 2" % sr(SL_PP))
        e("s_cbranch_scc0 %s" % skp)
        flag_poll_issue_l()
        a.lab(skp)
    e("s_cmp_eq_u32 %s, 0" % sr(SL_JJ))
    e("s_cbranch_scc0 L_ld_w2")
    e("s_add_u32 %s, %s, %s" % (sr(S_T2), sr(S_M), sr(SL_RND)))
    e("s_and_b32 %s, %s, 3" % (sr(S_T2), sr(S_T2)))
    e("s_lshl_b32 %s, %s, 17" % (sr(S_T1), sr(S_T2)))
    e("s_lshl_b32 %s, %s, 19" % (sr(SL_WB), sr(S_X)))
    e("s_add_u32 %s, %s, %s" % (sr(SL_WB), sr(SL_WB), sr(S_T1)))
    e("s_lshl_b32 %s, %s, 8" % (sr(S_T1), sr(S_M)))
    e("s_add_u32 %s, %s, %s" % (sr(SL_WB), sr(SL_WB), sr(S_T1)))
    e("s_lshl_b32 %s, %s, 2" % (sr(S_T3), sr(S_QUAD)))
    e("s_add_u32 %s, %s, %s" % (sr(S_T2), sr(S_T2), sr(S_T3)))
    e("s_mul_i32 %s, %s, 24576" % (sr(S_T2), sr(S_T2)))
    e("s_add_u32 %s, %s, %d" % (sr(SL_XB), sr(S_T2), WS_OBUF))
    e("s_cmp_eq_u32 %s, 0" % sr(SL_RND))
    e("s_cbranch_scc1 L_ld_w2")
    if not cfg.noxchg and not cfg.nocompute:
        okf = a.newlab("lfok")
        e("s_cmp_eq_u32 %s, 1" % sr(SL_RND))
        e("s_cbranch_scc0 %s" % okf)
        flag_check_l(okf)
        lpf = a.newlab("lfl")
        a.lab(lpf)
        flag_poll_issue_l()
        e("s_waitcnt vmcnt(0)")
        e("s_sub_u32 %s, %s, 1" % (sr(S_SPIN), sr(S_SPIN)))
        e("s_cmp_eq_u32 %s, 0" % sr(S_SPIN))
        e("s_cbranch_scc1 L_end")
        flag_check_l(okf)
        e("s_branch %s" % lpf)
        a.lab(okf)
    for w in range(3):
        e("s_add_u32 %s, %s, %d" % (sr(SL_OFF), sr(SL_XB), w * 8192))
        issue_tile(SRD_X, LV_O, 256, cfg.oflags, RING)
    a.lab("L_ld_w2")
    e("s_lshl_b32 %s, %s, 15" % (sr(SL_OFF), sr(SL_JJ)))
    e("s_add_u32 %s, %s, %s" % (sr(SL_OFF), sr(SL_OFF), sr(SL_WB)))
    issue_tile(SRD_WO, LV_WO, 1024, cfg.woflags, RING)
    e("s_cmp_eq_u32 %s, 14" % sr(SL_PP))
    e("s_cbranch_scc0 L_ld_evret")
    e("s_add_u32 %s, %s, %d" % (sr(SL_OFF), sr(SL_WB), 3 * 32 * 1024))
    issue_tile(SRD_WO, LV_WO, 1024, cfg.woflags, RING)
    e("s_branch L_ld_evret")

    for slow, ok in ool:
        a.lab(slow)
        e("s_call_b64 %s, L_waitfree" % sr(S_RET, 2))
        e("s_branch %s" % ok)
    a.lab("L_waitfree")
    if cfg.stamps:
        e("s_add_u32 %s, %s, 1" % (sr(SL_WFC), sr(SL_WFC)))
    e("ds_read_b96 v[%d:%d], v%d" % (LV_F, LV_F + 2, LV_FADDR))
    publish_nb()
    e("s_waitcnt lgkmcnt(1)")
    e("v_min3_u32 v%d, v%d, v%d, v%d" % (LV_F, LV_F, LV_F + 1, LV_F + 2))
    e("s_sub_u32 %s, %s, 1" % (sr(S_SPIN), sr(S_SPIN)))
    e("v_readfirstlane_b32 %s, v%d" % (sr(SL_FMIN), LV_F))
    e("s_cmp_eq_u32 %s, 0" % sr(S_SPIN))
    e("s_cbranch_scc1 L_end")
    e("s_nop 1")
    e("s_cmp_ge_i32 %s, %s" % (sr(SL_FMIN), sr(SL_NEED)))
    e("s_cbranch_scc0 L_waitfree")
    e("s_setpc_b64 %s" % sr(S_RET, 2))

    if cfg.noxchg:
        a.filt = lambda sx: (sx.startswith("buffer_") or sx.startswith("global_load")
                             or sx.startswith("global_store_dwordx2"))
    a.lab("L_compute")
    e("v_and_b32 v1, 3, v0")
    e("v_lshrrev_b32 v2, 5, v0")
    e("v_lshrrev_b32 v3, 4, v0")
    e("v_and_b32 v3, 1, v3")
    e("v_lshrrev_b32 v4, 2, v0")
    e("v_and_b32 v4, 3, v4")
    e("v_lshlrev_b32 v5, 2, v3")
    e("v_add_u32 v5, v5, v1")
    e("s_movk_i32 %s, %d" % (sr(S_T0), BLK))
    e("v_mul_lo_u32 v5, v5, %s" % sr(S_T0))
    e("v_lshlrev_b32 v6, 8, v4")
    e("v_add_u32 v5, v5, v6")
    for par in range(2):
        e("v_add_u32 v6, %d, v2" % (2 * par))
        e("v_xor_b32 v6, v6, v4")
        e("v_lshlrev_b32 v6, 4, v6")
        e("v_add_u32 v%d, v5, v6" % (V_KB + par))
    e("v_lshrrev_b32 v6, 1, v1")
    e("v_and_b32 v7, 1, v1")
    e("v_lshlrev_b32 v7, 1, v7")
    e("v_or_b32 v6, v6, v7")
    e("v_lshlrev_b32 v6, 3, v6")
    e("v_lshlrev_b32 v7, 5, v3")
    e("v_add_u32 v6, v6, v7")
    e("v_mul_lo_u32 v7, v4, %s" % sr(S_T0))
    e("v_add_u32 v6, v6, v7")
    e("v_lshlrev_b32 v7, 8, v2")
    e("v_add_u32 v%d, v6, v7" % V_VB)
    e("v_add_u32 v%d, v%d, v7" % (V_WB, V_VB))
    e("v_add_u32 v%d, %d, v%d" % (V_VB2, SLOT, V_VB))
    e("v_mov_b32 v%d, %d" % (V_LADDR, FLAG_L))
    e("s_lshl_b32 %s, %s, 2" % (sr(S_T0), sr(S_WAVE)))
    e("s_add_u32 %s, %s, %d" % (sr(S_T0), sr(S_T0), FLAG_F))
    e("v_mov_b32 v%d, %s" % (V_FADDR, sr(S_T0)))
    e("v_mov_b32 v%d, %d" % (V_FV, 100000 if cfg.nocompute else 0))
    e("ds_write_b32 v%d, v%d" % (V_FADDR, V_FV))
    e("v_lshlrev_b32 v%d, 4, v0" % V_L16)
    e("s_mov_b32 %s, 0" % sr(SC_L))
    e("s_mov_b32 %s, 0" % sr(SC_SWC))
    c = (128 ** -0.5) * math.log2(math.e)
    e("s_mov_b32 %s, 0x%x" % (sr(SC_T), f32bits(cfg.T_LOG2)))
    e("s_mov_b32 %s, 0" % sr(SC_IDX))
    e("s_mov_b32 %s, 0" % sr(SC_SLOT))
    e("s_mov_b32 %s, %d" % (sr(SC_WRAP), NQ * SLOT))
    if cfg.ytype == 1:
        e("s_and_b32 %s, %s, 1" % (sr(S_T1), sr(S_M)))
        e("s_mul_i32 %s, %s, %d" % (sr(SC_PADJ), sr(S_T1), E))
    else:
        e("s_mov_b32 %s, %d" % (sr(SC_PADJ), E if cfg.ytype == 2 else 0))
    e("s_mov_b32 %s, 0" % sr(SC_ADJ))
    if cfg.wsbase:
        e("s_add_u32 %s, %s, 0x%x" % (sr(KA_WS), sr(KA_WS), cfg.wsbase << 20))
        e("s_addc_u32 %s, %s, 0" % (sr(KA_WS + 1), sr(KA_WS + 1)))
    srd(SRD_WS, KA_WS, WS_USED)
    srd(SRD_OUT, KA_OUT, 8 * 96 * 1024 * 2)
    e("s_or_b32 %s, %s, %s" % (sr(S_T0), sr(S_WG), sr(S_WAVE)))
    e("s_cmp_eq_u32 %s, 0" % sr(S_T0))
    e("s_cbranch_scc0 L_nononce")
    e("s_memrealtime %s" % sr(SC_NONCE, 2))
    e("s_waitcnt lgkmcnt(0)")
    e("s_or_b32 %s, %s, 1" % (sr(SC_NONCE), sr(SC_NONCE)))
    e("v_mov_b32 v2, %s" % sr(SC_NONCE))
    e("v_mov_b32 v3, %s" % sr(SC_NONCE + 1))
    e("v_mov_b32 v1, 0")
    e("global_store_dwordx2 v1, v[2:3], %s sc1" % sr(KA_DBG, 2))
    a.lab("L_nononce")
    if cfg.tlbwarm:
        e("s_lshl_b32 %s, %s, 5" % (sr(S_T1), sr(S_B4)))
        e("s_add_u32 %s, %s, %s" % (sr(S_T1), sr(S_T1), sr(S_H)))
        e("s_lshl_b32 %s, %s, 18" % (sr(S_T1), sr(S_T1)))
        e("v_and_b32 v1, 1, v0")
        e("v_lshlrev_b32 v1, 25, v1")
        e("v_add_u32 v1, %s, v1" % sr(S_T1))
        e("global_load_dword v40, v1, %s" % sr(KA_K, 2))
        e("global_load_dword v41, v1, %s" % sr(KA_V, 2))
        e("s_lshl_b32 %s, %s, 19" % (sr(S_T1), sr(S_X)))
        e("v_and_b32 v1, 3, v0")
        e("v_lshlrev_b32 v1, 17, v1")
        e("v_add_u32 v1, %s, v1" % sr(S_T1))
        e("global_load_dword v42, v1, %s" % sr(KA_WO, 2))
        e("s_lshl_b32 %s, %s, 2" % (sr(S_T1), sr(S_QUAD)))
        e("s_mul_i32 %s, %s, 24576" % (sr(S_T1), sr(S_T1)))
        e("s_add_u32 %s, %s, %d" % (sr(S_T1), sr(S_T1), WS_OBUF))
        e("v_and_b32 v1, 1, v0")
        e("v_mul_u32_u24 v1, %d, v1" % (256 * 24576 // 1))
        e("buffer_load_dword v43, v1, %s, %s offen" % (sr(SRD_WS, 4), sr(S_T1)))
        poff_early = True
        e("s_lshl_b32 %s, %s, 2" % (sr(S_T1), sr(S_G8)))
        e("s_add_u32 %s, %s, %s" % (sr(S_T1), sr(S_T1), sr(S_M)))
        e("s_mul_i32 %s, %s, %d" % (sr(S_T1), sr(S_T1), 8 * 24576))
        e("s_add_u32 %s, %s, %d" % (sr(S_T1), sr(S_T1), WS_PBUF))
        e("v_and_b32 v1, 1, v0")
        e("v_mul_u32_u24 v1, %d, v1" % (8 * 4 * 8 * 24576))
        e("buffer_load_dword v44, v1, %s, %s offen" % (sr(SRD_WS, 4), sr(S_T1)))
        e("v_mov_b32 v1, 0")
        e("buffer_load_dword v45, v1, %s, 0 offen" % sr(SRD_WS, 4))
        e("s_mul_i32 %s, %s, %d" % (sr(S_T1), sr(S_B4), 96 * 2048))
        e("v_and_b32 v1, 1, v0")
        e("v_mul_u32_u24 v1, %d, v1" % (4 * 96 * 2048))
        e("buffer_load_dword v46, v1, %s, %s offen" % (sr(SRD_OUT, 4), sr(S_T1)))
    e("s_waitcnt lgkmcnt(0)")
    e("s_barrier")
    stamp("bar")
    if cfg.nocompute:
        e("s_branch L_fin")

    slowwaits = []

    def wait_landed_l(delta, adj=False):
        slow = a.newlab("lw_slow")
        back = a.newlab("lw_back")
        slowwaits.append((slow, back))
        out = ["s_add_u32 %s, %s, %d" % (sr(SC_NEED), sr(SC_IDX), delta)]
        if adj:
            out.append("s_add_u32 %s, %s, %s" % (sr(SC_NEED), sr(SC_NEED), sr(SC_ADJ)))
        out += ["s_cmp_lt_u32 %s, %s" % (sr(SC_L), sr(SC_NEED)),
                "s_cbranch_scc1 %s" % slow,
                back + ":"]
        return out

    def wait_landed(delta, adj=False):
        a.extend(wait_landed_l(delta, adj))

    def slot_adv_l(dst, src, n):
        return ["s_add_u32 %s, %s, %d" % (sr(dst), sr(src), n * SLOT),
                "s_sub_u32 %s, %s, %s" % (sr(S_T0), sr(dst), sr(SC_WRAP)),
                "s_cmp_lt_u32 %s, %s" % (sr(dst), sr(SC_WRAP)),
                "s_cselect_b32 %s, %s, %s" % (sr(dst), sr(dst), sr(S_T0))]

    def slot_adv(dst, src, n):
        a.extend(slot_adv_l(dst, src, n))

    def release_l(sg):
        return ["v_mov_b32 v%d, %s" % (V_FV, sr(sg)), "ds_write_b32 v%d, v%d" % (V_FADDR, V_FV)]

    def k_addr(slot):
        return ["v_add_u32 v%d, %s, v%d" % (V_KA + p, sr(slot), V_KB + p) for p in range(2)]

    def k_reads(dst_a):
        return ["ds_read_b128 %s, v%d offset:%d" % (ar(dst_a + 4 * s, 4), V_KA + (s & 1), (s >> 1) * 64)
                for s in range(8)]

    def v_addr(slot, base):
        return ["v_add_u32 v%d, %s, v%d" % (V_VA, sr(slot), base)]

    def v_reads(dst_a, isw):
        out = []
        for ks in range(2):
            for db in range(4):
                base = dst_a + (ks * 4 + db) * 4
                o2 = 256 if isw else 512
                o = ks * 4 * BLK + db * 64
                out.append("ds_read_b64_tr_b16 %s, v%d offset:%d" % (ar(base, 2), V_VA, o))
                out.append("ds_read_b64_tr_b16 %s, v%d offset:%d" % (ar(base + 2, 2), V_VA, o + o2))
        return out

    def wave_slot(dst, n):
        return ["s_mul_i32 %s, %s, %d" % (sr(S_T1), sr(S_WAVE), SLOT),
                "s_add_u32 %s, %s, %s" % (sr(dst), sr(SC_SLOT), sr(S_T1))] + slot_adv_l(dst, dst, n)

    def x_fetch(buf):
        out = wave_slot(SC_SLOT2, 0) + k_addr(SC_SLOT2) + k_reads(A_XF[buf])
        out += slot_adv_l(SC_SLOT, SC_SLOT, 3)
        return out

    wait_landed(4, True)
    a.extend(x_fetch(0))
    a.extend(v_addr(SC_SLOT, V_WB))
    a.extend(v_reads(A_AF[0], True))
    e("s_add_u32 %s, %s, 4" % (sr(SC_IDX), sr(SC_IDX)))
    slot_adv(SC_SLOT, SC_SLOT, 1)
    for cidx in range(16):
        r, j = divmod(cidx, 4)
        e("s_waitcnt lgkmcnt(0)")
        mf = []
        for ks in range(2):
            for db in range(4):
                acc = V_ACCQ + 16 * db
                cin = "0" if (cidx == 0 and ks == 0) else vr(acc, 16)
                mf.append("%s %s, %s, %s, %s" % (
                    MFMA, vr(acc, 16), ar(A_AF[cidx & 1] + (ks * 4 + db) * 4, 4),
                    ar(A_XF[r & 1] + (2 * j + ks) * 4, 4), cin))
        fill = []
        if cidx < 15:
            nx = 3 if j == 3 else 0
            if cidx == 3:
                fill += ["s_mov_b32 %s, %s" % (sr(SC_ADJ), sr(SC_PADJ))]
            fill += wait_landed_l(nx + 1, True)
            if nx:
                fill += x_fetch((r + 1) & 1)
            fill += v_addr(SC_SLOT, V_WB) + v_reads(A_AF[(cidx + 1) & 1], True)
            fill += release_l(SC_IDX)
            fill += ["s_add_u32 %s, %s, %d" % (sr(SC_IDX), sr(SC_IDX), nx + 1)] + slot_adv_l(SC_SLOT, SC_SLOT, 1)
        else:
            fill += release_l(SC_IDX)
        ng = 6
        per = [[] for _ in range(8)]
        items = fill
        n = len(items)
        pos = 0
        for g in range(ng):
            tgt = max((n * (g + 1)) // ng, pos)
            while tgt < n and items[tgt].endswith(":"):
                tgt += 1
            per[g] = items[pos:tgt]
            pos = tgt
        a.extend(gaps(mf, per))
        if cfg.stamps and ("q%d" % cidx) in stl:
            stamp("q%d" % cidx)

    def q_convert(dst):
        e("s_nop 7")
        e("s_nop 3")
        e("s_mov_b32 %s, 0x%x" % (sr(S_T1), f32bits(c)))
        if cfg.pkmul:
            e("v_mov_b32 v2, %s" % sr(S_T1))
            e("v_mov_b32 v3, %s" % sr(S_T1))
        for i in range(32):
            if cfg.pkmul:
                e("v_pk_mul_f32 %s, %s, v[2:3]" % (vr(V_ACCQ + 2 * i, 2), vr(V_ACCQ + 2 * i, 2)))
            else:
                e("v_mul_f32 v%d, %s, v%d" % (V_ACCQ + 2 * i, sr(S_T1), V_ACCQ + 2 * i))
                e("v_mul_f32 v%d, %s, v%d" % (V_ACCQ + 2 * i + 1, sr(S_T1), V_ACCQ + 2 * i + 1))
            e("v_cvt_pk_bf16_f32 v%d, v%d, v%d" % (dst + i, V_ACCQ + 2 * i, V_ACCQ + 2 * i + 1))
    q_convert(V_Q1)
    e("s_mov_b32 %s, %d" % (sr(SC_SLOT), NQ * SLOT))
    e("s_mov_b32 %s, %d" % (sr(SC_WRAP), RING))
    stamp("qp")

    def qk_mfmas(sdst, qbase, cin):
        return ["%s %s, %s, %s, %s" % (MFMA, vr(sdst, 16), ar(A_KF + 4 * s, 4), vr(qbase + 4 * s, 4),
                                       cin if s == 0 else vr(sdst, 16)) for s in range(8)]

    def softmax_gaps(sc):
        g = []
        for k in range(8):
            l = ["v_exp_f32 v%d, v%d" % (sc + 2 * k, sc + 2 * k),
                 "v_exp_f32 v%d, v%d" % (sc + 2 * k + 1, sc + 2 * k + 1)]
            if k > 0:
                p = k - 1
                l += ["v_add_f32 v%d, v%d, v%d" % (V_LSUM, V_LSUM, sc + 2 * p),
                      "v_add_f32 v%d, v%d, v%d" % (V_LS2, V_LS2, sc + 2 * p + 1),
                      "v_cvt_pk_bf16_f32 v%d, v%d, v%d" % (V_PF + p, sc + 2 * p, sc + 2 * p + 1)]
            g.append(l)
        tail = ["v_add_f32 v%d, v%d, v%d" % (V_LSUM, V_LSUM, sc + 14),
                "v_add_f32 v%d, v%d, v%d" % (V_LS2, V_LS2, sc + 15),
                "v_cvt_pk_bf16_f32 v%d, v%d, v%d" % (V_PF + 7, sc + 14, sc + 15)]
        return g, tail

    def pv_mfmas(vf):
        out = []
        for ks in range(2):
            for db in range(4):
                out.append("%s %s, %s, %s, %s" % (
                    MFMA, vr(V_O + 16 * db, 16), ar(vf + (ks * 4 + db) * 4, 4), vr(V_PF + 4 * ks, 4),
                    vr(V_O + 16 * db, 16)))
        return out

    def max_valu(sn):
        out = ["v_max3_f32 v%d, v%d, v%d, v%d" % (V_TMAX, sn, sn + 1, sn + 2)]
        for i in range(3, 15, 2):
            out.append("v_max3_f32 v%d, v%d, v%d, v%d" % (V_TMAX, V_TMAX, sn + i, sn + i + 1))
        out.append("v_max_f32 v%d, v%d, v%d" % (V_TMAX, V_TMAX, sn + 15))
        return out

    def cross_half_max():
        e("v_mov_b32 v1, v%d" % V_TMAX)
        e("s_nop 1")
        e("v_permlane32_swap_b32 v%d, v1" % V_TMAX)
        e("s_nop 1")
        e("v_max_f32 v%d, v%d, v1" % (V_TMAX, V_TMAX))

    def rare_path(lab, back, sn):
        a.lab(lab)
        cross_half_max()
        e("v_max_f32 v%d, 0, v%d" % (V_TMAX, V_TMAX))
        e("v_sub_f32 v%d, 0, v%d" % (V_ALPHA, V_TMAX))
        e("v_exp_f32 v%d, v%d" % (V_ALPHA, V_ALPHA))
        for i in range(16):
            e("v_sub_f32 v%d, v%d, v%d" % (sn + i, sn + i, V_TMAX))
        for i in range(16):
            e("v_sub_f32 v%d, v%d, v%d" % (V_NEGM + i, V_NEGM + i, V_TMAX))
        e("v_mul_f32 v%d, v%d, v%d" % (V_LSUM, V_LSUM, V_ALPHA))
        e("v_mul_f32 v%d, v%d, v%d" % (V_LS2, V_LS2, V_ALPHA))
        for i in range(64):
            e("v_mul_f32 v%d, v%d, v%d" % (V_O + i, V_O + i, V_ALPHA))
        e("s_branch %s" % back)

    rare = []
    dispatchers = []

    def get_nonce():
        if cfg.noxchg:
            return
        lp = a.newlab("nonce")
        a.lab(lp)
        e("v_mov_b32 v1, 0")
        e("global_load_dwordx2 v[2:3], v1, %s sc1" % sr(KA_DBG, 2))
        e("s_waitcnt vmcnt(0)")
        e("v_readfirstlane_b32 %s, v2" % sr(SC_NONCE))
        e("v_readfirstlane_b32 %s, v3" % sr(SC_NONCE + 1))
        e("s_sub_u32 %s, %s, 1" % (sr(S_SPIN), sr(S_SPIN)))
        e("s_cmp_eq_u32 %s, 0" % sr(S_SPIN))
        e("s_cbranch_scc1 L_end")
        e("s_cmp_eq_u32 %s, 0" % sr(SC_NONCE))
        e("s_cbranch_scc1 %s" % lp)

    def flag_store(off_sgpr, local=False, hi=None):
        e("v_mov_b32 v2, %s" % sr(SC_NONCE))
        e("v_mov_b32 v3, %s" % sr(SC_NONCE + 1 if hi is None else hi))
        e("v_mov_b32 v1, 0")
        e("s_mov_b64 s[34:35], exec")
        e("s_mov_b64 exec, 1")
        if local and cfg.local:
            gl = a.newlab("fsg")
            dn = a.newlab("fsd")
            e("s_cmp_eq_u32 %s, 0" % sr(SC_LOCAL))
            e("s_cbranch_scc1 %s" % gl)
            e("buffer_store_dwordx2 v[2:3], v1, %s, %s offen" % (sr(SRD_WS, 4), sr(off_sgpr)))
            e("s_branch %s" % dn)
            a.lab(gl)
            e("buffer_store_dwordx2 v[2:3], v1, %s, %s offen sc1" % (sr(SRD_WS, 4), sr(off_sgpr)))
            a.lab(dn)
        else:
            e("buffer_store_dwordx2 v[2:3], v1, %s, %s offen sc1" % (sr(SRD_WS, 4), sr(off_sgpr)))
        e("s_mov_b64 exec, s[34:35]")

    def flag_poll(off_sgpr, n):
        if cfg.noxchg:
            return
        lp = a.newlab("poll")
        e("v_min_u32 v1, %d, v0" % (n - 1))
        e("v_lshlrev_b32 v1, 3, v1")
        a.lab(lp)
        e("buffer_load_dwordx2 v[2:3], v1, %s, %s offen sc1" % (sr(SRD_WS, 4), sr(off_sgpr)))
        e("s_waitcnt vmcnt(0)")
        e("v_cmp_ne_u32 vcc, %s, v2" % sr(SC_NONCE))
        e("v_cmp_ne_u32 s[34:35], %s, v3" % sr(SC_NONCE + 1))
        e("s_sub_u32 %s, %s, 1" % (sr(S_SPIN), sr(S_SPIN)))
        e("s_cmp_eq_u32 %s, 0" % sr(S_SPIN))
        e("s_cbranch_scc1 L_end")
        e("s_or_b64 vcc, vcc, s[34:35]")
        e("s_cbranch_scc1 %s" % lp)

    def flago_off(dst, ph, with_m):
        e("s_lshl_b32 %s, %s, 2" % (sr(dst), sr(S_QUAD)))
        e("s_add_u32 %s, %s, %s" % (sr(dst), sr(dst), sr(S_WAVE)))
        e("s_lshl_b32 %s, %s, 7" % (sr(dst), sr(dst)))
        e("s_add_u32 %s, %s, %d" % (sr(dst), sr(dst), WS_FLAGO + ph * 64 * 4 * 128))
        if with_m:
            e("s_lshl_b32 %s, %s, 3" % (sr(S_T0), sr(S_M)))
            e("s_add_u32 %s, %s, %s" % (sr(dst), sr(dst), sr(S_T0)))

    def load_o(ph, regs, ks):
        e("s_lshl_b32 %s, %s, 2" % (sr(S_T1), sr(S_QUAD)))
        e("s_add_u32 %s, %s, %d" % (sr(S_T1), sr(S_T1), ph * 256))
        e("s_mul_i32 %s, %s, 24576" % (sr(S_T1), sr(S_T1)))
        e("s_lshl_b32 %s, %s, 13" % (sr(S_T2), sr(S_WAVE)))
        e("s_add_u32 %s, %s, %s" % (sr(S_T1), sr(S_T1), sr(S_T2)))
        e("s_add_u32 %s, %s, %d" % (sr(S_T1), sr(S_T1), WS_OBUF))
        for k in ks:
            e("s_add_u32 %s, %s, %d" % (sr(S_T2), sr(S_M), k))
            e("s_and_b32 %s, %s, 3" % (sr(S_T2), sr(S_T2)))
            e("s_mul_i32 %s, %s, 24576" % (sr(S_T2), sr(S_T2)))
            e("s_add_u32 %s, %s, %s" % (sr(S_T2), sr(S_T2), sr(S_T1)))
            e("s_add_u32 %s, %s, 4096" % (sr(S_T3), sr(S_T2)))
            for s in range(8):
                e("buffer_load_dwordx4 %s, v%d, %s, %s offen offset:%d sc1" % (
                    ar(regs[k] + 4 * s, 4), V_L16, sr(SRD_WS, 4), sr(S_T2 if s < 4 else S_T3), (s & 3) * 1024))

    def poff(dst, ph, kq_sgpr):
        e("s_add_u32 %s, %s, %d" % (sr(dst), sr(S_G8), ph * 8))
        e("s_lshl_b32 %s, %s, 2" % (sr(dst), sr(dst)))
        e("s_add_u32 %s, %s, %s" % (sr(dst), sr(dst), sr(S_M)))
        e("s_lshl_b32 %s, %s, 3" % (sr(dst), sr(dst)))
        if kq_sgpr is not None:
            e("s_add_u32 %s, %s, %s" % (sr(dst), sr(dst), sr(kq_sgpr)))
        e("s_mul_i32 %s, %s, 24576" % (sr(dst), sr(dst)))
        e("s_lshl_b32 %s, %s, 13" % (sr(S_T0), sr(S_WAVE)))
        e("s_add_u32 %s, %s, %s" % (sr(dst), sr(dst), sr(S_T0)))
        e("s_add_u32 %s, %s, %d" % (sr(dst), sr(dst), WS_PBUF))

    def flagp_off(dst, ph, with_kq):
        e("s_add_u32 %s, %s, %d" % (sr(dst), sr(S_G8), ph * 8))
        e("s_lshl_b32 %s, %s, 2" % (sr(dst), sr(dst)))
        e("s_add_u32 %s, %s, %s" % (sr(dst), sr(dst), sr(S_M)))
        e("s_lshl_b32 %s, %s, 2" % (sr(dst), sr(dst)))
        e("s_add_u32 %s, %s, %s" % (sr(dst), sr(dst), sr(S_WAVE)))
        e("s_lshl_b32 %s, %s, 7" % (sr(dst), sr(dst)))
        e("s_add_u32 %s, %s, %d" % (sr(dst), sr(dst), WS_FLAGP))
        if with_kq:
            e("s_lshl_b32 %s, %s, 3" % (sr(S_T0), sr(S_X)))
            e("s_add_u32 %s, %s, %s" % (sr(dst), sr(dst), sr(S_T0)))

    def partial_store(acc, ph):
        poff(SC_POFF, ph, S_X)
        e("s_add_u32 %s, %s, 4096" % (sr(S_T1), sr(SC_POFF)))
        e("s_nop 3")
        for cch in range(8):
            for i in range(4):
                k = 4 * cch + i
                e("v_cvt_pk_bf16_f32 v%d, v%d, v%d" % (acc + k, acc + 2 * k, acc + 2 * k + 1))
            e("buffer_store_dwordx4 %s, v%d, %s, %s offen offset:%d %s" % (
                vr(acc + 4 * cch, 4), V_L16, sr(SRD_WS, 4), sr(SC_POFF if cch < 4 else S_T1), (cch & 3) * 1024,
                cfg.stflags))

    def reduce(ph, regs):
        flagp_off(SC_FOFF, ph, False)
        flag_poll(SC_FOFF, 8)
        poff(SC_POFF, ph, None)
        e("s_lshl_b32 %s, %s, 10" % (sr(S_T1), sr(S_X)))
        e("s_add_u32 %s, %s, %s" % (sr(SC_POFF), sr(SC_POFF), sr(S_T1)))
        for kq in range(8):
            e("s_add_u32 %s, %s, %d" % (sr(S_T1), sr(SC_POFF), kq * 24576))
            e("buffer_load_dwordx4 %s, v%d, %s, %s offen sc1" % (
                vr(regs + 4 * kq, 4), V_L16, sr(SRD_WS, 4), sr(S_T1)))
        e("v_and_b32 v1, 31, v0")
        e("v_lshlrev_b32 v1, 11, v1")
        e("v_lshrrev_b32 v2, 5, v0")
        e("v_lshlrev_b32 v2, 4, v2")
        e("v_add_u32 v1, v1, v2")
        e("s_add_u32 %s, %s, %d" % (sr(S_T1), sr(S_B4), 4 * ph))
        e("s_mul_i32 %s, %s, 96" % (sr(S_T1), sr(S_T1)))
        e("s_lshl_b32 %s, %s, 5" % (sr(S_T2), sr(S_WAVE)))
        e("s_add_u32 %s, %s, %s" % (sr(S_T1), sr(S_T1), sr(S_T2)))
        e("s_lshl_b32 %s, %s, 11" % (sr(S_T1), sr(S_T1)))
        e("s_lshl_b32 %s, %s, 10" % (sr(S_T2), sr(S_BR)))
        e("s_add_u32 %s, %s, %s" % (sr(S_T1), sr(S_T1), sr(S_T2)))
        e("s_lshl_b32 %s, %s, 8" % (sr(S_T2), sr(S_M)))
        e("s_add_u32 %s, %s, %s" % (sr(S_T1), sr(S_T1), sr(S_T2)))
        e("s_lshl_b32 %s, %s, 5" % (sr(S_T2), sr(S_X)))
        e("s_add_u32 %s, %s, %s" % (sr(S_T1), sr(S_T1), sr(S_T2)))
        acc = regs + 32
        for kq in range(8):
            e("s_waitcnt vmcnt(%d)" % (7 - kq))
            for i in range(4):
                r = regs + 4 * kq + i
                if kq == 0:
                    e("v_lshlrev_b32 v%d, 16, v%d" % (acc + 2 * i, r))
                    e("v_and_b32 v%d, 0xffff0000, v%d" % (acc + 2 * i + 1, r))
                else:
                    e("v_lshlrev_b32 v%d, 16, v%d" % (acc + 8, r))
                    e("v_and_b32 v%d, 0xffff0000, v%d" % (r, r))
                    e("v_add_f32 v%d, v%d, v%d" % (acc + 2 * i, acc + 2 * i, acc + 8))
                    e("v_add_f32 v%d, v%d, v%d" % (acc + 2 * i + 1, acc + 2 * i + 1, r))
        for i in range(4):
            e("v_cvt_pk_bf16_f32 v%d, v%d, v%d" % (4 + i, acc + 2 * i, acc + 2 * i + 1))
        e("buffer_store_dwordx4 v[4:7], v1, %s, %s offen %s" % (sr(SRD_OUT, 4), sr(S_T1), cfg.outflags))

    def head(ph):
        qbase = V_Q1 if ph == 0 else V_Q2
        stg = V_STG if ph == 0 else V_SA
        xacc = V_ACCQ if ph == 0 else V_ACC1
        A_AF2 = 224
        e("v_mov_b32 v%d, 0" % V_LSUM)
        e("v_mov_b32 v%d, 0" % V_LS2)
        wait_landed(1)
        a.extend(k_addr(SC_SLOT))
        a.extend(k_reads(A_KF))
        e("s_waitcnt lgkmcnt(0)")
        zo = ["v_mov_b32 v%d, 0" % (V_O + i) for i in range(64)]
        a.extend(gaps(qk_mfmas(V_SA, qbase, "0"), [zo[8 * g:8 * g + 8] for g in range(8)]))
        slot_adv(SC_SLOT, SC_SLOT, 1)
        wait_landed(3)
        a.extend(k_addr(SC_SLOT))
        slot_adv(SC_SLOT, SC_SLOT, 1)
        a.extend(v_addr(SC_SLOT, V_VB))
        a.extend(k_reads(A_KF))
        a.extend(v_reads(A_VF[0], False))
        slot_adv(SC_SLOT, SC_SLOT, 1)
        e("s_add_u32 %s, %s, 3" % (sr(SC_IDX), sr(SC_IDX)))
        a.extend(max_valu(V_SA))
        cross_half_max()
        for i in range(16):
            e("v_sub_f32 v%d, v%d, v%d" % (V_SA + i, V_SA + i, V_TMAX))
        e("v_sub_f32 v%d, 0, v%d" % (V_NEGM, V_TMAX))
        for i in range(1, 16):
            e("v_mov_b32 v%d, v%d" % (V_NEGM + i, V_NEGM))

        def nxt(dst, src):
            return ["s_add_u32 %s, %s, %d" % (sr(dst), sr(src), SLOT),
                    "s_cmp_lt_u32 %s, %d" % (sr(dst), RING),
                    "s_cselect_b32 %s, %s, 0" % (sr(dst), sr(dst))]

        def iteration(par, kind):
            scur = V_SA if par == 0 else V_SB
            snext = V_SB if par == 0 else V_SA
            ex = ["v_exp_f32 v%d, v%d" % (scur + i, scur + i) for i in range(16)]
            ad = ["v_add_f32 v%d, v%d, v%d" % ((V_LSUM, V_LS2)[i & 1], (V_LSUM, V_LS2)[i & 1], scur + i)
                  for i in range(16)]
            cv = ["v_cvt_pk_bf16_f32 v%d, v%d, v%d" % (V_PF + k, scur + 2 * k, scur + 2 * k + 1) for k in range(8)]
            pv = pv_mfmas(A_VF[par])
            rel = release_l(SC_IDX)
            e("s_waitcnt lgkmcnt(%d)" % (15 if kind == "full" else 0))
            if kind == "full":
                qk = qk_mfmas(snext, qbase, vr(V_NEGM, 16))
                kr = k_reads(A_KF)
                r = v_reads(A_VF[par ^ 1], False)
                mx = max_valu(snext)
                cmp_ = ["v_cmp_lt_f32 vcc, %s, v%d" % (sr(SC_T), V_TMAX)]
                b = nxt(SC_SLOT2, SC_SLOT)
                c_ = nxt(SC_SLOT, SC_SLOT2)
                idx2 = ["s_add_u32 %s, %s, 2" % (sr(SC_IDX), sr(SC_IDX))]
                ka = k_addr(SC_SLOT)
                va = v_addr(SC_SLOT2, V_VB)
                per = [
                    [ex[0], ex[1]] + wait_landed_l(2),
                    [ex[2], ex[3], cv[0], ka[0], b[0]],
                    [ex[4], ex[5], cv[1], ka[1], b[1]],
                    [ex[6], ex[7], cv[2], b[2], rel[0]],
                    [ex[8], ex[9], cv[3], va[0]],
                    [ex[10], ex[11], cv[4], c_[0]],
                    [ex[12], ex[13], cv[5], c_[1]],
                    [ex[14], ex[15], cv[6], cv[7], c_[2], "s_waitcnt lgkmcnt(0)"],
                    [rel[1]] + kr[0:3] + ad[0:2],
                    kr[3:6] + ad[2:4] + idx2,
                    kr[6:8] + r[0:1] + ad[4:6],
                    r[1:4] + ad[6:8] + mx[0:1],
                    r[4:7] + ad[8:10] + mx[1:2],
                    r[7:10] + ad[10:12] + mx[2:3],
                    r[10:13] + ad[12:14] + mx[3:5],
                    r[13:16] + ad[14:16] + mx[5:8] + cmp_,
                ]
                if cfg.sched == 2:
                    per[8] = [rel[1]] + kr[0:4] + ad[0:1]
                    per[9] = kr[4:8] + ad[1:2] + idx2
                    per[10] = r[0:3] + ad[2:4]
                    per[11] = r[3:6] + ad[4:7]
                    per[12] = r[6:9] + ad[7:9] + mx[0:1]
                    per[13] = r[9:12] + ad[9:11] + mx[1:3]
                    per[14] = r[12:15] + ad[11:13] + mx[3:5]
                    per[15] = r[15:16] + ad[13:16] + mx[5:8] + cmp_
                a.extend(gaps(qk + pv, per))
            else:
                g, tl = softmax_gaps(scur)
                if kind == "lastk":
                    a.extend(wait_landed_l(1) + v_addr(SC_SLOT, V_VB))
                    vrr = v_reads(A_VF[par ^ 1], False)
                    g = [l + vrr[2 * k:2 * k + 2] for k, l in enumerate(g)]
                    a.extend(gaps(qk_mfmas(snext, qbase, vr(V_NEGM, 16)), g))
                    a.extend(tl)
                    mx = max_valu(snext) + ["v_cmp_lt_f32 vcc, %s, v%d" % (sr(SC_T), V_TMAX)]
                    book = ["s_add_u32 %s, %s, 1" % (sr(SC_IDX), sr(SC_IDX))] + nxt(SC_SLOT, SC_SLOT)
                    e("s_waitcnt lgkmcnt(15)")
                    per = [[], [], [], mx[0:2], mx[2:4] + book[0:1], mx[4:6] + book[1:3], mx[6:8] + book[3:4],
                           mx[8:9]]
                    a.extend(gaps(pv, per))
                else:
                    for l in g:
                        a.extend(l)
                    a.extend(tl)
                    a.extend(rel)
                    a.extend(pv)
            if kind != "final":
                r_ = a.newlab("rare")
                b_ = a.newlab("back")
                e("s_cbranch_vccnz %s" % r_)
                a.lab(b_)
                rare.append((r_, b_, snext))

        def ch_mfmas(af, j):
            return ["%s %s, %s, %s, %s" % (
                MFMA, vr(xacc + 16 * db, 16), ar(af + (ks * 4 + db) * 4, 4),
                ar(A_XF[0] + (2 * j + ks) * 4, 4), vr(xacc + 16 * db, 16))
                for ks in range(2) for db in range(4)]

        def x_reads():
            if ph == 0:
                return k_addr(SC_SLOT2), k_reads(A_XF[0])
            return (["v_add_u32 v%d, %s, v%d" % (V_KA, sr(SC_SLOT2), V_L16)],
                    ["ds_read_b128 %s, v%d offset:%d" % (ar(A_XF[0] + 4 * s_, 4), V_KA, s_ * BLK) for s_ in range(8)])

        def ch_slot(pos, first=False, last=False):
            afp = A_AF[(pos - 1) & 1]
            afn = A_AF[pos & 1]
            nx = 3 if (pos == 0 and not (first and ph == 1)) else 0
            chk = wait_landed_l(nx + 1 + (1 if last else 0))
            wr = v_reads(afn, True)
            fill = []
            late = []
            if nx:
                ws = wave_slot(SC_SLOT2, 0)
                xa, xr = x_reads()
                adv3 = slot_adv_l(SC_SLOT, SC_SLOT, 3)
                pre = chk + ws + xa + adv3 + v_addr(SC_SLOT, V_WB)
                body = xr[0:6] + wr
                late6, late7 = xr[6:7], xr[7:8]
            else:
                pre = chk + v_addr(SC_SLOT, V_WB)
                body = wr
                late6, late7 = [], []
            post = nxt(SC_SLOT, SC_SLOT) + ["s_add_u32 %s, %s, %d" % (sr(SC_IDX), sr(SC_IDX), nx + 1)]
            if last:
                post += v_addr(SC_SLOT, V_WB) + v_reads(A_AF2, True) + nxt(SC_SLOT, SC_SLOT)
                post += ["s_add_u32 %s, %s, 1" % (sr(SC_IDX), sr(SC_IDX))]
            if first:
                zz = ["v_mov_b32 v%d, 0" % (xacc + i) for i in range(64)]
                a.extend(pre)
                k = 0
                for x_ in body + late6 + late7:
                    a.e(x_)
                    a.extend(zz[k:k + 2])
                    k += 2
                a.extend(zz[k:])
                a.extend(post)
                return
            mf = ch_mfmas(afp, (pos - 1) & 3)
            per = [[] for _ in range(8)]
            per[0] = pre
            n = len(body)
            for g in range(1, 7):
                per[g] = body[(n * (g - 1)) // 6:(n * g) // 6]
            per[3] = per[3] + late6 if False else per[3]
            per[4] = late6 + per[4]
            per[7] = late7 + post
            a.extend(gaps(mf, per))

        acts = []
        mask = [0]

        def at_pass(n, body):
            mask[0] |= 1 << n
            acts.append((n, body))

        if cfg.stamps:
            for nm in stl:
                if nm[0] == "ab"[ph] and nm[1:].isdigit():
                    at_pass(int(nm[1:]), lambda nm=nm: stamp(nm))
        if ph == 0:
            def nonce_issue():
                e("v_mov_b32 v1, 0")
                e("global_load_dwordx2 %s, v1, %s sc1" % (vr(V_NON, 2), sr(KA_DBG, 2)))

            def nonce_get():
                ok = a.newlab("nok")
                e("s_waitcnt vmcnt(0)")
                e("v_readfirstlane_b32 %s, v%d" % (sr(SC_NONCE), V_NON))
                e("v_readfirstlane_b32 %s, v%d" % (sr(SC_NONCE + 1), V_NON + 1))
                e("s_nop 3")
                e("s_cmp_lg_u32 %s, 0" % sr(SC_NONCE))
                e("s_cbranch_scc1 %s" % ok)
                get_nonce()
                a.lab(ok)
            if not cfg.noxchg:
                at_pass(1, nonce_issue)
                at_pass(6, nonce_get)
        else:
            def p1b():
                e("s_waitcnt vmcnt(0)")
                flago_off(SC_FOFF, 0, True)
                flag_store(SC_FOFF)
                if cfg.owarm:
                    for s_ in range(8):
                        e("buffer_load_dwordx4 %s, v%d, %s, %s offen offset:%d" % (
                            ar(192 + 4 * s_, 4), V_L16, sr(SRD_WS, 4), sr(SC_OOFF if s_ < 4 else SC_OOFF2),
                            (s_ & 3) * 1024))
            def p1nb():
                sk = a.newlab("nbsk")
                e("s_cmp_lg_u32 %s, 0" % sr(SC_O2ST))
                e("s_cbranch_scc1 %s" % sk)
                e("s_getreg_b32 %s, hwreg(HW_REG_IB_STS)" % sr(S_T1))
                e("s_and_b32 %s, %s, 0xc0000f" % (sr(S_T1), sr(S_T1)))
                e("s_cmp_eq_u32 %s, 0" % sr(S_T1))
                e("s_cbranch_scc0 %s" % sk)
                flago_off(SC_FOFF, 0, True)
                flag_store(SC_FOFF)
                e("s_mov_b32 %s, 1" % sr(SC_O2ST))
                a.lab(sk)

            def p1last():
                sk = a.newlab("nbsk")
                e("s_cmp_lg_u32 %s, 0" % sr(SC_O2ST))
                e("s_cbranch_scc1 %s" % sk)
                p1b()
                a.lab(sk)
            if not cfg.noxchg:
                if cfg.nbflag:
                    e("s_mov_b32 %s, 0" % sr(SC_O2ST))
                    at_pass(1, p1nb)
                    at_pass(2, p1nb)
                    at_pass(3, p1last)
                else:
                    at_pass(cfg.flagpass, p1b)
        disp = a.newlab("evdisp")

        def pass_end():
            e("s_add_u32 %s, %s, 1" % (sr(SC_IT), sr(SC_IT)))
            stub = a.newlab("evstub")
            back = a.newlab("evback")
            e("s_bitcmp1_b32 %s, %s" % (sr(SC_EVM), sr(SC_IT)))
            e("s_cbranch_scc1 %s" % stub)
            a.lab(back)
            stubs.append((stub, back, disp))

        def dispatcher(disp=disp, acts=acts):
            a.lab(disp)
            for n, body in acts:
                sk = a.newlab("noev")
                e("s_cmp_eq_u32 %s, %d" % (sr(SC_IT), n))
                e("s_cbranch_scc0 %s" % sk)
                body()
                a.lab(sk)
            e("s_setpc_b64 %s" % sr(SC_RET2, 2))
        dispatchers.append(dispatcher)

        e("s_mov_b32 %s, 0x%x" % (sr(SC_EVM), mask[0]))
        e("s_mov_b32 %s, 0" % sr(SC_IT))
        lp = a.newlab("attn")
        a.lab(lp)
        for pos in range(4):
            iteration(0, "full")
            iteration(1, "full")
            if pos == 0:
                f1 = a.newlab("chfirst")
                fb = a.newlab("chback")
                e("s_cmp_eq_u32 %s, 0" % sr(SC_IT))
                e("s_cbranch_scc1 %s" % f1)
                ch_slot(0)
                a.lab(fb)
                firsts.append((f1, fb, ch_slot))
            else:
                ch_slot(pos)
            pass_end()
        e("s_cmp_lt_u32 %s, 12" % sr(SC_IT))
        e("s_cbranch_scc1 %s" % lp)
        for pos in range(3):
            iteration(0, "full")
            iteration(1, "full")
            ch_slot(pos, last=(pos == 2))
            pass_end()
        e("s_waitcnt lgkmcnt(0)")
        g, tl = softmax_gaps(V_SA)
        a.extend(gaps(qk_mfmas(V_SB, qbase, vr(V_NEGM, 16)), g))
        a.extend(tl)
        a.extend(release_l(SC_IDX))
        mx = max_valu(V_SB) + ["v_cmp_lt_f32 vcc, %s, v%d" % (sr(SC_T), V_TMAX)]
        a.extend(gaps(pv_mfmas(A_VF[0]), [[], [], [], mx[0:2], mx[2:4], mx[4:6], mx[6:8], mx[8:9]]))
        r_ = a.newlab("rare")
        b_ = a.newlab("back")
        e("s_cbranch_vccnz %s" % r_)
        a.lab(b_)
        rare.append((r_, b_, V_SB))
        g, tl = softmax_gaps(V_SB)
        c14 = ch_mfmas(A_AF[0], 2)
        a.extend(gaps(c14, g))
        a.extend(tl)
        a.extend(ch_mfmas(A_AF2, 3))
        wait_landed(1)
        a.extend(v_addr(SC_SLOT, V_VB))
        a.extend(v_reads(A_VF[1], False))
        e("s_add_u32 %s, %s, 1" % (sr(SC_IDX), sr(SC_IDX)))
        a.extend(nxt(SC_SLOT, SC_SLOT))
        pvl = pv_mfmas(A_VF[1])
        e("s_waitcnt lgkmcnt(8)")
        a.extend(pvl[0:4])
        e("s_waitcnt lgkmcnt(0)")
        a.extend(release_l(SC_IDX))
        a.extend(pvl[4:8])
        stamp("f%d" % ph)
        e("v_add_f32 v%d, v%d, v%d" % (V_LSUM, V_LSUM, V_LS2))
        e("v_mov_b32 v%d, v%d" % (V_LS2, V_LSUM))
        e("s_nop 1")
        e("v_permlane32_swap_b32 v%d, v%d" % (V_LSUM, V_LS2))
        e("s_nop 1")
        e("v_add_f32 v%d, v%d, v%d" % (V_LSUM, V_LSUM, V_LS2))
        e("v_rcp_f32 v%d, v%d" % (V_ALPHA, V_LSUM))
        if ph == 0:
            q_convert(V_Q2)
        e("s_lshl_b32 %s, %s, 2" % (sr(S_T1), sr(S_QUAD)))
        e("s_add_u32 %s, %s, %s" % (sr(S_T1), sr(S_T1), sr(S_M)))
        e("s_add_u32 %s, %s, %d" % (sr(S_T1), sr(S_T1), ph * 256))
        e("s_mul_i32 %s, %s, 24576" % (sr(S_T1), sr(S_T1)))
        e("s_lshl_b32 %s, %s, 13" % (sr(S_T2), sr(S_WAVE)))
        e("s_add_u32 %s, %s, %s" % (sr(S_T1), sr(S_T1), sr(S_T2)))
        e("s_add_u32 %s, %s, %d" % (sr(SC_OOFF), sr(S_T1), WS_OBUF))
        e("s_add_u32 %s, %s, 4096" % (sr(SC_OOFF2), sr(SC_OOFF)))
        e("s_nop 3")
        if cfg.pkmul:
            e("v_mov_b32 v2, v%d" % V_ALPHA)
            e("v_mov_b32 v3, v%d" % V_ALPHA)
        for s in range(8):
            for k in range(4):
                i = 4 * s + k
                if cfg.pkmul:
                    e("v_pk_mul_f32 %s, %s, v[2:3]" % (vr(V_O + 2 * i, 2), vr(V_O + 2 * i, 2)))
                else:
                    e("v_mul_f32 v%d, v%d, v%d" % (V_O + 2 * i, V_O + 2 * i, V_ALPHA))
                    e("v_mul_f32 v%d, v%d, v%d" % (V_O + 2 * i + 1, V_O + 2 * i + 1, V_ALPHA))
                e("v_cvt_pk_bf16_f32 v%d, v%d, v%d" % (stg + i, V_O + 2 * i, V_O + 2 * i + 1))
            e("buffer_store_dwordx4 %s, v%d, %s, %s offen offset:%d %s" % (
                vr(stg + 4 * s, 4), V_L16, sr(SRD_WS, 4), sr(SC_OOFF if s < 4 else SC_OOFF2),
                (s & 3) * 1024, cfg.stflags))
        if ph == 1:
            partial_store(V_ACC1, 0)

    stubs = []
    firsts = []

    def ccnt(name):
        if cfg.stamps:
            for k, nm in enumerate(stl):
                if nm == name:
                    e("s_mov_b32 %s, %s" % (sr(S_ST + 2 * k), sr(SC_SWC)))
    ccnt("cq")
    head(0)
    for i in range(32):
        e("v_accvgpr_write_b32 a%d, v%d" % (A_XF[0] + i, V_STG + i))
    stamp("h0")
    ccnt("c0")
    head(1)
    stamp("h1")
    ccnt("c1")

    def task(acc, bfrag, first, hooks):
        if first:
            wait_landed(1)
        a.extend(v_addr(SC_SLOT, V_WB))
        a.extend(v_reads(A_AF[0], True))
        e("s_add_u32 %s, %s, 1" % (sr(SC_IDX), sr(SC_IDX)))
        slot_adv(SC_SLOT, SC_SLOT, 1)
        fullwait = True
        for cidx in range(16):
            r, j = divmod(cidx, 4)
            mf = []
            for ks in range(2):
                for db in range(4):
                    cin = "0" if (cidx == 0 and ks == 0) else vr(acc + 16 * db, 16)
                    mf.append("%s %s, %s, %s, %s" % (
                        MFMA, vr(acc + 16 * db, 16), ar(A_AF[cidx & 1] + (ks * 4 + db) * 4, 4),
                        bfrag(r, 2 * j + ks), cin))
            per = [[] for _ in range(8)]
            if cidx == 15:
                fullwait = True
            if fullwait:
                e("s_waitcnt lgkmcnt(0)")
            if cidx < 15:
                wr = v_reads(A_AF[(cidx + 1) & 1], True)
                adv = ["s_add_u32 %s, %s, 1" % (sr(SC_IDX), sr(SC_IDX))] + slot_adv_l(SC_SLOT, SC_SLOT, 1)
                chk = wait_landed_l(1) if first else []
                per[0] = chk + v_addr(SC_SLOT, V_WB) + wr[0:2]
                per[1] = wr[2:4] + adv[0:2]
                per[2] = wr[4:6] + adv[2:4]
                per[3] = wr[6:8] + adv[4:5]
                per[4] = wr[8:10]
                per[5] = wr[10:12]
                per[6] = wr[12:14]
                per[7] = wr[14:16]
            if not fullwait:
                for g in (1, 3, 5):
                    per[g] = per[g] + ["s_waitcnt lgkmcnt(12)"]
                e("s_waitcnt lgkmcnt(12)")
            a.extend(gaps(mf, per))
            fullwait = False
            if cfg.stamps:
                stamp("k%d" % cidx)
            if hooks.get(cidx):
                hooks[cidx]()
                fullwait = True
                if cfg.stamps:
                    stamp("l%d" % cidx)

    ACC2 = V_O

    flago_off(SC_FOFF0, 1, False)
    e("v_min_u32 v1, 3, v0")
    e("v_lshlrev_b32 v1, 3, v1")
    e("buffer_load_dwordx2 %s, v1, %s, %s offen sc1" % (vr(V_NON, 2), sr(SRD_WS, 4), sr(SC_FOFF0)))
    e("s_mov_b32 %s, 0" % sr(SC_O2ST))

    def hk_early():
        e("s_waitcnt vmcnt(0)")
        flago_off(SC_FOFF, 1, True)
        flag_store(SC_FOFF)
        flagp_off(SC_FOFF, 0, True)
        flag_store(SC_FOFF)
        if cfg.noxchg:
            return
        sk = a.newlab("o2sk")
        e("v_cmp_ne_u32 vcc, %s, v%d" % (sr(SC_NONCE), V_NON))
        e("v_cmp_ne_u32 s[34:35], %s, v%d" % (sr(SC_NONCE + 1), V_NON + 1))
        e("s_lshl_b64 s[28:29], 1, %s" % sr(S_M))
        e("s_nop 2")
        e("s_or_b64 vcc, vcc, s[34:35]")
        e("s_and_b64 vcc, vcc, 15")
        e("s_andn2_b64 vcc, vcc, s[28:29]")
        e("s_cbranch_scc1 %s" % sk)
        load_o(1, A_OF2, [1, 2, 3])
        e("s_mov_b32 %s, 1" % sr(SC_O2ST))
        a.lab(sk)

    def hk_after_round0():
        if not cfg.noxchg:
            sk = a.newlab("o2ok")
            e("s_cmp_lg_u32 %s, 0" % sr(SC_O2ST))
            e("s_cbranch_scc1 %s" % sk)
            flag_poll(SC_FOFF0, 4)
            load_o(1, A_OF2, [1, 2, 3])
            a.lab(sk)
        e("s_waitcnt vmcnt(16)")
        stamp("t1")

    task(ACC2, lambda r, s: vr(V_SA + 4 * s, 4) if r == 0 else ar(A_OF2[r] + 4 * s, 4), True,
         {0: hk_early, 3: hk_after_round0, 7: lambda: e("s_waitcnt vmcnt(8)"), 11: lambda: e("s_waitcnt vmcnt(0)")})
    e("s_nop 7")
    partial_store(ACC2, 1)
    stamp("t2")
    e("s_waitcnt vmcnt(0)")
    stamp("w0")
    flagp_off(SC_FOFF, 1, True)
    flag_store(SC_FOFF)
    reduce(0, 160)
    stamp("r0")
    reduce(1, 160)
    e("s_waitcnt vmcnt(0)")
    stamp("r1")

    a.lab("L_fin")
    savef = a.filt
    a.filt = None
    if cfg.dbgstamps:
        dsk = a.newlab("dbgsk")
        e("s_waitcnt lgkmcnt(0)")
        e("s_mov_b32 s28, -1")
        e("s_cmp_eq_u32 s2, 0")
        e("s_cselect_b32 s28, 0, s28")
        e("s_cmp_eq_u32 s2, 129")
        e("s_cselect_b32 s28, 1, s28")
        e("s_cmp_eq_u32 s28, -1")
        e("s_cbranch_scc1 %s" % dsk)
        e("s_cmp_eq_u32 %s, 0" % sr(S_WAVE))
        e("s_cbranch_scc1 %s" % (dsk + "a"))
        e("s_cmp_eq_u32 %s, 3" % sr(S_WAVE))
        e("s_cbranch_scc0 %s" % dsk)
        e("s_cmp_eq_u32 s28, 0")
        e("s_cbranch_scc0 %s" % dsk)
        e("s_mov_b32 s28, 2")
        a.lab(dsk + "a")
        e("s_lshl_b32 s28, s28, 4")
        e("s_add_u32 s28, s28, 16")
        e("v_mov_b32 v1, s28")
        for j in range(4):
            e("s_sub_u32 s29, s%d, s%d" % (S_ST + 2 * (j + 1) + (2 * 3 if j == 3 else 0), S_ST))
            e("v_mov_b32 v%d, s29" % (4 + j))
        e("s_mov_b64 exec, 1")
        e("global_store_dwordx4 v1, v[4:7], %s" % sr(KA_DBG, 2))
        e("s_waitcnt vmcnt(0)")
        a.lab(dsk)
        e("s_branch L_end")
    if cfg.stamps:
        e("s_waitcnt lgkmcnt(0)")
        for k, nm in enumerate(stl):
            if nm == "loc":
                e("s_mov_b32 %s, %s" % (sr(S_ST + 2 * k), sr(SC_LOCAL)))
        e("s_lshl_b32 s28, s2, 9")
        e("s_lshl_b32 s29, %s, 7" % sr(S_WAVE))
        e("s_add_u32 s28, s28, s29")
        e("s_add_u32 s28, s28, 0x%x" % WS_STAMP)
        e("v_mov_b32 v1, s28")
        e("s_getreg_b32 s30, hwreg(HW_REG_XCC_ID)")
        e("s_mov_b64 exec, 1")
        for k in range(4):
            for j in range(4):
                e("v_mov_b32 v%d, s%d" % (4 + j, S_ST + 4 * k + j))
            e("global_store_dwordx4 v1, v[4:7], %s offset:%d" % (sr(KA_WS, 2), 16 * k))
            e("s_waitcnt vmcnt(0)")
        e("v_mov_b32 v4, s30")
        e("global_store_dword v1, v4, %s offset:64" % sr(KA_WS, 2))
        e("s_waitcnt vmcnt(0)")
    a.lab("L_end")
    e("s_endpgm")
    a.filt = savef

    for r, b, sn in rare:
        rare_path(r, b, sn)
    for d in dispatchers:
        d()
    for stub, back, disp in stubs:
        a.lab(stub)
        e("s_call_b64 %s, %s" % (sr(SC_RET2, 2), disp))
        e("s_branch %s" % back)
    for f1, fb, fn in firsts:
        a.lab(f1)
        fn(0, first=True)
        e("s_branch %s" % fb)
    for slow, back in slowwaits:
        a.lab(slow)
        if cfg.stamps:
            e("s_add_u32 %s, %s, 1" % (sr(SC_SWC), sr(SC_SWC)))
        e("ds_read_b32 v%d, v%d" % (V_LRD, V_LADDR))
        e("s_waitcnt lgkmcnt(0)")
        e("v_readfirstlane_b32 %s, v%d" % (sr(SC_L), V_LRD))
        e("s_sub_u32 %s, %s, 1" % (sr(S_SPIN), sr(S_SPIN)))
        e("s_cmp_eq_u32 %s, 0" % sr(S_SPIN))
        e("s_cbranch_scc1 L_end")
        e("s_cmp_lt_u32 %s, %s" % (sr(SC_L), sr(SC_NEED)))
        if cfg.psleep:
            e("s_cbranch_scc0 %s" % back)
            e("s_sleep %d" % cfg.psleep)
            e("s_branch %s" % slow)
        else:
            e("s_cbranch_scc1 %s" % slow)
            e("s_branch %s" % back)
    txt = a.text()

    kd = []
    kd.append('.section .rodata,"a"')
    kd.append(".p2align 6")
    kd.append(".amdhsa_kernel %s_kernel" % NAME)
    kd.append("  .amdhsa_next_free_vgpr 512")
    kd.append("  .amdhsa_next_free_sgpr 102")
    kd.append("  .amdhsa_accum_offset 256")
    kd.append("  .amdhsa_group_segment_fixed_size 0")
    kd.append("  .amdhsa_kernarg_size 104")
    kd.append("  .amdhsa_user_sgpr_count 2")
    kd.append("  .amdhsa_user_sgpr_kernarg_segment_ptr 1")
    kd.append("  .amdhsa_system_sgpr_workgroup_id_x 1")
    kd.append(".end_amdhsa_kernel")
    return "\n".join(hdr) + "\n" + txt + "\n".join(kd) + "\n"


if __name__ == "__main__":
    import argparse
    ap = argparse.ArgumentParser()
    ap.add_argument("-o", default="cdna_kernels/%s.s" % NAME)
    ap.add_argument("--stamps", action="store_true")
    ap.add_argument("--set", action="append", default=[])
    args = ap.parse_args()
    cfg = Cfg()
    cfg.stamps = args.stamps
    for kv in args.set:
        k, v = kv.split("=", 1)
        cur = getattr(cfg, k)
        if isinstance(cur, bool):
            v = v in ("1", "True", "true")
        elif isinstance(cur, int):
            v = int(v)
        elif isinstance(cur, float):
            v = float(v)
        setattr(cfg, k, v)
    open(args.o, "w").write(build(cfg))
    print("wrote", args.o)
```

```python
import math
import struct

NAME = "concat_heads__mha_block_cached__gqa_block_cached__near_ridge"


def f32bits(x):
    return struct.unpack("<I", struct.pack("<f", x))[0]


class Cfg:
    NS = 18
    NQ = 11
    E = 7
    D = 5
    deven = 5
    dodd = 5
    polllead = 3
    stamps = False
    T_LOG2 = 8.0
    kvflags = "nt"
    wflags = ""
    woflags = "nt"
    xflags = ""
    kvsame = False
    noload = False
    nocompute = False
    noxchg = False
    stamplist = "start,qp,h0,h1,t1,t2,r0,r1"
    po_base = 10
    po_mul = 4
    pft = 20
    prefetch = True
    ytype = 1
    spin = 0x80000
    local = False
    psleep = 0
    dumpq = False
    krot = 0
    perm = True
    skipo = False
    skipwo = False
    skipq2 = False
    wsbase = 0
    oflags = "sc1"
    wo2flags = "nt"
    wq2flags = ""
    x2flags = ""
    stflags = "sc1"
    flagpass = 2
    mix = 0
    dbgstamps = False
    ablate = ""


BLK = 1088
SLOT = 8 * BLK
NQT = 28
WS_FLAGO = 0
WS_FLAGP = 65536
WS_FLAGI = 131072
WS_OBUF = 1 << 20
WS_PBUF = 16 << 20
WS_STAMP = 28 << 20
WS_USED = 32 << 20


def vr(base, n=1):
    return "v%d" % base if n == 1 else "v[%d:%d]" % (base, base + n - 1)


def ar(base, n=1):
    return "a%d" % base if n == 1 else "a[%d:%d]" % (base, base + n - 1)


def sr(base, n=1):
    return "s%d" % base if n == 1 else "s[%d:%d]" % (base, base + n - 1)


class Asm:
    def __init__(self):
        self.L = []
        self.nlab = 0
        self.filt = None

    def e(self, s):
        if self.filt and self.filt(s):
            return
        self.L.append("  " + s)

    def lab(self, name):
        self.L.append(name + ":")

    def newlab(self, base):
        self.nlab += 1
        return "L%s_%d" % (base, self.nlab)

    def extend(self, lst):
        for s in lst:
            if s.endswith(":"):
                self.lab(s[:-1])
            else:
                self.e(s)

    def text(self):
        return "\n".join(self.L) + "\n"


def gaps(primary, per_gap):
    out = []
    for p, f in zip(primary, per_gap):
        out.append(p)
        out.extend(f)
    return out


S_WG = 2
S_WAVE = 3
S_X, S_M, S_G8, S_QUAD, S_H = 20, 21, 22, 24, 25
S_SPIN = 26
S_TAU = 27
S_T0, S_T1, S_T2, S_T3 = 28, 29, 30, 31
S_RET = 32
KA_X, KA_K, KA_V, KA_WQ, KA_WO = 36, 38, 40, 42, 44
S_B4, S_BR = 46, 47
KA_OUT, KA_DBG, KA_WS = 56, 58, 60
SL_ISS, SL_PUB, SL_FMIN, SL_SLOT, SL_NEED, SL_OFF, SL_OFF2, SL_CNT, SL_CNT2, SL_KOFF, SL_VOFF, SL_ROT = range(4, 16)
SL_RET2 = 16
SL_XB, SL_WB = 18, 19
SL_NADJ = 23
SL_QSLOT = 48
SL_EVM = 49
SL_NONCE = 34
SL_THR = 50
SL_WFC = 51
SL_RND = 52
SL_PP, SL_JJ, SL_MM = 53, 54, 55
SL_R0 = 62
SRD_X, SRD_K, SRD_V, SRD_WQ, SRD_WO = 64, 68, 72, 76, 80
SC_L, SC_SLOT, SC_IDX, SC_IT, SC_T, SC_NEED, SC_SLOT2, SC_ADJ = range(4, 12)
SC_OOFF, SC_OOFF2, SC_FOFF, SC_POFF = 12, 13, 14, 15
SC_NONCE = 16
SC_RET2 = 18
SC_WRAP, SC_LOCAL, SC_XCC, SC_IDOFF, SC_EVM, SC_PADJ, SC_SAVE, SC_SWC = 72, 73, 74, 75, 76, 77, 78, 79
SRD_WS, SRD_OUT = 64, 68
S_ST = 84

V_KB = 8
V_VB = 10
V_WB = 11
V_KA = 12
V_VA = 14
V_L16 = 15
V_LSUM, V_LS2, V_TMAX, V_ALPHA, V_FV, V_LADDR, V_FADDR, V_LRD = range(17, 25)
V_VB2 = 25
V_NON = 26
V_PF = 32
V_NEGM = 48
V_O = 64
V_SA = 128
V_SB = 144
V_ACCQ = 160
V_Q2 = 160
V_STG = 192
V_Q1 = 224
V_ACC1 = 192
A_AF = [0, 32]
A_KF = 64
A_VF = [96, 128]
A_XF = [160, 192]
A_OF2 = [None, 64, 96, 128]
MFMA = "v_mfma_f32_32x32x16_bf16"


def build(cfg):
    NS, D, NQ, E = cfg.NS, cfg.D, cfg.NQ, cfg.E
    assert NS == NQ + E and NS % 2 == 0 and (NQ + 3) % 2 == 0
    RING = NS * SLOT
    FLAG_L = RING
    FLAG_F = RING + 16
    LDS_BYTES = RING + 64
    a = Asm()
    e = a.e
    hdr = []
    hdr.append("; @launch grid=(256,1,1) block=(256,1,1) lds=%d" % LDS_BYTES)
    hdr.append('.amdgcn_target "amdgcn-amd-amdhsa--gfx950"')
    hdr.append(".text")
    hdr.append(".globl %s_kernel" % NAME)
    hdr.append(".p2align 8")
    hdr.append(".type %s_kernel,@function" % NAME)
    hdr.append("%s_kernel:" % NAME)
    stl = cfg.stamplist.split(",")

    def stamp(name):
        if cfg.stamps:
            for k, nm in enumerate(stl):
                if nm == name:
                    e("s_memrealtime %s" % sr(S_ST + 2 * k, 2))
                if nm == name + ".c":
                    e("s_memtime %s" % sr(S_ST + 2 * k, 2))

    def cnt(name):
        if cfg.stamps:
            for k, nm in enumerate(stl):
                if nm == name:
                    e("s_mov_b32 %s, %s" % (sr(S_ST + 2 * k), sr(SL_WFC)))

    e("s_cmp_ge_u32 s2, 256")
    e("s_cbranch_scc1 L_end")
    e("s_load_dwordx16 s[36:51], s[0:1], 0")
    e("s_load_dwordx4 s[52:55], s[0:1], 64")
    e("s_load_dwordx4 s[56:59], s[0:1], 80")
    e("s_load_dwordx2 s[60:61], s[0:1], 96")
    stamp("start")
    e("v_lshrrev_b32 v1, 6, v0")
    e("v_and_b32 v0, 63, v0")
    e("s_and_b32 %s, s2, 7" % sr(S_X))
    e("v_readfirstlane_b32 %s, v1" % sr(S_WAVE))
    e("s_lshr_b32 s28, s2, 3")
    e("s_and_b32 %s, s28, 3" % sr(S_M))
    e("s_lshr_b32 %s, s28, 2" % sr(S_G8))
    e("s_lshl_b32 %s, %s, 2" % (sr(S_H), sr(S_X)))
    e("s_add_u32 %s, %s, %s" % (sr(S_H), sr(S_H), sr(S_M)))
    e("s_lshl_b32 %s, %s, 3" % (sr(S_QUAD), sr(S_G8)))
    e("s_add_u32 %s, %s, %s" % (sr(S_QUAD), sr(S_QUAD), sr(S_X)))
    e("s_mov_b32 %s, 0x%x" % (sr(S_SPIN), cfg.spin))
    e("s_lshl_b32 %s, %s, 1" % (sr(S_TAU), sr(S_M)))
    e("s_and_b32 s29, %s, 1" % sr(S_X))
    e("s_add_u32 %s, %s, s29" % (sr(S_TAU), sr(S_TAU)))
    e("s_mul_i32 %s, %s, %d" % (sr(S_TAU), sr(S_TAU), cfg.po_mul))
    e("s_lshr_b32 %s, %s, 3" % (sr(S_TAU), sr(S_TAU)))
    e("s_add_u32 %s, %s, %d" % (sr(S_TAU), sr(S_TAU), cfg.po_base))
    e("s_cmp_lt_u32 %s, 4" % sr(S_G8))
    e("s_waitcnt lgkmcnt(0)")
    for k in range(10):
        e("s_cselect_b32 s%d, s%d, s%d" % (36 + k, 36 + k, 46 + k))
    e("s_and_b32 %s, %s, 3" % (sr(S_B4), sr(S_G8)))
    e("s_lshr_b32 %s, %s, 2" % (sr(S_BR), sr(S_G8)))
    e("s_cmp_eq_u32 %s, 3" % sr(S_WAVE))
    e("s_cbranch_scc0 L_compute")

    def srd(dst, ptr, nbytes):
        e("s_mov_b32 %s, %s" % (sr(dst), sr(ptr)))
        e("s_mov_b32 %s, %s" % (sr(dst + 1), sr(ptr + 1)))
        e("s_mov_b32 %s, 0x%x" % (sr(dst + 2), nbytes))
        e("s_mov_b32 %s, 0x20000" % sr(dst + 3))

    a.lab("L_loader")
    e("s_setprio 3")
    LV_K, LV_V, LV_X, LV_WQ, LV_WO, LV_T, LV_LADDR, LV_FADDR, LV_F = 8, 12, 16, 20, 24, 28, 29, 30, 32
    LV_O, LV_FL, LV_NON, LV_FA = 36, 200, 202, 204
    BIAS = 4096
    NB_X, NB_KV, NB_W = 8 * 96 * 512 * 2, 8 * 32 * 1024 * 128 * 2, 512 * 4096 * 2

    def srdb(dst, ptr, nbytes):
        e("s_sub_u32 %s, %s, %d" % (sr(dst), sr(ptr), BIAS))
        e("s_subb_u32 %s, %s, 0" % (sr(dst + 1), sr(ptr + 1)))
        e("s_mov_b32 %s, 0x%x" % (sr(dst + 2), nbytes + BIAS))
        e("s_mov_b32 %s, 0x20000" % sr(dst + 3))

    e("v_lshrrev_b32 v1, 4, v0")
    e("v_and_b32 v2, 15, v0")
    e("v_xor_b32 v3, v2, v1")
    e("v_lshlrev_b32 v3, 4, v3")
    e("v_lshlrev_b32 v2, 4, v2")
    e("v_lshlrev_b32 v4, 12, v1")
    e("v_lshlrev_b32 v5, 15, v1")
    e("v_lshlrev_b32 v6, 10, v1")

    def lane_offs(dst, rowpart, colpart, rs):
        e("v_add_u32 v%d, v%d, v%d" % (dst, rowpart, colpart))
        for b in range(3, 0, -1):
            e("v_add_u32 v%d, %d, v%d" % (dst + b, BIAS + b * (rs - BLK), dst))
        e("v_add_u32 v%d, %d, v%d" % (dst, BIAS, dst))

    srdb(SRD_X, KA_X, NB_X)
    srdb(SRD_WQ, KA_WQ, NB_W)
    lane_offs(LV_X, 4, 3, 1024)
    lane_offs(LV_WQ, 5, 2, 8192)
    e("s_getreg_b32 %s, hwreg(HW_REG_XCC_ID)" % sr(SL_THR))
    e("s_and_b32 %s, %s, 1" % (sr(SL_THR), sr(SL_THR)))
    if cfg.deven < cfg.dodd:
        e("s_xor_b32 %s, %s, 1" % (sr(SL_THR), sr(SL_THR)))
    e("v_mov_b32 v%d, %d" % (LV_LADDR, FLAG_L))
    e("v_mov_b32 v%d, %d" % (LV_FADDR, FLAG_F))
    e("v_mov_b32 v%d, 0" % LV_T)
    e("ds_write_b32 v%d, v%d" % (LV_LADDR, LV_T))
    e("s_mov_b32 %s, 0" % sr(SL_ISS))
    e("s_mov_b32 %s, 0" % sr(SL_PUB))
    e("s_mov_b32 %s, 0" % sr(SL_FMIN))
    e("s_mov_b32 %s, 0" % sr(SL_SLOT))
    e("s_mov_b32 %s, -1" % sr(SL_NEED))
    e("s_mov_b32 %s, 0" % sr(SL_WFC))
    e("s_add_u32 %s, %s, %s" % (sr(SL_ROT), sr(S_B4), sr(S_M)))
    e("s_and_b32 %s, %s, 3" % (sr(SL_ROT), sr(SL_ROT)))
    if cfg.noload:
        e("v_mov_b32 v%d, 100000" % LV_T)
        e("s_waitcnt lgkmcnt(0)")
        e("ds_write_b32 v%d, v%d" % (LV_LADDR, LV_T))
        e("s_waitcnt lgkmcnt(0)")
        e("s_barrier")
        e("s_branch L_fin")

    ool = []

    def publish_nb():
        e("s_getreg_b32 %s, hwreg(HW_REG_IB_STS)" % sr(S_T0))
        e("s_lshr_b32 %s, %s, 18" % (sr(S_T1), sr(S_T0)))
        e("s_and_b32 %s, %s, 15" % (sr(S_T0), sr(S_T0)))
        e("s_and_b32 %s, %s, 0x30" % (sr(S_T1), sr(S_T1)))
        e("s_add_u32 %s, %s, %s" % (sr(S_T0), sr(S_T0), sr(S_T1)))
        e("s_add_u32 %s, %s, 7" % (sr(S_T0), sr(S_T0)))
        e("s_lshr_b32 %s, %s, 3" % (sr(S_T0), sr(S_T0)))
        e("s_sub_i32 %s, %s, %s" % (sr(SL_PUB), sr(SL_ISS), sr(S_T0)))
        e("v_mov_b32 v%d, %s" % (LV_T, sr(SL_PUB)))
        e("ds_write_b32 v%d, v%d" % (LV_LADDR, LV_T))

    def issue_tile(srdreg, voff, rs, flags, wrap, nowait=False, check=True):
        if check:
            e("s_cmp_ge_i32 %s, %s" % (sr(SL_FMIN), sr(SL_NEED)))
            slow = a.newlab("lslow")
            ok = a.newlab("ok")
            e("s_cbranch_scc0 %s" % slow)
            a.lab(ok)
            ool.append((slow, ok))

        def ld(b):
            e("buffer_load_dwordx4 v%d, %s, %s offen offset:%d %s lds" % (
                voff + (b & 3), sr(srdreg, 4), sr(SL_OFF if b < 4 else SL_OFF2), (b & 3) * BLK, flags))
        e("s_mov_b32 m0, %s" % sr(SL_SLOT))
        e("s_add_u32 %s, %s, %d" % (sr(SL_OFF2), sr(SL_OFF), 16 * rs))
        ld(0)
        ld(1)
        ld(2)
        e("s_add_u32 %s, %s, 1" % (sr(SL_ISS), sr(SL_ISS)))
        ld(3)
        e("s_add_u32 m0, %s, %d" % (sr(SL_SLOT), 4 * BLK))
        e("s_add_u32 %s, %s, %d" % (sr(SL_SLOT), sr(SL_SLOT), SLOT))
        ld(4)
        e("s_cmp_lt_u32 %s, %d" % (sr(SL_SLOT), wrap))
        e("s_cselect_b32 %s, %s, 0" % (sr(SL_SLOT), sr(SL_SLOT)))
        ld(5)
        e("s_sub_i32 %s, %s, %s" % (sr(SL_NEED), sr(SL_ISS), sr(SL_NADJ)))
        ld(6)
        if cfg.deven != cfg.dodd:
            e("s_cmp_eq_u32 %s, 0" % sr(SL_THR))
        ld(7)
        if not nowait:
            dmax, dmin = max(cfg.deven, cfg.dodd), min(cfg.deven, cfg.dodd)
            e("s_waitcnt vmcnt(%d)" % (8 * dmax))
            if dmin != dmax:
                sk = a.newlab("thr")
                e("s_cbranch_scc1 %s" % sk)
                e("s_waitcnt vmcnt(%d)" % (8 * dmin))
                a.lab(sk)
            publish_nb()

    def qp_round(first_nowait=0):
        n = 0

        def after():
            if first_nowait and n == first_nowait:
                e("s_waitcnt lgkmcnt(0)")
                e("s_barrier")
        for w in range(3):
            e("s_add_u32 %s, %s, %d" % (sr(SL_OFF), sr(SL_XB), w * 32 * 1024))
            issue_tile(SRD_X, LV_X, 1024, cfg.xflags, NQ * SLOT, nowait=(n < first_nowait))
            n += 1
            after()
        for j in range(4):
            e("s_add_u32 %s, %s, %d" % (sr(SL_OFF), sr(SL_WB), j * 32 * 8192))
            issue_tile(SRD_WQ, LV_WQ, 8192, cfg.wflags, NQ * SLOT, nowait=(n < first_nowait))
            n += 1
            after()

    def qp_bases(ph, rnd):
        e("s_add_u32 %s, %s, %s" % (sr(S_T1), sr(SL_ROT), sr(rnd)))
        e("s_and_b32 %s, %s, 3" % (sr(S_T1), sr(S_T1)))
        e("s_lshl_b32 %s, %s, 8" % (sr(S_T2), sr(S_T1)))
        e("s_mul_i32 %s, %s, %d" % (sr(SL_XB), sr(S_B4), 96 * 1024))
        e("s_add_u32 %s, %s, %s" % (sr(SL_XB), sr(SL_XB), sr(S_T2)))
        if ph:
            e("s_add_u32 %s, %s, %d" % (sr(SL_XB), sr(SL_XB), 4 * 96 * 1024))
        e("s_lshl_b32 %s, %s, 20" % (sr(S_T2), sr(S_T1)))
        e("s_lshl_b32 %s, %s, 8" % (sr(SL_WB), sr(S_H)))
        e("s_add_u32 %s, %s, %s" % (sr(SL_WB), sr(SL_WB), sr(S_T2)))

    kvf = "" if cfg.kvsame else cfg.kvflags
    e("s_mov_b32 %s, %d" % (sr(SL_NADJ), NQ - 1))
    e("s_mov_b32 %s, 0" % sr(SL_CNT))
    qp_bases(0, SL_CNT)
    qp_round(first_nowait=D)
    srdb(SRD_K, KA_K, NB_KV)
    srdb(SRD_V, KA_V, NB_KV)
    srdb(SRD_WO, KA_WO, NB_W)
    lane_offs(LV_K, 6, 3, 256)
    lane_offs(LV_V, 6, 2, 256)
    lane_offs(LV_WO, 4, 2, 1024)
    e("v_lshlrev_b32 v7, 4, v0")
    for b in range(3, 0, -1):
        e("v_add_u32 v%d, %d, v7" % (LV_O + b, BIAS + b * (1024 - BLK)))
    e("v_add_u32 v%d, %d, v7" % (LV_O, BIAS))
    e("v_min_u32 v7, 11, v0")
    e("v_lshrrev_b32 v%d, 2, v7" % LV_FA)
    e("v_lshlrev_b32 v%d, 7, v%d" % (LV_FA, LV_FA))
    e("v_and_b32 v7, 3, v7")
    e("v_lshlrev_b32 v7, 3, v7")
    e("v_add_u32 v%d, v%d, v7" % (LV_FA, LV_FA))
    e("v_add_u32 v%d, %d, v%d" % (LV_FA, BIAS, LV_FA))
    e("s_lshl_b32 %s, %s, 5" % (sr(S_T1), sr(S_B4)))
    e("s_add_u32 %s, %s, %s" % (sr(S_T1), sr(S_T1), sr(S_H)))
    e("s_lshl_b32 %s, %s, 18" % (sr(SL_KOFF), sr(S_T1)))
    e("s_mul_i32 %s, %s, %d" % (sr(SL_R0), sr(S_WG), cfg.krot))
    e("s_and_b32 %s, %s, 31" % (sr(SL_R0), sr(SL_R0)))
    e("s_lshl_b32 %s, %s, 13" % (sr(SL_R0), sr(SL_R0)))
    stamp("q3")

    def kv_off(rel_sgpr, imm):
        if rel_sgpr is None:
            e("s_add_u32 %s, %s, %d" % (sr(SL_OFF), sr(SL_R0), imm))
        else:
            e("s_add_u32 %s, %s, %d" % (sr(SL_OFF), sr(rel_sgpr), imm))
        e("s_and_b32 %s, %s, 0x3ffff" % (sr(SL_OFF), sr(SL_OFF)))
        e("s_add_u32 %s, %s, %s" % (sr(SL_OFF), sr(SL_OFF), sr(SL_KOFF)))

    def early_tiles():
        e("s_mov_b32 %s, %s" % (sr(SL_QSLOT), sr(SL_SLOT)))
        e("s_mov_b32 %s, %d" % (sr(SL_SLOT), NQ * SLOT))
        seq = [("K", 0), ("K", 1), ("V", 0)]
        t = 0
        while len(seq) < E:
            seq += [("K", t + 2), ("V", t + 1)]
            t += 1
        assert len(seq) == E
        for kind, t in seq:
            kv_off(None, 0 if cfg.kvsame else t * 8192)
            if kind == "K":
                issue_tile(SRD_K, LV_K, 256, kvf, RING, check=False)
            else:
                issue_tile(SRD_V, LV_V, 256, kvf, RING, check=False)
        e("s_mov_b32 %s, %s" % (sr(SL_SLOT), sr(SL_QSLOT)))

    npairs_early = (E - 3) // 2
    if cfg.ytype == 1:
        e("s_and_b32 %s, %s, 1" % (sr(S_T3), sr(S_M)))
        e("s_cmp_eq_u32 %s, 0" % sr(S_T3))
        e("s_cbranch_scc1 L_ld_x1")
    if cfg.ytype in (1, 2):
        early_tiles()
        e("s_mov_b32 %s, %d" % (sr(SL_NADJ), NQ - 1 + E))
        e("s_sub_i32 %s, %s, %s" % (sr(SL_NEED), sr(SL_ISS), sr(SL_NADJ)))
    a.lab("L_ld_x1")
    e("s_mov_b32 %s, 1" % sr(SL_CNT))
    a.lab("L_ld_qp1")
    qp_bases(0, SL_CNT)
    qp_round()
    if cfg.stamps:
        for rr in (1, 2, 3):
            nm = "q%d" % (4 * rr + 3)
            if nm in stl:
                sk = a.newlab("sk")
                e("s_cmp_eq_u32 %s, %d" % (sr(SL_CNT), rr))
                e("s_cbranch_scc0 %s" % sk)
                stamp(nm)
                a.lab(sk)
    e("s_add_u32 %s, %s, 1" % (sr(SL_CNT), sr(SL_CNT)))
    e("s_cmp_lt_u32 %s, 4" % sr(SL_CNT))
    e("s_cbranch_scc1 L_ld_qp1")
    if cfg.ytype == 1:
        e("s_and_b32 %s, %s, 1" % (sr(S_T3), sr(S_M)))
        e("s_cmp_eq_u32 %s, 0" % sr(S_T3))
        e("s_cbranch_scc0 L_ld_y2")
    if cfg.ytype in (0, 1):
        early_tiles()
    a.lab("L_ld_y2")
    stamp("qp")
    cnt("cq")
    e("s_mov_b32 %s, 0" % sr(SL_SLOT))
    e("s_mov_b32 %s, %d" % (sr(SL_NADJ), NS - 1))
    e("s_mov_b32 %s, %d" % (sr(SL_NEED), NQT))
    e("v_mov_b32 v7, 0")
    e("global_load_dwordx2 %s, v7, %s sc1" % (vr(LV_NON, 2), sr(KA_DBG, 2)))
    e("s_mov_b32 %s, 0x55555554" % sr(SL_EVM))
    e("s_mov_b32 %s, 0" % sr(SL_CNT2))
    e("s_add_u32 %s, %s, %d" % (sr(SL_VOFF), sr(SL_R0), 0 if cfg.kvsame else npairs_early * 8192))
    e("s_mov_b32 %s, %d" % (sr(SL_CNT), npairs_early))
    assert npairs_early == 2
    e("s_branch L_ld_disp")
    a.lab("L_ld_head")
    kv_off(None, 0)
    issue_tile(SRD_K, LV_K, 256, kvf, RING)
    kv_off(None, 8192)
    issue_tile(SRD_K, LV_K, 256, kvf, RING)
    kv_off(None, 0)
    issue_tile(SRD_V, LV_V, 256, kvf, RING)
    e("s_mov_b32 %s, %s" % (sr(SL_VOFF), sr(SL_R0)))
    e("s_mov_b32 %s, 0" % sr(SL_CNT))
    a.lab("L_ld_kv")
    kv_off(SL_VOFF, 16384)
    issue_tile(SRD_K, LV_K, 256, kvf, RING)
    kv_off(SL_VOFF, 8192)
    issue_tile(SRD_V, LV_V, 256, kvf, RING)
    if not cfg.kvsame:
        e("s_add_u32 %s, %s, 8192" % (sr(SL_VOFF), sr(SL_VOFF)))
    e("s_add_u32 %s, %s, 1" % (sr(SL_CNT), sr(SL_CNT)))
    e("s_bitcmp1_b32 %s, %s" % (sr(SL_EVM), sr(SL_CNT)))
    e("s_cbranch_scc1 L_ld_disp")
    a.lab("L_ld_evret")
    e("s_cmp_lt_u32 %s, 30" % sr(SL_CNT))
    e("s_cbranch_scc1 L_ld_kv")
    kv_off(SL_VOFF, 8192)
    issue_tile(SRD_V, LV_V, 256, kvf, RING)
    e("s_cmp_eq_u32 %s, 0" % sr(SL_CNT2))
    e("s_cbranch_scc0 L_ld_tail")
    stamp("h0")
    cnt("c0")
    e("s_add_u32 %s, %s, %d" % (sr(SL_KOFF), sr(SL_KOFF), 4 * 32 * 262144))
    if cfg.wsbase:
        e("s_add_u32 %s, %s, 0x%x" % (sr(KA_WS), sr(KA_WS), cfg.wsbase << 20))
        e("s_addc_u32 %s, %s, 0" % (sr(KA_WS + 1), sr(KA_WS + 1)))
    srdb(SRD_X, KA_WS, WS_USED)
    if not cfg.noxchg and not cfg.nocompute:
        okn = a.newlab("lnok")
        e("v_readfirstlane_b32 %s, v%d" % (sr(SL_NONCE), LV_NON))
        e("v_readfirstlane_b32 %s, v%d" % (sr(SL_NONCE + 1), LV_NON + 1))
        e("s_nop 3")
        e("s_cmp_lg_u32 %s, 0" % sr(SL_NONCE))
        e("s_cbranch_scc1 %s" % okn)
        lpn = a.newlab("lnlp")
        a.lab(lpn)
        e("v_mov_b32 v7, 0")
        e("global_load_dwordx2 %s, v7, %s sc1" % (vr(LV_NON, 2), sr(KA_DBG, 2)))
        e("s_waitcnt vmcnt(0)")
        e("v_readfirstlane_b32 %s, v%d" % (sr(SL_NONCE), LV_NON))
        e("v_readfirstlane_b32 %s, v%d" % (sr(SL_NONCE + 1), LV_NON + 1))
        e("s_sub_u32 %s, %s, 1" % (sr(S_SPIN), sr(S_SPIN)))
        e("s_cmp_eq_u32 %s, 0" % sr(S_SPIN))
        e("s_cbranch_scc1 L_end")
        e("s_cmp_eq_u32 %s, 0" % sr(SL_NONCE))
        e("s_cbranch_scc1 %s" % lpn)
        a.lab(okn)
    e("s_mov_b32 %s, 1" % sr(SL_CNT2))
    e("s_branch L_ld_head")
    a.lab("L_ld_tail")
    stamp("h1")
    cnt("c1")
    e("s_mov_b32 %s, 0" % sr(SL_XB))
    a.lab("L_ld_wo_r")
    e("s_add_u32 %s, %s, %s" % (sr(S_T1), sr(S_M), sr(SL_XB)))
    e("s_and_b32 %s, %s, 3" % (sr(S_T1), sr(S_T1)))
    e("s_lshl_b32 %s, %s, 17" % (sr(S_T1), sr(S_T1)))
    e("s_lshl_b32 %s, %s, 19" % (sr(SL_WB), sr(S_X)))
    e("s_add_u32 %s, %s, %s" % (sr(SL_WB), sr(SL_WB), sr(S_T1)))
    e("s_lshl_b32 %s, %s, 8" % (sr(S_T1), sr(S_M)))
    e("s_add_u32 %s, %s, %s" % (sr(SL_WB), sr(SL_WB), sr(S_T1)))
    for j in range(4):
        e("s_add_u32 %s, %s, %d" % (sr(SL_OFF), sr(SL_WB), j * 32 * 1024))
        issue_tile(SRD_WO, LV_WO, 1024, cfg.wo2flags, RING)
    e("s_add_u32 %s, %s, 1" % (sr(SL_XB), sr(SL_XB)))
    e("s_cmp_lt_u32 %s, 4" % sr(SL_XB))
    e("s_cbranch_scc1 L_ld_wo_r")
    a.lab("L_ld_drain")
    publish_nb()
    e("s_cmp_lt_i32 %s, %s" % (sr(SL_PUB), sr(SL_ISS)))
    e("s_cbranch_scc1 L_ld_drain")
    e("s_waitcnt lgkmcnt(0)")
    stamp("t2")
    e("s_branch L_fin")

    def pf_tile(srdreg, voff, rs, flags, vdst):
        e("s_add_u32 %s, %s, %d" % (sr(SL_OFF2), sr(SL_OFF), 16 * rs))
        for b in range(8):
            e("buffer_load_dwordx4 %s, v%d, %s, %s offen offset:%d %s" % (
                vr(vdst + 4 * b, 4), voff + (b & 3), sr(srdreg, 4), sr(SL_OFF if b < 4 else SL_OFF2),
                (b & 3) * BLK, flags))

    def flag_poll_issue_l():
        e("s_lshl_b32 %s, %s, 9" % (sr(S_T1), sr(S_QUAD)))
        e("buffer_load_dwordx2 %s, v%d, %s, %s offen sc1" % (vr(LV_FL, 2), LV_FA, sr(SRD_X, 4), sr(S_T1)))

    def flag_check_l(tgt_ok):
        e("v_cmp_ne_u32 vcc, %s, v%d" % (sr(SL_NONCE), LV_FL))
        e("v_cmp_ne_u32 s[28:29], %s, v%d" % (sr(SL_NONCE + 1), LV_FL + 1))
        e("s_nop 3")
        e("s_or_b64 vcc, vcc, s[28:29]")
        if cfg.perm:
            e("s_lshl_b32 s28, 0x111, %s" % sr(SL_MM))
            e("s_and_b32 s28, s28, vcc_lo")
        e("s_cbranch_scc0 %s" % tgt_ok)

    a.lab("L_ld_disp")
    e("s_lshr_b32 %s, %s, 1" % (sr(SL_PP), sr(SL_CNT)))
    e("s_sub_u32 %s, %s, 1" % (sr(SL_PP), sr(SL_PP)))
    e("s_lshr_b32 %s, %s, 2" % (sr(SL_RND), sr(SL_PP)))
    e("s_and_b32 %s, %s, 3" % (sr(SL_JJ), sr(SL_PP)))
    e("s_cmp_eq_u32 %s, 0" % sr(SL_CNT2))
    e("s_cbranch_scc0 L_ld_x2")
    e("s_cmp_eq_u32 %s, 0" % sr(SL_JJ))
    e("s_cbranch_scc0 L_ld_w1")
    qp_bases(1, SL_RND)
    for w in range(3):
        e("s_add_u32 %s, %s, %d" % (sr(SL_OFF), sr(SL_XB), w * 32 * 1024))
        issue_tile(SRD_X, LV_X, 1024, cfg.x2flags, RING)
    a.lab("L_ld_w1")
    e("s_lshl_b32 %s, %s, 18" % (sr(SL_OFF), sr(SL_JJ)))
    e("s_add_u32 %s, %s, %s" % (sr(SL_OFF), sr(SL_OFF), sr(SL_WB)))
    issue_tile(SRD_WQ, LV_WQ, 8192, cfg.wq2flags, RING)
    e("s_cmp_eq_u32 %s, 14" % sr(SL_PP))
    e("s_cbranch_scc0 L_ld_evret")
    e("s_add_u32 %s, %s, %d" % (sr(SL_OFF), sr(SL_WB), 3 * 32 * 8192))
    issue_tile(SRD_WQ, LV_WQ, 8192, cfg.wq2flags, RING)
    e("s_branch L_ld_evret")
    a.lab("L_ld_x2")
    if not cfg.noxchg and not cfg.nocompute:
        skp = a.newlab("skp")
        if cfg.perm:
            e("s_cmp_eq_u32 %s, 2" % sr(SL_JJ))
        else:
            e("s_cmp_eq_u32 %s, 2" % sr(SL_PP))
        e("s_cbranch_scc0 %s" % skp)
        flag_poll_issue_l()
        a.lab(skp)
    e("s_cmp_eq_u32 %s, 0" % sr(SL_JJ))
    e("s_cbranch_scc0 L_ld_w2")
    if cfg.perm:
        e("s_brev_b32 %s, %s" % (sr(S_T2), sr(SL_RND)))
        e("s_lshr_b32 %s, %s, 30" % (sr(S_T2), sr(S_T2)))
        e("s_add_u32 %s, %s, %s" % (sr(S_T2), sr(S_M), sr(S_T2)))
    else:
        e("s_add_u32 %s, %s, %s" % (sr(S_T2), sr(S_M), sr(SL_RND)))
    e("s_and_b32 %s, %s, 3" % (sr(S_T2), sr(S_T2)))
    e("s_mov_b32 %s, %s" % (sr(SL_MM), sr(S_T2)))
    e("s_lshl_b32 %s, %s, 17" % (sr(S_T1), sr(S_T2)))
    e("s_lshl_b32 %s, %s, 19" % (sr(SL_WB), sr(S_X)))
    e("s_add_u32 %s, %s, %s" % (sr(SL_WB), sr(SL_WB), sr(S_T1)))
    e("s_lshl_b32 %s, %s, 8" % (sr(S_T1), sr(S_M)))
    e("s_add_u32 %s, %s, %s" % (sr(SL_WB), sr(SL_WB), sr(S_T1)))
    e("s_lshl_b32 %s, %s, 2" % (sr(S_T3), sr(S_QUAD)))
    e("s_add_u32 %s, %s, %s" % (sr(S_T2), sr(S_T2), sr(S_T3)))
    e("s_mul_i32 %s, %s, 24576" % (sr(S_T2), sr(S_T2)))
    e("s_add_u32 %s, %s, %d" % (sr(SL_XB), sr(S_T2), WS_OBUF))
    e("s_cmp_eq_u32 %s, 0" % sr(SL_RND))
    e("s_cbranch_scc1 L_ld_w2")
    if not cfg.noxchg and not cfg.nocompute:
        okf = a.newlab("lfok")
        if not cfg.perm:
            e("s_cmp_eq_u32 %s, 1" % sr(SL_RND))
            e("s_cbranch_scc0 %s" % okf)
        stamp("e2")
        flag_check_l(okf)
        lpf = a.newlab("lfl")
        a.lab(lpf)
        flag_poll_issue_l()
        e("s_waitcnt vmcnt(0)")
        e("s_sub_u32 %s, %s, 1" % (sr(S_SPIN), sr(S_SPIN)))
        e("s_cmp_eq_u32 %s, 0" % sr(S_SPIN))
        e("s_cbranch_scc1 L_end")
        flag_check_l(okf)
        e("s_branch %s" % lpf)
        a.lab(okf)
        if cfg.stamps:
            skq = a.newlab("skq")
            e("s_cmp_eq_u32 %s, 1" % sr(SL_RND))
            e("s_cbranch_scc0 %s" % skq)
            stamp("e3")
            a.lab(skq)
    for w in range(3):
        e("s_add_u32 %s, %s, %d" % (sr(SL_OFF), sr(SL_XB), w * 8192))
        issue_tile(SRD_X, LV_O, 256, cfg.oflags, RING)
    a.lab("L_ld_w2")
    e("s_lshl_b32 %s, %s, 15" % (sr(SL_OFF), sr(SL_JJ)))
    e("s_add_u32 %s, %s, %s" % (sr(SL_OFF), sr(SL_OFF), sr(SL_WB)))
    issue_tile(SRD_WO, LV_WO, 1024, cfg.woflags, RING)
    e("s_cmp_eq_u32 %s, 14" % sr(SL_PP))
    e("s_cbranch_scc0 L_ld_evret")
    e("s_add_u32 %s, %s, %d" % (sr(SL_OFF), sr(SL_WB), 3 * 32 * 1024))
    issue_tile(SRD_WO, LV_WO, 1024, cfg.woflags, RING)
    e("s_branch L_ld_evret")

    for slow, ok in ool:
        a.lab(slow)
        e("s_call_b64 %s, L_waitfree" % sr(S_RET, 2))
        e("s_branch %s" % ok)
    a.lab("L_waitfree")
    if cfg.stamps:
        e("s_add_u32 %s, %s, 1" % (sr(SL_WFC), sr(SL_WFC)))
    e("ds_read_b96 v[%d:%d], v%d" % (LV_F, LV_F + 2, LV_FADDR))
    publish_nb()
    e("s_waitcnt lgkmcnt(1)")
    e("v_min3_u32 v%d, v%d, v%d, v%d" % (LV_F, LV_F, LV_F + 1, LV_F + 2))
    e("s_sub_u32 %s, %s, 1" % (sr(S_SPIN), sr(S_SPIN)))
    e("v_readfirstlane_b32 %s, v%d" % (sr(SL_FMIN), LV_F))
    e("s_cmp_eq_u32 %s, 0" % sr(S_SPIN))
    e("s_cbranch_scc1 L_end")
    e("s_nop 1")
    e("s_cmp_ge_i32 %s, %s" % (sr(SL_FMIN), sr(SL_NEED)))
    e("s_cbranch_scc0 L_waitfree")
    e("s_setpc_b64 %s" % sr(S_RET, 2))

    if cfg.noxchg:
        a.filt = lambda sx: (sx.startswith("buffer_") or sx.startswith("global_load")
                             or sx.startswith("global_store_dwordx2"))
    a.lab("L_compute")
    e("v_and_b32 v1, 3, v0")
    e("v_lshrrev_b32 v2, 5, v0")
    e("v_lshrrev_b32 v3, 4, v0")
    e("v_and_b32 v3, 1, v3")
    e("v_lshrrev_b32 v4, 2, v0")
    e("v_and_b32 v4, 3, v4")
    e("v_lshlrev_b32 v5, 2, v3")
    e("v_add_u32 v5, v5, v1")
    e("s_movk_i32 %s, %d" % (sr(S_T0), BLK))
    e("v_mul_lo_u32 v5, v5, %s" % sr(S_T0))
    e("v_lshlrev_b32 v6, 8, v4")
    e("v_add_u32 v5, v5, v6")
    for par in range(2):
        e("v_add_u32 v6, %d, v2" % (2 * par))
        e("v_xor_b32 v6, v6, v4")
        e("v_lshlrev_b32 v6, 4, v6")
        e("v_add_u32 v%d, v5, v6" % (V_KB + par))
    e("v_lshrrev_b32 v6, 1, v1")
    e("v_and_b32 v7, 1, v1")
    e("v_lshlrev_b32 v7, 1, v7")
    e("v_or_b32 v6, v6, v7")
    e("v_lshlrev_b32 v6, 3, v6")
    e("v_lshlrev_b32 v7, 5, v3")
    e("v_add_u32 v6, v6, v7")
    e("v_mul_lo_u32 v7, v4, %s" % sr(S_T0))
    e("v_add_u32 v6, v6, v7")
    e("v_lshlrev_b32 v7, 8, v2")
    e("v_add_u32 v%d, v6, v7" % V_VB)
    e("v_add_u32 v%d, v%d, v7" % (V_WB, V_VB))
    e("v_add_u32 v%d, %d, v%d" % (V_VB2, SLOT, V_VB))
    e("v_mov_b32 v%d, %d" % (V_LADDR, FLAG_L))
    e("s_lshl_b32 %s, %s, 2" % (sr(S_T0), sr(S_WAVE)))
    e("s_add_u32 %s, %s, %d" % (sr(S_T0), sr(S_T0), FLAG_F))
    e("v_mov_b32 v%d, %s" % (V_FADDR, sr(S_T0)))
    e("v_mov_b32 v%d, %d" % (V_FV, 100000 if cfg.nocompute else 0))
    e("ds_write_b32 v%d, v%d" % (V_FADDR, V_FV))
    e("v_lshlrev_b32 v%d, 4, v0" % V_L16)
    e("s_mov_b32 %s, 0" % sr(SC_L))
    e("s_mov_b32 %s, 0" % sr(SC_SWC))
    c = (128 ** -0.5) * math.log2(math.e)
    e("s_mov_b32 %s, 0x%x" % (sr(SC_T), f32bits(cfg.T_LOG2)))
    e("s_mov_b32 %s, 0" % sr(SC_IDX))
    e("s_mov_b32 %s, 0" % sr(SC_SLOT))
    e("s_mov_b32 %s, %d" % (sr(SC_WRAP), NQ * SLOT))
    if cfg.ytype == 1:
        e("s_and_b32 %s, %s, 1" % (sr(S_T1), sr(S_M)))
        e("s_mul_i32 %s, %s, %d" % (sr(SC_PADJ), sr(S_T1), E))
    else:
        e("s_mov_b32 %s, %d" % (sr(SC_PADJ), E if cfg.ytype == 2 else 0))
    e("s_mov_b32 %s, 0" % sr(SC_ADJ))
    if cfg.wsbase:
        e("s_add_u32 %s, %s, 0x%x" % (sr(KA_WS), sr(KA_WS), cfg.wsbase << 20))
        e("s_addc_u32 %s, %s, 0" % (sr(KA_WS + 1), sr(KA_WS + 1)))
    srd(SRD_WS, KA_WS, WS_USED)
    srd(SRD_OUT, KA_OUT, 8 * 96 * 1024 * 2)
    e("s_or_b32 %s, %s, %s" % (sr(S_T0), sr(S_WG), sr(S_WAVE)))
    e("s_cmp_eq_u32 %s, 0" % sr(S_T0))
    e("s_cbranch_scc0 L_nononce")
    e("s_memrealtime %s" % sr(SC_NONCE, 2))
    e("s_waitcnt lgkmcnt(0)")
    e("s_or_b32 %s, %s, 1" % (sr(SC_NONCE), sr(SC_NONCE)))
    e("v_mov_b32 v2, %s" % sr(SC_NONCE))
    e("v_mov_b32 v3, %s" % sr(SC_NONCE + 1))
    e("v_mov_b32 v1, 0")
    e("global_store_dwordx2 v1, v[2:3], %s sc1" % sr(KA_DBG, 2))
    a.lab("L_nononce")
    e("s_waitcnt lgkmcnt(0)")
    e("s_barrier")
    stamp("bar")
    if cfg.nocompute:
        e("s_branch L_fin")

    slowwaits = []

    def wait_landed_l(delta, adj=False):
        slow = a.newlab("lw_slow")
        back = a.newlab("lw_back")
        slowwaits.append((slow, back))
        out = ["s_add_u32 %s, %s, %d" % (sr(SC_NEED), sr(SC_IDX), delta)]
        if adj:
            out.append("s_add_u32 %s, %s, %s" % (sr(SC_NEED), sr(SC_NEED), sr(SC_ADJ)))
        out += ["s_cmp_lt_u32 %s, %s" % (sr(SC_L), sr(SC_NEED)),
                "s_cbranch_scc1 %s" % slow,
                back + ":"]
        return out

    def wait_landed(delta, adj=False):
        a.extend(wait_landed_l(delta, adj))

    def slot_adv_l(dst, src, n):
        return ["s_add_u32 %s, %s, %d" % (sr(dst), sr(src), n * SLOT),
                "s_sub_u32 %s, %s, %s" % (sr(S_T0), sr(dst), sr(SC_WRAP)),
                "s_cmp_lt_u32 %s, %s" % (sr(dst), sr(SC_WRAP)),
                "s_cselect_b32 %s, %s, %s" % (sr(dst), sr(dst), sr(S_T0))]

    def slot_adv(dst, src, n):
        a.extend(slot_adv_l(dst, src, n))

    def release_l(sg):
        return ["v_mov_b32 v%d, %s" % (V_FV, sr(sg)), "ds_write_b32 v%d, v%d" % (V_FADDR, V_FV)]

    def k_addr(slot):
        return ["v_add_u32 v%d, %s, v%d" % (V_KA + p, sr(slot), V_KB + p) for p in range(2)]

    def k_reads(dst_a):
        return ["ds_read_b128 %s, v%d offset:%d" % (ar(dst_a + 4 * s, 4), V_KA + (s & 1), (s >> 1) * 64)
                for s in range(8)]

    def v_addr(slot, base):
        return ["v_add_u32 v%d, %s, v%d" % (V_VA, sr(slot), base)]

    def v_reads(dst_a, isw):
        out = []
        for ks in range(2):
            for db in range(4):
                base = dst_a + (ks * 4 + db) * 4
                o2 = 256 if isw else 512
                o = ks * 4 * BLK + db * 64
                out.append("ds_read_b64_tr_b16 %s, v%d offset:%d" % (ar(base, 2), V_VA, o))
                out.append("ds_read_b64_tr_b16 %s, v%d offset:%d" % (ar(base + 2, 2), V_VA, o + o2))
        return out

    def wave_slot(dst, n):
        return ["s_mul_i32 %s, %s, %d" % (sr(S_T1), sr(S_WAVE), SLOT),
                "s_add_u32 %s, %s, %s" % (sr(dst), sr(SC_SLOT), sr(S_T1))] + slot_adv_l(dst, dst, n)

    def x_fetch(buf):
        out = wave_slot(SC_SLOT2, 0) + k_addr(SC_SLOT2) + k_reads(A_XF[buf])
        out += slot_adv_l(SC_SLOT, SC_SLOT, 3)
        return out

    wait_landed(4, True)
    a.extend(x_fetch(0))
    a.extend(v_addr(SC_SLOT, V_WB))
    a.extend(v_reads(A_AF[0], True))
    e("s_add_u32 %s, %s, 4" % (sr(SC_IDX), sr(SC_IDX)))
    slot_adv(SC_SLOT, SC_SLOT, 1)
    for cidx in range(16):
        r, j = divmod(cidx, 4)
        e("s_waitcnt lgkmcnt(0)")
        mf = []
        for ks in range(2):
            for db in range(4):
                acc = V_ACCQ + 16 * db
                cin = "0" if (cidx == 0 and ks == 0) else vr(acc, 16)
                mf.append("%s %s, %s, %s, %s" % (
                    MFMA, vr(acc, 16), ar(A_AF[cidx & 1] + (ks * 4 + db) * 4, 4),
                    ar(A_XF[r & 1] + (2 * j + ks) * 4, 4), cin))
        fill = []
        if cidx < 15:
            nx = 3 if j == 3 else 0
            if cidx == 3:
                fill += ["s_mov_b32 %s, %s" % (sr(SC_ADJ), sr(SC_PADJ))]
            fill += wait_landed_l(nx + 1, True)
            if nx:
                fill += x_fetch((r + 1) & 1)
            fill += v_addr(SC_SLOT, V_WB) + v_reads(A_AF[(cidx + 1) & 1], True)
            fill += release_l(SC_IDX)
            fill += ["s_add_u32 %s, %s, %d" % (sr(SC_IDX), sr(SC_IDX), nx + 1)] + slot_adv_l(SC_SLOT, SC_SLOT, 1)
        else:
            fill += release_l(SC_IDX)
        ng = 6
        per = [[] for _ in range(8)]
        items = fill
        n = len(items)
        pos = 0
        for g in range(ng):
            tgt = max((n * (g + 1)) // ng, pos)
            while tgt < n and items[tgt].endswith(":"):
                tgt += 1
            per[g] = items[pos:tgt]
            pos = tgt
        a.extend(gaps(mf, per))
        if cfg.stamps and ("q%d" % cidx) in stl:
            stamp("q%d" % cidx)

    def q_convert(dst):
        e("s_nop 7")
        e("s_nop 3")
        e("s_mov_b32 %s, 0x%x" % (sr(S_T1), f32bits(c)))
        for i in range(32):
            e("v_mul_f32 v%d, %s, v%d" % (V_ACCQ + 2 * i, sr(S_T1), V_ACCQ + 2 * i))
            e("v_mul_f32 v%d, %s, v%d" % (V_ACCQ + 2 * i + 1, sr(S_T1), V_ACCQ + 2 * i + 1))
            e("v_cvt_pk_bf16_f32 v%d, v%d, v%d" % (dst + i, V_ACCQ + 2 * i, V_ACCQ + 2 * i + 1))
    q_convert(V_Q1)
    e("s_mov_b32 %s, %d" % (sr(SC_SLOT), NQ * SLOT))
    e("s_mov_b32 %s, %d" % (sr(SC_WRAP), RING))
    stamp("qp")

    def qk_mfmas(sdst, qbase, cin):
        return ["%s %s, %s, %s, %s" % (MFMA, vr(sdst, 16), ar(A_KF + 4 * s, 4), vr(qbase + 4 * s, 4),
                                       cin if s == 0 else vr(sdst, 16)) for s in range(8)]

    def softmax_gaps(sc):
        g = []
        for k in range(8):
            l = ["v_exp_f32 v%d, v%d" % (sc + 2 * k, sc + 2 * k),
                 "v_exp_f32 v%d, v%d" % (sc + 2 * k + 1, sc + 2 * k + 1)]
            if k > 0:
                p = k - 1
                l += ["v_add_f32 v%d, v%d, v%d" % (V_LSUM, V_LSUM, sc + 2 * p),
                      "v_add_f32 v%d, v%d, v%d" % (V_LS2, V_LS2, sc + 2 * p + 1),
                      "v_cvt_pk_bf16_f32 v%d, v%d, v%d" % (V_PF + p, sc + 2 * p, sc + 2 * p + 1)]
            g.append(l)
        tail = ["v_add_f32 v%d, v%d, v%d" % (V_LSUM, V_LSUM, sc + 14),
                "v_add_f32 v%d, v%d, v%d" % (V_LS2, V_LS2, sc + 15),
                "v_cvt_pk_bf16_f32 v%d, v%d, v%d" % (V_PF + 7, sc + 14, sc + 15)]
        return g, tail

    def pv_mfmas(vf):
        out = []
        for ks in range(2):
            for db in range(4):
                out.append("%s %s, %s, %s, %s" % (
                    MFMA, vr(V_O + 16 * db, 16), ar(vf + (ks * 4 + db) * 4, 4), vr(V_PF + 4 * ks, 4),
                    vr(V_O + 16 * db, 16)))
        return out

    def max_valu(sn):
        out = ["v_max3_f32 v%d, v%d, v%d, v%d" % (V_TMAX, sn, sn + 1, sn + 2)]
        for i in range(3, 15, 2):
            out.append("v_max3_f32 v%d, v%d, v%d, v%d" % (V_TMAX, V_TMAX, sn + i, sn + i + 1))
        out.append("v_max_f32 v%d, v%d, v%d" % (V_TMAX, V_TMAX, sn + 15))
        return out

    def cross_half_max():
        e("v_mov_b32 v1, v%d" % V_TMAX)
        e("s_nop 1")
        e("v_permlane32_swap_b32 v%d, v1" % V_TMAX)
        e("s_nop 1")
        e("v_max_f32 v%d, v%d, v1" % (V_TMAX, V_TMAX))

    def rare_path(lab, back, sn):
        a.lab(lab)
        cross_half_max()
        e("v_max_f32 v%d, 0, v%d" % (V_TMAX, V_TMAX))
        e("v_sub_f32 v%d, 0, v%d" % (V_ALPHA, V_TMAX))
        e("v_exp_f32 v%d, v%d" % (V_ALPHA, V_ALPHA))
        for i in range(16):
            e("v_sub_f32 v%d, v%d, v%d" % (sn + i, sn + i, V_TMAX))
        for i in range(16):
            e("v_sub_f32 v%d, v%d, v%d" % (V_NEGM + i, V_NEGM + i, V_TMAX))
        e("v_mul_f32 v%d, v%d, v%d" % (V_LSUM, V_LSUM, V_ALPHA))
        e("v_mul_f32 v%d, v%d, v%d" % (V_LS2, V_LS2, V_ALPHA))
        for i in range(64):
            e("v_mul_f32 v%d, v%d, v%d" % (V_O + i, V_O + i, V_ALPHA))
        e("s_branch %s" % back)

    rare = []
    dispatchers = []

    def get_nonce():
        if cfg.noxchg:
            return
        lp = a.newlab("nonce")
        a.lab(lp)
        e("v_mov_b32 v1, 0")
        e("global_load_dwordx2 v[2:3], v1, %s sc1" % sr(KA_DBG, 2))
        e("s_waitcnt vmcnt(0)")
        e("v_readfirstlane_b32 %s, v2" % sr(SC_NONCE))
        e("v_readfirstlane_b32 %s, v3" % sr(SC_NONCE + 1))
        e("s_sub_u32 %s, %s, 1" % (sr(S_SPIN), sr(S_SPIN)))
        e("s_cmp_eq_u32 %s, 0" % sr(S_SPIN))
        e("s_cbranch_scc1 L_end")
        e("s_cmp_eq_u32 %s, 0" % sr(SC_NONCE))
        e("s_cbranch_scc1 %s" % lp)

    def flag_store(off_sgpr, local=False, hi=None):
        e("v_mov_b32 v2, %s" % sr(SC_NONCE))
        e("v_mov_b32 v3, %s" % sr(SC_NONCE + 1 if hi is None else hi))
        e("v_mov_b32 v1, 0")
        e("s_mov_b64 s[34:35], exec")
        e("s_mov_b64 exec, 1")
        if local and cfg.local:
            gl = a.newlab("fsg")
            dn = a.newlab("fsd")
            e("s_cmp_eq_u32 %s, 0" % sr(SC_LOCAL))
            e("s_cbranch_scc1 %s" % gl)
            e("buffer_store_dwordx2 v[2:3], v1, %s, %s offen" % (sr(SRD_WS, 4), sr(off_sgpr)))
            e("s_branch %s" % dn)
            a.lab(gl)
            e("buffer_store_dwordx2 v[2:3], v1, %s, %s offen sc1" % (sr(SRD_WS, 4), sr(off_sgpr)))
            a.lab(dn)
        else:
            e("buffer_store_dwordx2 v[2:3], v1, %s, %s offen sc1" % (sr(SRD_WS, 4), sr(off_sgpr)))
        e("s_mov_b64 exec, s[34:35]")

    def flag_poll(off_sgpr, n):
        if cfg.noxchg:
            return
        lp = a.newlab("poll")
        e("v_min_u32 v1, %d, v0" % (n - 1))
        e("v_lshlrev_b32 v1, 3, v1")
        a.lab(lp)
        e("buffer_load_dwordx2 v[2:3], v1, %s, %s offen sc1" % (sr(SRD_WS, 4), sr(off_sgpr)))
        e("s_waitcnt vmcnt(0)")
        e("v_cmp_ne_u32 vcc, %s, v2" % sr(SC_NONCE))
        e("v_cmp_ne_u32 s[34:35], %s, v3" % sr(SC_NONCE + 1))
        e("s_sub_u32 %s, %s, 1" % (sr(S_SPIN), sr(S_SPIN)))
        e("s_cmp_eq_u32 %s, 0" % sr(S_SPIN))
        e("s_cbranch_scc1 L_end")
        e("s_or_b64 vcc, vcc, s[34:35]")
        e("s_cbranch_scc1 %s" % lp)

    def flago_off(dst, ph, with_m):
        e("s_lshl_b32 %s, %s, 2" % (sr(dst), sr(S_QUAD)))
        e("s_add_u32 %s, %s, %s" % (sr(dst), sr(dst), sr(S_WAVE)))
        e("s_lshl_b32 %s, %s, 7" % (sr(dst), sr(dst)))
        e("s_add_u32 %s, %s, %d" % (sr(dst), sr(dst), WS_FLAGO + ph * 64 * 4 * 128))
        if with_m:
            e("s_lshl_b32 %s, %s, 3" % (sr(S_T0), sr(S_M)))
            e("s_add_u32 %s, %s, %s" % (sr(dst), sr(dst), sr(S_T0)))

    def load_o(ph, regs, ks):
        e("s_lshl_b32 %s, %s, 2" % (sr(S_T1), sr(S_QUAD)))
        e("s_add_u32 %s, %s, %d" % (sr(S_T1), sr(S_T1), ph * 256))
        e("s_mul_i32 %s, %s, 24576" % (sr(S_T1), sr(S_T1)))
        e("s_lshl_b32 %s, %s, 13" % (sr(S_T2), sr(S_WAVE)))
        e("s_add_u32 %s, %s, %s" % (sr(S_T1), sr(S_T1), sr(S_T2)))
        e("s_add_u32 %s, %s, %d" % (sr(S_T1), sr(S_T1), WS_OBUF))
        for k in ks:
            e("s_add_u32 %s, %s, %d" % (sr(S_T2), sr(S_M), k))
            e("s_and_b32 %s, %s, 3" % (sr(S_T2), sr(S_T2)))
            e("s_mul_i32 %s, %s, 24576" % (sr(S_T2), sr(S_T2)))
            e("s_add_u32 %s, %s, %s" % (sr(S_T2), sr(S_T2), sr(S_T1)))
            e("s_add_u32 %s, %s, 4096" % (sr(S_T3), sr(S_T2)))
            for s in range(8):
                e("buffer_load_dwordx4 %s, v%d, %s, %s offen offset:%d sc1" % (
                    ar(regs[k] + 4 * s, 4), V_L16, sr(SRD_WS, 4), sr(S_T2 if s < 4 else S_T3), (s & 3) * 1024))

    def poff(dst, ph, kq_sgpr):
        e("s_add_u32 %s, %s, %d" % (sr(dst), sr(S_G8), ph * 8))
        e("s_lshl_b32 %s, %s, 2" % (sr(dst), sr(dst)))
        e("s_add_u32 %s, %s, %s" % (sr(dst), sr(dst), sr(S_M)))
        e("s_lshl_b32 %s, %s, 3" % (sr(dst), sr(dst)))
        if kq_sgpr is not None:
            e("s_add_u32 %s, %s, %s" % (sr(dst), sr(dst), sr(kq_sgpr)))
        e("s_mul_i32 %s, %s, 24576" % (sr(dst), sr(dst)))
        e("s_lshl_b32 %s, %s, 13" % (sr(S_T0), sr(S_WAVE)))
        e("s_add_u32 %s, %s, %s" % (sr(dst), sr(dst), sr(S_T0)))
        e("s_add_u32 %s, %s, %d" % (sr(dst), sr(dst), WS_PBUF))

    def flagp_off(dst, ph, with_kq):
        e("s_add_u32 %s, %s, %d" % (sr(dst), sr(S_G8), ph * 8))
        e("s_lshl_b32 %s, %s, 2" % (sr(dst), sr(dst)))
        e("s_add_u32 %s, %s, %s" % (sr(dst), sr(dst), sr(S_M)))
        e("s_lshl_b32 %s, %s, 2" % (sr(dst), sr(dst)))
        e("s_add_u32 %s, %s, %s" % (sr(dst), sr(dst), sr(S_WAVE)))
        e("s_lshl_b32 %s, %s, 7" % (sr(dst), sr(dst)))
        e("s_add_u32 %s, %s, %d" % (sr(dst), sr(dst), WS_FLAGP))
        if with_kq:
            e("s_lshl_b32 %s, %s, 3" % (sr(S_T0), sr(S_X)))
            e("s_add_u32 %s, %s, %s" % (sr(dst), sr(dst), sr(S_T0)))

    def partial_store(acc, ph):
        poff(SC_POFF, ph, S_X)
        e("s_add_u32 %s, %s, 4096" % (sr(S_T1), sr(SC_POFF)))
        e("s_nop 3")
        for cch in range(8):
            for i in range(4):
                k = 4 * cch + i
                e("v_cvt_pk_bf16_f32 v%d, v%d, v%d" % (acc + k, acc + 2 * k, acc + 2 * k + 1))
            e("buffer_store_dwordx4 %s, v%d, %s, %s offen offset:%d %s" % (
                vr(acc + 4 * cch, 4), V_L16, sr(SRD_WS, 4), sr(SC_POFF if cch < 4 else S_T1), (cch & 3) * 1024,
                cfg.stflags))

    def reduce(ph, regs):
        flagp_off(SC_FOFF, ph, False)
        flag_poll(SC_FOFF, 8)
        poff(SC_POFF, ph, None)
        e("s_lshl_b32 %s, %s, 10" % (sr(S_T1), sr(S_X)))
        e("s_add_u32 %s, %s, %s" % (sr(SC_POFF), sr(SC_POFF), sr(S_T1)))
        for kq in range(8):
            e("s_add_u32 %s, %s, %d" % (sr(S_T1), sr(SC_POFF), kq * 24576))
            e("buffer_load_dwordx4 %s, v%d, %s, %s offen sc1" % (
                vr(regs + 4 * kq, 4), V_L16, sr(SRD_WS, 4), sr(S_T1)))
        e("v_and_b32 v1, 31, v0")
        e("v_lshlrev_b32 v1, 11, v1")
        e("v_lshrrev_b32 v2, 5, v0")
        e("v_lshlrev_b32 v2, 4, v2")
        e("v_add_u32 v1, v1, v2")
        e("s_add_u32 %s, %s, %d" % (sr(S_T1), sr(S_B4), 4 * ph))
        e("s_mul_i32 %s, %s, 96" % (sr(S_T1), sr(S_T1)))
        e("s_lshl_b32 %s, %s, 5" % (sr(S_T2), sr(S_WAVE)))
        e("s_add_u32 %s, %s, %s" % (sr(S_T1), sr(S_T1), sr(S_T2)))
        e("s_lshl_b32 %s, %s, 11" % (sr(S_T1), sr(S_T1)))
        e("s_lshl_b32 %s, %s, 10" % (sr(S_T2), sr(S_BR)))
        e("s_add_u32 %s, %s, %s" % (sr(S_T1), sr(S_T1), sr(S_T2)))
        e("s_lshl_b32 %s, %s, 8" % (sr(S_T2), sr(S_M)))
        e("s_add_u32 %s, %s, %s" % (sr(S_T1), sr(S_T1), sr(S_T2)))
        e("s_lshl_b32 %s, %s, 5" % (sr(S_T2), sr(S_X)))
        e("s_add_u32 %s, %s, %s" % (sr(S_T1), sr(S_T1), sr(S_T2)))
        acc = regs + 32
        for kq in range(8):
            e("s_waitcnt vmcnt(%d)" % (7 - kq))
            for i in range(4):
                r = regs + 4 * kq + i
                if kq == 0:
                    e("v_lshlrev_b32 v%d, 16, v%d" % (acc + 2 * i, r))
                    e("v_and_b32 v%d, 0xffff0000, v%d" % (acc + 2 * i + 1, r))
                else:
                    e("v_lshlrev_b32 v%d, 16, v%d" % (acc + 8, r))
                    e("v_and_b32 v%d, 0xffff0000, v%d" % (r, r))
                    e("v_add_f32 v%d, v%d, v%d" % (acc + 2 * i, acc + 2 * i, acc + 8))
                    e("v_add_f32 v%d, v%d, v%d" % (acc + 2 * i + 1, acc + 2 * i + 1, r))
        for i in range(4):
            e("v_cvt_pk_bf16_f32 v%d, v%d, v%d" % (4 + i, acc + 2 * i, acc + 2 * i + 1))
        e("buffer_store_dwordx4 v[4:7], v1, %s, %s offen" % (sr(SRD_OUT, 4), sr(S_T1)))

    def head(ph):
        qbase = V_Q1 if ph == 0 else V_Q2
        stg = V_STG if ph == 0 else V_SA
        xacc = V_ACCQ if ph == 0 else V_ACC1
        A_AF2 = 224
        e("v_mov_b32 v%d, 0" % V_LSUM)
        e("v_mov_b32 v%d, 0" % V_LS2)
        wait_landed(1)
        a.extend(k_addr(SC_SLOT))
        a.extend(k_reads(A_KF))
        e("s_waitcnt lgkmcnt(0)")
        zo = ["v_mov_b32 v%d, 0" % (V_O + i) for i in range(64)]
        a.extend(gaps(qk_mfmas(V_SA, qbase, "0"), [zo[8 * g:8 * g + 8] for g in range(8)]))
        slot_adv(SC_SLOT, SC_SLOT, 1)
        wait_landed(3)
        a.extend(k_addr(SC_SLOT))
        slot_adv(SC_SLOT, SC_SLOT, 1)
        a.extend(v_addr(SC_SLOT, V_VB))
        a.extend(k_reads(A_KF))
        a.extend(v_reads(A_VF[0], False))
        slot_adv(SC_SLOT, SC_SLOT, 1)
        e("s_add_u32 %s, %s, 3" % (sr(SC_IDX), sr(SC_IDX)))
        a.extend(max_valu(V_SA))
        cross_half_max()
        for i in range(16):
            e("v_sub_f32 v%d, v%d, v%d" % (V_SA + i, V_SA + i, V_TMAX))
        e("v_sub_f32 v%d, 0, v%d" % (V_NEGM, V_TMAX))
        for i in range(1, 16):
            e("v_mov_b32 v%d, v%d" % (V_NEGM + i, V_NEGM))

        def nxt(dst, src):
            return ["s_add_u32 %s, %s, %d" % (sr(dst), sr(src), SLOT),
                    "s_cmp_lt_u32 %s, %d" % (sr(dst), RING),
                    "s_cselect_b32 %s, %s, 0" % (sr(dst), sr(dst))]

        def iteration(par, kind):
            scur = V_SA if par == 0 else V_SB
            snext = V_SB if par == 0 else V_SA
            ex = ["v_exp_f32 v%d, v%d" % (scur + i, scur + i) for i in range(16)]
            ad = ["v_add_f32 v%d, v%d, v%d" % ((V_LSUM, V_LS2)[i & 1], (V_LSUM, V_LS2)[i & 1], scur + i)
                  for i in range(16)]
            cv = ["v_cvt_pk_bf16_f32 v%d, v%d, v%d" % (V_PF + k, scur + 2 * k, scur + 2 * k + 1) for k in range(8)]
            pv = pv_mfmas(A_VF[par])
            rel = release_l(SC_IDX)
            e("s_waitcnt lgkmcnt(%d)" % (15 if kind == "full" else 0))
            if kind == "full":
                qk = qk_mfmas(snext, qbase, vr(V_NEGM, 16))
                kr = k_reads(A_KF)
                r = v_reads(A_VF[par ^ 1], False)
                mx = max_valu(snext)
                cmp_ = ["v_cmp_lt_f32 vcc, %s, v%d" % (sr(SC_T), V_TMAX)]
                b = nxt(SC_SLOT2, SC_SLOT)
                c_ = nxt(SC_SLOT, SC_SLOT2)
                idx2 = ["s_add_u32 %s, %s, 2" % (sr(SC_IDX), sr(SC_IDX))]
                ka = k_addr(SC_SLOT)
                va = v_addr(SC_SLOT2, V_VB)
                per = [
                    [ex[0], ex[1]] + wait_landed_l(2),
                    [ex[2], ex[3], cv[0], ka[0], b[0]],
                    [ex[4], ex[5], cv[1], ka[1], b[1]],
                    [ex[6], ex[7], cv[2], b[2], rel[0]],
                    [ex[8], ex[9], cv[3], va[0]],
                    [ex[10], ex[11], cv[4], c_[0]],
                    [ex[12], ex[13], cv[5], c_[1]],
                    [ex[14], ex[15], cv[6], cv[7], c_[2], "s_waitcnt lgkmcnt(0)"],
                    [rel[1]] + kr[0:3] + ad[0:2],
                    kr[3:6] + ad[2:4] + idx2,
                    kr[6:8] + r[0:1] + ad[4:6],
                    r[1:4] + ad[6:8] + mx[0:1],
                    r[4:7] + ad[8:10] + mx[1:2],
                    r[7:10] + ad[10:12] + mx[2:3],
                    r[10:13] + ad[12:14] + mx[3:5],
                    r[13:16] + ad[14:16] + mx[5:8] + cmp_,
                ]
                a.extend(gaps(qk + pv, per))
            else:
                g, tl = softmax_gaps(scur)
                if kind == "lastk":
                    a.extend(wait_landed_l(1) + v_addr(SC_SLOT, V_VB))
                    vrr = v_reads(A_VF[par ^ 1], False)
                    g = [l + vrr[2 * k:2 * k + 2] for k, l in enumerate(g)]
                    a.extend(gaps(qk_mfmas(snext, qbase, vr(V_NEGM, 16)), g))
                    a.extend(tl)
                    mx = max_valu(snext) + ["v_cmp_lt_f32 vcc, %s, v%d" % (sr(SC_T), V_TMAX)]
                    book = ["s_add_u32 %s, %s, 1" % (sr(SC_IDX), sr(SC_IDX))] + nxt(SC_SLOT, SC_SLOT)
                    e("s_waitcnt lgkmcnt(15)")
                    per = [[], [], [], mx[0:2], mx[2:4] + book[0:1], mx[4:6] + book[1:3], mx[6:8] + book[3:4],
                           mx[8:9]]
                    a.extend(gaps(pv, per))
                else:
                    for l in g:
                        a.extend(l)
                    a.extend(tl)
                    a.extend(rel)
                    a.extend(pv)
            if kind != "final":
                r_ = a.newlab("rare")
                b_ = a.newlab("back")
                e("s_cbranch_vccnz %s" % r_)
                a.lab(b_)
                rare.append((r_, b_, snext))

        def ch_mfmas(af, j):
            return ["%s %s, %s, %s, %s" % (
                MFMA, vr(xacc + 16 * db, 16), ar(af + (ks * 4 + db) * 4, 4),
                ar(A_XF[0] + (2 * j + ks) * 4, 4), vr(xacc + 16 * db, 16))
                for ks in range(2) for db in range(4)]

        def x_reads():
            if ph == 0:
                return k_addr(SC_SLOT2), k_reads(A_XF[0])
            return (["v_add_u32 v%d, %s, v%d" % (V_KA, sr(SC_SLOT2), V_L16)],
                    ["ds_read_b128 %s, v%d offset:%d" % (ar(A_XF[0] + 4 * s_, 4), V_KA, s_ * BLK) for s_ in range(8)])

        def ch_slot(pos, first=False, last=False):
            afp = A_AF[(pos - 1) & 1]
            afn = A_AF[pos & 1]
            nx = 3 if (pos == 0 and not (first and ph == 1)) else 0
            chk = wait_landed_l(nx + 1 + (1 if last else 0))
            wr = v_reads(afn, True)
            fill = []
            late = []
            if nx:
                ws = wave_slot(SC_SLOT2, 0)
                xa, xr = x_reads()
                adv3 = slot_adv_l(SC_SLOT, SC_SLOT, 3)
                pre = chk + ws + xa + adv3 + v_addr(SC_SLOT, V_WB)
                body = xr[0:6] + wr
                late6, late7 = xr[6:7], xr[7:8]
            else:
                pre = chk + v_addr(SC_SLOT, V_WB)
                body = wr
                late6, late7 = [], []
            post = nxt(SC_SLOT, SC_SLOT) + ["s_add_u32 %s, %s, %d" % (sr(SC_IDX), sr(SC_IDX), nx + 1)]
            if last:
                post += v_addr(SC_SLOT, V_WB) + v_reads(A_AF2, True) + nxt(SC_SLOT, SC_SLOT)
                post += ["s_add_u32 %s, %s, 1" % (sr(SC_IDX), sr(SC_IDX))]
            if first:
                zz = ["v_mov_b32 v%d, 0" % (xacc + i) for i in range(64)]
                a.extend(pre)
                k = 0
                for x_ in body + late6 + late7:
                    a.e(x_)
                    a.extend(zz[k:k + 2])
                    k += 2
                a.extend(zz[k:])
                a.extend(post)
                return
            mf = ch_mfmas(afp, (pos - 1) & 3)
            per = [[] for _ in range(8)]
            per[0] = pre
            n = len(body)
            for g in range(1, 7):
                per[g] = body[(n * (g - 1)) // 6:(n * g) // 6]
            per[3] = per[3] + late6 if False else per[3]
            per[4] = late6 + per[4]
            per[7] = late7 + post
            a.extend(gaps(mf, per))

        acts = []
        mask = [0]

        def at_pass(n, body):
            mask[0] |= 1 << n
            acts.append((n, body))

        if cfg.stamps:
            for nm in stl:
                if nm[0] == "ab"[ph] and nm[1:].isdigit():
                    at_pass(int(nm[1:]), lambda nm=nm: stamp(nm))
        if ph == 0:
            def nonce_issue():
                e("v_mov_b32 v1, 0")
                e("global_load_dwordx2 %s, v1, %s sc1" % (vr(V_NON, 2), sr(KA_DBG, 2)))

            def nonce_get():
                ok = a.newlab("nok")
                e("s_waitcnt vmcnt(0)")
                e("v_readfirstlane_b32 %s, v%d" % (sr(SC_NONCE), V_NON))
                e("v_readfirstlane_b32 %s, v%d" % (sr(SC_NONCE + 1), V_NON + 1))
                e("s_nop 3")
                e("s_cmp_lg_u32 %s, 0" % sr(SC_NONCE))
                e("s_cbranch_scc1 %s" % ok)
                get_nonce()
                a.lab(ok)
            if not cfg.noxchg:
                at_pass(1, nonce_issue)
                at_pass(6, nonce_get)
        else:
            def p1b():
                e("s_waitcnt vmcnt(0)")
                flago_off(SC_FOFF, 0, True)
                flag_store(SC_FOFF)
            if not cfg.noxchg:
                at_pass(cfg.flagpass, p1b)
        disp = a.newlab("evdisp")

        def pass_end():
            e("s_add_u32 %s, %s, 1" % (sr(SC_IT), sr(SC_IT)))
            stub = a.newlab("evstub")
            back = a.newlab("evback")
            e("s_bitcmp1_b32 %s, %s" % (sr(SC_EVM), sr(SC_IT)))
            e("s_cbranch_scc1 %s" % stub)
            a.lab(back)
            stubs.append((stub, back, disp))

        def dispatcher(disp=disp, acts=acts):
            a.lab(disp)
            for n, body in acts:
                sk = a.newlab("noev")
                e("s_cmp_eq_u32 %s, %d" % (sr(SC_IT), n))
                e("s_cbranch_scc0 %s" % sk)
                body()
                a.lab(sk)
            e("s_setpc_b64 %s" % sr(SC_RET2, 2))
        dispatchers.append(dispatcher)

        e("s_mov_b32 %s, 0x%x" % (sr(SC_EVM), mask[0]))
        e("s_mov_b32 %s, 0" % sr(SC_IT))
        lp = a.newlab("attn")
        a.lab(lp)
        for pos in range(4):
            iteration(0, "full")
            iteration(1, "full")
            if pos == 0:
                f1 = a.newlab("chfirst")
                fb = a.newlab("chback")
                e("s_cmp_eq_u32 %s, 0" % sr(SC_IT))
                e("s_cbranch_scc1 %s" % f1)
                ch_slot(0)
                a.lab(fb)
                firsts.append((f1, fb, ch_slot))
            else:
                ch_slot(pos)
            pass_end()
        e("s_cmp_lt_u32 %s, 12" % sr(SC_IT))
        e("s_cbranch_scc1 %s" % lp)
        for pos in range(3):
            iteration(0, "full")
            iteration(1, "full")
            ch_slot(pos, last=(pos == 2))
            pass_end()
        iteration(0, "lastk")
        a.extend(ch_mfmas(A_AF[0], 2))
        iteration(1, "final")
        a.extend(ch_mfmas(A_AF2, 3))
        stamp("f%d" % ph)
        e("v_add_f32 v%d, v%d, v%d" % (V_LSUM, V_LSUM, V_LS2))
        e("v_mov_b32 v%d, v%d" % (V_LS2, V_LSUM))
        e("s_nop 1")
        e("v_permlane32_swap_b32 v%d, v%d" % (V_LSUM, V_LS2))
        e("s_nop 1")
        e("v_add_f32 v%d, v%d, v%d" % (V_LSUM, V_LSUM, V_LS2))
        e("v_rcp_f32 v%d, v%d" % (V_ALPHA, V_LSUM))
        if ph == 0:
            q_convert(V_Q2)
        e("s_lshl_b32 %s, %s, 2" % (sr(S_T1), sr(S_QUAD)))
        e("s_add_u32 %s, %s, %s" % (sr(S_T1), sr(S_T1), sr(S_M)))
        e("s_add_u32 %s, %s, %d" % (sr(S_T1), sr(S_T1), ph * 256))
        e("s_mul_i32 %s, %s, 24576" % (sr(S_T1), sr(S_T1)))
        e("s_lshl_b32 %s, %s, 13" % (sr(S_T2), sr(S_WAVE)))
        e("s_add_u32 %s, %s, %s" % (sr(S_T1), sr(S_T1), sr(S_T2)))
        e("s_add_u32 %s, %s, %d" % (sr(SC_OOFF), sr(S_T1), WS_OBUF))
        e("s_add_u32 %s, %s, 4096" % (sr(SC_OOFF2), sr(SC_OOFF)))
        e("s_nop 3")
        for s in range(8):
            for k in range(4):
                i = 4 * s + k
                e("v_mul_f32 v%d, v%d, v%d" % (V_O + 2 * i, V_O + 2 * i, V_ALPHA))
                e("v_mul_f32 v%d, v%d, v%d" % (V_O + 2 * i + 1, V_O + 2 * i + 1, V_ALPHA))
                e("v_cvt_pk_bf16_f32 v%d, v%d, v%d" % (stg + i, V_O + 2 * i, V_O + 2 * i + 1))
            e("buffer_store_dwordx4 %s, v%d, %s, %s offen offset:%d %s" % (
                vr(stg + 4 * s, 4), V_L16, sr(SRD_WS, 4), sr(SC_OOFF if s < 4 else SC_OOFF2),
                (s & 3) * 1024, cfg.stflags))
        if ph == 1:
            partial_store(V_ACC1, 0)

    stubs = []
    firsts = []

    def ccnt(name):
        if cfg.stamps:
            for k, nm in enumerate(stl):
                if nm == name:
                    e("s_mov_b32 %s, %s" % (sr(S_ST + 2 * k), sr(SC_SWC)))
    ccnt("cq")
    head(0)
    for i in range(32):
        e("v_accvgpr_write_b32 a%d, v%d" % (A_XF[0] + i, V_STG + i))
    stamp("h0")
    ccnt("c0")
    head(1)
    stamp("h1")
    ccnt("c1")

    def task(acc, bfrag, first, hooks):
        if first:
            wait_landed(1)
        a.extend(v_addr(SC_SLOT, V_WB))
        a.extend(v_reads(A_AF[0], True))
        e("s_add_u32 %s, %s, 1" % (sr(SC_IDX), sr(SC_IDX)))
        slot_adv(SC_SLOT, SC_SLOT, 1)
        fullwait = True
        for cidx in range(16):
            r, j = divmod(cidx, 4)
            mf = []
            for ks in range(2):
                for db in range(4):
                    cin = "0" if (cidx == 0 and ks == 0) else vr(acc + 16 * db, 16)
                    mf.append("%s %s, %s, %s, %s" % (
                        MFMA, vr(acc + 16 * db, 16), ar(A_AF[cidx & 1] + (ks * 4 + db) * 4, 4),
                        bfrag(r, 2 * j + ks), cin))
            per = [[] for _ in range(8)]
            if cidx == 15:
                fullwait = True
            if fullwait:
                e("s_waitcnt lgkmcnt(0)")
            if cidx < 15:
                wr = v_reads(A_AF[(cidx + 1) & 1], True)
                adv = ["s_add_u32 %s, %s, 1" % (sr(SC_IDX), sr(SC_IDX))] + slot_adv_l(SC_SLOT, SC_SLOT, 1)
                chk = wait_landed_l(1) if first else []
                per[0] = chk + v_addr(SC_SLOT, V_WB) + wr[0:2]
                per[1] = wr[2:4] + adv[0:2]
                per[2] = wr[4:6] + adv[2:4]
                per[3] = wr[6:8] + adv[4:5]
                per[4] = wr[8:10]
                per[5] = wr[10:12]
                per[6] = wr[12:14]
                per[7] = wr[14:16]
            if not fullwait:
                for g in (1, 3, 5):
                    per[g] = per[g] + ["s_waitcnt lgkmcnt(12)"]
                e("s_waitcnt lgkmcnt(12)")
            a.extend(gaps(mf, per))
            fullwait = False
            if hooks.get(cidx):
                hooks[cidx]()
                fullwait = True

    ACC2 = V_O

    def hk_after_round0():
        e("s_waitcnt vmcnt(0)")
        flago_off(SC_FOFF, 1, True)
        flag_store(SC_FOFF)
        flagp_off(SC_FOFF, 0, True)
        flag_store(SC_FOFF)
        flago_off(SC_FOFF, 1, False)
        flag_poll(SC_FOFF, 4)
        load_o(1, A_OF2, [1, 2, 3])
        e("s_waitcnt vmcnt(16)")
        stamp("t1")

    task(ACC2, lambda r, s: vr(V_SA + 4 * s, 4) if r == 0 else ar(A_OF2[r] + 4 * s, 4), True,
         {3: hk_after_round0, 7: lambda: e("s_waitcnt vmcnt(8)"), 11: lambda: e("s_waitcnt vmcnt(0)")})
    e("s_nop 7")
    partial_store(ACC2, 1)
    stamp("t2")
    e("s_waitcnt vmcnt(0)")
    stamp("w0")
    flagp_off(SC_FOFF, 1, True)
    flag_store(SC_FOFF)
    reduce(0, 160)
    stamp("r0")
    reduce(1, 160)
    e("s_waitcnt vmcnt(0)")
    stamp("r1")

    a.lab("L_fin")
    savef = a.filt
    a.filt = None
    if cfg.dbgstamps:
        dsk = a.newlab("dbgsk")
        e("s_waitcnt lgkmcnt(0)")
        e("s_mov_b32 s28, -1")
        e("s_cmp_eq_u32 s2, 0")
        e("s_cselect_b32 s28, 0, s28")
        e("s_cmp_eq_u32 s2, 129")
        e("s_cselect_b32 s28, 1, s28")
        e("s_cmp_eq_u32 s28, -1")
        e("s_cbranch_scc1 %s" % dsk)
        e("s_cmp_eq_u32 %s, 0" % sr(S_WAVE))
        e("s_cbranch_scc1 %s" % (dsk + "a"))
        e("s_cmp_eq_u32 %s, 3" % sr(S_WAVE))
        e("s_cbranch_scc0 %s" % dsk)
        e("s_cmp_eq_u32 s28, 0")
        e("s_cbranch_scc0 %s" % dsk)
        e("s_mov_b32 s28, 2")
        a.lab(dsk + "a")
        e("s_lshl_b32 s28, s28, 4")
        e("s_add_u32 s28, s28, 16")
        e("v_mov_b32 v1, s28")
        for j in range(4):
            e("s_sub_u32 s29, s%d, s%d" % (S_ST + 2 * (j + 1) + (2 * 3 if j == 3 else 0), S_ST))
            e("v_mov_b32 v%d, s29" % (4 + j))
        e("s_mov_b64 exec, 1")
        e("global_store_dwordx4 v1, v[4:7], %s" % sr(KA_DBG, 2))
        e("s_waitcnt vmcnt(0)")
        a.lab(dsk)
        e("s_branch L_end")
    if cfg.stamps:
        e("s_waitcnt lgkmcnt(0)")
        for k, nm in enumerate(stl):
            if nm == "loc":
                e("s_mov_b32 %s, %s" % (sr(S_ST + 2 * k), sr(SC_LOCAL)))
        e("s_lshl_b32 s28, s2, 9")
        e("s_lshl_b32 s29, %s, 7" % sr(S_WAVE))
        e("s_add_u32 s28, s28, s29")
        e("s_add_u32 s28, s28, 0x%x" % WS_STAMP)
        e("v_mov_b32 v1, s28")
        e("s_getreg_b32 s30, hwreg(HW_REG_XCC_ID)")
        e("s_mov_b64 exec, 1")
        for k in range(4):
            for j in range(4):
                e("v_mov_b32 v%d, s%d" % (4 + j, S_ST + 4 * k + j))
            e("global_store_dwordx4 v1, v[4:7], %s offset:%d" % (sr(KA_WS, 2), 16 * k))
            e("s_waitcnt vmcnt(0)")
        e("v_mov_b32 v4, s30")
        e("global_store_dword v1, v4, %s offset:64" % sr(KA_WS, 2))
        e("s_waitcnt vmcnt(0)")
    a.lab("L_end")
    e("s_endpgm")
    a.filt = savef

    for r, b, sn in rare:
        rare_path(r, b, sn)
    for d in dispatchers:
        d()
    for stub, back, disp in stubs:
        a.lab(stub)
        e("s_call_b64 %s, %s" % (sr(SC_RET2, 2), disp))
        e("s_branch %s" % back)
    for f1, fb, fn in firsts:
        a.lab(f1)
        fn(0, first=True)
        e("s_branch %s" % fb)
    for slow, back in slowwaits:
        a.lab(slow)
        if cfg.stamps:
            e("s_add_u32 %s, %s, 1" % (sr(SC_SWC), sr(SC_SWC)))
        e("ds_read_b32 v%d, v%d" % (V_LRD, V_LADDR))
        e("s_waitcnt lgkmcnt(0)")
        e("v_readfirstlane_b32 %s, v%d" % (sr(SC_L), V_LRD))
        e("s_sub_u32 %s, %s, 1" % (sr(S_SPIN), sr(S_SPIN)))
        e("s_cmp_eq_u32 %s, 0" % sr(S_SPIN))
        e("s_cbranch_scc1 L_end")
        e("s_cmp_lt_u32 %s, %s" % (sr(SC_L), sr(SC_NEED)))
        if cfg.psleep:
            e("s_cbranch_scc0 %s" % back)
            e("s_sleep %d" % cfg.psleep)
            e("s_branch %s" % slow)
        else:
            e("s_cbranch_scc1 %s" % slow)
            e("s_branch %s" % back)
    txt = a.text()

    kd = []
    kd.append('.section .rodata,"a"')
    kd.append(".p2align 6")
    kd.append(".amdhsa_kernel %s_kernel" % NAME)
    kd.append("  .amdhsa_next_free_vgpr 512")
    kd.append("  .amdhsa_next_free_sgpr 102")
    kd.append("  .amdhsa_accum_offset 256")
    kd.append("  .amdhsa_group_segment_fixed_size 0")
    kd.append("  .amdhsa_kernarg_size 104")
    kd.append("  .amdhsa_user_sgpr_count 2")
    kd.append("  .amdhsa_user_sgpr_kernarg_segment_ptr 1")
    kd.append("  .amdhsa_system_sgpr_workgroup_id_x 1")
    kd.append(".end_amdhsa_kernel")
    return "\n".join(hdr) + "\n" + txt + "\n".join(kd) + "\n"


if __name__ == "__main__":
    import argparse
    ap = argparse.ArgumentParser()
    ap.add_argument("-o", default="cdna_kernels/%s.s" % NAME)
    ap.add_argument("--stamps", action="store_true")
    ap.add_argument("--set", action="append", default=[])
    args = ap.parse_args()
    cfg = Cfg()
    cfg.stamps = args.stamps
    for kv in args.set:
        k, v = kv.split("=", 1)
        cur = getattr(cfg, k)
        if isinstance(cur, bool):
            v = v in ("1", "True", "true")
        elif isinstance(cur, int):
            v = int(v)
        elif isinstance(cur, float):
            v = float(v)
        setattr(cfg, k, v)
    open(args.o, "w").write(build(cfg))
    print("wrote", args.o)
```

```python
import math
import struct

NAME = "concat_heads__mha_block_cached__gqa_block_cached__near_ridge"


def f32bits(x):
    return struct.unpack("<I", struct.pack("<f", x))[0]


class Cfg:
    NS = 18
    NQ = 11
    E = 7
    D = 5
    deven = 5
    dodd = 5
    polllead = 3
    stamps = False
    T_LOG2 = 8.0
    kvflags = "nt"
    wflags = ""
    woflags = "nt"
    xflags = ""
    kvsame = False
    noload = False
    nocompute = False
    noxchg = False
    stamplist = "start,qp,h0,h1,t1,t2,r0,r1"
    po_base = 10
    po_mul = 4
    pft = 20
    prefetch = True
    ytype = 1
    spin = 0x80000
    local = False
    psleep = 0
    dumpq = False
    dyntail = True
    holdw = 8
    krot = 0
    perm = True
    skipo = False
    skipwo = False
    skipq2 = False
    wsbase = 0
    oflags = "sc1"
    wo2flags = "nt"
    wq2flags = ""
    x2flags = ""
    stflags = "sc1"
    flagpass = 2
    mix = 0
    dbgstamps = False
    ablate = ""


BLK = 1088
SLOT = 8 * BLK
NQT = 28
WS_FLAGO = 0
WS_FLAGP = 65536
WS_FLAGI = 131072
WS_OBUF = 1 << 20
WS_PBUF = 16 << 20
WS_STAMP = 28 << 20
WS_USED = 32 << 20


def vr(base, n=1):
    return "v%d" % base if n == 1 else "v[%d:%d]" % (base, base + n - 1)


def ar(base, n=1):
    return "a%d" % base if n == 1 else "a[%d:%d]" % (base, base + n - 1)


def sr(base, n=1):
    return "s%d" % base if n == 1 else "s[%d:%d]" % (base, base + n - 1)


class Asm:
    def __init__(self):
        self.L = []
        self.nlab = 0
        self.filt = None

    def e(self, s):
        if self.filt and self.filt(s):
            return
        self.L.append("  " + s)

    def lab(self, name):
        self.L.append(name + ":")

    def newlab(self, base):
        self.nlab += 1
        return "L%s_%d" % (base, self.nlab)

    def extend(self, lst):
        for s in lst:
            if s.endswith(":"):
                self.lab(s[:-1])
            else:
                self.e(s)

    def text(self):
        return "\n".join(self.L) + "\n"


def gaps(primary, per_gap):
    out = []
    for p, f in zip(primary, per_gap):
        out.append(p)
        out.extend(f)
    return out


S_WG = 2
S_WAVE = 3
S_X, S_M, S_G8, S_QUAD, S_H = 20, 21, 22, 24, 25
S_SPIN = 26
S_TAU = 27
S_T0, S_T1, S_T2, S_T3 = 28, 29, 30, 31
S_RET = 32
KA_X, KA_K, KA_V, KA_WQ, KA_WO = 36, 38, 40, 42, 44
S_B4, S_BR = 46, 47
KA_OUT, KA_DBG, KA_WS = 56, 58, 60
SL_ISS, SL_PUB, SL_FMIN, SL_SLOT, SL_NEED, SL_OFF, SL_OFF2, SL_CNT, SL_CNT2, SL_KOFF, SL_VOFF, SL_ROT = range(4, 16)
SL_RET2 = 16
SL_XB, SL_WB = 18, 19
SL_NADJ = 23
SL_QSLOT = 48
SL_EVM = 49
SL_NONCE = 34
SL_THR = 50
SL_WFC = 51
SL_RND = 52
SL_PP, SL_JJ, SL_MM = 53, 54, 55
SL_R0 = 62
SRD_X, SRD_K, SRD_V, SRD_WQ, SRD_WO = 64, 68, 72, 76, 80
SC_L, SC_SLOT, SC_IDX, SC_IT, SC_T, SC_NEED, SC_SLOT2, SC_ADJ = range(4, 12)
SC_OOFF, SC_OOFF2, SC_FOFF, SC_POFF = 12, 13, 14, 15
SC_NONCE = 16
SC_RET2 = 18
SC_WRAP, SC_LOCAL, SC_XCC, SC_IDOFF, SC_EVM, SC_PADJ, SC_SAVE, SC_SWC = 72, 73, 74, 75, 76, 77, 78, 79
SC_FOFF0, SC_BIDX, SC_TL, SC_TD, SC_NEW = 80, 81, 82, 83, 48
SRD_WS, SRD_OUT = 64, 68
S_ST = 84

V_KB = 8
V_VB = 10
V_WB = 11
V_KA = 12
V_VA = 14
V_L16 = 15
V_LSUM, V_LS2, V_TMAX, V_ALPHA, V_FV, V_LADDR, V_FADDR, V_LRD = range(17, 25)
V_VB2 = 25
V_NON = 26
V_PF = 32
V_NEGM = 48
V_O = 64
V_SA = 128
V_SB = 144
V_ACCQ = 160
V_Q2 = 160
V_STG = 192
V_Q1 = 224
V_ACC1 = 192
A_AF = [0, 32]
A_KF = 64
A_VF = [96, 128]
A_XF = [160, 192]
A_OF2 = [None, 64, 96, 128]
MFMA = "v_mfma_f32_32x32x16_bf16"


def build(cfg):
    NS, D, NQ, E = cfg.NS, cfg.D, cfg.NQ, cfg.E
    assert NS == NQ + E and NS % 2 == 0 and (NQ + 3) % 2 == 0
    RING = NS * SLOT
    FLAG_L = RING
    FLAG_F = RING + 16
    LDS_BYTES = RING + 64
    a = Asm()
    e = a.e
    hdr = []
    hdr.append("; @launch grid=(256,1,1) block=(256,1,1) lds=%d" % LDS_BYTES)
    hdr.append('.amdgcn_target "amdgcn-amd-amdhsa--gfx950"')
    hdr.append(".text")
    hdr.append(".globl %s_kernel" % NAME)
    hdr.append(".p2align 8")
    hdr.append(".type %s_kernel,@function" % NAME)
    hdr.append("%s_kernel:" % NAME)
    stl = cfg.stamplist.split(",")

    def stamp(name):
        if cfg.stamps:
            for k, nm in enumerate(stl):
                if nm == name:
                    e("s_memrealtime %s" % sr(S_ST + 2 * k, 2))
                if nm == name + ".c":
                    e("s_memtime %s" % sr(S_ST + 2 * k, 2))

    def cnt(name):
        if cfg.stamps:
            for k, nm in enumerate(stl):
                if nm == name:
                    e("s_mov_b32 %s, %s" % (sr(S_ST + 2 * k), sr(SL_WFC)))

    e("s_cmp_ge_u32 s2, 256")
    e("s_cbranch_scc1 L_end")
    e("s_load_dwordx16 s[36:51], s[0:1], 0")
    e("s_load_dwordx4 s[52:55], s[0:1], 64")
    e("s_load_dwordx4 s[56:59], s[0:1], 80")
    e("s_load_dwordx2 s[60:61], s[0:1], 96")
    stamp("start")
    e("v_lshrrev_b32 v1, 6, v0")
    e("v_and_b32 v0, 63, v0")
    e("s_and_b32 %s, s2, 7" % sr(S_X))
    e("v_readfirstlane_b32 %s, v1" % sr(S_WAVE))
    e("s_lshr_b32 s28, s2, 3")
    e("s_and_b32 %s, s28, 3" % sr(S_M))
    e("s_lshr_b32 %s, s28, 2" % sr(S_G8))
    e("s_lshl_b32 %s, %s, 2" % (sr(S_H), sr(S_X)))
    e("s_add_u32 %s, %s, %s" % (sr(S_H), sr(S_H), sr(S_M)))
    e("s_lshl_b32 %s, %s, 3" % (sr(S_QUAD), sr(S_G8)))
    e("s_add_u32 %s, %s, %s" % (sr(S_QUAD), sr(S_QUAD), sr(S_X)))
    e("s_mov_b32 %s, 0x%x" % (sr(S_SPIN), cfg.spin))
    e("s_lshl_b32 %s, %s, 1" % (sr(S_TAU), sr(S_M)))
    e("s_and_b32 s29, %s, 1" % sr(S_X))
    e("s_add_u32 %s, %s, s29" % (sr(S_TAU), sr(S_TAU)))
    e("s_mul_i32 %s, %s, %d" % (sr(S_TAU), sr(S_TAU), cfg.po_mul))
    e("s_lshr_b32 %s, %s, 3" % (sr(S_TAU), sr(S_TAU)))
    e("s_add_u32 %s, %s, %d" % (sr(S_TAU), sr(S_TAU), cfg.po_base))
    e("s_cmp_lt_u32 %s, 4" % sr(S_G8))
    e("s_waitcnt lgkmcnt(0)")
    for k in range(10):
        e("s_cselect_b32 s%d, s%d, s%d" % (36 + k, 36 + k, 46 + k))
    e("s_and_b32 %s, %s, 3" % (sr(S_B4), sr(S_G8)))
    e("s_lshr_b32 %s, %s, 2" % (sr(S_BR), sr(S_G8)))
    e("s_cmp_eq_u32 %s, 3" % sr(S_WAVE))
    e("s_cbranch_scc0 L_compute")

    def srd(dst, ptr, nbytes):
        e("s_mov_b32 %s, %s" % (sr(dst), sr(ptr)))
        e("s_mov_b32 %s, %s" % (sr(dst + 1), sr(ptr + 1)))
        e("s_mov_b32 %s, 0x%x" % (sr(dst + 2), nbytes))
        e("s_mov_b32 %s, 0x20000" % sr(dst + 3))

    a.lab("L_loader")
    e("s_setprio 3")
    LV_K, LV_V, LV_X, LV_WQ, LV_WO, LV_T, LV_LADDR, LV_FADDR, LV_F = 8, 12, 16, 20, 24, 28, 29, 30, 32
    LV_O, LV_FL, LV_NON, LV_FA = 36, 200, 202, 204
    BIAS = 4096
    NB_X, NB_KV, NB_W = 8 * 96 * 512 * 2, 8 * 32 * 1024 * 128 * 2, 512 * 4096 * 2

    def srdb(dst, ptr, nbytes):
        e("s_sub_u32 %s, %s, %d" % (sr(dst), sr(ptr), BIAS))
        e("s_subb_u32 %s, %s, 0" % (sr(dst + 1), sr(ptr + 1)))
        e("s_mov_b32 %s, 0x%x" % (sr(dst + 2), nbytes + BIAS))
        e("s_mov_b32 %s, 0x20000" % sr(dst + 3))

    e("v_lshrrev_b32 v1, 4, v0")
    e("v_and_b32 v2, 15, v0")
    e("v_xor_b32 v3, v2, v1")
    e("v_lshlrev_b32 v3, 4, v3")
    e("v_lshlrev_b32 v2, 4, v2")
    e("v_lshlrev_b32 v4, 12, v1")
    e("v_lshlrev_b32 v5, 15, v1")
    e("v_lshlrev_b32 v6, 10, v1")

    def lane_offs(dst, rowpart, colpart, rs):
        e("v_add_u32 v%d, v%d, v%d" % (dst, rowpart, colpart))
        for b in range(3, 0, -1):
            e("v_add_u32 v%d, %d, v%d" % (dst + b, BIAS + b * (rs - BLK), dst))
        e("v_add_u32 v%d, %d, v%d" % (dst, BIAS, dst))

    srdb(SRD_X, KA_X, NB_X)
    srdb(SRD_WQ, KA_WQ, NB_W)
    lane_offs(LV_X, 4, 3, 1024)
    lane_offs(LV_WQ, 5, 2, 8192)
    e("s_getreg_b32 %s, hwreg(HW_REG_XCC_ID)" % sr(SL_THR))
    e("s_and_b32 %s, %s, 1" % (sr(SL_THR), sr(SL_THR)))
    if cfg.deven < cfg.dodd:
        e("s_xor_b32 %s, %s, 1" % (sr(SL_THR), sr(SL_THR)))
    e("v_mov_b32 v%d, %d" % (LV_LADDR, FLAG_L))
    e("v_mov_b32 v%d, %d" % (LV_FADDR, FLAG_F))
    e("v_mov_b32 v%d, 0" % LV_T)
    e("ds_write_b32 v%d, v%d" % (LV_LADDR, LV_T))
    e("s_mov_b32 %s, 0" % sr(SL_ISS))
    e("s_mov_b32 %s, 0" % sr(SL_PUB))
    e("s_mov_b32 %s, 0" % sr(SL_FMIN))
    e("s_mov_b32 %s, 0" % sr(SL_SLOT))
    e("s_mov_b32 %s, -1" % sr(SL_NEED))
    e("s_mov_b32 %s, 0" % sr(SL_WFC))
    e("s_add_u32 %s, %s, %s" % (sr(SL_ROT), sr(S_B4), sr(S_M)))
    e("s_and_b32 %s, %s, 3" % (sr(SL_ROT), sr(SL_ROT)))
    if cfg.noload:
        e("v_mov_b32 v%d, 100000" % LV_T)
        e("s_waitcnt lgkmcnt(0)")
        e("ds_write_b32 v%d, v%d" % (LV_LADDR, LV_T))
        e("s_waitcnt lgkmcnt(0)")
        e("s_barrier")
        e("s_branch L_fin")

    ool = []

    def publish_nb():
        e("s_getreg_b32 %s, hwreg(HW_REG_IB_STS)" % sr(S_T0))
        e("s_lshr_b32 %s, %s, 18" % (sr(S_T1), sr(S_T0)))
        e("s_and_b32 %s, %s, 15" % (sr(S_T0), sr(S_T0)))
        e("s_and_b32 %s, %s, 0x30" % (sr(S_T1), sr(S_T1)))
        e("s_add_u32 %s, %s, %s" % (sr(S_T0), sr(S_T0), sr(S_T1)))
        e("s_add_u32 %s, %s, 7" % (sr(S_T0), sr(S_T0)))
        e("s_lshr_b32 %s, %s, 3" % (sr(S_T0), sr(S_T0)))
        e("s_sub_i32 %s, %s, %s" % (sr(SL_PUB), sr(SL_ISS), sr(S_T0)))
        e("v_mov_b32 v%d, %s" % (LV_T, sr(SL_PUB)))
        e("ds_write_b32 v%d, v%d" % (LV_LADDR, LV_T))

    def issue_tile(srdreg, voff, rs, flags, wrap, nowait=False, check=True):
        if check:
            e("s_cmp_ge_i32 %s, %s" % (sr(SL_FMIN), sr(SL_NEED)))
            slow = a.newlab("lslow")
            ok = a.newlab("ok")
            e("s_cbranch_scc0 %s" % slow)
            a.lab(ok)
            ool.append((slow, ok))

        def ld(b):
            e("buffer_load_dwordx4 v%d, %s, %s offen offset:%d %s lds" % (
                voff + (b & 3), sr(srdreg, 4), sr(SL_OFF if b < 4 else SL_OFF2), (b & 3) * BLK, flags))
        e("s_mov_b32 m0, %s" % sr(SL_SLOT))
        e("s_add_u32 %s, %s, %d" % (sr(SL_OFF2), sr(SL_OFF), 16 * rs))
        ld(0)
        ld(1)
        ld(2)
        e("s_add_u32 %s, %s, 1" % (sr(SL_ISS), sr(SL_ISS)))
        ld(3)
        e("s_add_u32 m0, %s, %d" % (sr(SL_SLOT), 4 * BLK))
        e("s_add_u32 %s, %s, %d" % (sr(SL_SLOT), sr(SL_SLOT), SLOT))
        ld(4)
        e("s_cmp_lt_u32 %s, %d" % (sr(SL_SLOT), wrap))
        e("s_cselect_b32 %s, %s, 0" % (sr(SL_SLOT), sr(SL_SLOT)))
        ld(5)
        e("s_sub_i32 %s, %s, %s" % (sr(SL_NEED), sr(SL_ISS), sr(SL_NADJ)))
        ld(6)
        if cfg.deven != cfg.dodd:
            e("s_cmp_eq_u32 %s, 0" % sr(SL_THR))
        ld(7)
        if not nowait:
            dmax, dmin = max(cfg.deven, cfg.dodd), min(cfg.deven, cfg.dodd)
            e("s_waitcnt vmcnt(%d)" % (8 * dmax))
            if dmin != dmax:
                sk = a.newlab("thr")
                e("s_cbranch_scc1 %s" % sk)
                e("s_waitcnt vmcnt(%d)" % (8 * dmin))
                a.lab(sk)
            publish_nb()

    def qp_round(first_nowait=0):
        n = 0

        def after():
            if first_nowait and n == first_nowait:
                e("s_waitcnt lgkmcnt(0)")
                e("s_barrier")
        for w in range(3):
            e("s_add_u32 %s, %s, %d" % (sr(SL_OFF), sr(SL_XB), w * 32 * 1024))
            issue_tile(SRD_X, LV_X, 1024, cfg.xflags, NQ * SLOT, nowait=(n < first_nowait))
            n += 1
            after()
        for j in range(4):
            e("s_add_u32 %s, %s, %d" % (sr(SL_OFF), sr(SL_WB), j * 32 * 8192))
            issue_tile(SRD_WQ, LV_WQ, 8192, cfg.wflags, NQ * SLOT, nowait=(n < first_nowait))
            n += 1
            after()

    def qp_bases(ph, rnd):
        e("s_add_u32 %s, %s, %s" % (sr(S_T1), sr(SL_ROT), sr(rnd)))
        e("s_and_b32 %s, %s, 3" % (sr(S_T1), sr(S_T1)))
        e("s_lshl_b32 %s, %s, 8" % (sr(S_T2), sr(S_T1)))
        e("s_mul_i32 %s, %s, %d" % (sr(SL_XB), sr(S_B4), 96 * 1024))
        e("s_add_u32 %s, %s, %s" % (sr(SL_XB), sr(SL_XB), sr(S_T2)))
        if ph:
            e("s_add_u32 %s, %s, %d" % (sr(SL_XB), sr(SL_XB), 4 * 96 * 1024))
        e("s_lshl_b32 %s, %s, 20" % (sr(S_T2), sr(S_T1)))
        e("s_lshl_b32 %s, %s, 8" % (sr(SL_WB), sr(S_H)))
        e("s_add_u32 %s, %s, %s" % (sr(SL_WB), sr(SL_WB), sr(S_T2)))

    kvf = "" if cfg.kvsame else cfg.kvflags
    e("s_mov_b32 %s, %d" % (sr(SL_NADJ), NQ - 1))
    e("s_mov_b32 %s, 0" % sr(SL_CNT))
    qp_bases(0, SL_CNT)
    qp_round(first_nowait=D)
    srdb(SRD_K, KA_K, NB_KV)
    srdb(SRD_V, KA_V, NB_KV)
    srdb(SRD_WO, KA_WO, NB_W)
    lane_offs(LV_K, 6, 3, 256)
    lane_offs(LV_V, 6, 2, 256)
    lane_offs(LV_WO, 4, 2, 1024)
    e("v_lshlrev_b32 v7, 4, v0")
    for b in range(3, 0, -1):
        e("v_add_u32 v%d, %d, v7" % (LV_O + b, BIAS + b * (1024 - BLK)))
    e("v_add_u32 v%d, %d, v7" % (LV_O, BIAS))
    e("v_min_u32 v7, 11, v0")
    e("v_lshrrev_b32 v%d, 2, v7" % LV_FA)
    e("v_lshlrev_b32 v%d, 7, v%d" % (LV_FA, LV_FA))
    e("v_and_b32 v7, 3, v7")
    e("v_lshlrev_b32 v7, 3, v7")
    e("v_add_u32 v%d, v%d, v7" % (LV_FA, LV_FA))
    e("v_add_u32 v%d, %d, v%d" % (LV_FA, BIAS, LV_FA))
    e("s_lshl_b32 %s, %s, 5" % (sr(S_T1), sr(S_B4)))
    e("s_add_u32 %s, %s, %s" % (sr(S_T1), sr(S_T1), sr(S_H)))
    e("s_lshl_b32 %s, %s, 18" % (sr(SL_KOFF), sr(S_T1)))
    e("s_mul_i32 %s, %s, %d" % (sr(SL_R0), sr(S_WG), cfg.krot))
    e("s_and_b32 %s, %s, 31" % (sr(SL_R0), sr(SL_R0)))
    e("s_lshl_b32 %s, %s, 13" % (sr(SL_R0), sr(SL_R0)))
    stamp("q3")

    def kv_off(rel_sgpr, imm):
        if rel_sgpr is None:
            e("s_add_u32 %s, %s, %d" % (sr(SL_OFF), sr(SL_R0), imm))
        else:
            e("s_add_u32 %s, %s, %d" % (sr(SL_OFF), sr(rel_sgpr), imm))
        e("s_and_b32 %s, %s, 0x3ffff" % (sr(SL_OFF), sr(SL_OFF)))
        e("s_add_u32 %s, %s, %s" % (sr(SL_OFF), sr(SL_OFF), sr(SL_KOFF)))

    def early_tiles():
        e("s_mov_b32 %s, %s" % (sr(SL_QSLOT), sr(SL_SLOT)))
        e("s_mov_b32 %s, %d" % (sr(SL_SLOT), NQ * SLOT))
        seq = [("K", 0), ("K", 1), ("V", 0)]
        t = 0
        while len(seq) < E:
            seq += [("K", t + 2), ("V", t + 1)]
            t += 1
        assert len(seq) == E
        for kind, t in seq:
            kv_off(None, 0 if cfg.kvsame else t * 8192)
            if kind == "K":
                issue_tile(SRD_K, LV_K, 256, kvf, RING, check=False)
            else:
                issue_tile(SRD_V, LV_V, 256, kvf, RING, check=False)
        e("s_mov_b32 %s, %s" % (sr(SL_SLOT), sr(SL_QSLOT)))

    npairs_early = (E - 3) // 2
    if cfg.ytype == 1:
        e("s_and_b32 %s, %s, 1" % (sr(S_T3), sr(S_M)))
        e("s_cmp_eq_u32 %s, 0" % sr(S_T3))
        e("s_cbranch_scc1 L_ld_x1")
    if cfg.ytype in (1, 2):
        early_tiles()
        e("s_mov_b32 %s, %d" % (sr(SL_NADJ), NQ - 1 + E))
        e("s_sub_i32 %s, %s, %s" % (sr(SL_NEED), sr(SL_ISS), sr(SL_NADJ)))
    a.lab("L_ld_x1")
    e("s_mov_b32 %s, 1" % sr(SL_CNT))
    a.lab("L_ld_qp1")
    qp_bases(0, SL_CNT)
    qp_round()
    if cfg.stamps:
        for rr in (1, 2, 3):
            nm = "q%d" % (4 * rr + 3)
            if nm in stl:
                sk = a.newlab("sk")
                e("s_cmp_eq_u32 %s, %d" % (sr(SL_CNT), rr))
                e("s_cbranch_scc0 %s" % sk)
                stamp(nm)
                a.lab(sk)
    e("s_add_u32 %s, %s, 1" % (sr(SL_CNT), sr(SL_CNT)))
    e("s_cmp_lt_u32 %s, 4" % sr(SL_CNT))
    e("s_cbranch_scc1 L_ld_qp1")
    if cfg.ytype == 1:
        e("s_and_b32 %s, %s, 1" % (sr(S_T3), sr(S_M)))
        e("s_cmp_eq_u32 %s, 0" % sr(S_T3))
        e("s_cbranch_scc0 L_ld_y2")
    if cfg.ytype in (0, 1):
        early_tiles()
    a.lab("L_ld_y2")
    stamp("qp")
    cnt("cq")
    e("s_mov_b32 %s, 0" % sr(SL_SLOT))
    e("s_mov_b32 %s, %d" % (sr(SL_NADJ), NS - 1))
    e("s_mov_b32 %s, %d" % (sr(SL_NEED), NQT))
    e("v_mov_b32 v7, 0")
    e("global_load_dwordx2 %s, v7, %s sc1" % (vr(LV_NON, 2), sr(KA_DBG, 2)))
    e("s_mov_b32 %s, 0x55555554" % sr(SL_EVM))
    e("s_mov_b32 %s, 0" % sr(SL_CNT2))
    e("s_add_u32 %s, %s, %d" % (sr(SL_VOFF), sr(SL_R0), 0 if cfg.kvsame else npairs_early * 8192))
    e("s_mov_b32 %s, %d" % (sr(SL_CNT), npairs_early))
    assert npairs_early == 2
    e("s_branch L_ld_disp")
    a.lab("L_ld_head")
    kv_off(None, 0)
    issue_tile(SRD_K, LV_K, 256, kvf, RING)
    kv_off(None, 8192)
    issue_tile(SRD_K, LV_K, 256, kvf, RING)
    kv_off(None, 0)
    issue_tile(SRD_V, LV_V, 256, kvf, RING)
    e("s_mov_b32 %s, %s" % (sr(SL_VOFF), sr(SL_R0)))
    e("s_mov_b32 %s, 0" % sr(SL_CNT))
    a.lab("L_ld_kv")
    kv_off(SL_VOFF, 16384)
    issue_tile(SRD_K, LV_K, 256, kvf, RING)
    kv_off(SL_VOFF, 8192)
    issue_tile(SRD_V, LV_V, 256, kvf, RING)
    if not cfg.kvsame:
        e("s_add_u32 %s, %s, 8192" % (sr(SL_VOFF), sr(SL_VOFF)))
    e("s_add_u32 %s, %s, 1" % (sr(SL_CNT), sr(SL_CNT)))
    e("s_bitcmp1_b32 %s, %s" % (sr(SL_EVM), sr(SL_CNT)))
    e("s_cbranch_scc1 L_ld_disp")
    a.lab("L_ld_evret")
    e("s_cmp_lt_u32 %s, 30" % sr(SL_CNT))
    e("s_cbranch_scc1 L_ld_kv")
    kv_off(SL_VOFF, 8192)
    issue_tile(SRD_V, LV_V, 256, kvf, RING)
    e("s_cmp_eq_u32 %s, 0" % sr(SL_CNT2))
    e("s_cbranch_scc0 L_ld_tail")
    stamp("h0")
    cnt("c0")
    e("s_add_u32 %s, %s, %d" % (sr(SL_KOFF), sr(SL_KOFF), 4 * 32 * 262144))
    if cfg.wsbase:
        e("s_add_u32 %s, %s, 0x%x" % (sr(KA_WS), sr(KA_WS), cfg.wsbase << 20))
        e("s_addc_u32 %s, %s, 0" % (sr(KA_WS + 1), sr(KA_WS + 1)))
    srdb(SRD_X, KA_WS, WS_USED)
    if not cfg.noxchg and not cfg.nocompute:
        okn = a.newlab("lnok")
        e("v_readfirstlane_b32 %s, v%d" % (sr(SL_NONCE), LV_NON))
        e("v_readfirstlane_b32 %s, v%d" % (sr(SL_NONCE + 1), LV_NON + 1))
        e("s_nop 3")
        e("s_cmp_lg_u32 %s, 0" % sr(SL_NONCE))
        e("s_cbranch_scc1 %s" % okn)
        lpn = a.newlab("lnlp")
        a.lab(lpn)
        e("v_mov_b32 v7, 0")
        e("global_load_dwordx2 %s, v7, %s sc1" % (vr(LV_NON, 2), sr(KA_DBG, 2)))
        e("s_waitcnt vmcnt(0)")
        e("v_readfirstlane_b32 %s, v%d" % (sr(SL_NONCE), LV_NON))
        e("v_readfirstlane_b32 %s, v%d" % (sr(SL_NONCE + 1), LV_NON + 1))
        e("s_sub_u32 %s, %s, 1" % (sr(S_SPIN), sr(S_SPIN)))
        e("s_cmp_eq_u32 %s, 0" % sr(S_SPIN))
        e("s_cbranch_scc1 L_end")
        e("s_cmp_eq_u32 %s, 0" % sr(SL_NONCE))
        e("s_cbranch_scc1 %s" % lpn)
        a.lab(okn)
    e("s_mov_b32 %s, 1" % sr(SL_CNT2))
    e("s_branch L_ld_head")
    a.lab("L_ld_tail")
    stamp("h1")
    cnt("c1")
    e("s_mov_b32 %s, 0" % sr(SL_XB))
    a.lab("L_ld_wo_r")
    e("s_add_u32 %s, %s, %s" % (sr(S_T1), sr(S_M), sr(SL_XB)))
    e("s_and_b32 %s, %s, 3" % (sr(S_T1), sr(S_T1)))
    e("s_lshl_b32 %s, %s, 17" % (sr(S_T1), sr(S_T1)))
    e("s_lshl_b32 %s, %s, 19" % (sr(SL_WB), sr(S_X)))
    e("s_add_u32 %s, %s, %s" % (sr(SL_WB), sr(SL_WB), sr(S_T1)))
    e("s_lshl_b32 %s, %s, 8" % (sr(S_T1), sr(S_M)))
    e("s_add_u32 %s, %s, %s" % (sr(SL_WB), sr(SL_WB), sr(S_T1)))
    if cfg.holdw < 16:
        skh = a.newlab("hold")
        e("s_cmp_eq_u32 %s, %d" % (sr(SL_XB), cfg.holdw // 4))
        e("s_cbranch_scc0 %s" % skh)
        e("s_add_u32 %s, %s, 32" % (sr(SL_NEED), sr(SL_ISS)))
        a.lab(skh)
    for j in range(4):
        e("s_add_u32 %s, %s, %d" % (sr(SL_OFF), sr(SL_WB), j * 32 * 1024))
        issue_tile(SRD_WO, LV_WO, 1024, cfg.wo2flags, RING)
    e("s_add_u32 %s, %s, 1" % (sr(SL_XB), sr(SL_XB)))
    e("s_cmp_lt_u32 %s, 4" % sr(SL_XB))
    e("s_cbranch_scc1 L_ld_wo_r")
    a.lab("L_ld_drain")
    publish_nb()
    e("s_cmp_lt_i32 %s, %s" % (sr(SL_PUB), sr(SL_ISS)))
    e("s_cbranch_scc1 L_ld_drain")
    e("s_waitcnt lgkmcnt(0)")
    stamp("t2")
    e("s_branch L_fin")

    def pf_tile(srdreg, voff, rs, flags, vdst):
        e("s_add_u32 %s, %s, %d" % (sr(SL_OFF2), sr(SL_OFF), 16 * rs))
        for b in range(8):
            e("buffer_load_dwordx4 %s, v%d, %s, %s offen offset:%d %s" % (
                vr(vdst + 4 * b, 4), voff + (b & 3), sr(srdreg, 4), sr(SL_OFF if b < 4 else SL_OFF2),
                (b & 3) * BLK, flags))

    def flag_poll_issue_l():
        e("s_lshl_b32 %s, %s, 9" % (sr(S_T1), sr(S_QUAD)))
        e("buffer_load_dwordx2 %s, v%d, %s, %s offen sc1" % (vr(LV_FL, 2), LV_FA, sr(SRD_X, 4), sr(S_T1)))

    def flag_check_l(tgt_ok):
        e("v_cmp_ne_u32 vcc, %s, v%d" % (sr(SL_NONCE), LV_FL))
        e("v_cmp_ne_u32 s[28:29], %s, v%d" % (sr(SL_NONCE + 1), LV_FL + 1))
        e("s_nop 3")
        e("s_or_b64 vcc, vcc, s[28:29]")
        if cfg.perm:
            e("s_lshl_b32 s28, 0x111, %s" % sr(SL_MM))
            e("s_and_b32 s28, s28, vcc_lo")
        e("s_cbranch_scc0 %s" % tgt_ok)

    a.lab("L_ld_disp")
    e("s_lshr_b32 %s, %s, 1" % (sr(SL_PP), sr(SL_CNT)))
    e("s_sub_u32 %s, %s, 1" % (sr(SL_PP), sr(SL_PP)))
    e("s_lshr_b32 %s, %s, 2" % (sr(SL_RND), sr(SL_PP)))
    e("s_and_b32 %s, %s, 3" % (sr(SL_JJ), sr(SL_PP)))
    e("s_cmp_eq_u32 %s, 0" % sr(SL_CNT2))
    e("s_cbranch_scc0 L_ld_x2")
    e("s_cmp_eq_u32 %s, 0" % sr(SL_JJ))
    e("s_cbranch_scc0 L_ld_w1")
    qp_bases(1, SL_RND)
    for w in range(3):
        e("s_add_u32 %s, %s, %d" % (sr(SL_OFF), sr(SL_XB), w * 32 * 1024))
        issue_tile(SRD_X, LV_X, 1024, cfg.x2flags, RING)
    a.lab("L_ld_w1")
    e("s_lshl_b32 %s, %s, 18" % (sr(SL_OFF), sr(SL_JJ)))
    e("s_add_u32 %s, %s, %s" % (sr(SL_OFF), sr(SL_OFF), sr(SL_WB)))
    issue_tile(SRD_WQ, LV_WQ, 8192, cfg.wq2flags, RING)
    e("s_cmp_eq_u32 %s, 14" % sr(SL_PP))
    e("s_cbranch_scc0 L_ld_evret")
    e("s_add_u32 %s, %s, %d" % (sr(SL_OFF), sr(SL_WB), 3 * 32 * 8192))
    issue_tile(SRD_WQ, LV_WQ, 8192, cfg.wq2flags, RING)
    e("s_branch L_ld_evret")
    a.lab("L_ld_x2")
    if not cfg.noxchg and not cfg.nocompute:
        skp = a.newlab("skp")
        if cfg.perm:
            e("s_cmp_eq_u32 %s, 2" % sr(SL_JJ))
        else:
            e("s_cmp_eq_u32 %s, 2" % sr(SL_PP))
        e("s_cbranch_scc0 %s" % skp)
        flag_poll_issue_l()
        a.lab(skp)
    e("s_cmp_eq_u32 %s, 0" % sr(SL_JJ))
    e("s_cbranch_scc0 L_ld_w2")
    if cfg.perm:
        e("s_brev_b32 %s, %s" % (sr(S_T2), sr(SL_RND)))
        e("s_lshr_b32 %s, %s, 30" % (sr(S_T2), sr(S_T2)))
        e("s_add_u32 %s, %s, %s" % (sr(S_T2), sr(S_M), sr(S_T2)))
    else:
        e("s_add_u32 %s, %s, %s" % (sr(S_T2), sr(S_M), sr(SL_RND)))
    e("s_and_b32 %s, %s, 3" % (sr(S_T2), sr(S_T2)))
    e("s_mov_b32 %s, %s" % (sr(SL_MM), sr(S_T2)))
    e("s_lshl_b32 %s, %s, 17" % (sr(S_T1), sr(S_T2)))
    e("s_lshl_b32 %s, %s, 19" % (sr(SL_WB), sr(S_X)))
    e("s_add_u32 %s, %s, %s" % (sr(SL_WB), sr(SL_WB), sr(S_T1)))
    e("s_lshl_b32 %s, %s, 8" % (sr(S_T1), sr(S_M)))
    e("s_add_u32 %s, %s, %s" % (sr(SL_WB), sr(SL_WB), sr(S_T1)))
    e("s_lshl_b32 %s, %s, 2" % (sr(S_T3), sr(S_QUAD)))
    e("s_add_u32 %s, %s, %s" % (sr(S_T2), sr(S_T2), sr(S_T3)))
    e("s_mul_i32 %s, %s, 24576" % (sr(S_T2), sr(S_T2)))
    e("s_add_u32 %s, %s, %d" % (sr(SL_XB), sr(S_T2), WS_OBUF))
    e("s_cmp_eq_u32 %s, 0" % sr(SL_RND))
    e("s_cbranch_scc1 L_ld_w2")
    if not cfg.noxchg and not cfg.nocompute:
        okf = a.newlab("lfok")
        if not cfg.perm:
            e("s_cmp_eq_u32 %s, 1" % sr(SL_RND))
            e("s_cbranch_scc0 %s" % okf)
        stamp("e2")
        flag_check_l(okf)
        lpf = a.newlab("lfl")
        a.lab(lpf)
        flag_poll_issue_l()
        e("s_waitcnt vmcnt(0)")
        e("s_sub_u32 %s, %s, 1" % (sr(S_SPIN), sr(S_SPIN)))
        e("s_cmp_eq_u32 %s, 0" % sr(S_SPIN))
        e("s_cbranch_scc1 L_end")
        flag_check_l(okf)
        e("s_branch %s" % lpf)
        a.lab(okf)
        if cfg.stamps:
            skq = a.newlab("skq")
            e("s_cmp_eq_u32 %s, 1" % sr(SL_RND))
            e("s_cbranch_scc0 %s" % skq)
            stamp("e3")
            a.lab(skq)
    for w in range(3):
        e("s_add_u32 %s, %s, %d" % (sr(SL_OFF), sr(SL_XB), w * 8192))
        issue_tile(SRD_X, LV_O, 256, cfg.oflags, RING)
    a.lab("L_ld_w2")
    e("s_lshl_b32 %s, %s, 15" % (sr(SL_OFF), sr(SL_JJ)))
    e("s_add_u32 %s, %s, %s" % (sr(SL_OFF), sr(SL_OFF), sr(SL_WB)))
    issue_tile(SRD_WO, LV_WO, 1024, cfg.woflags, RING)
    e("s_cmp_eq_u32 %s, 14" % sr(SL_PP))
    e("s_cbranch_scc0 L_ld_evret")
    e("s_add_u32 %s, %s, %d" % (sr(SL_OFF), sr(SL_WB), 3 * 32 * 1024))
    issue_tile(SRD_WO, LV_WO, 1024, cfg.woflags, RING)
    e("s_branch L_ld_evret")

    for slow, ok in ool:
        a.lab(slow)
        e("s_call_b64 %s, L_waitfree" % sr(S_RET, 2))
        e("s_branch %s" % ok)
    a.lab("L_waitfree")
    if cfg.stamps:
        e("s_add_u32 %s, %s, 1" % (sr(SL_WFC), sr(SL_WFC)))
    e("ds_read_b96 v[%d:%d], v%d" % (LV_F, LV_F + 2, LV_FADDR))
    publish_nb()
    e("s_waitcnt lgkmcnt(1)")
    e("v_min3_u32 v%d, v%d, v%d, v%d" % (LV_F, LV_F, LV_F + 1, LV_F + 2))
    e("s_sub_u32 %s, %s, 1" % (sr(S_SPIN), sr(S_SPIN)))
    e("v_readfirstlane_b32 %s, v%d" % (sr(SL_FMIN), LV_F))
    e("s_cmp_eq_u32 %s, 0" % sr(S_SPIN))
    e("s_cbranch_scc1 L_end")
    e("s_nop 1")
    e("s_cmp_ge_i32 %s, %s" % (sr(SL_FMIN), sr(SL_NEED)))
    e("s_cbranch_scc0 L_waitfree")
    e("s_setpc_b64 %s" % sr(S_RET, 2))

    if cfg.noxchg:
        a.filt = lambda sx: (sx.startswith("buffer_") or sx.startswith("global_load")
                             or sx.startswith("global_store_dwordx2"))
    a.lab("L_compute")
    e("v_and_b32 v1, 3, v0")
    e("v_lshrrev_b32 v2, 5, v0")
    e("v_lshrrev_b32 v3, 4, v0")
    e("v_and_b32 v3, 1, v3")
    e("v_lshrrev_b32 v4, 2, v0")
    e("v_and_b32 v4, 3, v4")
    e("v_lshlrev_b32 v5, 2, v3")
    e("v_add_u32 v5, v5, v1")
    e("s_movk_i32 %s, %d" % (sr(S_T0), BLK))
    e("v_mul_lo_u32 v5, v5, %s" % sr(S_T0))
    e("v_lshlrev_b32 v6, 8, v4")
    e("v_add_u32 v5, v5, v6")
    for par in range(2):
        e("v_add_u32 v6, %d, v2" % (2 * par))
        e("v_xor_b32 v6, v6, v4")
        e("v_lshlrev_b32 v6, 4, v6")
        e("v_add_u32 v%d, v5, v6" % (V_KB + par))
    e("v_lshrrev_b32 v6, 1, v1")
    e("v_and_b32 v7, 1, v1")
    e("v_lshlrev_b32 v7, 1, v7")
    e("v_or_b32 v6, v6, v7")
    e("v_lshlrev_b32 v6, 3, v6")
    e("v_lshlrev_b32 v7, 5, v3")
    e("v_add_u32 v6, v6, v7")
    e("v_mul_lo_u32 v7, v4, %s" % sr(S_T0))
    e("v_add_u32 v6, v6, v7")
    e("v_lshlrev_b32 v7, 8, v2")
    e("v_add_u32 v%d, v6, v7" % V_VB)
    e("v_add_u32 v%d, v%d, v7" % (V_WB, V_VB))
    e("v_add_u32 v%d, %d, v%d" % (V_VB2, SLOT, V_VB))
    e("v_mov_b32 v%d, %d" % (V_LADDR, FLAG_L))
    e("s_lshl_b32 %s, %s, 2" % (sr(S_T0), sr(S_WAVE)))
    e("s_add_u32 %s, %s, %d" % (sr(S_T0), sr(S_T0), FLAG_F))
    e("v_mov_b32 v%d, %s" % (V_FADDR, sr(S_T0)))
    e("v_mov_b32 v%d, %d" % (V_FV, 100000 if cfg.nocompute else 0))
    e("ds_write_b32 v%d, v%d" % (V_FADDR, V_FV))
    e("v_lshlrev_b32 v%d, 4, v0" % V_L16)
    e("s_mov_b32 %s, 0" % sr(SC_L))
    e("s_mov_b32 %s, 0" % sr(SC_SWC))
    c = (128 ** -0.5) * math.log2(math.e)
    e("s_mov_b32 %s, 0x%x" % (sr(SC_T), f32bits(cfg.T_LOG2)))
    e("s_mov_b32 %s, 0" % sr(SC_IDX))
    e("s_mov_b32 %s, 0" % sr(SC_SLOT))
    e("s_mov_b32 %s, %d" % (sr(SC_WRAP), NQ * SLOT))
    if cfg.ytype == 1:
        e("s_and_b32 %s, %s, 1" % (sr(S_T1), sr(S_M)))
        e("s_mul_i32 %s, %s, %d" % (sr(SC_PADJ), sr(S_T1), E))
    else:
        e("s_mov_b32 %s, %d" % (sr(SC_PADJ), E if cfg.ytype == 2 else 0))
    e("s_mov_b32 %s, 0" % sr(SC_ADJ))
    if cfg.wsbase:
        e("s_add_u32 %s, %s, 0x%x" % (sr(KA_WS), sr(KA_WS), cfg.wsbase << 20))
        e("s_addc_u32 %s, %s, 0" % (sr(KA_WS + 1), sr(KA_WS + 1)))
    srd(SRD_WS, KA_WS, WS_USED)
    srd(SRD_OUT, KA_OUT, 8 * 96 * 1024 * 2)
    e("s_or_b32 %s, %s, %s" % (sr(S_T0), sr(S_WG), sr(S_WAVE)))
    e("s_cmp_eq_u32 %s, 0" % sr(S_T0))
    e("s_cbranch_scc0 L_nononce")
    e("s_memrealtime %s" % sr(SC_NONCE, 2))
    e("s_waitcnt lgkmcnt(0)")
    e("s_or_b32 %s, %s, 1" % (sr(SC_NONCE), sr(SC_NONCE)))
    e("v_mov_b32 v2, %s" % sr(SC_NONCE))
    e("v_mov_b32 v3, %s" % sr(SC_NONCE + 1))
    e("v_mov_b32 v1, 0")
    e("global_store_dwordx2 v1, v[2:3], %s sc1" % sr(KA_DBG, 2))
    a.lab("L_nononce")
    e("s_waitcnt lgkmcnt(0)")
    e("s_barrier")
    stamp("bar")
    if cfg.nocompute:
        e("s_branch L_fin")

    slowwaits = []

    def wait_landed_l(delta, adj=False):
        slow = a.newlab("lw_slow")
        back = a.newlab("lw_back")
        slowwaits.append((slow, back))
        out = ["s_add_u32 %s, %s, %d" % (sr(SC_NEED), sr(SC_IDX), delta)]
        if adj:
            out.append("s_add_u32 %s, %s, %s" % (sr(SC_NEED), sr(SC_NEED), sr(SC_ADJ)))
        out += ["s_cmp_lt_u32 %s, %s" % (sr(SC_L), sr(SC_NEED)),
                "s_cbranch_scc1 %s" % slow,
                back + ":"]
        return out

    def wait_landed(delta, adj=False):
        a.extend(wait_landed_l(delta, adj))

    def slot_adv_l(dst, src, n):
        return ["s_add_u32 %s, %s, %d" % (sr(dst), sr(src), n * SLOT),
                "s_sub_u32 %s, %s, %s" % (sr(S_T0), sr(dst), sr(SC_WRAP)),
                "s_cmp_lt_u32 %s, %s" % (sr(dst), sr(SC_WRAP)),
                "s_cselect_b32 %s, %s, %s" % (sr(dst), sr(dst), sr(S_T0))]

    def slot_adv(dst, src, n):
        a.extend(slot_adv_l(dst, src, n))

    def release_l(sg):
        return ["v_mov_b32 v%d, %s" % (V_FV, sr(sg)), "ds_write_b32 v%d, v%d" % (V_FADDR, V_FV)]

    def k_addr(slot):
        return ["v_add_u32 v%d, %s, v%d" % (V_KA + p, sr(slot), V_KB + p) for p in range(2)]

    def k_reads(dst_a):
        return ["ds_read_b128 %s, v%d offset:%d" % (ar(dst_a + 4 * s, 4), V_KA + (s & 1), (s >> 1) * 64)
                for s in range(8)]

    def v_addr(slot, base):
        return ["v_add_u32 v%d, %s, v%d" % (V_VA, sr(slot), base)]

    def v_reads(dst_a, isw):
        out = []
        for ks in range(2):
            for db in range(4):
                base = dst_a + (ks * 4 + db) * 4
                o2 = 256 if isw else 512
                o = ks * 4 * BLK + db * 64
                out.append("ds_read_b64_tr_b16 %s, v%d offset:%d" % (ar(base, 2), V_VA, o))
                out.append("ds_read_b64_tr_b16 %s, v%d offset:%d" % (ar(base + 2, 2), V_VA, o + o2))
        return out

    def wave_slot(dst, n):
        return ["s_mul_i32 %s, %s, %d" % (sr(S_T1), sr(S_WAVE), SLOT),
                "s_add_u32 %s, %s, %s" % (sr(dst), sr(SC_SLOT), sr(S_T1))] + slot_adv_l(dst, dst, n)

    def x_fetch(buf):
        out = wave_slot(SC_SLOT2, 0) + k_addr(SC_SLOT2) + k_reads(A_XF[buf])
        out += slot_adv_l(SC_SLOT, SC_SLOT, 3)
        return out

    wait_landed(4, True)
    a.extend(x_fetch(0))
    a.extend(v_addr(SC_SLOT, V_WB))
    a.extend(v_reads(A_AF[0], True))
    e("s_add_u32 %s, %s, 4" % (sr(SC_IDX), sr(SC_IDX)))
    slot_adv(SC_SLOT, SC_SLOT, 1)
    for cidx in range(16):
        r, j = divmod(cidx, 4)
        e("s_waitcnt lgkmcnt(0)")
        mf = []
        for ks in range(2):
            for db in range(4):
                acc = V_ACCQ + 16 * db
                cin = "0" if (cidx == 0 and ks == 0) else vr(acc, 16)
                mf.append("%s %s, %s, %s, %s" % (
                    MFMA, vr(acc, 16), ar(A_AF[cidx & 1] + (ks * 4 + db) * 4, 4),
                    ar(A_XF[r & 1] + (2 * j + ks) * 4, 4), cin))
        fill = []
        if cidx < 15:
            nx = 3 if j == 3 else 0
            if cidx == 3:
                fill += ["s_mov_b32 %s, %s" % (sr(SC_ADJ), sr(SC_PADJ))]
            fill += wait_landed_l(nx + 1, True)
            if nx:
                fill += x_fetch((r + 1) & 1)
            fill += v_addr(SC_SLOT, V_WB) + v_reads(A_AF[(cidx + 1) & 1], True)
            fill += release_l(SC_IDX)
            fill += ["s_add_u32 %s, %s, %d" % (sr(SC_IDX), sr(SC_IDX), nx + 1)] + slot_adv_l(SC_SLOT, SC_SLOT, 1)
        else:
            fill += release_l(SC_IDX)
        ng = 6
        per = [[] for _ in range(8)]
        items = fill
        n = len(items)
        pos = 0
        for g in range(ng):
            tgt = max((n * (g + 1)) // ng, pos)
            while tgt < n and items[tgt].endswith(":"):
                tgt += 1
            per[g] = items[pos:tgt]
            pos = tgt
        a.extend(gaps(mf, per))
        if cfg.stamps and ("q%d" % cidx) in stl:
            stamp("q%d" % cidx)

    def q_convert(dst):
        e("s_nop 7")
        e("s_nop 3")
        e("s_mov_b32 %s, 0x%x" % (sr(S_T1), f32bits(c)))
        for i in range(32):
            e("v_mul_f32 v%d, %s, v%d" % (V_ACCQ + 2 * i, sr(S_T1), V_ACCQ + 2 * i))
            e("v_mul_f32 v%d, %s, v%d" % (V_ACCQ + 2 * i + 1, sr(S_T1), V_ACCQ + 2 * i + 1))
            e("v_cvt_pk_bf16_f32 v%d, v%d, v%d" % (dst + i, V_ACCQ + 2 * i, V_ACCQ + 2 * i + 1))
    q_convert(V_Q1)
    e("s_mov_b32 %s, %d" % (sr(SC_SLOT), NQ * SLOT))
    e("s_mov_b32 %s, %d" % (sr(SC_WRAP), RING))
    stamp("qp")

    def qk_mfmas(sdst, qbase, cin):
        return ["%s %s, %s, %s, %s" % (MFMA, vr(sdst, 16), ar(A_KF + 4 * s, 4), vr(qbase + 4 * s, 4),
                                       cin if s == 0 else vr(sdst, 16)) for s in range(8)]

    def softmax_gaps(sc):
        g = []
        for k in range(8):
            l = ["v_exp_f32 v%d, v%d" % (sc + 2 * k, sc + 2 * k),
                 "v_exp_f32 v%d, v%d" % (sc + 2 * k + 1, sc + 2 * k + 1)]
            if k > 0:
                p = k - 1
                l += ["v_add_f32 v%d, v%d, v%d" % (V_LSUM, V_LSUM, sc + 2 * p),
                      "v_add_f32 v%d, v%d, v%d" % (V_LS2, V_LS2, sc + 2 * p + 1),
                      "v_cvt_pk_bf16_f32 v%d, v%d, v%d" % (V_PF + p, sc + 2 * p, sc + 2 * p + 1)]
            g.append(l)
        tail = ["v_add_f32 v%d, v%d, v%d" % (V_LSUM, V_LSUM, sc + 14),
                "v_add_f32 v%d, v%d, v%d" % (V_LS2, V_LS2, sc + 15),
                "v_cvt_pk_bf16_f32 v%d, v%d, v%d" % (V_PF + 7, sc + 14, sc + 15)]
        return g, tail

    def pv_mfmas(vf):
        out = []
        for ks in range(2):
            for db in range(4):
                out.append("%s %s, %s, %s, %s" % (
                    MFMA, vr(V_O + 16 * db, 16), ar(vf + (ks * 4 + db) * 4, 4), vr(V_PF + 4 * ks, 4),
                    vr(V_O + 16 * db, 16)))
        return out

    def max_valu(sn):
        out = ["v_max3_f32 v%d, v%d, v%d, v%d" % (V_TMAX, sn, sn + 1, sn + 2)]
        for i in range(3, 15, 2):
            out.append("v_max3_f32 v%d, v%d, v%d, v%d" % (V_TMAX, V_TMAX, sn + i, sn + i + 1))
        out.append("v_max_f32 v%d, v%d, v%d" % (V_TMAX, V_TMAX, sn + 15))
        return out

    def cross_half_max():
        e("v_mov_b32 v1, v%d" % V_TMAX)
        e("s_nop 1")
        e("v_permlane32_swap_b32 v%d, v1" % V_TMAX)
        e("s_nop 1")
        e("v_max_f32 v%d, v%d, v1" % (V_TMAX, V_TMAX))

    def rare_path(lab, back, sn):
        a.lab(lab)
        cross_half_max()
        e("v_max_f32 v%d, 0, v%d" % (V_TMAX, V_TMAX))
        e("v_sub_f32 v%d, 0, v%d" % (V_ALPHA, V_TMAX))
        e("v_exp_f32 v%d, v%d" % (V_ALPHA, V_ALPHA))
        for i in range(16):
            e("v_sub_f32 v%d, v%d, v%d" % (sn + i, sn + i, V_TMAX))
        for i in range(16):
            e("v_sub_f32 v%d, v%d, v%d" % (V_NEGM + i, V_NEGM + i, V_TMAX))
        e("v_mul_f32 v%d, v%d, v%d" % (V_LSUM, V_LSUM, V_ALPHA))
        e("v_mul_f32 v%d, v%d, v%d" % (V_LS2, V_LS2, V_ALPHA))
        for i in range(64):
            e("v_mul_f32 v%d, v%d, v%d" % (V_O + i, V_O + i, V_ALPHA))
        e("s_branch %s" % back)

    rare = []
    dispatchers = []

    def get_nonce():
        if cfg.noxchg:
            return
        lp = a.newlab("nonce")
        a.lab(lp)
        e("v_mov_b32 v1, 0")
        e("global_load_dwordx2 v[2:3], v1, %s sc1" % sr(KA_DBG, 2))
        e("s_waitcnt vmcnt(0)")
        e("v_readfirstlane_b32 %s, v2" % sr(SC_NONCE))
        e("v_readfirstlane_b32 %s, v3" % sr(SC_NONCE + 1))
        e("s_sub_u32 %s, %s, 1" % (sr(S_SPIN), sr(S_SPIN)))
        e("s_cmp_eq_u32 %s, 0" % sr(S_SPIN))
        e("s_cbranch_scc1 L_end")
        e("s_cmp_eq_u32 %s, 0" % sr(SC_NONCE))
        e("s_cbranch_scc1 %s" % lp)

    def flag_store(off_sgpr, local=False, hi=None):
        e("v_mov_b32 v2, %s" % sr(SC_NONCE))
        e("v_mov_b32 v3, %s" % sr(SC_NONCE + 1 if hi is None else hi))
        e("v_mov_b32 v1, 0")
        e("s_mov_b64 s[34:35], exec")
        e("s_mov_b64 exec, 1")
        if local and cfg.local:
            gl = a.newlab("fsg")
            dn = a.newlab("fsd")
            e("s_cmp_eq_u32 %s, 0" % sr(SC_LOCAL))
            e("s_cbranch_scc1 %s" % gl)
            e("buffer_store_dwordx2 v[2:3], v1, %s, %s offen" % (sr(SRD_WS, 4), sr(off_sgpr)))
            e("s_branch %s" % dn)
            a.lab(gl)
            e("buffer_store_dwordx2 v[2:3], v1, %s, %s offen sc1" % (sr(SRD_WS, 4), sr(off_sgpr)))
            a.lab(dn)
        else:
            e("buffer_store_dwordx2 v[2:3], v1, %s, %s offen sc1" % (sr(SRD_WS, 4), sr(off_sgpr)))
        e("s_mov_b64 exec, s[34:35]")

    def flag_poll(off_sgpr, n):
        if cfg.noxchg:
            return
        lp = a.newlab("poll")
        e("v_min_u32 v1, %d, v0" % (n - 1))
        e("v_lshlrev_b32 v1, 3, v1")
        a.lab(lp)
        e("buffer_load_dwordx2 v[2:3], v1, %s, %s offen sc1" % (sr(SRD_WS, 4), sr(off_sgpr)))
        e("s_waitcnt vmcnt(0)")
        e("v_cmp_ne_u32 vcc, %s, v2" % sr(SC_NONCE))
        e("v_cmp_ne_u32 s[34:35], %s, v3" % sr(SC_NONCE + 1))
        e("s_sub_u32 %s, %s, 1" % (sr(S_SPIN), sr(S_SPIN)))
        e("s_cmp_eq_u32 %s, 0" % sr(S_SPIN))
        e("s_cbranch_scc1 L_end")
        e("s_or_b64 vcc, vcc, s[34:35]")
        e("s_cbranch_scc1 %s" % lp)

    def flago_off(dst, ph, with_m):
        e("s_lshl_b32 %s, %s, 2" % (sr(dst), sr(S_QUAD)))
        e("s_add_u32 %s, %s, %s" % (sr(dst), sr(dst), sr(S_WAVE)))
        e("s_lshl_b32 %s, %s, 7" % (sr(dst), sr(dst)))
        e("s_add_u32 %s, %s, %d" % (sr(dst), sr(dst), WS_FLAGO + ph * 64 * 4 * 128))
        if with_m:
            e("s_lshl_b32 %s, %s, 3" % (sr(S_T0), sr(S_M)))
            e("s_add_u32 %s, %s, %s" % (sr(dst), sr(dst), sr(S_T0)))

    def load_o(ph, regs, ks):
        e("s_lshl_b32 %s, %s, 2" % (sr(S_T1), sr(S_QUAD)))
        e("s_add_u32 %s, %s, %d" % (sr(S_T1), sr(S_T1), ph * 256))
        e("s_mul_i32 %s, %s, 24576" % (sr(S_T1), sr(S_T1)))
        e("s_lshl_b32 %s, %s, 13" % (sr(S_T2), sr(S_WAVE)))
        e("s_add_u32 %s, %s, %s" % (sr(S_T1), sr(S_T1), sr(S_T2)))
        e("s_add_u32 %s, %s, %d" % (sr(S_T1), sr(S_T1), WS_OBUF))
        for k in ks:
            e("s_add_u32 %s, %s, %d" % (sr(S_T2), sr(S_M), k))
            e("s_and_b32 %s, %s, 3" % (sr(S_T2), sr(S_T2)))
            e("s_mul_i32 %s, %s, 24576" % (sr(S_T2), sr(S_T2)))
            e("s_add_u32 %s, %s, %s" % (sr(S_T2), sr(S_T2), sr(S_T1)))
            e("s_add_u32 %s, %s, 4096" % (sr(S_T3), sr(S_T2)))
            for s in range(8):
                e("buffer_load_dwordx4 %s, v%d, %s, %s offen offset:%d sc1" % (
                    ar(regs[k] + 4 * s, 4), V_L16, sr(SRD_WS, 4), sr(S_T2 if s < 4 else S_T3), (s & 3) * 1024))

    def poff(dst, ph, kq_sgpr):
        e("s_add_u32 %s, %s, %d" % (sr(dst), sr(S_G8), ph * 8))
        e("s_lshl_b32 %s, %s, 2" % (sr(dst), sr(dst)))
        e("s_add_u32 %s, %s, %s" % (sr(dst), sr(dst), sr(S_M)))
        e("s_lshl_b32 %s, %s, 3" % (sr(dst), sr(dst)))
        if kq_sgpr is not None:
            e("s_add_u32 %s, %s, %s" % (sr(dst), sr(dst), sr(kq_sgpr)))
        e("s_mul_i32 %s, %s, 24576" % (sr(dst), sr(dst)))
        e("s_lshl_b32 %s, %s, 13" % (sr(S_T0), sr(S_WAVE)))
        e("s_add_u32 %s, %s, %s" % (sr(dst), sr(dst), sr(S_T0)))
        e("s_add_u32 %s, %s, %d" % (sr(dst), sr(dst), WS_PBUF))

    def flagp_off(dst, ph, with_kq):
        e("s_add_u32 %s, %s, %d" % (sr(dst), sr(S_G8), ph * 8))
        e("s_lshl_b32 %s, %s, 2" % (sr(dst), sr(dst)))
        e("s_add_u32 %s, %s, %s" % (sr(dst), sr(dst), sr(S_M)))
        e("s_lshl_b32 %s, %s, 2" % (sr(dst), sr(dst)))
        e("s_add_u32 %s, %s, %s" % (sr(dst), sr(dst), sr(S_WAVE)))
        e("s_lshl_b32 %s, %s, 7" % (sr(dst), sr(dst)))
        e("s_add_u32 %s, %s, %d" % (sr(dst), sr(dst), WS_FLAGP))
        if with_kq:
            e("s_lshl_b32 %s, %s, 3" % (sr(S_T0), sr(S_X)))
            e("s_add_u32 %s, %s, %s" % (sr(dst), sr(dst), sr(S_T0)))

    def partial_store(acc, ph):
        poff(SC_POFF, ph, S_X)
        e("s_add_u32 %s, %s, 4096" % (sr(S_T1), sr(SC_POFF)))
        e("s_nop 3")
        for cch in range(8):
            for i in range(4):
                k = 4 * cch + i
                e("v_cvt_pk_bf16_f32 v%d, v%d, v%d" % (acc + k, acc + 2 * k, acc + 2 * k + 1))
            e("buffer_store_dwordx4 %s, v%d, %s, %s offen offset:%d %s" % (
                vr(acc + 4 * cch, 4), V_L16, sr(SRD_WS, 4), sr(SC_POFF if cch < 4 else S_T1), (cch & 3) * 1024,
                cfg.stflags))

    def reduce(ph, regs):
        flagp_off(SC_FOFF, ph, False)
        flag_poll(SC_FOFF, 8)
        poff(SC_POFF, ph, None)
        e("s_lshl_b32 %s, %s, 10" % (sr(S_T1), sr(S_X)))
        e("s_add_u32 %s, %s, %s" % (sr(SC_POFF), sr(SC_POFF), sr(S_T1)))
        for kq in range(8):
            e("s_add_u32 %s, %s, %d" % (sr(S_T1), sr(SC_POFF), kq * 24576))
            e("buffer_load_dwordx4 %s, v%d, %s, %s offen sc1" % (
                vr(regs + 4 * kq, 4), V_L16, sr(SRD_WS, 4), sr(S_T1)))
        e("v_and_b32 v1, 31, v0")
        e("v_lshlrev_b32 v1, 11, v1")
        e("v_lshrrev_b32 v2, 5, v0")
        e("v_lshlrev_b32 v2, 4, v2")
        e("v_add_u32 v1, v1, v2")
        e("s_add_u32 %s, %s, %d" % (sr(S_T1), sr(S_B4), 4 * ph))
        e("s_mul_i32 %s, %s, 96" % (sr(S_T1), sr(S_T1)))
        e("s_lshl_b32 %s, %s, 5" % (sr(S_T2), sr(S_WAVE)))
        e("s_add_u32 %s, %s, %s" % (sr(S_T1), sr(S_T1), sr(S_T2)))
        e("s_lshl_b32 %s, %s, 11" % (sr(S_T1), sr(S_T1)))
        e("s_lshl_b32 %s, %s, 10" % (sr(S_T2), sr(S_BR)))
        e("s_add_u32 %s, %s, %s" % (sr(S_T1), sr(S_T1), sr(S_T2)))
        e("s_lshl_b32 %s, %s, 8" % (sr(S_T2), sr(S_M)))
        e("s_add_u32 %s, %s, %s" % (sr(S_T1), sr(S_T1), sr(S_T2)))
        e("s_lshl_b32 %s, %s, 5" % (sr(S_T2), sr(S_X)))
        e("s_add_u32 %s, %s, %s" % (sr(S_T1), sr(S_T1), sr(S_T2)))
        acc = regs + 32
        for kq in range(8):
            e("s_waitcnt vmcnt(%d)" % (7 - kq))
            for i in range(4):
                r = regs + 4 * kq + i
                if kq == 0:
                    e("v_lshlrev_b32 v%d, 16, v%d" % (acc + 2 * i, r))
                    e("v_and_b32 v%d, 0xffff0000, v%d" % (acc + 2 * i + 1, r))
                else:
                    e("v_lshlrev_b32 v%d, 16, v%d" % (acc + 8, r))
                    e("v_and_b32 v%d, 0xffff0000, v%d" % (r, r))
                    e("v_add_f32 v%d, v%d, v%d" % (acc + 2 * i, acc + 2 * i, acc + 8))
                    e("v_add_f32 v%d, v%d, v%d" % (acc + 2 * i + 1, acc + 2 * i + 1, r))
        for i in range(4):
            e("v_cvt_pk_bf16_f32 v%d, v%d, v%d" % (4 + i, acc + 2 * i, acc + 2 * i + 1))
        e("buffer_store_dwordx4 v[4:7], v1, %s, %s offen" % (sr(SRD_OUT, 4), sr(S_T1)))

    def head(ph):
        qbase = V_Q1 if ph == 0 else V_Q2
        stg = V_STG if ph == 0 else V_SA
        xacc = V_ACCQ if ph == 0 else V_ACC1
        A_AF2 = 224
        e("v_mov_b32 v%d, 0" % V_LSUM)
        e("v_mov_b32 v%d, 0" % V_LS2)
        wait_landed(1)
        a.extend(k_addr(SC_SLOT))
        a.extend(k_reads(A_KF))
        e("s_waitcnt lgkmcnt(0)")
        zo = ["v_mov_b32 v%d, 0" % (V_O + i) for i in range(64)]
        a.extend(gaps(qk_mfmas(V_SA, qbase, "0"), [zo[8 * g:8 * g + 8] for g in range(8)]))
        slot_adv(SC_SLOT, SC_SLOT, 1)
        wait_landed(3)
        a.extend(k_addr(SC_SLOT))
        slot_adv(SC_SLOT, SC_SLOT, 1)
        a.extend(v_addr(SC_SLOT, V_VB))
        a.extend(k_reads(A_KF))
        a.extend(v_reads(A_VF[0], False))
        slot_adv(SC_SLOT, SC_SLOT, 1)
        e("s_add_u32 %s, %s, 3" % (sr(SC_IDX), sr(SC_IDX)))
        a.extend(max_valu(V_SA))
        cross_half_max()
        for i in range(16):
            e("v_sub_f32 v%d, v%d, v%d" % (V_SA + i, V_SA + i, V_TMAX))
        e("v_sub_f32 v%d, 0, v%d" % (V_NEGM, V_TMAX))
        for i in range(1, 16):
            e("v_mov_b32 v%d, v%d" % (V_NEGM + i, V_NEGM))

        def nxt(dst, src):
            return ["s_add_u32 %s, %s, %d" % (sr(dst), sr(src), SLOT),
                    "s_cmp_lt_u32 %s, %d" % (sr(dst), RING),
                    "s_cselect_b32 %s, %s, 0" % (sr(dst), sr(dst))]

        def iteration(par, kind):
            scur = V_SA if par == 0 else V_SB
            snext = V_SB if par == 0 else V_SA
            ex = ["v_exp_f32 v%d, v%d" % (scur + i, scur + i) for i in range(16)]
            ad = ["v_add_f32 v%d, v%d, v%d" % ((V_LSUM, V_LS2)[i & 1], (V_LSUM, V_LS2)[i & 1], scur + i)
                  for i in range(16)]
            cv = ["v_cvt_pk_bf16_f32 v%d, v%d, v%d" % (V_PF + k, scur + 2 * k, scur + 2 * k + 1) for k in range(8)]
            pv = pv_mfmas(A_VF[par])
            rel = release_l(SC_IDX)
            e("s_waitcnt lgkmcnt(%d)" % (15 if kind == "full" else 0))
            if kind == "full":
                qk = qk_mfmas(snext, qbase, vr(V_NEGM, 16))
                kr = k_reads(A_KF)
                r = v_reads(A_VF[par ^ 1], False)
                mx = max_valu(snext)
                cmp_ = ["v_cmp_lt_f32 vcc, %s, v%d" % (sr(SC_T), V_TMAX)]
                b = nxt(SC_SLOT2, SC_SLOT)
                c_ = nxt(SC_SLOT, SC_SLOT2)
                idx2 = ["s_add_u32 %s, %s, 2" % (sr(SC_IDX), sr(SC_IDX))]
                ka = k_addr(SC_SLOT)
                va = v_addr(SC_SLOT2, V_VB)
                per = [
                    [ex[0], ex[1]] + wait_landed_l(2),
                    [ex[2], ex[3], cv[0], ka[0], b[0]],
                    [ex[4], ex[5], cv[1], ka[1], b[1]],
                    [ex[6], ex[7], cv[2], b[2], rel[0]],
                    [ex[8], ex[9], cv[3], va[0]],
                    [ex[10], ex[11], cv[4], c_[0]],
                    [ex[12], ex[13], cv[5], c_[1]],
                    [ex[14], ex[15], cv[6], cv[7], c_[2], "s_waitcnt lgkmcnt(0)"],
                    [rel[1]] + kr[0:3] + ad[0:2],
                    kr[3:6] + ad[2:4] + idx2,
                    kr[6:8] + r[0:1] + ad[4:6],
                    r[1:4] + ad[6:8] + mx[0:1],
                    r[4:7] + ad[8:10] + mx[1:2],
                    r[7:10] + ad[10:12] + mx[2:3],
                    r[10:13] + ad[12:14] + mx[3:5],
                    r[13:16] + ad[14:16] + mx[5:8] + cmp_,
                ]
                a.extend(gaps(qk + pv, per))
            else:
                g, tl = softmax_gaps(scur)
                if kind == "lastk":
                    a.extend(wait_landed_l(1) + v_addr(SC_SLOT, V_VB))
                    vrr = v_reads(A_VF[par ^ 1], False)
                    g = [l + vrr[2 * k:2 * k + 2] for k, l in enumerate(g)]
                    a.extend(gaps(qk_mfmas(snext, qbase, vr(V_NEGM, 16)), g))
                    a.extend(tl)
                    mx = max_valu(snext) + ["v_cmp_lt_f32 vcc, %s, v%d" % (sr(SC_T), V_TMAX)]
                    book = ["s_add_u32 %s, %s, 1" % (sr(SC_IDX), sr(SC_IDX))] + nxt(SC_SLOT, SC_SLOT)
                    e("s_waitcnt lgkmcnt(15)")
                    per = [[], [], [], mx[0:2], mx[2:4] + book[0:1], mx[4:6] + book[1:3], mx[6:8] + book[3:4],
                           mx[8:9]]
                    a.extend(gaps(pv, per))
                else:
                    for l in g:
                        a.extend(l)
                    a.extend(tl)
                    a.extend(rel)
                    a.extend(pv)
            if kind != "final":
                r_ = a.newlab("rare")
                b_ = a.newlab("back")
                e("s_cbranch_vccnz %s" % r_)
                a.lab(b_)
                rare.append((r_, b_, snext))

        def ch_mfmas(af, j):
            return ["%s %s, %s, %s, %s" % (
                MFMA, vr(xacc + 16 * db, 16), ar(af + (ks * 4 + db) * 4, 4),
                ar(A_XF[0] + (2 * j + ks) * 4, 4), vr(xacc + 16 * db, 16))
                for ks in range(2) for db in range(4)]

        def x_reads():
            if ph == 0:
                return k_addr(SC_SLOT2), k_reads(A_XF[0])
            return (["v_add_u32 v%d, %s, v%d" % (V_KA, sr(SC_SLOT2), V_L16)],
                    ["ds_read_b128 %s, v%d offset:%d" % (ar(A_XF[0] + 4 * s_, 4), V_KA, s_ * BLK) for s_ in range(8)])

        def ch_slot(pos, first=False, last=False):
            afp = A_AF[(pos - 1) & 1]
            afn = A_AF[pos & 1]
            nx = 3 if (pos == 0 and not (first and ph == 1)) else 0
            chk = wait_landed_l(nx + 1 + (1 if last else 0))
            wr = v_reads(afn, True)
            fill = []
            late = []
            if nx:
                ws = wave_slot(SC_SLOT2, 0)
                xa, xr = x_reads()
                adv3 = slot_adv_l(SC_SLOT, SC_SLOT, 3)
                pre = chk + ws + xa + adv3 + v_addr(SC_SLOT, V_WB)
                body = xr[0:6] + wr
                late6, late7 = xr[6:7], xr[7:8]
            else:
                pre = chk + v_addr(SC_SLOT, V_WB)
                body = wr
                late6, late7 = [], []
            post = nxt(SC_SLOT, SC_SLOT) + ["s_add_u32 %s, %s, %d" % (sr(SC_IDX), sr(SC_IDX), nx + 1)]
            if last:
                post += v_addr(SC_SLOT, V_WB) + v_reads(A_AF2, True) + nxt(SC_SLOT, SC_SLOT)
                post += ["s_add_u32 %s, %s, 1" % (sr(SC_IDX), sr(SC_IDX))]
            if first:
                zz = ["v_mov_b32 v%d, 0" % (xacc + i) for i in range(64)]
                a.extend(pre)
                k = 0
                for x_ in body + late6 + late7:
                    a.e(x_)
                    a.extend(zz[k:k + 2])
                    k += 2
                a.extend(zz[k:])
                a.extend(post)
                return
            mf = ch_mfmas(afp, (pos - 1) & 3)
            per = [[] for _ in range(8)]
            per[0] = pre
            n = len(body)
            for g in range(1, 7):
                per[g] = body[(n * (g - 1)) // 6:(n * g) // 6]
            per[3] = per[3] + late6 if False else per[3]
            per[4] = late6 + per[4]
            per[7] = late7 + post
            a.extend(gaps(mf, per))

        acts = []
        mask = [0]

        def at_pass(n, body):
            mask[0] |= 1 << n
            acts.append((n, body))

        if cfg.stamps:
            for nm in stl:
                if nm[0] == "ab"[ph] and nm[1:].isdigit():
                    at_pass(int(nm[1:]), lambda nm=nm: stamp(nm))
        if ph == 0:
            def nonce_issue():
                e("v_mov_b32 v1, 0")
                e("global_load_dwordx2 %s, v1, %s sc1" % (vr(V_NON, 2), sr(KA_DBG, 2)))

            def nonce_get():
                ok = a.newlab("nok")
                e("s_waitcnt vmcnt(0)")
                e("v_readfirstlane_b32 %s, v%d" % (sr(SC_NONCE), V_NON))
                e("v_readfirstlane_b32 %s, v%d" % (sr(SC_NONCE + 1), V_NON + 1))
                e("s_nop 3")
                e("s_cmp_lg_u32 %s, 0" % sr(SC_NONCE))
                e("s_cbranch_scc1 %s" % ok)
                get_nonce()
                a.lab(ok)
            if not cfg.noxchg:
                at_pass(1, nonce_issue)
                at_pass(6, nonce_get)
        else:
            def p1b():
                e("s_waitcnt vmcnt(0)")
                flago_off(SC_FOFF, 0, True)
                flag_store(SC_FOFF)
            if not cfg.noxchg:
                at_pass(cfg.flagpass, p1b)
        disp = a.newlab("evdisp")

        def pass_end():
            e("s_add_u32 %s, %s, 1" % (sr(SC_IT), sr(SC_IT)))
            stub = a.newlab("evstub")
            back = a.newlab("evback")
            e("s_bitcmp1_b32 %s, %s" % (sr(SC_EVM), sr(SC_IT)))
            e("s_cbranch_scc1 %s" % stub)
            a.lab(back)
            stubs.append((stub, back, disp))

        def dispatcher(disp=disp, acts=acts):
            a.lab(disp)
            for n, body in acts:
                sk = a.newlab("noev")
                e("s_cmp_eq_u32 %s, %d" % (sr(SC_IT), n))
                e("s_cbranch_scc0 %s" % sk)
                body()
                a.lab(sk)
            e("s_setpc_b64 %s" % sr(SC_RET2, 2))
        dispatchers.append(dispatcher)

        e("s_mov_b32 %s, 0x%x" % (sr(SC_EVM), mask[0]))
        e("s_mov_b32 %s, 0" % sr(SC_IT))
        lp = a.newlab("attn")
        a.lab(lp)
        for pos in range(4):
            iteration(0, "full")
            iteration(1, "full")
            if pos == 0:
                f1 = a.newlab("chfirst")
                fb = a.newlab("chback")
                e("s_cmp_eq_u32 %s, 0" % sr(SC_IT))
                e("s_cbranch_scc1 %s" % f1)
                ch_slot(0)
                a.lab(fb)
                firsts.append((f1, fb, ch_slot))
            else:
                ch_slot(pos)
            pass_end()
        e("s_cmp_lt_u32 %s, 12" % sr(SC_IT))
        e("s_cbranch_scc1 %s" % lp)
        for pos in range(3):
            iteration(0, "full")
            iteration(1, "full")
            ch_slot(pos, last=(pos == 2))
            pass_end()
        iteration(0, "lastk")
        a.extend(ch_mfmas(A_AF[0], 2))
        iteration(1, "final")
        a.extend(ch_mfmas(A_AF2, 3))
        stamp("f%d" % ph)
        e("v_add_f32 v%d, v%d, v%d" % (V_LSUM, V_LSUM, V_LS2))
        e("v_mov_b32 v%d, v%d" % (V_LS2, V_LSUM))
        e("s_nop 1")
        e("v_permlane32_swap_b32 v%d, v%d" % (V_LSUM, V_LS2))
        e("s_nop 1")
        e("v_add_f32 v%d, v%d, v%d" % (V_LSUM, V_LSUM, V_LS2))
        e("v_rcp_f32 v%d, v%d" % (V_ALPHA, V_LSUM))
        if ph == 0:
            q_convert(V_Q2)
        e("s_lshl_b32 %s, %s, 2" % (sr(S_T1), sr(S_QUAD)))
        e("s_add_u32 %s, %s, %s" % (sr(S_T1), sr(S_T1), sr(S_M)))
        e("s_add_u32 %s, %s, %d" % (sr(S_T1), sr(S_T1), ph * 256))
        e("s_mul_i32 %s, %s, 24576" % (sr(S_T1), sr(S_T1)))
        e("s_lshl_b32 %s, %s, 13" % (sr(S_T2), sr(S_WAVE)))
        e("s_add_u32 %s, %s, %s" % (sr(S_T1), sr(S_T1), sr(S_T2)))
        e("s_add_u32 %s, %s, %d" % (sr(SC_OOFF), sr(S_T1), WS_OBUF))
        e("s_add_u32 %s, %s, 4096" % (sr(SC_OOFF2), sr(SC_OOFF)))
        e("s_nop 3")
        for s in range(8):
            for k in range(4):
                i = 4 * s + k
                e("v_mul_f32 v%d, v%d, v%d" % (V_O + 2 * i, V_O + 2 * i, V_ALPHA))
                e("v_mul_f32 v%d, v%d, v%d" % (V_O + 2 * i + 1, V_O + 2 * i + 1, V_ALPHA))
                e("v_cvt_pk_bf16_f32 v%d, v%d, v%d" % (stg + i, V_O + 2 * i, V_O + 2 * i + 1))
            e("buffer_store_dwordx4 %s, v%d, %s, %s offen offset:%d %s" % (
                vr(stg + 4 * s, 4), V_L16, sr(SRD_WS, 4), sr(SC_OOFF if s < 4 else SC_OOFF2),
                (s & 3) * 1024, cfg.stflags))
        if ph == 1:
            partial_store(V_ACC1, 0)

    stubs = []
    firsts = []

    def ccnt(name):
        if cfg.stamps:
            for k, nm in enumerate(stl):
                if nm == name:
                    e("s_mov_b32 %s, %s" % (sr(S_ST + 2 * k), sr(SC_SWC)))
    ccnt("cq")
    head(0)
    for i in range(32):
        e("v_accvgpr_write_b32 a%d, v%d" % (A_XF[0] + i, V_STG + i))
    stamp("h0")
    ccnt("c0")
    head(1)
    stamp("h1")
    ccnt("c1")

    def task(acc, bfrag, first, hooks):
        if first:
            wait_landed(1)
        a.extend(v_addr(SC_SLOT, V_WB))
        a.extend(v_reads(A_AF[0], True))
        e("s_add_u32 %s, %s, 1" % (sr(SC_IDX), sr(SC_IDX)))
        slot_adv(SC_SLOT, SC_SLOT, 1)
        fullwait = True
        for cidx in range(16):
            r, j = divmod(cidx, 4)
            mf = []
            for ks in range(2):
                for db in range(4):
                    cin = "0" if (cidx == 0 and ks == 0) else vr(acc + 16 * db, 16)
                    mf.append("%s %s, %s, %s, %s" % (
                        MFMA, vr(acc + 16 * db, 16), ar(A_AF[cidx & 1] + (ks * 4 + db) * 4, 4),
                        bfrag(r, 2 * j + ks), cin))
            per = [[] for _ in range(8)]
            if cidx == 15:
                fullwait = True
            if fullwait:
                e("s_waitcnt lgkmcnt(0)")
            if cidx < 15:
                wr = v_reads(A_AF[(cidx + 1) & 1], True)
                adv = ["s_add_u32 %s, %s, 1" % (sr(SC_IDX), sr(SC_IDX))] + slot_adv_l(SC_SLOT, SC_SLOT, 1)
                chk = wait_landed_l(1) if first else []
                per[0] = chk + v_addr(SC_SLOT, V_WB) + wr[0:2]
                per[1] = wr[2:4] + adv[0:2]
                per[2] = wr[4:6] + adv[2:4]
                per[3] = wr[6:8] + adv[4:5]
                per[4] = wr[8:10]
                per[5] = wr[10:12]
                per[6] = wr[12:14]
                per[7] = wr[14:16]
            if not fullwait:
                for g in (1, 3, 5):
                    per[g] = per[g] + ["s_waitcnt lgkmcnt(12)"]
                e("s_waitcnt lgkmcnt(12)")
            a.extend(gaps(mf, per))
            fullwait = False
            if hooks.get(cidx):
                hooks[cidx]()
                fullwait = True

    ACC2 = V_O
    e("s_add_u32 %s, %s, 64" % (sr(S_T1), sr(SC_IDX)))
    a.extend(release_l(S_T1))
    e("s_mov_b32 %s, %s" % (sr(SC_SAVE), sr(SC_SLOT)))
    e("s_mov_b32 %s, %s" % (sr(SC_BIDX), sr(SC_IDX)))

    def round_code(k):
        bfr = (lambda s_: vr(V_SA + 4 * s_, 4)) if k == 0 else (lambda s_: ar(A_OF2[k] + 4 * s_, 4))
        e("s_add_u32 %s, %s, %d" % (sr(SC_IDX), sr(SC_BIDX), 4 * k))
        wait_landed(4)
        slot_adv(SC_SLOT, SC_SAVE, 4 * k)
        a.extend(v_addr(SC_SLOT, V_WB))
        a.extend(v_reads(A_AF[0], True))
        a.extend(nxt_l(SC_SLOT))
        for j in range(4):
            mf = []
            for ks in range(2):
                for db in range(4):
                    cin = "0" if (k == 0 and j == 0 and ks == 0) else vr(ACC2 + 16 * db, 16)
                    mf.append("%s %s, %s, %s, %s" % (
                        MFMA, vr(ACC2 + 16 * db, 16), ar(A_AF[j & 1] + (ks * 4 + db) * 4, 4),
                        bfr(2 * j + ks), cin))
            per = [[] for _ in range(8)]
            if j < 3:
                wr = v_reads(A_AF[(j + 1) & 1], True)
                nx_ = nxt_l(SC_SLOT)
                per[0] = v_addr(SC_SLOT, V_WB) + wr[0:2]
                per[1] = wr[2:4] + nx_[0:2]
                per[2] = wr[4:6] + nx_[2:3]
                for g in range(3, 8):
                    per[g] = wr[2 * g:2 * g + 2]
            if j == 0 or j == 3:
                e("s_waitcnt lgkmcnt(0)")
            else:
                for g in (1, 3, 5):
                    per[g] = per[g] + ["s_waitcnt lgkmcnt(12)"]
                e("s_waitcnt lgkmcnt(12)")
            if j == 3:
                pass
            a.extend(gaps(mf, per))

    def nxt_l(dst):
        return ["s_add_u32 %s, %s, %d" % (sr(dst), sr(dst), SLOT),
                "s_cmp_lt_u32 %s, %d" % (sr(dst), RING),
                "s_cselect_b32 %s, %s, 0" % (sr(dst), sr(dst))]

    round_code(0)
    e("s_waitcnt vmcnt(0)")
    flago_off(SC_FOFF, 1, True)
    flag_store(SC_FOFF)
    flagp_off(SC_FOFF, 0, True)
    flag_store(SC_FOFF)
    stamp("t1")
    flago_off(SC_FOFF0, 1, False)
    e("s_mov_b32 %s, 14" % sr(SC_TL))
    e("s_mov_b32 %s, 0" % sr(SC_TD))
    a.lab("L_tl_poll")
    if not cfg.noxchg:
        e("v_min_u32 v1, 3, v0")
        e("v_lshlrev_b32 v1, 3, v1")
        e("buffer_load_dwordx2 v[2:3], v1, %s, %s offen sc1" % (sr(SRD_WS, 4), sr(SC_FOFF0)))
        e("s_waitcnt vmcnt(0)")
        e("v_cmp_eq_u32 vcc, %s, v2" % sr(SC_NONCE))
        e("v_cmp_eq_u32 s[34:35], %s, v3" % sr(SC_NONCE + 1))
        e("s_sub_u32 %s, %s, 1" % (sr(S_SPIN), sr(S_SPIN)))
        e("s_cmp_eq_u32 %s, 0" % sr(S_SPIN))
        e("s_cbranch_scc1 L_end")
        e("s_and_b32 %s, vcc_lo, s34" % sr(S_T1))
        e("s_and_b32 %s, %s, 15" % (sr(S_T1), sr(S_T1)))
        e("s_lshl_b32 %s, %s, 4" % (sr(S_T2), sr(S_T1)))
        e("s_or_b32 %s, %s, %s" % (sr(S_T1), sr(S_T1), sr(S_T2)))
        e("s_lshr_b32 %s, %s, %s" % (sr(S_T1), sr(S_T1), sr(S_M)))
    else:
        e("s_mov_b32 %s, 15" % sr(S_T1))
    e("s_and_b32 %s, %s, %s" % (sr(SC_NEW), sr(S_T1), sr(SC_TL)))
    e("s_andn2_b32 %s, %s, %s" % (sr(SC_TL), sr(SC_TL), sr(SC_NEW)))
    e("s_or_b32 %s, %s, %s" % (sr(SC_TD), sr(SC_TD), sr(SC_NEW)))
    for k in (1, 2, 3):
        sk = a.newlab("tlsk")
        e("s_bitcmp1_b32 %s, %d" % (sr(SC_NEW), k))
        e("s_cbranch_scc0 %s" % sk)
        load_o(1, A_OF2, [k])
        a.lab(sk)
    e("s_cmp_eq_u32 %s, 0" % sr(SC_TD))
    e("s_cbranch_scc1 L_tl_poll")
    a.lab("L_tl_run")
    e("s_waitcnt vmcnt(0)")
    for k in (1, 2, 3):
        sk = a.newlab("tlsk")
        e("s_bitcmp0_b32 %s, %d" % (sr(SC_TD), k))
        e("s_cbranch_scc1 %s" % sk)
        e("s_bitset0_b32 %s, %d" % (sr(SC_TD), k))
        round_code(k)
        a.lab(sk)
    e("s_cmp_lg_u32 %s, 0" % sr(SC_TL))
    e("s_cbranch_scc1 L_tl_poll")
    e("s_nop 7")
    partial_store(ACC2, 1)
    stamp("t2")
    e("s_waitcnt vmcnt(0)")
    stamp("w0")
    flagp_off(SC_FOFF, 1, True)
    flag_store(SC_FOFF)
    reduce(0, 160)
    stamp("r0")
    reduce(1, 160)
    e("s_waitcnt vmcnt(0)")
    stamp("r1")

    a.lab("L_fin")
    savef = a.filt
    a.filt = None
    if cfg.dbgstamps:
        dsk = a.newlab("dbgsk")
        e("s_waitcnt lgkmcnt(0)")
        e("s_mov_b32 s28, -1")
        e("s_cmp_eq_u32 s2, 0")
        e("s_cselect_b32 s28, 0, s28")
        e("s_cmp_eq_u32 s2, 129")
        e("s_cselect_b32 s28, 1, s28")
        e("s_cmp_eq_u32 s28, -1")
        e("s_cbranch_scc1 %s" % dsk)
        e("s_cmp_eq_u32 %s, 0" % sr(S_WAVE))
        e("s_cbranch_scc1 %s" % (dsk + "a"))
        e("s_cmp_eq_u32 %s, 3" % sr(S_WAVE))
        e("s_cbranch_scc0 %s" % dsk)
        e("s_cmp_eq_u32 s28, 0")
        e("s_cbranch_scc0 %s" % dsk)
        e("s_mov_b32 s28, 2")
        a.lab(dsk + "a")
        e("s_lshl_b32 s28, s28, 4")
        e("s_add_u32 s28, s28, 16")
        e("v_mov_b32 v1, s28")
        for j in range(4):
            e("s_sub_u32 s29, s%d, s%d" % (S_ST + 2 * (j + 1) + (2 * 3 if j == 3 else 0), S_ST))
            e("v_mov_b32 v%d, s29" % (4 + j))
        e("s_mov_b64 exec, 1")
        e("global_store_dwordx4 v1, v[4:7], %s" % sr(KA_DBG, 2))
        e("s_waitcnt vmcnt(0)")
        a.lab(dsk)
        e("s_branch L_end")
    if cfg.stamps:
        e("s_waitcnt lgkmcnt(0)")
        for k, nm in enumerate(stl):
            if nm == "loc":
                e("s_mov_b32 %s, %s" % (sr(S_ST + 2 * k), sr(SC_LOCAL)))
        e("s_lshl_b32 s28, s2, 9")
        e("s_lshl_b32 s29, %s, 7" % sr(S_WAVE))
        e("s_add_u32 s28, s28, s29")
        e("s_add_u32 s28, s28, 0x%x" % WS_STAMP)
        e("v_mov_b32 v1, s28")
        e("s_getreg_b32 s30, hwreg(HW_REG_XCC_ID)")
        e("s_mov_b64 exec, 1")
        for k in range(4):
            for j in range(4):
                e("v_mov_b32 v%d, s%d" % (4 + j, S_ST + 4 * k + j))
            e("global_store_dwordx4 v1, v[4:7], %s offset:%d" % (sr(KA_WS, 2), 16 * k))
            e("s_waitcnt vmcnt(0)")
        e("v_mov_b32 v4, s30")
        e("global_store_dword v1, v4, %s offset:64" % sr(KA_WS, 2))
        e("s_waitcnt vmcnt(0)")
    a.lab("L_end")
    e("s_endpgm")
    a.filt = savef

    for r, b, sn in rare:
        rare_path(r, b, sn)
    for d in dispatchers:
        d()
    for stub, back, disp in stubs:
        a.lab(stub)
        e("s_call_b64 %s, %s" % (sr(SC_RET2, 2), disp))
        e("s_branch %s" % back)
    for f1, fb, fn in firsts:
        a.lab(f1)
        fn(0, first=True)
        e("s_branch %s" % fb)
    for slow, back in slowwaits:
        a.lab(slow)
        if cfg.stamps:
            e("s_add_u32 %s, %s, 1" % (sr(SC_SWC), sr(SC_SWC)))
        e("ds_read_b32 v%d, v%d" % (V_LRD, V_LADDR))
        e("s_waitcnt lgkmcnt(0)")
        e("v_readfirstlane_b32 %s, v%d" % (sr(SC_L), V_LRD))
        e("s_sub_u32 %s, %s, 1" % (sr(S_SPIN), sr(S_SPIN)))
        e("s_cmp_eq_u32 %s, 0" % sr(S_SPIN))
        e("s_cbranch_scc1 L_end")
        e("s_cmp_lt_u32 %s, %s" % (sr(SC_L), sr(SC_NEED)))
        if cfg.psleep:
            e("s_cbranch_scc0 %s" % back)
            e("s_sleep %d" % cfg.psleep)
            e("s_branch %s" % slow)
        else:
            e("s_cbranch_scc1 %s" % slow)
            e("s_branch %s" % back)
    txt = a.text()

    kd = []
    kd.append('.section .rodata,"a"')
    kd.append(".p2align 6")
    kd.append(".amdhsa_kernel %s_kernel" % NAME)
    kd.append("  .amdhsa_next_free_vgpr 512")
    kd.append("  .amdhsa_next_free_sgpr 102")
    kd.append("  .amdhsa_accum_offset 256")
    kd.append("  .amdhsa_group_segment_fixed_size 0")
    kd.append("  .amdhsa_kernarg_size 104")
    kd.append("  .amdhsa_user_sgpr_count 2")
    kd.append("  .amdhsa_user_sgpr_kernarg_segment_ptr 1")
    kd.append("  .amdhsa_system_sgpr_workgroup_id_x 1")
    kd.append(".end_amdhsa_kernel")
    return "\n".join(hdr) + "\n" + txt + "\n".join(kd) + "\n"


if __name__ == "__main__":
    import argparse
    ap = argparse.ArgumentParser()
    ap.add_argument("-o", default="cdna_kernels/%s.s" % NAME)
    ap.add_argument("--stamps", action="store_true")
    ap.add_argument("--set", action="append", default=[])
    args = ap.parse_args()
    cfg = Cfg()
    cfg.stamps = args.stamps
    for kv in args.set:
        k, v = kv.split("=", 1)
        cur = getattr(cfg, k)
        if isinstance(cur, bool):
            v = v in ("1", "True", "true")
        elif isinstance(cur, int):
            v = int(v)
        elif isinstance(cur, float):
            v = float(v)
        setattr(cfg, k, v)
    open(args.o, "w").write(build(cfg))
    print("wrote", args.o)
```

```python
import math
import struct

NAME = "concat_heads__mha_block_cached__gqa_block_cached__near_ridge"


def f32bits(x):
    return struct.unpack("<I", struct.pack("<f", x))[0]


class Cfg:
    NS = 18
    NQ = 11
    E = 7
    D = 5
    deven = 5
    dodd = 5
    polllead = 3
    stamps = False
    T_LOG2 = 8.0
    kvflags = "nt"
    wflags = ""
    woflags = "nt"
    xflags = ""
    kvsame = False
    noload = False
    nocompute = False
    noxchg = False
    stamplist = "start,qp,h0,h1,t1,t2,r0,r1"
    po_base = 10
    po_mul = 4
    pft = 20
    prefetch = True
    ytype = 1
    spin = 0x80000
    local = False
    psleep = 0
    dumpq = False
    nbflag = False
    lead2 = 0
    onlywg = 0
    krot = 0
    perm = True
    skipo = False
    skipwo = False
    skipq2 = False
    wsbase = 0
    oflags = "sc1"
    wo2flags = "nt"
    wq2flags = ""
    x2flags = ""
    stflags = "sc1"
    flagpass = 2
    mix = 0
    dbgstamps = False
    ablate = ""


BLK = 1088
SLOT = 8 * BLK
NQT = 28
WS_FLAGO = 0
WS_FLAGP = 65536
WS_FLAGI = 131072
WS_OBUF = 1 << 20
WS_PBUF = 16 << 20
WS_STAMP = 28 << 20
WS_USED = 32 << 20


def vr(base, n=1):
    return "v%d" % base if n == 1 else "v[%d:%d]" % (base, base + n - 1)


def ar(base, n=1):
    return "a%d" % base if n == 1 else "a[%d:%d]" % (base, base + n - 1)


def sr(base, n=1):
    return "s%d" % base if n == 1 else "s[%d:%d]" % (base, base + n - 1)


class Asm:
    def __init__(self):
        self.L = []
        self.nlab = 0
        self.filt = None

    def e(self, s):
        if self.filt and self.filt(s):
            return
        self.L.append("  " + s)

    def lab(self, name):
        self.L.append(name + ":")

    def newlab(self, base):
        self.nlab += 1
        return "L%s_%d" % (base, self.nlab)

    def extend(self, lst):
        for s in lst:
            if s.endswith(":"):
                self.lab(s[:-1])
            else:
                self.e(s)

    def text(self):
        return "\n".join(self.L) + "\n"


def gaps(primary, per_gap):
    out = []
    for p, f in zip(primary, per_gap):
        out.append(p)
        out.extend(f)
    return out


S_WG = 2
S_WAVE = 3
S_X, S_M, S_G8, S_QUAD, S_H = 20, 21, 22, 24, 25
S_SPIN = 26
S_TAU = 27
S_T0, S_T1, S_T2, S_T3 = 28, 29, 30, 31
S_RET = 32
KA_X, KA_K, KA_V, KA_WQ, KA_WO = 36, 38, 40, 42, 44
S_B4, S_BR = 46, 47
KA_OUT, KA_DBG, KA_WS = 56, 58, 60
SL_ISS, SL_PUB, SL_FMIN, SL_SLOT, SL_NEED, SL_OFF, SL_OFF2, SL_CNT, SL_CNT2, SL_KOFF, SL_VOFF, SL_ROT = range(4, 16)
SL_RET2 = 16
SL_XB, SL_WB = 18, 19
SL_NADJ = 23
SL_QSLOT = 48
SL_EVM = 49
SL_NONCE = 34
SL_THR = 50
SL_WFC = 51
SL_RND = 52
SL_PP, SL_JJ, SL_MM = 53, 54, 55
SL_R0 = 62
SRD_X, SRD_K, SRD_V, SRD_WQ, SRD_WO = 64, 68, 72, 76, 80
SC_L, SC_SLOT, SC_IDX, SC_IT, SC_T, SC_NEED, SC_SLOT2, SC_ADJ = range(4, 12)
SC_OOFF, SC_OOFF2, SC_FOFF, SC_POFF = 12, 13, 14, 15
SC_NONCE = 16
SC_RET2 = 18
SC_WRAP, SC_LOCAL, SC_XCC, SC_IDOFF, SC_EVM, SC_PADJ, SC_SAVE, SC_SWC = 72, 73, 74, 75, 76, 77, 78, 79
SRD_WS, SRD_OUT = 64, 68
S_ST = 84

V_KB = 8
V_VB = 10
V_WB = 11
V_KA = 12
V_VA = 14
V_L16 = 15
V_LSUM, V_LS2, V_TMAX, V_ALPHA, V_FV, V_LADDR, V_FADDR, V_LRD = range(17, 25)
V_VB2 = 25
V_NON = 26
V_PF = 32
V_NEGM = 48
V_O = 64
V_SA = 128
V_SB = 144
V_ACCQ = 160
V_Q2 = 160
V_STG = 192
V_Q1 = 224
V_ACC1 = 192
A_AF = [0, 32]
A_KF = 64
A_VF = [96, 128]
A_XF = [160, 192]
A_OF2 = [None, 64, 96, 128]
MFMA = "v_mfma_f32_32x32x16_bf16"


def build(cfg):
    NS, D, NQ, E = cfg.NS, cfg.D, cfg.NQ, cfg.E
    assert NS == NQ + E and NS % 2 == 0 and (NQ + 3) % 2 == 0
    RING = NS * SLOT
    FLAG_L = RING
    FLAG_F = RING + 16
    LDS_BYTES = RING + 64
    a = Asm()
    e = a.e
    hdr = []
    hdr.append("; @launch grid=(256,1,1) block=(256,1,1) lds=%d" % LDS_BYTES)
    hdr.append('.amdgcn_target "amdgcn-amd-amdhsa--gfx950"')
    hdr.append(".text")
    hdr.append(".globl %s_kernel" % NAME)
    hdr.append(".p2align 8")
    hdr.append(".type %s_kernel,@function" % NAME)
    hdr.append("%s_kernel:" % NAME)
    stl = cfg.stamplist.split(",")

    def stamp(name):
        if cfg.stamps:
            for k, nm in enumerate(stl):
                if nm == name:
                    e("s_memrealtime %s" % sr(S_ST + 2 * k, 2))
                if nm == name + ".c":
                    e("s_memtime %s" % sr(S_ST + 2 * k, 2))

    def cnt(name):
        if cfg.stamps:
            for k, nm in enumerate(stl):
                if nm == name:
                    e("s_mov_b32 %s, %s" % (sr(S_ST + 2 * k), sr(SL_WFC)))

    e("s_cmp_ge_u32 s2, 256")
    e("s_cbranch_scc1 L_end")
    if cfg.onlywg:
        e("s_and_b32 s3, s2, %d" % cfg.onlywg)
        e("s_cmp_lg_u32 s3, 0")
        e("s_cbranch_scc1 L_end")
    e("s_load_dwordx16 s[36:51], s[0:1], 0")
    e("s_load_dwordx4 s[52:55], s[0:1], 64")
    e("s_load_dwordx4 s[56:59], s[0:1], 80")
    e("s_load_dwordx2 s[60:61], s[0:1], 96")
    stamp("start")
    e("v_lshrrev_b32 v1, 6, v0")
    e("v_and_b32 v0, 63, v0")
    e("s_and_b32 %s, s2, 7" % sr(S_X))
    e("v_readfirstlane_b32 %s, v1" % sr(S_WAVE))
    e("s_lshr_b32 s28, s2, 3")
    e("s_and_b32 %s, s28, 3" % sr(S_M))
    e("s_lshr_b32 %s, s28, 2" % sr(S_G8))
    e("s_lshl_b32 %s, %s, 2" % (sr(S_H), sr(S_X)))
    e("s_add_u32 %s, %s, %s" % (sr(S_H), sr(S_H), sr(S_M)))
    e("s_lshl_b32 %s, %s, 3" % (sr(S_QUAD), sr(S_G8)))
    e("s_add_u32 %s, %s, %s" % (sr(S_QUAD), sr(S_QUAD), sr(S_X)))
    e("s_mov_b32 %s, 0x%x" % (sr(S_SPIN), cfg.spin))
    e("s_lshl_b32 %s, %s, 1" % (sr(S_TAU), sr(S_M)))
    e("s_and_b32 s29, %s, 1" % sr(S_X))
    e("s_add_u32 %s, %s, s29" % (sr(S_TAU), sr(S_TAU)))
    e("s_mul_i32 %s, %s, %d" % (sr(S_TAU), sr(S_TAU), cfg.po_mul))
    e("s_lshr_b32 %s, %s, 3" % (sr(S_TAU), sr(S_TAU)))
    e("s_add_u32 %s, %s, %d" % (sr(S_TAU), sr(S_TAU), cfg.po_base))
    e("s_cmp_lt_u32 %s, 4" % sr(S_G8))
    e("s_waitcnt lgkmcnt(0)")
    for k in range(10):
        e("s_cselect_b32 s%d, s%d, s%d" % (36 + k, 36 + k, 46 + k))
    e("s_and_b32 %s, %s, 3" % (sr(S_B4), sr(S_G8)))
    e("s_lshr_b32 %s, %s, 2" % (sr(S_BR), sr(S_G8)))
    e("s_cmp_eq_u32 %s, 3" % sr(S_WAVE))
    e("s_cbranch_scc0 L_compute")

    def srd(dst, ptr, nbytes):
        e("s_mov_b32 %s, %s" % (sr(dst), sr(ptr)))
        e("s_mov_b32 %s, %s" % (sr(dst + 1), sr(ptr + 1)))
        e("s_mov_b32 %s, 0x%x" % (sr(dst + 2), nbytes))
        e("s_mov_b32 %s, 0x20000" % sr(dst + 3))

    a.lab("L_loader")
    e("s_setprio 3")
    LV_K, LV_V, LV_X, LV_WQ, LV_WO, LV_T, LV_LADDR, LV_FADDR, LV_F = 8, 12, 16, 20, 24, 28, 29, 30, 32
    LV_O, LV_FL, LV_NON, LV_FA = 36, 200, 202, 204
    BIAS = 4096
    NB_X, NB_KV, NB_W = 8 * 96 * 512 * 2, 8 * 32 * 1024 * 128 * 2, 512 * 4096 * 2

    def srdb(dst, ptr, nbytes):
        e("s_sub_u32 %s, %s, %d" % (sr(dst), sr(ptr), BIAS))
        e("s_subb_u32 %s, %s, 0" % (sr(dst + 1), sr(ptr + 1)))
        e("s_mov_b32 %s, 0x%x" % (sr(dst + 2), nbytes + BIAS))
        e("s_mov_b32 %s, 0x20000" % sr(dst + 3))

    e("v_lshrrev_b32 v1, 4, v0")
    e("v_and_b32 v2, 15, v0")
    e("v_xor_b32 v3, v2, v1")
    e("v_lshlrev_b32 v3, 4, v3")
    e("v_lshlrev_b32 v2, 4, v2")
    e("v_lshlrev_b32 v4, 12, v1")
    e("v_lshlrev_b32 v5, 15, v1")
    e("v_lshlrev_b32 v6, 10, v1")

    def lane_offs(dst, rowpart, colpart, rs):
        e("v_add_u32 v%d, v%d, v%d" % (dst, rowpart, colpart))
        for b in range(3, 0, -1):
            e("v_add_u32 v%d, %d, v%d" % (dst + b, BIAS + b * (rs - BLK), dst))
        e("v_add_u32 v%d, %d, v%d" % (dst, BIAS, dst))

    srdb(SRD_X, KA_X, NB_X)
    srdb(SRD_WQ, KA_WQ, NB_W)
    lane_offs(LV_X, 4, 3, 1024)
    lane_offs(LV_WQ, 5, 2, 8192)
    e("s_getreg_b32 %s, hwreg(HW_REG_XCC_ID)" % sr(SL_THR))
    e("s_and_b32 %s, %s, 1" % (sr(SL_THR), sr(SL_THR)))
    if cfg.deven < cfg.dodd:
        e("s_xor_b32 %s, %s, 1" % (sr(SL_THR), sr(SL_THR)))
    e("v_mov_b32 v%d, %d" % (LV_LADDR, FLAG_L))
    e("v_mov_b32 v%d, %d" % (LV_FADDR, FLAG_F))
    e("v_mov_b32 v%d, 0" % LV_T)
    e("ds_write_b32 v%d, v%d" % (LV_LADDR, LV_T))
    e("s_mov_b32 %s, 0" % sr(SL_ISS))
    e("s_mov_b32 %s, 0" % sr(SL_PUB))
    e("s_mov_b32 %s, 0" % sr(SL_FMIN))
    e("s_mov_b32 %s, 0" % sr(SL_SLOT))
    e("s_mov_b32 %s, -1" % sr(SL_NEED))
    e("s_mov_b32 %s, 0" % sr(SL_WFC))
    e("s_add_u32 %s, %s, %s" % (sr(SL_ROT), sr(S_B4), sr(S_M)))
    e("s_and_b32 %s, %s, 3" % (sr(SL_ROT), sr(SL_ROT)))
    if cfg.noload:
        e("v_mov_b32 v%d, 100000" % LV_T)
        e("s_waitcnt lgkmcnt(0)")
        e("ds_write_b32 v%d, v%d" % (LV_LADDR, LV_T))
        e("s_waitcnt lgkmcnt(0)")
        e("s_barrier")
        e("s_branch L_fin")

    ool = []

    def publish_nb():
        e("s_getreg_b32 %s, hwreg(HW_REG_IB_STS)" % sr(S_T0))
        e("s_lshr_b32 %s, %s, 18" % (sr(S_T1), sr(S_T0)))
        e("s_and_b32 %s, %s, 15" % (sr(S_T0), sr(S_T0)))
        e("s_and_b32 %s, %s, 0x30" % (sr(S_T1), sr(S_T1)))
        e("s_add_u32 %s, %s, %s" % (sr(S_T0), sr(S_T0), sr(S_T1)))
        e("s_add_u32 %s, %s, 7" % (sr(S_T0), sr(S_T0)))
        e("s_lshr_b32 %s, %s, 3" % (sr(S_T0), sr(S_T0)))
        e("s_sub_i32 %s, %s, %s" % (sr(SL_PUB), sr(SL_ISS), sr(S_T0)))
        e("v_mov_b32 v%d, %s" % (LV_T, sr(SL_PUB)))
        e("ds_write_b32 v%d, v%d" % (LV_LADDR, LV_T))

    def issue_tile(srdreg, voff, rs, flags, wrap, nowait=False, check=True):
        if check:
            e("s_cmp_ge_i32 %s, %s" % (sr(SL_FMIN), sr(SL_NEED)))
            slow = a.newlab("lslow")
            ok = a.newlab("ok")
            e("s_cbranch_scc0 %s" % slow)
            a.lab(ok)
            ool.append((slow, ok))

        def ld(b):
            e("buffer_load_dwordx4 v%d, %s, %s offen offset:%d %s lds" % (
                voff + (b & 3), sr(srdreg, 4), sr(SL_OFF if b < 4 else SL_OFF2), (b & 3) * BLK, flags))
        e("s_mov_b32 m0, %s" % sr(SL_SLOT))
        e("s_add_u32 %s, %s, %d" % (sr(SL_OFF2), sr(SL_OFF), 16 * rs))
        ld(0)
        ld(1)
        ld(2)
        e("s_add_u32 %s, %s, 1" % (sr(SL_ISS), sr(SL_ISS)))
        ld(3)
        e("s_add_u32 m0, %s, %d" % (sr(SL_SLOT), 4 * BLK))
        e("s_add_u32 %s, %s, %d" % (sr(SL_SLOT), sr(SL_SLOT), SLOT))
        ld(4)
        e("s_cmp_lt_u32 %s, %d" % (sr(SL_SLOT), wrap))
        e("s_cselect_b32 %s, %s, 0" % (sr(SL_SLOT), sr(SL_SLOT)))
        ld(5)
        e("s_sub_i32 %s, %s, %s" % (sr(SL_NEED), sr(SL_ISS), sr(SL_NADJ)))
        ld(6)
        if cfg.deven != cfg.dodd:
            e("s_cmp_eq_u32 %s, 0" % sr(SL_THR))
        ld(7)
        if not nowait:
            dmax, dmin = max(cfg.deven, cfg.dodd), min(cfg.deven, cfg.dodd)
            e("s_waitcnt vmcnt(%d)" % (8 * dmax))
            if dmin != dmax:
                sk = a.newlab("thr")
                e("s_cbranch_scc1 %s" % sk)
                e("s_waitcnt vmcnt(%d)" % (8 * dmin))
                a.lab(sk)
            publish_nb()

    def qp_round(first_nowait=0):
        n = 0

        def after():
            if first_nowait and n == first_nowait:
                e("s_waitcnt lgkmcnt(0)")
                e("s_barrier")
        for w in range(3):
            e("s_add_u32 %s, %s, %d" % (sr(SL_OFF), sr(SL_XB), w * 32 * 1024))
            issue_tile(SRD_X, LV_X, 1024, cfg.xflags, NQ * SLOT, nowait=(n < first_nowait))
            n += 1
            after()
        for j in range(4):
            e("s_add_u32 %s, %s, %d" % (sr(SL_OFF), sr(SL_WB), j * 32 * 8192))
            issue_tile(SRD_WQ, LV_WQ, 8192, cfg.wflags, NQ * SLOT, nowait=(n < first_nowait))
            n += 1
            after()

    def qp_bases(ph, rnd):
        e("s_add_u32 %s, %s, %s" % (sr(S_T1), sr(SL_ROT), sr(rnd)))
        e("s_and_b32 %s, %s, 3" % (sr(S_T1), sr(S_T1)))
        e("s_lshl_b32 %s, %s, 8" % (sr(S_T2), sr(S_T1)))
        e("s_mul_i32 %s, %s, %d" % (sr(SL_XB), sr(S_B4), 96 * 1024))
        e("s_add_u32 %s, %s, %s" % (sr(SL_XB), sr(SL_XB), sr(S_T2)))
        if ph:
            e("s_add_u32 %s, %s, %d" % (sr(SL_XB), sr(SL_XB), 4 * 96 * 1024))
        e("s_lshl_b32 %s, %s, 20" % (sr(S_T2), sr(S_T1)))
        e("s_lshl_b32 %s, %s, 8" % (sr(SL_WB), sr(S_H)))
        e("s_add_u32 %s, %s, %s" % (sr(SL_WB), sr(SL_WB), sr(S_T2)))

    kvf = "" if cfg.kvsame else cfg.kvflags
    e("s_mov_b32 %s, %d" % (sr(SL_NADJ), NQ - 1))
    e("s_mov_b32 %s, 0" % sr(SL_CNT))
    qp_bases(0, SL_CNT)
    qp_round(first_nowait=D)
    srdb(SRD_K, KA_K, NB_KV)
    srdb(SRD_V, KA_V, NB_KV)
    srdb(SRD_WO, KA_WO, NB_W)
    lane_offs(LV_K, 6, 3, 256)
    lane_offs(LV_V, 6, 2, 256)
    lane_offs(LV_WO, 4, 2, 1024)
    e("v_lshlrev_b32 v7, 4, v0")
    for b in range(3, 0, -1):
        e("v_add_u32 v%d, %d, v7" % (LV_O + b, BIAS + b * (1024 - BLK)))
    e("v_add_u32 v%d, %d, v7" % (LV_O, BIAS))
    e("v_min_u32 v7, 11, v0")
    e("v_lshrrev_b32 v%d, 2, v7" % LV_FA)
    e("v_lshlrev_b32 v%d, 7, v%d" % (LV_FA, LV_FA))
    e("v_and_b32 v7, 3, v7")
    e("v_lshlrev_b32 v7, 3, v7")
    e("v_add_u32 v%d, v%d, v7" % (LV_FA, LV_FA))
    e("v_add_u32 v%d, %d, v%d" % (LV_FA, BIAS, LV_FA))
    e("s_lshl_b32 %s, %s, 5" % (sr(S_T1), sr(S_B4)))
    e("s_add_u32 %s, %s, %s" % (sr(S_T1), sr(S_T1), sr(S_H)))
    e("s_lshl_b32 %s, %s, 18" % (sr(SL_KOFF), sr(S_T1)))
    e("s_mul_i32 %s, %s, %d" % (sr(SL_R0), sr(S_WG), cfg.krot))
    e("s_and_b32 %s, %s, 31" % (sr(SL_R0), sr(SL_R0)))
    e("s_lshl_b32 %s, %s, 13" % (sr(SL_R0), sr(SL_R0)))
    stamp("q3")

    def kv_off(rel_sgpr, imm):
        if rel_sgpr is None:
            e("s_add_u32 %s, %s, %d" % (sr(SL_OFF), sr(SL_R0), imm))
        else:
            e("s_add_u32 %s, %s, %d" % (sr(SL_OFF), sr(rel_sgpr), imm))
        e("s_and_b32 %s, %s, 0x3ffff" % (sr(SL_OFF), sr(SL_OFF)))
        e("s_add_u32 %s, %s, %s" % (sr(SL_OFF), sr(SL_OFF), sr(SL_KOFF)))

    def early_tiles():
        e("s_mov_b32 %s, %s" % (sr(SL_QSLOT), sr(SL_SLOT)))
        e("s_mov_b32 %s, %d" % (sr(SL_SLOT), NQ * SLOT))
        seq = [("K", 0), ("K", 1), ("V", 0)]
        t = 0
        while len(seq) < E:
            seq += [("K", t + 2), ("V", t + 1)]
            t += 1
        assert len(seq) == E
        for kind, t in seq:
            kv_off(None, 0 if cfg.kvsame else t * 8192)
            if kind == "K":
                issue_tile(SRD_K, LV_K, 256, kvf, RING, check=False)
            else:
                issue_tile(SRD_V, LV_V, 256, kvf, RING, check=False)
        e("s_mov_b32 %s, %s" % (sr(SL_SLOT), sr(SL_QSLOT)))

    npairs_early = (E - 3) // 2
    if cfg.ytype == 1:
        e("s_and_b32 %s, %s, 1" % (sr(S_T3), sr(S_M)))
        e("s_cmp_eq_u32 %s, 0" % sr(S_T3))
        e("s_cbranch_scc1 L_ld_x1")
    if cfg.ytype in (1, 2):
        early_tiles()
        e("s_mov_b32 %s, %d" % (sr(SL_NADJ), NQ - 1 + E))
        e("s_sub_i32 %s, %s, %s" % (sr(SL_NEED), sr(SL_ISS), sr(SL_NADJ)))
    a.lab("L_ld_x1")
    e("s_mov_b32 %s, 1" % sr(SL_CNT))
    a.lab("L_ld_qp1")
    qp_bases(0, SL_CNT)
    qp_round()
    if cfg.stamps:
        for rr in (1, 2, 3):
            nm = "q%d" % (4 * rr + 3)
            if nm in stl:
                sk = a.newlab("sk")
                e("s_cmp_eq_u32 %s, %d" % (sr(SL_CNT), rr))
                e("s_cbranch_scc0 %s" % sk)
                stamp(nm)
                a.lab(sk)
    e("s_add_u32 %s, %s, 1" % (sr(SL_CNT), sr(SL_CNT)))
    e("s_cmp_lt_u32 %s, 4" % sr(SL_CNT))
    e("s_cbranch_scc1 L_ld_qp1")
    if cfg.ytype == 1:
        e("s_and_b32 %s, %s, 1" % (sr(S_T3), sr(S_M)))
        e("s_cmp_eq_u32 %s, 0" % sr(S_T3))
        e("s_cbranch_scc0 L_ld_y2")
    if cfg.ytype in (0, 1):
        early_tiles()
    a.lab("L_ld_y2")
    stamp("qp")
    cnt("cq")
    e("s_mov_b32 %s, 0" % sr(SL_SLOT))
    e("s_mov_b32 %s, %d" % (sr(SL_NADJ), NS - 1))
    e("s_mov_b32 %s, %d" % (sr(SL_NEED), NQT))
    e("v_mov_b32 v7, 0")
    e("global_load_dwordx2 %s, v7, %s sc1" % (vr(LV_NON, 2), sr(KA_DBG, 2)))
    e("s_mov_b32 %s, 0x55555554" % sr(SL_EVM))
    e("s_mov_b32 %s, 0" % sr(SL_CNT2))
    e("s_add_u32 %s, %s, %d" % (sr(SL_VOFF), sr(SL_R0), 0 if cfg.kvsame else npairs_early * 8192))
    e("s_mov_b32 %s, %d" % (sr(SL_CNT), npairs_early))
    assert npairs_early == 2
    e("s_branch L_ld_disp")
    a.lab("L_ld_head")
    kv_off(None, 0)
    issue_tile(SRD_K, LV_K, 256, kvf, RING)
    kv_off(None, 8192)
    issue_tile(SRD_K, LV_K, 256, kvf, RING)
    kv_off(None, 0)
    issue_tile(SRD_V, LV_V, 256, kvf, RING)
    e("s_mov_b32 %s, %s" % (sr(SL_VOFF), sr(SL_R0)))
    e("s_mov_b32 %s, 0" % sr(SL_CNT))
    a.lab("L_ld_kv")
    kv_off(SL_VOFF, 16384)
    issue_tile(SRD_K, LV_K, 256, kvf, RING)
    kv_off(SL_VOFF, 8192)
    issue_tile(SRD_V, LV_V, 256, kvf, RING)
    if not cfg.kvsame:
        e("s_add_u32 %s, %s, 8192" % (sr(SL_VOFF), sr(SL_VOFF)))
    e("s_add_u32 %s, %s, 1" % (sr(SL_CNT), sr(SL_CNT)))
    e("s_bitcmp1_b32 %s, %s" % (sr(SL_EVM), sr(SL_CNT)))
    e("s_cbranch_scc1 L_ld_disp")
    a.lab("L_ld_evret")
    e("s_cmp_lt_u32 %s, 30" % sr(SL_CNT))
    e("s_cbranch_scc1 L_ld_kv")
    kv_off(SL_VOFF, 8192)
    issue_tile(SRD_V, LV_V, 256, kvf, RING)
    e("s_cmp_eq_u32 %s, 0" % sr(SL_CNT2))
    e("s_cbranch_scc0 L_ld_tail")
    stamp("h0")
    cnt("c0")
    e("s_add_u32 %s, %s, %d" % (sr(SL_KOFF), sr(SL_KOFF), 4 * 32 * 262144))
    if cfg.wsbase:
        e("s_add_u32 %s, %s, 0x%x" % (sr(KA_WS), sr(KA_WS), cfg.wsbase << 20))
        e("s_addc_u32 %s, %s, 0" % (sr(KA_WS + 1), sr(KA_WS + 1)))
    srdb(SRD_X, KA_WS, WS_USED)
    if not cfg.noxchg and not cfg.nocompute:
        okn = a.newlab("lnok")
        e("v_readfirstlane_b32 %s, v%d" % (sr(SL_NONCE), LV_NON))
        e("v_readfirstlane_b32 %s, v%d" % (sr(SL_NONCE + 1), LV_NON + 1))
        e("s_nop 3")
        e("s_cmp_lg_u32 %s, 0" % sr(SL_NONCE))
        e("s_cbranch_scc1 %s" % okn)
        lpn = a.newlab("lnlp")
        a.lab(lpn)
        e("v_mov_b32 v7, 0")
        e("global_load_dwordx2 %s, v7, %s sc1" % (vr(LV_NON, 2), sr(KA_DBG, 2)))
        e("s_waitcnt vmcnt(0)")
        e("v_readfirstlane_b32 %s, v%d" % (sr(SL_NONCE), LV_NON))
        e("v_readfirstlane_b32 %s, v%d" % (sr(SL_NONCE + 1), LV_NON + 1))
        e("s_sub_u32 %s, %s, 1" % (sr(S_SPIN), sr(S_SPIN)))
        e("s_cmp_eq_u32 %s, 0" % sr(S_SPIN))
        e("s_cbranch_scc1 L_end")
        e("s_cmp_eq_u32 %s, 0" % sr(SL_NONCE))
        e("s_cbranch_scc1 %s" % lpn)
        a.lab(okn)
    if cfg.lead2:
        e("s_mov_b32 %s, %d" % (sr(SL_NADJ), cfg.lead2 - 1))
    e("s_mov_b32 %s, 1" % sr(SL_CNT2))
    e("s_branch L_ld_head")
    a.lab("L_ld_tail")
    if cfg.lead2:
        e("s_mov_b32 %s, %d" % (sr(SL_NADJ), NS - 1))
        e("s_sub_i32 %s, %s, %s" % (sr(SL_NEED), sr(SL_ISS), sr(SL_NADJ)))
    stamp("h1")
    cnt("c1")
    e("s_mov_b32 %s, 0" % sr(SL_XB))
    a.lab("L_ld_wo_r")
    e("s_add_u32 %s, %s, %s" % (sr(S_T1), sr(S_M), sr(SL_XB)))
    e("s_and_b32 %s, %s, 3" % (sr(S_T1), sr(S_T1)))
    e("s_lshl_b32 %s, %s, 17" % (sr(S_T1), sr(S_T1)))
    e("s_lshl_b32 %s, %s, 19" % (sr(SL_WB), sr(S_X)))
    e("s_add_u32 %s, %s, %s" % (sr(SL_WB), sr(SL_WB), sr(S_T1)))
    e("s_lshl_b32 %s, %s, 8" % (sr(S_T1), sr(S_M)))
    e("s_add_u32 %s, %s, %s" % (sr(SL_WB), sr(SL_WB), sr(S_T1)))
    for j in range(4):
        e("s_add_u32 %s, %s, %d" % (sr(SL_OFF), sr(SL_WB), j * 32 * 1024))
        issue_tile(SRD_WO, LV_WO, 1024, cfg.wo2flags, RING)
    e("s_add_u32 %s, %s, 1" % (sr(SL_XB), sr(SL_XB)))
    e("s_cmp_lt_u32 %s, 4" % sr(SL_XB))
    e("s_cbranch_scc1 L_ld_wo_r")
    a.lab("L_ld_drain")
    publish_nb()
    e("s_cmp_lt_i32 %s, %s" % (sr(SL_PUB), sr(SL_ISS)))
    e("s_cbranch_scc1 L_ld_drain")
    e("s_waitcnt lgkmcnt(0)")
    stamp("t2")
    e("s_branch L_fin")

    def pf_tile(srdreg, voff, rs, flags, vdst):
        e("s_add_u32 %s, %s, %d" % (sr(SL_OFF2), sr(SL_OFF), 16 * rs))
        for b in range(8):
            e("buffer_load_dwordx4 %s, v%d, %s, %s offen offset:%d %s" % (
                vr(vdst + 4 * b, 4), voff + (b & 3), sr(srdreg, 4), sr(SL_OFF if b < 4 else SL_OFF2),
                (b & 3) * BLK, flags))

    def flag_poll_issue_l():
        e("s_lshl_b32 %s, %s, 9" % (sr(S_T1), sr(S_QUAD)))
        e("buffer_load_dwordx2 %s, v%d, %s, %s offen sc1" % (vr(LV_FL, 2), LV_FA, sr(SRD_X, 4), sr(S_T1)))

    def flag_check_l(tgt_ok):
        e("v_cmp_ne_u32 vcc, %s, v%d" % (sr(SL_NONCE), LV_FL))
        e("v_cmp_ne_u32 s[28:29], %s, v%d" % (sr(SL_NONCE + 1), LV_FL + 1))
        e("s_nop 3")
        e("s_or_b64 vcc, vcc, s[28:29]")
        if cfg.perm:
            e("s_lshl_b32 s28, 0x111, %s" % sr(SL_MM))
            e("s_and_b32 s28, s28, vcc_lo")
        e("s_cbranch_scc0 %s" % tgt_ok)

    a.lab("L_ld_disp")
    e("s_lshr_b32 %s, %s, 1" % (sr(SL_PP), sr(SL_CNT)))
    e("s_sub_u32 %s, %s, 1" % (sr(SL_PP), sr(SL_PP)))
    e("s_lshr_b32 %s, %s, 2" % (sr(SL_RND), sr(SL_PP)))
    e("s_and_b32 %s, %s, 3" % (sr(SL_JJ), sr(SL_PP)))
    e("s_cmp_eq_u32 %s, 0" % sr(SL_CNT2))
    e("s_cbranch_scc0 L_ld_x2")
    e("s_cmp_eq_u32 %s, 0" % sr(SL_JJ))
    e("s_cbranch_scc0 L_ld_w1")
    qp_bases(1, SL_RND)
    for w in range(3):
        e("s_add_u32 %s, %s, %d" % (sr(SL_OFF), sr(SL_XB), w * 32 * 1024))
        issue_tile(SRD_X, LV_X, 1024, cfg.x2flags, RING)
    a.lab("L_ld_w1")
    e("s_lshl_b32 %s, %s, 18" % (sr(SL_OFF), sr(SL_JJ)))
    e("s_add_u32 %s, %s, %s" % (sr(SL_OFF), sr(SL_OFF), sr(SL_WB)))
    issue_tile(SRD_WQ, LV_WQ, 8192, cfg.wq2flags, RING)
    e("s_cmp_eq_u32 %s, 14" % sr(SL_PP))
    e("s_cbranch_scc0 L_ld_evret")
    e("s_add_u32 %s, %s, %d" % (sr(SL_OFF), sr(SL_WB), 3 * 32 * 8192))
    issue_tile(SRD_WQ, LV_WQ, 8192, cfg.wq2flags, RING)
    e("s_branch L_ld_evret")
    a.lab("L_ld_x2")
    if not cfg.noxchg and not cfg.nocompute:
        skp = a.newlab("skp")
        if cfg.perm:
            e("s_cmp_eq_u32 %s, 2" % sr(SL_JJ))
        else:
            e("s_cmp_eq_u32 %s, 2" % sr(SL_PP))
        e("s_cbranch_scc0 %s" % skp)
        flag_poll_issue_l()
        a.lab(skp)
    e("s_cmp_eq_u32 %s, 0" % sr(SL_JJ))
    e("s_cbranch_scc0 L_ld_w2")
    if cfg.perm:
        e("s_brev_b32 %s, %s" % (sr(S_T2), sr(SL_RND)))
        e("s_lshr_b32 %s, %s, 30" % (sr(S_T2), sr(S_T2)))
        e("s_add_u32 %s, %s, %s" % (sr(S_T2), sr(S_M), sr(S_T2)))
    else:
        e("s_add_u32 %s, %s, %s" % (sr(S_T2), sr(S_M), sr(SL_RND)))
    e("s_and_b32 %s, %s, 3" % (sr(S_T2), sr(S_T2)))
    e("s_mov_b32 %s, %s" % (sr(SL_MM), sr(S_T2)))
    e("s_lshl_b32 %s, %s, 17" % (sr(S_T1), sr(S_T2)))
    e("s_lshl_b32 %s, %s, 19" % (sr(SL_WB), sr(S_X)))
    e("s_add_u32 %s, %s, %s" % (sr(SL_WB), sr(SL_WB), sr(S_T1)))
    e("s_lshl_b32 %s, %s, 8" % (sr(S_T1), sr(S_M)))
    e("s_add_u32 %s, %s, %s" % (sr(SL_WB), sr(SL_WB), sr(S_T1)))
    e("s_lshl_b32 %s, %s, 2" % (sr(S_T3), sr(S_QUAD)))
    e("s_add_u32 %s, %s, %s" % (sr(S_T2), sr(S_T2), sr(S_T3)))
    e("s_mul_i32 %s, %s, 24576" % (sr(S_T2), sr(S_T2)))
    e("s_add_u32 %s, %s, %d" % (sr(SL_XB), sr(S_T2), WS_OBUF))
    e("s_cmp_eq_u32 %s, 0" % sr(SL_RND))
    e("s_cbranch_scc1 L_ld_w2")
    if not cfg.noxchg and not cfg.nocompute:
        okf = a.newlab("lfok")
        if not cfg.perm:
            e("s_cmp_eq_u32 %s, 1" % sr(SL_RND))
            e("s_cbranch_scc0 %s" % okf)
        stamp("e2")
        flag_check_l(okf)
        lpf = a.newlab("lfl")
        a.lab(lpf)
        flag_poll_issue_l()
        e("s_waitcnt vmcnt(0)")
        e("s_sub_u32 %s, %s, 1" % (sr(S_SPIN), sr(S_SPIN)))
        e("s_cmp_eq_u32 %s, 0" % sr(S_SPIN))
        e("s_cbranch_scc1 L_end")
        flag_check_l(okf)
        e("s_branch %s" % lpf)
        a.lab(okf)
        if cfg.stamps:
            skq = a.newlab("skq")
            e("s_cmp_eq_u32 %s, 1" % sr(SL_RND))
            e("s_cbranch_scc0 %s" % skq)
            stamp("e3")
            a.lab(skq)
    for w in range(3):
        e("s_add_u32 %s, %s, %d" % (sr(SL_OFF), sr(SL_XB), w * 8192))
        issue_tile(SRD_X, LV_O, 256, cfg.oflags, RING)
    a.lab("L_ld_w2")
    e("s_lshl_b32 %s, %s, 15" % (sr(SL_OFF), sr(SL_JJ)))
    e("s_add_u32 %s, %s, %s" % (sr(SL_OFF), sr(SL_OFF), sr(SL_WB)))
    issue_tile(SRD_WO, LV_WO, 1024, cfg.woflags, RING)
    e("s_cmp_eq_u32 %s, 14" % sr(SL_PP))
    e("s_cbranch_scc0 L_ld_evret")
    e("s_add_u32 %s, %s, %d" % (sr(SL_OFF), sr(SL_WB), 3 * 32 * 1024))
    issue_tile(SRD_WO, LV_WO, 1024, cfg.woflags, RING)
    e("s_branch L_ld_evret")

    for slow, ok in ool:
        a.lab(slow)
        e("s_call_b64 %s, L_waitfree" % sr(S_RET, 2))
        e("s_branch %s" % ok)
    a.lab("L_waitfree")
    if cfg.stamps:
        e("s_add_u32 %s, %s, 1" % (sr(SL_WFC), sr(SL_WFC)))
    e("ds_read_b96 v[%d:%d], v%d" % (LV_F, LV_F + 2, LV_FADDR))
    publish_nb()
    e("s_waitcnt lgkmcnt(1)")
    e("v_min3_u32 v%d, v%d, v%d, v%d" % (LV_F, LV_F, LV_F + 1, LV_F + 2))
    e("s_sub_u32 %s, %s, 1" % (sr(S_SPIN), sr(S_SPIN)))
    e("v_readfirstlane_b32 %s, v%d" % (sr(SL_FMIN), LV_F))
    e("s_cmp_eq_u32 %s, 0" % sr(S_SPIN))
    e("s_cbranch_scc1 L_end")
    e("s_nop 1")
    e("s_cmp_ge_i32 %s, %s" % (sr(SL_FMIN), sr(SL_NEED)))
    e("s_cbranch_scc0 L_waitfree")
    e("s_setpc_b64 %s" % sr(S_RET, 2))

    if cfg.noxchg:
        a.filt = lambda sx: (sx.startswith("buffer_") or sx.startswith("global_load")
                             or sx.startswith("global_store_dwordx2"))
    a.lab("L_compute")
    e("v_and_b32 v1, 3, v0")
    e("v_lshrrev_b32 v2, 5, v0")
    e("v_lshrrev_b32 v3, 4, v0")
    e("v_and_b32 v3, 1, v3")
    e("v_lshrrev_b32 v4, 2, v0")
    e("v_and_b32 v4, 3, v4")
    e("v_lshlrev_b32 v5, 2, v3")
    e("v_add_u32 v5, v5, v1")
    e("s_movk_i32 %s, %d" % (sr(S_T0), BLK))
    e("v_mul_lo_u32 v5, v5, %s" % sr(S_T0))
    e("v_lshlrev_b32 v6, 8, v4")
    e("v_add_u32 v5, v5, v6")
    for par in range(2):
        e("v_add_u32 v6, %d, v2" % (2 * par))
        e("v_xor_b32 v6, v6, v4")
        e("v_lshlrev_b32 v6, 4, v6")
        e("v_add_u32 v%d, v5, v6" % (V_KB + par))
    e("v_lshrrev_b32 v6, 1, v1")
    e("v_and_b32 v7, 1, v1")
    e("v_lshlrev_b32 v7, 1, v7")
    e("v_or_b32 v6, v6, v7")
    e("v_lshlrev_b32 v6, 3, v6")
    e("v_lshlrev_b32 v7, 5, v3")
    e("v_add_u32 v6, v6, v7")
    e("v_mul_lo_u32 v7, v4, %s" % sr(S_T0))
    e("v_add_u32 v6, v6, v7")
    e("v_lshlrev_b32 v7, 8, v2")
    e("v_add_u32 v%d, v6, v7" % V_VB)
    e("v_add_u32 v%d, v%d, v7" % (V_WB, V_VB))
    e("v_add_u32 v%d, %d, v%d" % (V_VB2, SLOT, V_VB))
    e("v_mov_b32 v%d, %d" % (V_LADDR, FLAG_L))
    e("s_lshl_b32 %s, %s, 2" % (sr(S_T0), sr(S_WAVE)))
    e("s_add_u32 %s, %s, %d" % (sr(S_T0), sr(S_T0), FLAG_F))
    e("v_mov_b32 v%d, %s" % (V_FADDR, sr(S_T0)))
    e("v_mov_b32 v%d, %d" % (V_FV, 100000 if cfg.nocompute else 0))
    e("ds_write_b32 v%d, v%d" % (V_FADDR, V_FV))
    e("v_lshlrev_b32 v%d, 4, v0" % V_L16)
    e("s_mov_b32 %s, 0" % sr(SC_L))
    e("s_mov_b32 %s, 0" % sr(SC_SWC))
    c = (128 ** -0.5) * math.log2(math.e)
    e("s_mov_b32 %s, 0x%x" % (sr(SC_T), f32bits(cfg.T_LOG2)))
    e("s_mov_b32 %s, 0" % sr(SC_IDX))
    e("s_mov_b32 %s, 0" % sr(SC_SLOT))
    e("s_mov_b32 %s, %d" % (sr(SC_WRAP), NQ * SLOT))
    if cfg.ytype == 1:
        e("s_and_b32 %s, %s, 1" % (sr(S_T1), sr(S_M)))
        e("s_mul_i32 %s, %s, %d" % (sr(SC_PADJ), sr(S_T1), E))
    else:
        e("s_mov_b32 %s, %d" % (sr(SC_PADJ), E if cfg.ytype == 2 else 0))
    e("s_mov_b32 %s, 0" % sr(SC_ADJ))
    if cfg.wsbase:
        e("s_add_u32 %s, %s, 0x%x" % (sr(KA_WS), sr(KA_WS), cfg.wsbase << 20))
        e("s_addc_u32 %s, %s, 0" % (sr(KA_WS + 1), sr(KA_WS + 1)))
    srd(SRD_WS, KA_WS, WS_USED)
    srd(SRD_OUT, KA_OUT, 8 * 96 * 1024 * 2)
    e("s_or_b32 %s, %s, %s" % (sr(S_T0), sr(S_WG), sr(S_WAVE)))
    e("s_cmp_eq_u32 %s, 0" % sr(S_T0))
    e("s_cbranch_scc0 L_nononce")
    e("s_memrealtime %s" % sr(SC_NONCE, 2))
    e("s_waitcnt lgkmcnt(0)")
    e("s_or_b32 %s, %s, 1" % (sr(SC_NONCE), sr(SC_NONCE)))
    e("v_mov_b32 v2, %s" % sr(SC_NONCE))
    e("v_mov_b32 v3, %s" % sr(SC_NONCE + 1))
    e("v_mov_b32 v1, 0")
    e("global_store_dwordx2 v1, v[2:3], %s sc1" % sr(KA_DBG, 2))
    a.lab("L_nononce")
    e("s_waitcnt lgkmcnt(0)")
    e("s_barrier")
    stamp("bar")
    if cfg.nocompute:
        e("s_branch L_fin")

    slowwaits = []

    def wait_landed_l(delta, adj=False):
        slow = a.newlab("lw_slow")
        back = a.newlab("lw_back")
        slowwaits.append((slow, back))
        out = ["s_add_u32 %s, %s, %d" % (sr(SC_NEED), sr(SC_IDX), delta)]
        if adj:
            out.append("s_add_u32 %s, %s, %s" % (sr(SC_NEED), sr(SC_NEED), sr(SC_ADJ)))
        out += ["s_cmp_lt_u32 %s, %s" % (sr(SC_L), sr(SC_NEED)),
                "s_cbranch_scc1 %s" % slow,
                back + ":"]
        return out

    def wait_landed(delta, adj=False):
        a.extend(wait_landed_l(delta, adj))

    def slot_adv_l(dst, src, n):
        return ["s_add_u32 %s, %s, %d" % (sr(dst), sr(src), n * SLOT),
                "s_sub_u32 %s, %s, %s" % (sr(S_T0), sr(dst), sr(SC_WRAP)),
                "s_cmp_lt_u32 %s, %s" % (sr(dst), sr(SC_WRAP)),
                "s_cselect_b32 %s, %s, %s" % (sr(dst), sr(dst), sr(S_T0))]

    def slot_adv(dst, src, n):
        a.extend(slot_adv_l(dst, src, n))

    def release_l(sg):
        return ["v_mov_b32 v%d, %s" % (V_FV, sr(sg)), "ds_write_b32 v%d, v%d" % (V_FADDR, V_FV)]

    def k_addr(slot):
        return ["v_add_u32 v%d, %s, v%d" % (V_KA + p, sr(slot), V_KB + p) for p in range(2)]

    def k_reads(dst_a):
        return ["ds_read_b128 %s, v%d offset:%d" % (ar(dst_a + 4 * s, 4), V_KA + (s & 1), (s >> 1) * 64)
                for s in range(8)]

    def v_addr(slot, base):
        return ["v_add_u32 v%d, %s, v%d" % (V_VA, sr(slot), base)]

    def v_reads(dst_a, isw):
        out = []
        for ks in range(2):
            for db in range(4):
                base = dst_a + (ks * 4 + db) * 4
                o2 = 256 if isw else 512
                o = ks * 4 * BLK + db * 64
                out.append("ds_read_b64_tr_b16 %s, v%d offset:%d" % (ar(base, 2), V_VA, o))
                out.append("ds_read_b64_tr_b16 %s, v%d offset:%d" % (ar(base + 2, 2), V_VA, o + o2))
        return out

    def wave_slot(dst, n):
        return ["s_mul_i32 %s, %s, %d" % (sr(S_T1), sr(S_WAVE), SLOT),
                "s_add_u32 %s, %s, %s" % (sr(dst), sr(SC_SLOT), sr(S_T1))] + slot_adv_l(dst, dst, n)

    def x_fetch(buf):
        out = wave_slot(SC_SLOT2, 0) + k_addr(SC_SLOT2) + k_reads(A_XF[buf])
        out += slot_adv_l(SC_SLOT, SC_SLOT, 3)
        return out

    wait_landed(4, True)
    a.extend(x_fetch(0))
    a.extend(v_addr(SC_SLOT, V_WB))
    a.extend(v_reads(A_AF[0], True))
    e("s_add_u32 %s, %s, 4" % (sr(SC_IDX), sr(SC_IDX)))
    slot_adv(SC_SLOT, SC_SLOT, 1)
    for cidx in range(16):
        r, j = divmod(cidx, 4)
        e("s_waitcnt lgkmcnt(0)")
        mf = []
        for ks in range(2):
            for db in range(4):
                acc = V_ACCQ + 16 * db
                cin = "0" if (cidx == 0 and ks == 0) else vr(acc, 16)
                mf.append("%s %s, %s, %s, %s" % (
                    MFMA, vr(acc, 16), ar(A_AF[cidx & 1] + (ks * 4 + db) * 4, 4),
                    ar(A_XF[r & 1] + (2 * j + ks) * 4, 4), cin))
        fill = []
        if cidx < 15:
            nx = 3 if j == 3 else 0
            if cidx == 3:
                fill += ["s_mov_b32 %s, %s" % (sr(SC_ADJ), sr(SC_PADJ))]
            fill += wait_landed_l(nx + 1, True)
            if nx:
                fill += x_fetch((r + 1) & 1)
            fill += v_addr(SC_SLOT, V_WB) + v_reads(A_AF[(cidx + 1) & 1], True)
            fill += release_l(SC_IDX)
            fill += ["s_add_u32 %s, %s, %d" % (sr(SC_IDX), sr(SC_IDX), nx + 1)] + slot_adv_l(SC_SLOT, SC_SLOT, 1)
        else:
            fill += release_l(SC_IDX)
        ng = 6
        per = [[] for _ in range(8)]
        items = fill
        n = len(items)
        pos = 0
        for g in range(ng):
            tgt = max((n * (g + 1)) // ng, pos)
            while tgt < n and items[tgt].endswith(":"):
                tgt += 1
            per[g] = items[pos:tgt]
            pos = tgt
        a.extend(gaps(mf, per))
        if cfg.stamps and ("q%d" % cidx) in stl:
            stamp("q%d" % cidx)

    def q_convert(dst):
        e("s_nop 7")
        e("s_nop 3")
        e("s_mov_b32 %s, 0x%x" % (sr(S_T1), f32bits(c)))
        for i in range(32):
            e("v_mul_f32 v%d, %s, v%d" % (V_ACCQ + 2 * i, sr(S_T1), V_ACCQ + 2 * i))
            e("v_mul_f32 v%d, %s, v%d" % (V_ACCQ + 2 * i + 1, sr(S_T1), V_ACCQ + 2 * i + 1))
            e("v_cvt_pk_bf16_f32 v%d, v%d, v%d" % (dst + i, V_ACCQ + 2 * i, V_ACCQ + 2 * i + 1))
    q_convert(V_Q1)
    e("s_mov_b32 %s, %d" % (sr(SC_SLOT), NQ * SLOT))
    e("s_mov_b32 %s, %d" % (sr(SC_WRAP), RING))
    stamp("qp")

    def qk_mfmas(sdst, qbase, cin):
        return ["%s %s, %s, %s, %s" % (MFMA, vr(sdst, 16), ar(A_KF + 4 * s, 4), vr(qbase + 4 * s, 4),
                                       cin if s == 0 else vr(sdst, 16)) for s in range(8)]

    def softmax_gaps(sc):
        g = []
        for k in range(8):
            l = ["v_exp_f32 v%d, v%d" % (sc + 2 * k, sc + 2 * k),
                 "v_exp_f32 v%d, v%d" % (sc + 2 * k + 1, sc + 2 * k + 1)]
            if k > 0:
                p = k - 1
                l += ["v_add_f32 v%d, v%d, v%d" % (V_LSUM, V_LSUM, sc + 2 * p),
                      "v_add_f32 v%d, v%d, v%d" % (V_LS2, V_LS2, sc + 2 * p + 1),
                      "v_cvt_pk_bf16_f32 v%d, v%d, v%d" % (V_PF + p, sc + 2 * p, sc + 2 * p + 1)]
            g.append(l)
        tail = ["v_add_f32 v%d, v%d, v%d" % (V_LSUM, V_LSUM, sc + 14),
                "v_add_f32 v%d, v%d, v%d" % (V_LS2, V_LS2, sc + 15),
                "v_cvt_pk_bf16_f32 v%d, v%d, v%d" % (V_PF + 7, sc + 14, sc + 15)]
        return g, tail

    def pv_mfmas(vf):
        out = []
        for ks in range(2):
            for db in range(4):
                out.append("%s %s, %s, %s, %s" % (
                    MFMA, vr(V_O + 16 * db, 16), ar(vf + (ks * 4 + db) * 4, 4), vr(V_PF + 4 * ks, 4),
                    vr(V_O + 16 * db, 16)))
        return out

    def max_valu(sn):
        out = ["v_max3_f32 v%d, v%d, v%d, v%d" % (V_TMAX, sn, sn + 1, sn + 2)]
        for i in range(3, 15, 2):
            out.append("v_max3_f32 v%d, v%d, v%d, v%d" % (V_TMAX, V_TMAX, sn + i, sn + i + 1))
        out.append("v_max_f32 v%d, v%d, v%d" % (V_TMAX, V_TMAX, sn + 15))
        return out

    def cross_half_max():
        e("v_mov_b32 v1, v%d" % V_TMAX)
        e("s_nop 1")
        e("v_permlane32_swap_b32 v%d, v1" % V_TMAX)
        e("s_nop 1")
        e("v_max_f32 v%d, v%d, v1" % (V_TMAX, V_TMAX))

    def rare_path(lab, back, sn):
        a.lab(lab)
        cross_half_max()
        e("v_max_f32 v%d, 0, v%d" % (V_TMAX, V_TMAX))
        e("v_sub_f32 v%d, 0, v%d" % (V_ALPHA, V_TMAX))
        e("v_exp_f32 v%d, v%d" % (V_ALPHA, V_ALPHA))
        for i in range(16):
            e("v_sub_f32 v%d, v%d, v%d" % (sn + i, sn + i, V_TMAX))
        for i in range(16):
            e("v_sub_f32 v%d, v%d, v%d" % (V_NEGM + i, V_NEGM + i, V_TMAX))
        e("v_mul_f32 v%d, v%d, v%d" % (V_LSUM, V_LSUM, V_ALPHA))
        e("v_mul_f32 v%d, v%d, v%d" % (V_LS2, V_LS2, V_ALPHA))
        for i in range(64):
            e("v_mul_f32 v%d, v%d, v%d" % (V_O + i, V_O + i, V_ALPHA))
        e("s_branch %s" % back)

    rare = []
    dispatchers = []

    def get_nonce():
        if cfg.noxchg:
            return
        lp = a.newlab("nonce")
        a.lab(lp)
        e("v_mov_b32 v1, 0")
        e("global_load_dwordx2 v[2:3], v1, %s sc1" % sr(KA_DBG, 2))
        e("s_waitcnt vmcnt(0)")
        e("v_readfirstlane_b32 %s, v2" % sr(SC_NONCE))
        e("v_readfirstlane_b32 %s, v3" % sr(SC_NONCE + 1))
        e("s_sub_u32 %s, %s, 1" % (sr(S_SPIN), sr(S_SPIN)))
        e("s_cmp_eq_u32 %s, 0" % sr(S_SPIN))
        e("s_cbranch_scc1 L_end")
        e("s_cmp_eq_u32 %s, 0" % sr(SC_NONCE))
        e("s_cbranch_scc1 %s" % lp)

    def flag_store(off_sgpr, local=False, hi=None):
        e("v_mov_b32 v2, %s" % sr(SC_NONCE))
        e("v_mov_b32 v3, %s" % sr(SC_NONCE + 1 if hi is None else hi))
        e("v_mov_b32 v1, 0")
        e("s_mov_b64 s[34:35], exec")
        e("s_mov_b64 exec, 1")
        if local and cfg.local:
            gl = a.newlab("fsg")
            dn = a.newlab("fsd")
            e("s_cmp_eq_u32 %s, 0" % sr(SC_LOCAL))
            e("s_cbranch_scc1 %s" % gl)
            e("buffer_store_dwordx2 v[2:3], v1, %s, %s offen" % (sr(SRD_WS, 4), sr(off_sgpr)))
            e("s_branch %s" % dn)
            a.lab(gl)
            e("buffer_store_dwordx2 v[2:3], v1, %s, %s offen sc1" % (sr(SRD_WS, 4), sr(off_sgpr)))
            a.lab(dn)
        else:
            e("buffer_store_dwordx2 v[2:3], v1, %s, %s offen sc1" % (sr(SRD_WS, 4), sr(off_sgpr)))
        e("s_mov_b64 exec, s[34:35]")

    def flag_poll(off_sgpr, n):
        if cfg.noxchg:
            return
        lp = a.newlab("poll")
        e("v_min_u32 v1, %d, v0" % (n - 1))
        e("v_lshlrev_b32 v1, 3, v1")
        a.lab(lp)
        e("buffer_load_dwordx2 v[2:3], v1, %s, %s offen sc1" % (sr(SRD_WS, 4), sr(off_sgpr)))
        e("s_waitcnt vmcnt(0)")
        e("v_cmp_ne_u32 vcc, %s, v2" % sr(SC_NONCE))
        e("v_cmp_ne_u32 s[34:35], %s, v3" % sr(SC_NONCE + 1))
        e("s_sub_u32 %s, %s, 1" % (sr(S_SPIN), sr(S_SPIN)))
        e("s_cmp_eq_u32 %s, 0" % sr(S_SPIN))
        e("s_cbranch_scc1 L_end")
        e("s_or_b64 vcc, vcc, s[34:35]")
        e("s_cbranch_scc1 %s" % lp)

    def flago_off(dst, ph, with_m):
        e("s_lshl_b32 %s, %s, 2" % (sr(dst), sr(S_QUAD)))
        e("s_add_u32 %s, %s, %s" % (sr(dst), sr(dst), sr(S_WAVE)))
        e("s_lshl_b32 %s, %s, 7" % (sr(dst), sr(dst)))
        e("s_add_u32 %s, %s, %d" % (sr(dst), sr(dst), WS_FLAGO + ph * 64 * 4 * 128))
        if with_m:
            e("s_lshl_b32 %s, %s, 3" % (sr(S_T0), sr(S_M)))
            e("s_add_u32 %s, %s, %s" % (sr(dst), sr(dst), sr(S_T0)))

    def load_o(ph, regs, ks):
        e("s_lshl_b32 %s, %s, 2" % (sr(S_T1), sr(S_QUAD)))
        e("s_add_u32 %s, %s, %d" % (sr(S_T1), sr(S_T1), ph * 256))
        e("s_mul_i32 %s, %s, 24576" % (sr(S_T1), sr(S_T1)))
        e("s_lshl_b32 %s, %s, 13" % (sr(S_T2), sr(S_WAVE)))
        e("s_add_u32 %s, %s, %s" % (sr(S_T1), sr(S_T1), sr(S_T2)))
        e("s_add_u32 %s, %s, %d" % (sr(S_T1), sr(S_T1), WS_OBUF))
        for k in ks:
            e("s_add_u32 %s, %s, %d" % (sr(S_T2), sr(S_M), k))
            e("s_and_b32 %s, %s, 3" % (sr(S_T2), sr(S_T2)))
            e("s_mul_i32 %s, %s, 24576" % (sr(S_T2), sr(S_T2)))
            e("s_add_u32 %s, %s, %s" % (sr(S_T2), sr(S_T2), sr(S_T1)))
            e("s_add_u32 %s, %s, 4096" % (sr(S_T3), sr(S_T2)))
            for s in range(8):
                e("buffer_load_dwordx4 %s, v%d, %s, %s offen offset:%d sc1" % (
                    ar(regs[k] + 4 * s, 4), V_L16, sr(SRD_WS, 4), sr(S_T2 if s < 4 else S_T3), (s & 3) * 1024))

    def poff(dst, ph, kq_sgpr):
        e("s_add_u32 %s, %s, %d" % (sr(dst), sr(S_G8), ph * 8))
        e("s_lshl_b32 %s, %s, 2" % (sr(dst), sr(dst)))
        e("s_add_u32 %s, %s, %s" % (sr(dst), sr(dst), sr(S_M)))
        e("s_lshl_b32 %s, %s, 3" % (sr(dst), sr(dst)))
        if kq_sgpr is not None:
            e("s_add_u32 %s, %s, %s" % (sr(dst), sr(dst), sr(kq_sgpr)))
        e("s_mul_i32 %s, %s, 24576" % (sr(dst), sr(dst)))
        e("s_lshl_b32 %s, %s, 13" % (sr(S_T0), sr(S_WAVE)))
        e("s_add_u32 %s, %s, %s" % (sr(dst), sr(dst), sr(S_T0)))
        e("s_add_u32 %s, %s, %d" % (sr(dst), sr(dst), WS_PBUF))

    def flagp_off(dst, ph, with_kq):
        e("s_add_u32 %s, %s, %d" % (sr(dst), sr(S_G8), ph * 8))
        e("s_lshl_b32 %s, %s, 2" % (sr(dst), sr(dst)))
        e("s_add_u32 %s, %s, %s" % (sr(dst), sr(dst), sr(S_M)))
        e("s_lshl_b32 %s, %s, 2" % (sr(dst), sr(dst)))
        e("s_add_u32 %s, %s, %s" % (sr(dst), sr(dst), sr(S_WAVE)))
        e("s_lshl_b32 %s, %s, 7" % (sr(dst), sr(dst)))
        e("s_add_u32 %s, %s, %d" % (sr(dst), sr(dst), WS_FLAGP))
        if with_kq:
            e("s_lshl_b32 %s, %s, 3" % (sr(S_T0), sr(S_X)))
            e("s_add_u32 %s, %s, %s" % (sr(dst), sr(dst), sr(S_T0)))

    def partial_store(acc, ph):
        poff(SC_POFF, ph, S_X)
        e("s_add_u32 %s, %s, 4096" % (sr(S_T1), sr(SC_POFF)))
        e("s_nop 3")
        for cch in range(8):
            for i in range(4):
                k = 4 * cch + i
                e("v_cvt_pk_bf16_f32 v%d, v%d, v%d" % (acc + k, acc + 2 * k, acc + 2 * k + 1))
            e("buffer_store_dwordx4 %s, v%d, %s, %s offen offset:%d %s" % (
                vr(acc + 4 * cch, 4), V_L16, sr(SRD_WS, 4), sr(SC_POFF if cch < 4 else S_T1), (cch & 3) * 1024,
                cfg.stflags))

    def reduce(ph, regs):
        flagp_off(SC_FOFF, ph, False)
        flag_poll(SC_FOFF, 8)
        poff(SC_POFF, ph, None)
        e("s_lshl_b32 %s, %s, 10" % (sr(S_T1), sr(S_X)))
        e("s_add_u32 %s, %s, %s" % (sr(SC_POFF), sr(SC_POFF), sr(S_T1)))
        for kq in range(8):
            e("s_add_u32 %s, %s, %d" % (sr(S_T1), sr(SC_POFF), kq * 24576))
            e("buffer_load_dwordx4 %s, v%d, %s, %s offen sc1" % (
                vr(regs + 4 * kq, 4), V_L16, sr(SRD_WS, 4), sr(S_T1)))
        e("v_and_b32 v1, 31, v0")
        e("v_lshlrev_b32 v1, 11, v1")
        e("v_lshrrev_b32 v2, 5, v0")
        e("v_lshlrev_b32 v2, 4, v2")
        e("v_add_u32 v1, v1, v2")
        e("s_add_u32 %s, %s, %d" % (sr(S_T1), sr(S_B4), 4 * ph))
        e("s_mul_i32 %s, %s, 96" % (sr(S_T1), sr(S_T1)))
        e("s_lshl_b32 %s, %s, 5" % (sr(S_T2), sr(S_WAVE)))
        e("s_add_u32 %s, %s, %s" % (sr(S_T1), sr(S_T1), sr(S_T2)))
        e("s_lshl_b32 %s, %s, 11" % (sr(S_T1), sr(S_T1)))
        e("s_lshl_b32 %s, %s, 10" % (sr(S_T2), sr(S_BR)))
        e("s_add_u32 %s, %s, %s" % (sr(S_T1), sr(S_T1), sr(S_T2)))
        e("s_lshl_b32 %s, %s, 8" % (sr(S_T2), sr(S_M)))
        e("s_add_u32 %s, %s, %s" % (sr(S_T1), sr(S_T1), sr(S_T2)))
        e("s_lshl_b32 %s, %s, 5" % (sr(S_T2), sr(S_X)))
        e("s_add_u32 %s, %s, %s" % (sr(S_T1), sr(S_T1), sr(S_T2)))
        acc = regs + 32
        for kq in range(8):
            e("s_waitcnt vmcnt(%d)" % (7 - kq))
            for i in range(4):
                r = regs + 4 * kq + i
                if kq == 0:
                    e("v_lshlrev_b32 v%d, 16, v%d" % (acc + 2 * i, r))
                    e("v_and_b32 v%d, 0xffff0000, v%d" % (acc + 2 * i + 1, r))
                else:
                    e("v_lshlrev_b32 v%d, 16, v%d" % (acc + 8, r))
                    e("v_and_b32 v%d, 0xffff0000, v%d" % (r, r))
                    e("v_add_f32 v%d, v%d, v%d" % (acc + 2 * i, acc + 2 * i, acc + 8))
                    e("v_add_f32 v%d, v%d, v%d" % (acc + 2 * i + 1, acc + 2 * i + 1, r))
        for i in range(4):
            e("v_cvt_pk_bf16_f32 v%d, v%d, v%d" % (4 + i, acc + 2 * i, acc + 2 * i + 1))
        e("buffer_store_dwordx4 v[4:7], v1, %s, %s offen" % (sr(SRD_OUT, 4), sr(S_T1)))

    def head(ph):
        qbase = V_Q1 if ph == 0 else V_Q2
        stg = V_STG if ph == 0 else V_SA
        xacc = V_ACCQ if ph == 0 else V_ACC1
        A_AF2 = 224
        e("v_mov_b32 v%d, 0" % V_LSUM)
        e("v_mov_b32 v%d, 0" % V_LS2)
        wait_landed(1)
        a.extend(k_addr(SC_SLOT))
        a.extend(k_reads(A_KF))
        e("s_waitcnt lgkmcnt(0)")
        zo = ["v_mov_b32 v%d, 0" % (V_O + i) for i in range(64)]
        a.extend(gaps(qk_mfmas(V_SA, qbase, "0"), [zo[8 * g:8 * g + 8] for g in range(8)]))
        slot_adv(SC_SLOT, SC_SLOT, 1)
        wait_landed(3)
        a.extend(k_addr(SC_SLOT))
        slot_adv(SC_SLOT, SC_SLOT, 1)
        a.extend(v_addr(SC_SLOT, V_VB))
        a.extend(k_reads(A_KF))
        a.extend(v_reads(A_VF[0], False))
        slot_adv(SC_SLOT, SC_SLOT, 1)
        e("s_add_u32 %s, %s, 3" % (sr(SC_IDX), sr(SC_IDX)))
        a.extend(max_valu(V_SA))
        cross_half_max()
        for i in range(16):
            e("v_sub_f32 v%d, v%d, v%d" % (V_SA + i, V_SA + i, V_TMAX))
        e("v_sub_f32 v%d, 0, v%d" % (V_NEGM, V_TMAX))
        for i in range(1, 16):
            e("v_mov_b32 v%d, v%d" % (V_NEGM + i, V_NEGM))

        def nxt(dst, src):
            return ["s_add_u32 %s, %s, %d" % (sr(dst), sr(src), SLOT),
                    "s_cmp_lt_u32 %s, %d" % (sr(dst), RING),
                    "s_cselect_b32 %s, %s, 0" % (sr(dst), sr(dst))]

        def iteration(par, kind):
            scur = V_SA if par == 0 else V_SB
            snext = V_SB if par == 0 else V_SA
            ex = ["v_exp_f32 v%d, v%d" % (scur + i, scur + i) for i in range(16)]
            ad = ["v_add_f32 v%d, v%d, v%d" % ((V_LSUM, V_LS2)[i & 1], (V_LSUM, V_LS2)[i & 1], scur + i)
                  for i in range(16)]
            cv = ["v_cvt_pk_bf16_f32 v%d, v%d, v%d" % (V_PF + k, scur + 2 * k, scur + 2 * k + 1) for k in range(8)]
            pv = pv_mfmas(A_VF[par])
            rel = release_l(SC_IDX)
            e("s_waitcnt lgkmcnt(%d)" % (15 if kind == "full" else 0))
            if kind == "full":
                qk = qk_mfmas(snext, qbase, vr(V_NEGM, 16))
                kr = k_reads(A_KF)
                r = v_reads(A_VF[par ^ 1], False)
                mx = max_valu(snext)
                cmp_ = ["v_cmp_lt_f32 vcc, %s, v%d" % (sr(SC_T), V_TMAX)]
                b = nxt(SC_SLOT2, SC_SLOT)
                c_ = nxt(SC_SLOT, SC_SLOT2)
                idx2 = ["s_add_u32 %s, %s, 2" % (sr(SC_IDX), sr(SC_IDX))]
                ka = k_addr(SC_SLOT)
                va = v_addr(SC_SLOT2, V_VB)
                per = [
                    [ex[0], ex[1]] + wait_landed_l(2),
                    [ex[2], ex[3], cv[0], ka[0], b[0]],
                    [ex[4], ex[5], cv[1], ka[1], b[1]],
                    [ex[6], ex[7], cv[2], b[2], rel[0]],
                    [ex[8], ex[9], cv[3], va[0]],
                    [ex[10], ex[11], cv[4], c_[0]],
                    [ex[12], ex[13], cv[5], c_[1]],
                    [ex[14], ex[15], cv[6], cv[7], c_[2], "s_waitcnt lgkmcnt(0)"],
                    [rel[1]] + kr[0:3] + ad[0:2],
                    kr[3:6] + ad[2:4] + idx2,
                    kr[6:8] + r[0:1] + ad[4:6],
                    r[1:4] + ad[6:8] + mx[0:1],
                    r[4:7] + ad[8:10] + mx[1:2],
                    r[7:10] + ad[10:12] + mx[2:3],
                    r[10:13] + ad[12:14] + mx[3:5],
                    r[13:16] + ad[14:16] + mx[5:8] + cmp_,
                ]
                if cfg.ablate:
                    ab = cfg.ablate.split("+")

                    def keep(x):
                        for key, pat in (("add", "v_add_f32"), ("exp", "v_exp_f32"), ("cvt", "v_cvt_pk"),
                                         ("vr", "ds_read_b64"), ("mx", "v_max")):
                            if key in ab and x.startswith(pat):
                                return False
                        return True
                    per = [[x for x in l if keep(x)] for l in per]
                a.extend(gaps(qk + pv, per))
            else:
                g, tl = softmax_gaps(scur)
                if kind == "lastk":
                    a.extend(wait_landed_l(1) + v_addr(SC_SLOT, V_VB))
                    vrr = v_reads(A_VF[par ^ 1], False)
                    g = [l + vrr[2 * k:2 * k + 2] for k, l in enumerate(g)]
                    a.extend(gaps(qk_mfmas(snext, qbase, vr(V_NEGM, 16)), g))
                    a.extend(tl)
                    mx = max_valu(snext) + ["v_cmp_lt_f32 vcc, %s, v%d" % (sr(SC_T), V_TMAX)]
                    book = ["s_add_u32 %s, %s, 1" % (sr(SC_IDX), sr(SC_IDX))] + nxt(SC_SLOT, SC_SLOT)
                    e("s_waitcnt lgkmcnt(15)")
                    per = [[], [], [], mx[0:2], mx[2:4] + book[0:1], mx[4:6] + book[1:3], mx[6:8] + book[3:4],
                           mx[8:9]]
                    a.extend(gaps(pv, per))
                else:
                    for l in g:
                        a.extend(l)
                    a.extend(tl)
                    a.extend(rel)
                    a.extend(pv)
            if kind != "final":
                r_ = a.newlab("rare")
                b_ = a.newlab("back")
                e("s_cbranch_vccnz %s" % r_)
                a.lab(b_)
                rare.append((r_, b_, snext))

        def ch_mfmas(af, j):
            return ["%s %s, %s, %s, %s" % (
                MFMA, vr(xacc + 16 * db, 16), ar(af + (ks * 4 + db) * 4, 4),
                ar(A_XF[0] + (2 * j + ks) * 4, 4), vr(xacc + 16 * db, 16))
                for ks in range(2) for db in range(4)]

        def x_reads():
            if ph == 0:
                return k_addr(SC_SLOT2), k_reads(A_XF[0])
            return (["v_add_u32 v%d, %s, v%d" % (V_KA, sr(SC_SLOT2), V_L16)],
                    ["ds_read_b128 %s, v%d offset:%d" % (ar(A_XF[0] + 4 * s_, 4), V_KA, s_ * BLK) for s_ in range(8)])

        def ch_slot(pos, first=False, last=False):
            afp = A_AF[(pos - 1) & 1]
            afn = A_AF[pos & 1]
            nx = 3 if (pos == 0 and not (first and ph == 1)) else 0
            chk = wait_landed_l(nx + 1 + (1 if last else 0))
            wr = v_reads(afn, True)
            fill = []
            late = []
            if nx:
                ws = wave_slot(SC_SLOT2, 0)
                xa, xr = x_reads()
                adv3 = slot_adv_l(SC_SLOT, SC_SLOT, 3)
                pre = chk + ws + xa + adv3 + v_addr(SC_SLOT, V_WB)
                body = xr[0:6] + wr
                late6, late7 = xr[6:7], xr[7:8]
            else:
                pre = chk + v_addr(SC_SLOT, V_WB)
                body = wr
                late6, late7 = [], []
            post = nxt(SC_SLOT, SC_SLOT) + ["s_add_u32 %s, %s, %d" % (sr(SC_IDX), sr(SC_IDX), nx + 1)]
            if last:
                post += v_addr(SC_SLOT, V_WB) + v_reads(A_AF2, True) + nxt(SC_SLOT, SC_SLOT)
                post += ["s_add_u32 %s, %s, 1" % (sr(SC_IDX), sr(SC_IDX))]
            if first:
                zz = ["v_mov_b32 v%d, 0" % (xacc + i) for i in range(64)]
                a.extend(pre)
                k = 0
                for x_ in body + late6 + late7:
                    a.e(x_)
                    a.extend(zz[k:k + 2])
                    k += 2
                a.extend(zz[k:])
                a.extend(post)
                return
            mf = ch_mfmas(afp, (pos - 1) & 3)
            per = [[] for _ in range(8)]
            per[0] = pre
            n = len(body)
            for g in range(1, 7):
                per[g] = body[(n * (g - 1)) // 6:(n * g) // 6]
            per[3] = per[3] + late6 if False else per[3]
            per[4] = late6 + per[4]
            per[7] = late7 + post
            a.extend(gaps(mf, per))

        acts = []
        mask = [0]

        def at_pass(n, body):
            mask[0] |= 1 << n
            acts.append((n, body))

        if cfg.stamps:
            for nm in stl:
                if nm[0] == "ab"[ph] and nm[1:].isdigit():
                    at_pass(int(nm[1:]), lambda nm=nm: stamp(nm))
        if ph == 0:
            def nonce_issue():
                e("v_mov_b32 v1, 0")
                e("global_load_dwordx2 %s, v1, %s sc1" % (vr(V_NON, 2), sr(KA_DBG, 2)))

            def nonce_get():
                ok = a.newlab("nok")
                e("s_waitcnt vmcnt(0)")
                e("v_readfirstlane_b32 %s, v%d" % (sr(SC_NONCE), V_NON))
                e("v_readfirstlane_b32 %s, v%d" % (sr(SC_NONCE + 1), V_NON + 1))
                e("s_nop 3")
                e("s_cmp_lg_u32 %s, 0" % sr(SC_NONCE))
                e("s_cbranch_scc1 %s" % ok)
                get_nonce()
                a.lab(ok)
            if not cfg.noxchg:
                at_pass(1, nonce_issue)
                at_pass(6, nonce_get)
        else:
            def p1b():
                e("s_waitcnt vmcnt(0)")
                flago_off(SC_FOFF, 0, True)
                flag_store(SC_FOFF)
            def p1nb():
                sk = a.newlab("nbsk")
                e("s_cmp_lg_u32 %s, 0" % sr(SC_SAVE))
                e("s_cbranch_scc1 %s" % sk)
                e("s_getreg_b32 %s, hwreg(HW_REG_IB_STS)" % sr(S_T1))
                e("s_and_b32 %s, %s, 0xc0000f" % (sr(S_T1), sr(S_T1)))
                e("s_cmp_eq_u32 %s, 0" % sr(S_T1))
                e("s_cbranch_scc0 %s" % sk)
                flago_off(SC_FOFF, 0, True)
                flag_store(SC_FOFF)
                e("s_mov_b32 %s, 1" % sr(SC_SAVE))
                a.lab(sk)

            def p1last():
                sk = a.newlab("nbsk")
                e("s_cmp_lg_u32 %s, 0" % sr(SC_SAVE))
                e("s_cbranch_scc1 %s" % sk)
                p1b()
                a.lab(sk)
            if not cfg.noxchg:
                if cfg.nbflag:
                    e("s_mov_b32 %s, 0" % sr(SC_SAVE))
                    at_pass(1, p1nb)
                    at_pass(2, p1last)
                else:
                    at_pass(cfg.flagpass, p1b)
        disp = a.newlab("evdisp")

        def pass_end():
            e("s_add_u32 %s, %s, 1" % (sr(SC_IT), sr(SC_IT)))
            stub = a.newlab("evstub")
            back = a.newlab("evback")
            e("s_bitcmp1_b32 %s, %s" % (sr(SC_EVM), sr(SC_IT)))
            e("s_cbranch_scc1 %s" % stub)
            a.lab(back)
            stubs.append((stub, back, disp))

        def dispatcher(disp=disp, acts=acts):
            a.lab(disp)
            for n, body in acts:
                sk = a.newlab("noev")
                e("s_cmp_eq_u32 %s, %d" % (sr(SC_IT), n))
                e("s_cbranch_scc0 %s" % sk)
                body()
                a.lab(sk)
            e("s_setpc_b64 %s" % sr(SC_RET2, 2))
        dispatchers.append(dispatcher)

        e("s_mov_b32 %s, 0x%x" % (sr(SC_EVM), mask[0]))
        e("s_mov_b32 %s, 0" % sr(SC_IT))
        lp = a.newlab("attn")
        a.lab(lp)
        for pos in range(4):
            iteration(0, "full")
            iteration(1, "full")
            if pos == 0:
                f1 = a.newlab("chfirst")
                fb = a.newlab("chback")
                e("s_cmp_eq_u32 %s, 0" % sr(SC_IT))
                e("s_cbranch_scc1 %s" % f1)
                ch_slot(0)
                a.lab(fb)
                firsts.append((f1, fb, ch_slot))
            else:
                ch_slot(pos)
            pass_end()
        e("s_cmp_lt_u32 %s, 12" % sr(SC_IT))
        e("s_cbranch_scc1 %s" % lp)
        for pos in range(3):
            iteration(0, "full")
            iteration(1, "full")
            ch_slot(pos, last=(pos == 2))
            pass_end()
        iteration(0, "lastk")
        a.extend(ch_mfmas(A_AF[0], 2))
        iteration(1, "final")
        a.extend(ch_mfmas(A_AF2, 3))
        stamp("f%d" % ph)
        e("v_add_f32 v%d, v%d, v%d" % (V_LSUM, V_LSUM, V_LS2))
        e("v_mov_b32 v%d, v%d" % (V_LS2, V_LSUM))
        e("s_nop 1")
        e("v_permlane32_swap_b32 v%d, v%d" % (V_LSUM, V_LS2))
        e("s_nop 1")
        e("v_add_f32 v%d, v%d, v%d" % (V_LSUM, V_LSUM, V_LS2))
        e("v_rcp_f32 v%d, v%d" % (V_ALPHA, V_LSUM))
        if ph == 0:
            q_convert(V_Q2)
        e("s_lshl_b32 %s, %s, 2" % (sr(S_T1), sr(S_QUAD)))
        e("s_add_u32 %s, %s, %s" % (sr(S_T1), sr(S_T1), sr(S_M)))
        e("s_add_u32 %s, %s, %d" % (sr(S_T1), sr(S_T1), ph * 256))
        e("s_mul_i32 %s, %s, 24576" % (sr(S_T1), sr(S_T1)))
        e("s_lshl_b32 %s, %s, 13" % (sr(S_T2), sr(S_WAVE)))
        e("s_add_u32 %s, %s, %s" % (sr(S_T1), sr(S_T1), sr(S_T2)))
        e("s_add_u32 %s, %s, %d" % (sr(SC_OOFF), sr(S_T1), WS_OBUF))
        e("s_add_u32 %s, %s, 4096" % (sr(SC_OOFF2), sr(SC_OOFF)))
        e("s_nop 3")
        for s in range(8):
            for k in range(4):
                i = 4 * s + k
                e("v_mul_f32 v%d, v%d, v%d" % (V_O + 2 * i, V_O + 2 * i, V_ALPHA))
                e("v_mul_f32 v%d, v%d, v%d" % (V_O + 2 * i + 1, V_O + 2 * i + 1, V_ALPHA))
                e("v_cvt_pk_bf16_f32 v%d, v%d, v%d" % (stg + i, V_O + 2 * i, V_O + 2 * i + 1))
            e("buffer_store_dwordx4 %s, v%d, %s, %s offen offset:%d %s" % (
                vr(stg + 4 * s, 4), V_L16, sr(SRD_WS, 4), sr(SC_OOFF if s < 4 else SC_OOFF2),
                (s & 3) * 1024, cfg.stflags))
        if ph == 1:
            partial_store(V_ACC1, 0)

    stubs = []
    firsts = []

    def ccnt(name):
        if cfg.stamps:
            for k, nm in enumerate(stl):
                if nm == name:
                    e("s_mov_b32 %s, %s" % (sr(S_ST + 2 * k), sr(SC_SWC)))
    ccnt("cq")
    head(0)
    for i in range(32):
        e("v_accvgpr_write_b32 a%d, v%d" % (A_XF[0] + i, V_STG + i))
    stamp("h0")
    ccnt("c0")
    head(1)
    stamp("h1")
    ccnt("c1")

    def task(acc, bfrag, first, hooks):
        if first:
            wait_landed(1)
        a.extend(v_addr(SC_SLOT, V_WB))
        a.extend(v_reads(A_AF[0], True))
        e("s_add_u32 %s, %s, 1" % (sr(SC_IDX), sr(SC_IDX)))
        slot_adv(SC_SLOT, SC_SLOT, 1)
        fullwait = True
        for cidx in range(16):
            r, j = divmod(cidx, 4)
            mf = []
            for ks in range(2):
                for db in range(4):
                    cin = "0" if (cidx == 0 and ks == 0) else vr(acc + 16 * db, 16)
                    mf.append("%s %s, %s, %s, %s" % (
                        MFMA, vr(acc + 16 * db, 16), ar(A_AF[cidx & 1] + (ks * 4 + db) * 4, 4),
                        bfrag(r, 2 * j + ks), cin))
            per = [[] for _ in range(8)]
            if cidx == 15:
                fullwait = True
            if fullwait:
                e("s_waitcnt lgkmcnt(0)")
            if cidx < 15:
                wr = v_reads(A_AF[(cidx + 1) & 1], True)
                adv = ["s_add_u32 %s, %s, 1" % (sr(SC_IDX), sr(SC_IDX))] + slot_adv_l(SC_SLOT, SC_SLOT, 1)
                chk = wait_landed_l(1) if first else []
                per[0] = chk + v_addr(SC_SLOT, V_WB) + wr[0:2]
                per[1] = wr[2:4] + adv[0:2]
                per[2] = wr[4:6] + adv[2:4]
                per[3] = wr[6:8] + adv[4:5]
                per[4] = wr[8:10]
                per[5] = wr[10:12]
                per[6] = wr[12:14]
                per[7] = wr[14:16]
            if not fullwait:
                for g in (1, 3, 5):
                    per[g] = per[g] + ["s_waitcnt lgkmcnt(12)"]
                e("s_waitcnt lgkmcnt(12)")
            a.extend(gaps(mf, per))
            fullwait = False
            if hooks.get(cidx):
                hooks[cidx]()
                fullwait = True

    ACC2 = V_O

    def hk_after_round0():
        e("s_waitcnt vmcnt(0)")
        flago_off(SC_FOFF, 1, True)
        flag_store(SC_FOFF)
        flagp_off(SC_FOFF, 0, True)
        flag_store(SC_FOFF)
        flago_off(SC_FOFF, 1, False)
        flag_poll(SC_FOFF, 4)
        load_o(1, A_OF2, [1, 2, 3])
        e("s_waitcnt vmcnt(16)")
        stamp("t1")

    task(ACC2, lambda r, s: vr(V_SA + 4 * s, 4) if r == 0 else ar(A_OF2[r] + 4 * s, 4), True,
         {3: hk_after_round0, 7: lambda: e("s_waitcnt vmcnt(8)"), 11: lambda: e("s_waitcnt vmcnt(0)")})
    e("s_nop 7")
    partial_store(ACC2, 1)
    stamp("t2")
    e("s_waitcnt vmcnt(0)")
    stamp("w0")
    flagp_off(SC_FOFF, 1, True)
    flag_store(SC_FOFF)
    reduce(0, 160)
    stamp("r0")
    reduce(1, 160)
    e("s_waitcnt vmcnt(0)")
    stamp("r1")

    a.lab("L_fin")
    savef = a.filt
    a.filt = None
    if cfg.dbgstamps:
        dsk = a.newlab("dbgsk")
        e("s_waitcnt lgkmcnt(0)")
        e("s_mov_b32 s28, -1")
        e("s_cmp_eq_u32 s2, 0")
        e("s_cselect_b32 s28, 0, s28")
        e("s_cmp_eq_u32 s2, 129")
        e("s_cselect_b32 s28, 1, s28")
        e("s_cmp_eq_u32 s28, -1")
        e("s_cbranch_scc1 %s" % dsk)
        e("s_cmp_eq_u32 %s, 0" % sr(S_WAVE))
        e("s_cbranch_scc1 %s" % (dsk + "a"))
        e("s_cmp_eq_u32 %s, 3" % sr(S_WAVE))
        e("s_cbranch_scc0 %s" % dsk)
        e("s_cmp_eq_u32 s28, 0")
        e("s_cbranch_scc0 %s" % dsk)
        e("s_mov_b32 s28, 2")
        a.lab(dsk + "a")
        e("s_lshl_b32 s28, s28, 4")
        e("s_add_u32 s28, s28, 16")
        e("v_mov_b32 v1, s28")
        for j in range(4):
            e("s_sub_u32 s29, s%d, s%d" % (S_ST + 2 * (j + 1) + (2 * 3 if j == 3 else 0), S_ST))
            e("v_mov_b32 v%d, s29" % (4 + j))
        e("s_mov_b64 exec, 1")
        e("global_store_dwordx4 v1, v[4:7], %s" % sr(KA_DBG, 2))
        e("s_waitcnt vmcnt(0)")
        a.lab(dsk)
        e("s_branch L_end")
    if cfg.stamps:
        e("s_waitcnt lgkmcnt(0)")
        for k, nm in enumerate(stl):
            if nm == "loc":
                e("s_mov_b32 %s, %s" % (sr(S_ST + 2 * k), sr(SC_LOCAL)))
        e("s_lshl_b32 s28, s2, 9")
        e("s_lshl_b32 s29, %s, 7" % sr(S_WAVE))
        e("s_add_u32 s28, s28, s29")
        e("s_add_u32 s28, s28, 0x%x" % WS_STAMP)
        e("v_mov_b32 v1, s28")
        e("s_getreg_b32 s30, hwreg(HW_REG_XCC_ID)")
        e("s_mov_b64 exec, 1")
        for k in range(4):
            for j in range(4):
                e("v_mov_b32 v%d, s%d" % (4 + j, S_ST + 4 * k + j))
            e("global_store_dwordx4 v1, v[4:7], %s offset:%d" % (sr(KA_WS, 2), 16 * k))
            e("s_waitcnt vmcnt(0)")
        e("v_mov_b32 v4, s30")
        e("global_store_dword v1, v4, %s offset:64" % sr(KA_WS, 2))
        e("s_waitcnt vmcnt(0)")
    a.lab("L_end")
    e("s_endpgm")
    a.filt = savef

    for r, b, sn in rare:
        rare_path(r, b, sn)
    for d in dispatchers:
        d()
    for stub, back, disp in stubs:
        a.lab(stub)
        e("s_call_b64 %s, %s" % (sr(SC_RET2, 2), disp))
        e("s_branch %s" % back)
    for f1, fb, fn in firsts:
        a.lab(f1)
        fn(0, first=True)
        e("s_branch %s" % fb)
    for slow, back in slowwaits:
        a.lab(slow)
        if cfg.stamps:
            e("s_add_u32 %s, %s, 1" % (sr(SC_SWC), sr(SC_SWC)))
        e("ds_read_b32 v%d, v%d" % (V_LRD, V_LADDR))
        e("s_waitcnt lgkmcnt(0)")
        e("v_readfirstlane_b32 %s, v%d" % (sr(SC_L), V_LRD))
        e("s_sub_u32 %s, %s, 1" % (sr(S_SPIN), sr(S_SPIN)))
        e("s_cmp_eq_u32 %s, 0" % sr(S_SPIN))
        e("s_cbranch_scc1 L_end")
        e("s_cmp_lt_u32 %s, %s" % (sr(SC_L), sr(SC_NEED)))
        if cfg.psleep:
            e("s_cbranch_scc0 %s" % back)
            e("s_sleep %d" % cfg.psleep)
            e("s_branch %s" % slow)
        else:
            e("s_cbranch_scc1 %s" % slow)
            e("s_branch %s" % back)
    txt = a.text()

    kd = []
    kd.append('.section .rodata,"a"')
    kd.append(".p2align 6")
    kd.append(".amdhsa_kernel %s_kernel" % NAME)
    kd.append("  .amdhsa_next_free_vgpr 512")
    kd.append("  .amdhsa_next_free_sgpr 102")
    kd.append("  .amdhsa_accum_offset 256")
    kd.append("  .amdhsa_group_segment_fixed_size 0")
    kd.append("  .amdhsa_kernarg_size 104")
    kd.append("  .amdhsa_user_sgpr_count 2")
    kd.append("  .amdhsa_user_sgpr_kernarg_segment_ptr 1")
    kd.append("  .amdhsa_system_sgpr_workgroup_id_x 1")
    kd.append(".end_amdhsa_kernel")
    return "\n".join(hdr) + "\n" + txt + "\n".join(kd) + "\n"


if __name__ == "__main__":
    import argparse
    ap = argparse.ArgumentParser()
    ap.add_argument("-o", default="cdna_kernels/%s.s" % NAME)
    ap.add_argument("--stamps", action="store_true")
    ap.add_argument("--set", action="append", default=[])
    args = ap.parse_args()
    cfg = Cfg()
    cfg.stamps = args.stamps
    for kv in args.set:
        k, v = kv.split("=", 1)
        cur = getattr(cfg, k)
        if isinstance(cur, bool):
            v = v in ("1", "True", "true")
        elif isinstance(cur, int):
            v = int(v)
        elif isinstance(cur, float):
            v = float(v)
        setattr(cfg, k, v)
    open(args.o, "w").write(build(cfg))
    print("wrote", args.o)
```

```python
import math
import struct

NAME = "concat_heads__mha_block_cached__gqa_block_cached__near_ridge"


def f32bits(x):
    return struct.unpack("<I", struct.pack("<f", x))[0]


class Cfg:
    NS = 18
    NQ = 11
    E = 7
    D = 5
    deven = 5
    dodd = 5
    polllead = 3
    stamps = False
    T_LOG2 = 8.0
    kvflags = "nt"
    wflags = ""
    woflags = "nt"
    xflags = ""
    kvsame = False
    noload = False
    nocompute = False
    noxchg = False
    stamplist = "start,qp,h0,h1,t1,t2,r0,r1"
    po_base = 10
    po_mul = 4
    pft = 20
    prefetch = True
    ytype = 1
    spin = 0x80000
    local = False
    psleep = 0
    dumpq = False
    p0 = 6
    nostash = False
    nbflag = False
    lead2 = 0
    onlywg = 0
    krot = 0
    perm = True
    skipo = False
    skipwo = False
    skipq2 = False
    wsbase = 0
    oflags = "sc1"
    wo2flags = "nt"
    wq2flags = ""
    x2flags = ""
    stflags = "sc1"
    flagpass = 2
    mix = 0
    dbgstamps = False
    ablate = ""


BLK = 1088
SLOT = 8 * BLK
NQT = 28
WS_FLAGO = 0
WS_FLAGP = 65536
WS_FLAGI = 131072
WS_OBUF = 1 << 20
WS_PBUF = 16 << 20
WS_STAMP = 28 << 20
WS_USED = 32 << 20


def vr(base, n=1):
    return "v%d" % base if n == 1 else "v[%d:%d]" % (base, base + n - 1)


def ar(base, n=1):
    return "a%d" % base if n == 1 else "a[%d:%d]" % (base, base + n - 1)


def sr(base, n=1):
    return "s%d" % base if n == 1 else "s[%d:%d]" % (base, base + n - 1)


class Asm:
    def __init__(self):
        self.L = []
        self.nlab = 0
        self.filt = None

    def e(self, s):
        if self.filt and self.filt(s):
            return
        self.L.append("  " + s)

    def lab(self, name):
        self.L.append(name + ":")

    def newlab(self, base):
        self.nlab += 1
        return "L%s_%d" % (base, self.nlab)

    def extend(self, lst):
        for s in lst:
            if s.endswith(":"):
                self.lab(s[:-1])
            else:
                self.e(s)

    def text(self):
        return "\n".join(self.L) + "\n"


def gaps(primary, per_gap):
    out = []
    for p, f in zip(primary, per_gap):
        out.append(p)
        out.extend(f)
    return out


S_WG = 2
S_WAVE = 3
S_X, S_M, S_G8, S_QUAD, S_H = 20, 21, 22, 24, 25
S_SPIN = 26
S_TAU = 27
S_T0, S_T1, S_T2, S_T3 = 28, 29, 30, 31
S_RET = 32
KA_X, KA_K, KA_V, KA_WQ, KA_WO = 36, 38, 40, 42, 44
S_B4, S_BR = 46, 47
KA_OUT, KA_DBG, KA_WS = 56, 58, 60
SL_ISS, SL_PUB, SL_FMIN, SL_SLOT, SL_NEED, SL_OFF, SL_OFF2, SL_CNT, SL_CNT2, SL_KOFF, SL_VOFF, SL_ROT = range(4, 16)
SL_RET2 = 16
SL_XB, SL_WB = 18, 19
SL_NADJ = 23
SL_QSLOT = 48
SL_EVM = 49
SL_NONCE = 34
SL_THR = 50
SL_WFC = 51
SL_RND = 52
SL_PP, SL_JJ, SL_MM = 53, 54, 55
SL_WS0, SL_WS1 = 55, 63
SL_R0 = 62
SRD_X, SRD_K, SRD_V, SRD_WQ, SRD_WO = 64, 68, 72, 76, 80
SC_L, SC_SLOT, SC_IDX, SC_IT, SC_T, SC_NEED, SC_SLOT2, SC_ADJ = range(4, 12)
SC_OOFF, SC_OOFF2, SC_FOFF, SC_POFF = 12, 13, 14, 15
SC_NONCE = 16
SC_RET2 = 18
SC_WRAP, SC_LOCAL, SC_XCC, SC_IDOFF, SC_EVM, SC_PADJ, SC_SAVE, SC_SWC = 72, 73, 74, 75, 76, 77, 78, 79
SRD_WS, SRD_OUT = 64, 68
S_ST = 84

V_KB = 8
V_VB = 10
V_WB = 11
V_KA = 12
V_VA = 14
V_L16 = 15
V_LSUM, V_LS2, V_TMAX, V_ALPHA, V_FV, V_LADDR, V_FADDR, V_LRD = range(17, 25)
V_VB2 = 25
V_NON = 26
V_PF = 32
V_NEGM = 48
V_O = 64
V_SA = 128
V_SB = 144
V_ACCQ = 160
V_Q2 = 160
V_STG = 192
V_Q1 = 224
V_ACC1 = 192
A_AF = [0, 32]
A_KF = 64
A_VF = [96, 128]
A_XF = [160, 192]
A_OF2 = [None, 64, 96, 128]
MFMA = "v_mfma_f32_32x32x16_bf16"


def build(cfg):
    NS, D, NQ, E = cfg.NS, cfg.D, cfg.NQ, cfg.E
    if cfg.nostash:
        NQ, E = NS, 0
        cfg.ytype = 3
    else:
        assert NS == NQ + E
    RING = NS * SLOT
    FLAG_L = RING
    FLAG_F = RING + 16
    LDS_BYTES = RING + 64
    a = Asm()
    e = a.e
    hdr = []
    hdr.append("; @launch grid=(256,1,1) block=(256,1,1) lds=%d" % LDS_BYTES)
    hdr.append('.amdgcn_target "amdgcn-amd-amdhsa--gfx950"')
    hdr.append(".text")
    hdr.append(".globl %s_kernel" % NAME)
    hdr.append(".p2align 8")
    hdr.append(".type %s_kernel,@function" % NAME)
    hdr.append("%s_kernel:" % NAME)
    stl = cfg.stamplist.split(",")

    def stamp(name):
        if cfg.stamps:
            for k, nm in enumerate(stl):
                if nm == name:
                    e("s_memrealtime %s" % sr(S_ST + 2 * k, 2))
                if nm == name + ".c":
                    e("s_memtime %s" % sr(S_ST + 2 * k, 2))

    def cnt(name):
        if cfg.stamps:
            for k, nm in enumerate(stl):
                if nm == name:
                    e("s_mov_b32 %s, %s" % (sr(S_ST + 2 * k), sr(SL_WFC)))

    e("s_cmp_ge_u32 s2, 256")
    e("s_cbranch_scc1 L_end")
    if cfg.onlywg:
        e("s_and_b32 s3, s2, %d" % cfg.onlywg)
        e("s_cmp_lg_u32 s3, 0")
        e("s_cbranch_scc1 L_end")
    e("s_load_dwordx16 s[36:51], s[0:1], 0")
    e("s_load_dwordx4 s[52:55], s[0:1], 64")
    e("s_load_dwordx4 s[56:59], s[0:1], 80")
    e("s_load_dwordx2 s[60:61], s[0:1], 96")
    stamp("start")
    e("v_lshrrev_b32 v1, 6, v0")
    e("v_and_b32 v0, 63, v0")
    e("s_and_b32 %s, s2, 7" % sr(S_X))
    e("v_readfirstlane_b32 %s, v1" % sr(S_WAVE))
    e("s_lshr_b32 s28, s2, 3")
    e("s_and_b32 %s, s28, 3" % sr(S_M))
    e("s_lshr_b32 %s, s28, 2" % sr(S_G8))
    e("s_lshl_b32 %s, %s, 2" % (sr(S_H), sr(S_X)))
    e("s_add_u32 %s, %s, %s" % (sr(S_H), sr(S_H), sr(S_M)))
    e("s_lshl_b32 %s, %s, 3" % (sr(S_QUAD), sr(S_G8)))
    e("s_add_u32 %s, %s, %s" % (sr(S_QUAD), sr(S_QUAD), sr(S_X)))
    e("s_mov_b32 %s, 0x%x" % (sr(S_SPIN), cfg.spin))
    e("s_lshl_b32 %s, %s, 1" % (sr(S_TAU), sr(S_M)))
    e("s_and_b32 s29, %s, 1" % sr(S_X))
    e("s_add_u32 %s, %s, s29" % (sr(S_TAU), sr(S_TAU)))
    e("s_mul_i32 %s, %s, %d" % (sr(S_TAU), sr(S_TAU), cfg.po_mul))
    e("s_lshr_b32 %s, %s, 3" % (sr(S_TAU), sr(S_TAU)))
    e("s_add_u32 %s, %s, %d" % (sr(S_TAU), sr(S_TAU), cfg.po_base))
    e("s_cmp_lt_u32 %s, 4" % sr(S_G8))
    e("s_waitcnt lgkmcnt(0)")
    for k in range(10):
        e("s_cselect_b32 s%d, s%d, s%d" % (36 + k, 36 + k, 46 + k))
    e("s_and_b32 %s, %s, 3" % (sr(S_B4), sr(S_G8)))
    e("s_lshr_b32 %s, %s, 2" % (sr(S_BR), sr(S_G8)))
    e("s_cmp_eq_u32 %s, 3" % sr(S_WAVE))
    e("s_cbranch_scc0 L_compute")

    def srd(dst, ptr, nbytes):
        e("s_mov_b32 %s, %s" % (sr(dst), sr(ptr)))
        e("s_mov_b32 %s, %s" % (sr(dst + 1), sr(ptr + 1)))
        e("s_mov_b32 %s, 0x%x" % (sr(dst + 2), nbytes))
        e("s_mov_b32 %s, 0x20000" % sr(dst + 3))

    a.lab("L_loader")
    e("s_setprio 3")
    LV_K, LV_V, LV_X, LV_WQ, LV_WO, LV_T, LV_LADDR, LV_FADDR, LV_F = 8, 12, 16, 20, 24, 28, 29, 30, 32
    LV_O, LV_FL, LV_NON, LV_FA, LV_WB, LV_VA = 36, 40, 42, 44, 45, 46
    BIAS = 4096
    NB_X, NB_KV, NB_W = 8 * 96 * 512 * 2, 8 * 32 * 1024 * 128 * 2, 512 * 4096 * 2

    def srdb(dst, ptr, nbytes):
        e("s_sub_u32 %s, %s, %d" % (sr(dst), sr(ptr), BIAS))
        e("s_subb_u32 %s, %s, 0" % (sr(dst + 1), sr(ptr + 1)))
        e("s_mov_b32 %s, 0x%x" % (sr(dst + 2), nbytes + BIAS))
        e("s_mov_b32 %s, 0x20000" % sr(dst + 3))

    e("v_lshrrev_b32 v1, 4, v0")
    e("v_and_b32 v2, 15, v0")
    e("v_xor_b32 v3, v2, v1")
    e("v_lshlrev_b32 v3, 4, v3")
    e("v_lshlrev_b32 v2, 4, v2")
    e("v_lshlrev_b32 v4, 12, v1")
    e("v_lshlrev_b32 v5, 15, v1")
    e("v_lshlrev_b32 v6, 10, v1")

    def lane_offs(dst, rowpart, colpart, rs):
        e("v_add_u32 v%d, v%d, v%d" % (dst, rowpart, colpart))
        for b in range(3, 0, -1):
            e("v_add_u32 v%d, %d, v%d" % (dst + b, BIAS + b * (rs - BLK), dst))
        e("v_add_u32 v%d, %d, v%d" % (dst, BIAS, dst))

    srdb(SRD_X, KA_X, NB_X)
    srdb(SRD_WQ, KA_WQ, NB_W)
    lane_offs(LV_X, 4, 3, 1024)
    lane_offs(LV_WQ, 5, 2, 8192)
    e("s_getreg_b32 %s, hwreg(HW_REG_XCC_ID)" % sr(SL_THR))
    e("s_and_b32 %s, %s, 1" % (sr(SL_THR), sr(SL_THR)))
    if cfg.deven < cfg.dodd:
        e("s_xor_b32 %s, %s, 1" % (sr(SL_THR), sr(SL_THR)))
    e("v_mov_b32 v%d, %d" % (LV_LADDR, FLAG_L))
    e("v_mov_b32 v%d, %d" % (LV_FADDR, FLAG_F))
    e("v_mov_b32 v%d, 0" % LV_T)
    e("ds_write_b32 v%d, v%d" % (LV_LADDR, LV_T))
    e("s_mov_b32 %s, 0" % sr(SL_ISS))
    e("s_mov_b32 %s, 0" % sr(SL_PUB))
    e("s_mov_b32 %s, 0" % sr(SL_FMIN))
    e("s_mov_b32 %s, 0" % sr(SL_SLOT))
    e("s_mov_b32 %s, -1" % sr(SL_NEED))
    e("s_mov_b32 %s, 0" % sr(SL_WFC))
    e("s_add_u32 %s, %s, %s" % (sr(SL_ROT), sr(S_B4), sr(S_M)))
    e("s_and_b32 %s, %s, 3" % (sr(SL_ROT), sr(SL_ROT)))
    if cfg.noload:
        e("v_mov_b32 v%d, 100000" % LV_T)
        e("s_waitcnt lgkmcnt(0)")
        e("ds_write_b32 v%d, v%d" % (LV_LADDR, LV_T))
        e("s_waitcnt lgkmcnt(0)")
        e("s_barrier")
        e("s_branch L_fin")

    ool = []

    def publish_nb():
        e("s_getreg_b32 %s, hwreg(HW_REG_IB_STS)" % sr(S_T0))
        e("s_lshr_b32 %s, %s, 18" % (sr(S_T1), sr(S_T0)))
        e("s_and_b32 %s, %s, 15" % (sr(S_T0), sr(S_T0)))
        e("s_and_b32 %s, %s, 0x30" % (sr(S_T1), sr(S_T1)))
        e("s_add_u32 %s, %s, %s" % (sr(S_T0), sr(S_T0), sr(S_T1)))
        e("s_add_u32 %s, %s, 7" % (sr(S_T0), sr(S_T0)))
        e("s_lshr_b32 %s, %s, 3" % (sr(S_T0), sr(S_T0)))
        e("s_sub_i32 %s, %s, %s" % (sr(S_T0), sr(SL_ISS), sr(S_T0)))
        e("s_max_i32 %s, %s, %s" % (sr(SL_PUB), sr(SL_PUB), sr(S_T0)))
        e("v_mov_b32 v%d, %s" % (LV_T, sr(SL_PUB)))
        e("ds_write_b32 v%d, v%d" % (LV_LADDR, LV_T))

    def issue_tile(srdreg, voff, rs, flags, wrap, nowait=False, check=True):
        if check:
            e("s_cmp_ge_i32 %s, %s" % (sr(SL_FMIN), sr(SL_NEED)))
            slow = a.newlab("lslow")
            ok = a.newlab("ok")
            e("s_cbranch_scc0 %s" % slow)
            a.lab(ok)
            ool.append((slow, ok))

        def ld(b):
            e("buffer_load_dwordx4 v%d, %s, %s offen offset:%d %s lds" % (
                voff + (b & 3), sr(srdreg, 4), sr(SL_OFF if b < 4 else SL_OFF2), (b & 3) * BLK, flags))
        e("s_mov_b32 m0, %s" % sr(SL_SLOT))
        e("s_add_u32 %s, %s, %d" % (sr(SL_OFF2), sr(SL_OFF), 16 * rs))
        ld(0)
        ld(1)
        ld(2)
        e("s_add_u32 %s, %s, 1" % (sr(SL_ISS), sr(SL_ISS)))
        ld(3)
        e("s_add_u32 m0, %s, %d" % (sr(SL_SLOT), 4 * BLK))
        e("s_add_u32 %s, %s, %d" % (sr(SL_SLOT), sr(SL_SLOT), SLOT))
        ld(4)
        e("s_cmp_lt_u32 %s, %d" % (sr(SL_SLOT), wrap))
        e("s_cselect_b32 %s, %s, 0" % (sr(SL_SLOT), sr(SL_SLOT)))
        ld(5)
        e("s_sub_i32 %s, %s, %s" % (sr(SL_NEED), sr(SL_ISS), sr(SL_NADJ)))
        ld(6)
        if cfg.deven != cfg.dodd:
            e("s_cmp_eq_u32 %s, 0" % sr(SL_THR))
        ld(7)
        if not nowait:
            dmax, dmin = max(cfg.deven, cfg.dodd), min(cfg.deven, cfg.dodd)
            e("s_waitcnt vmcnt(%d)" % (8 * dmax))
            if dmin != dmax:
                sk = a.newlab("thr")
                e("s_cbranch_scc1 %s" % sk)
                e("s_waitcnt vmcnt(%d)" % (8 * dmin))
                a.lab(sk)
            publish_nb()

    def qp_round(first_nowait=0):
        n = 0

        def after():
            if first_nowait and n == first_nowait:
                e("s_waitcnt lgkmcnt(0)")
                e("s_barrier")
        for w in range(3):
            e("s_add_u32 %s, %s, %d" % (sr(SL_OFF), sr(SL_XB), w * 32 * 1024))
            issue_tile(SRD_X, LV_X, 1024, cfg.xflags, NQ * SLOT, nowait=(n < first_nowait))
            n += 1
            after()
        for j in range(4):
            e("s_add_u32 %s, %s, %d" % (sr(SL_OFF), sr(SL_WB), j * 32 * 8192))
            issue_tile(SRD_WQ, LV_WQ, 8192, cfg.wflags, NQ * SLOT, nowait=(n < first_nowait))
            n += 1
            after()

    def qp_bases(ph, rnd):
        e("s_add_u32 %s, %s, %s" % (sr(S_T1), sr(SL_ROT), sr(rnd)))
        e("s_and_b32 %s, %s, 3" % (sr(S_T1), sr(S_T1)))
        e("s_lshl_b32 %s, %s, 8" % (sr(S_T2), sr(S_T1)))
        e("s_mul_i32 %s, %s, %d" % (sr(SL_XB), sr(S_B4), 96 * 1024))
        e("s_add_u32 %s, %s, %s" % (sr(SL_XB), sr(SL_XB), sr(S_T2)))
        if ph:
            e("s_add_u32 %s, %s, %d" % (sr(SL_XB), sr(SL_XB), 4 * 96 * 1024))
        e("s_lshl_b32 %s, %s, 20" % (sr(S_T2), sr(S_T1)))
        e("s_lshl_b32 %s, %s, 8" % (sr(SL_WB), sr(S_H)))
        e("s_add_u32 %s, %s, %s" % (sr(SL_WB), sr(SL_WB), sr(S_T2)))

    kvf = "" if cfg.kvsame else cfg.kvflags
    e("s_mov_b32 %s, %d" % (sr(SL_NADJ), NQ - 1))
    e("s_mov_b32 %s, 0" % sr(SL_CNT))
    qp_bases(0, SL_CNT)
    qp_round(first_nowait=D)
    srdb(SRD_K, KA_K, NB_KV)
    srdb(SRD_V, KA_V, NB_KV)
    srdb(SRD_WO, KA_WO, NB_W)
    lane_offs(LV_K, 6, 3, 256)
    lane_offs(LV_V, 6, 2, 256)
    lane_offs(LV_WO, 4, 2, 1024)
    e("v_lshlrev_b32 v7, 4, v0")
    for b in range(3, 0, -1):
        e("v_add_u32 v%d, %d, v7" % (LV_O + b, BIAS + b * (1024 - BLK)))
    e("v_add_u32 v%d, %d, v7" % (LV_O, BIAS))
    e("v_min_u32 v7, 11, v0")
    e("v_lshrrev_b32 v%d, 2, v7" % LV_FA)
    e("v_lshlrev_b32 v%d, 7, v%d" % (LV_FA, LV_FA))
    e("v_and_b32 v7, 3, v7")
    e("v_lshlrev_b32 v7, 3, v7")
    e("v_add_u32 v%d, v%d, v7" % (LV_FA, LV_FA))
    e("v_add_u32 v%d, %d, v%d" % (LV_FA, BIAS, LV_FA))
    e("v_and_b32 v48, 3, v0")
    e("v_lshrrev_b32 v49, 1, v48")
    e("v_and_b32 v50, 1, v48")
    e("v_lshlrev_b32 v50, 1, v50")
    e("v_or_b32 v49, v49, v50")
    e("v_lshlrev_b32 v49, 3, v49")
    e("v_lshrrev_b32 v50, 4, v0")
    e("v_and_b32 v50, 1, v50")
    e("v_lshlrev_b32 v50, 5, v50")
    e("v_add_u32 v49, v49, v50")
    e("v_lshrrev_b32 v50, 2, v0")
    e("v_and_b32 v50, 3, v50")
    e("v_mul_u32_u24 v50, %d, v50" % BLK)
    e("v_add_u32 v49, v49, v50")
    e("v_lshrrev_b32 v50, 5, v0")
    e("v_lshlrev_b32 v50, 9, v50")
    e("v_add_u32 v%d, v49, v50" % LV_WB)
    e("s_lshl_b32 %s, %s, 5" % (sr(S_T1), sr(S_B4)))
    e("s_add_u32 %s, %s, %s" % (sr(S_T1), sr(S_T1), sr(S_H)))
    e("s_lshl_b32 %s, %s, 18" % (sr(SL_KOFF), sr(S_T1)))
    e("s_mul_i32 %s, %s, %d" % (sr(SL_R0), sr(S_WG), cfg.krot))
    e("s_and_b32 %s, %s, 31" % (sr(SL_R0), sr(SL_R0)))
    e("s_lshl_b32 %s, %s, 13" % (sr(SL_R0), sr(SL_R0)))
    stamp("q3")

    def kv_off(rel_sgpr, imm):
        if rel_sgpr is None:
            e("s_add_u32 %s, %s, %d" % (sr(SL_OFF), sr(SL_R0), imm))
        else:
            e("s_add_u32 %s, %s, %d" % (sr(SL_OFF), sr(rel_sgpr), imm))
        e("s_and_b32 %s, %s, 0x3ffff" % (sr(SL_OFF), sr(SL_OFF)))
        e("s_add_u32 %s, %s, %s" % (sr(SL_OFF), sr(SL_OFF), sr(SL_KOFF)))

    def early_tiles():
        e("s_mov_b32 %s, %s" % (sr(SL_QSLOT), sr(SL_SLOT)))
        e("s_mov_b32 %s, %d" % (sr(SL_SLOT), NQ * SLOT))
        seq = [("K", 0), ("K", 1), ("V", 0)]
        t = 0
        while len(seq) < E:
            seq += [("K", t + 2), ("V", t + 1)]
            t += 1
        assert len(seq) == E
        for kind, t in seq:
            kv_off(None, 0 if cfg.kvsame else t * 8192)
            if kind == "K":
                issue_tile(SRD_K, LV_K, 256, kvf, RING, check=False)
            else:
                issue_tile(SRD_V, LV_V, 256, kvf, RING, check=False)
        e("s_mov_b32 %s, %s" % (sr(SL_SLOT), sr(SL_QSLOT)))

    npairs_early = (E - 3) // 2 if E else 0
    if cfg.ytype == 1:
        e("s_and_b32 %s, %s, 1" % (sr(S_T3), sr(S_M)))
        e("s_cmp_eq_u32 %s, 0" % sr(S_T3))
        e("s_cbranch_scc1 L_ld_x1")
    if cfg.ytype in (1, 2):
        early_tiles()
        e("s_mov_b32 %s, %d" % (sr(SL_NADJ), NQ - 1 + E))
        e("s_sub_i32 %s, %s, %s" % (sr(SL_NEED), sr(SL_ISS), sr(SL_NADJ)))
    a.lab("L_ld_x1")
    e("s_mov_b32 %s, 1" % sr(SL_CNT))
    a.lab("L_ld_qp1")
    qp_bases(0, SL_CNT)
    qp_round()
    if cfg.stamps:
        for rr in (1, 2, 3):
            nm = "q%d" % (4 * rr + 3)
            if nm in stl:
                sk = a.newlab("sk")
                e("s_cmp_eq_u32 %s, %d" % (sr(SL_CNT), rr))
                e("s_cbranch_scc0 %s" % sk)
                stamp(nm)
                a.lab(sk)
    e("s_add_u32 %s, %s, 1" % (sr(SL_CNT), sr(SL_CNT)))
    e("s_cmp_lt_u32 %s, 4" % sr(SL_CNT))
    e("s_cbranch_scc1 L_ld_qp1")
    if cfg.ytype == 1:
        e("s_and_b32 %s, %s, 1" % (sr(S_T3), sr(S_M)))
        e("s_cmp_eq_u32 %s, 0" % sr(S_T3))
        e("s_cbranch_scc0 L_ld_y2")
    if cfg.ytype in (0, 1):
        early_tiles()
    a.lab("L_ld_y2")
    stamp("qp")
    cnt("cq")
    if not cfg.nostash:
        e("s_mov_b32 %s, 0" % sr(SL_SLOT))
        e("s_mov_b32 %s, %d" % (sr(SL_NADJ), NS - 1))
        e("s_mov_b32 %s, %d" % (sr(SL_NEED), NQT))
    e("v_mov_b32 v7, 0")
    e("global_load_dwordx2 %s, v7, %s sc1" % (vr(LV_NON, 2), sr(KA_DBG, 2)))
    e("s_mov_b32 %s, 0x55555554" % sr(SL_EVM))
    e("s_mov_b32 %s, 0" % sr(SL_CNT2))
    if not cfg.nostash:
        e("s_add_u32 %s, %s, %d" % (sr(SL_VOFF), sr(SL_R0), 0 if cfg.kvsame else npairs_early * 8192))
        e("s_mov_b32 %s, %d" % (sr(SL_CNT), npairs_early))
        assert npairs_early == 2
        e("s_branch L_ld_disp")
    a.lab("L_ld_head")
    kv_off(None, 0)
    issue_tile(SRD_K, LV_K, 256, kvf, RING)
    kv_off(None, 8192)
    issue_tile(SRD_K, LV_K, 256, kvf, RING)
    kv_off(None, 0)
    issue_tile(SRD_V, LV_V, 256, kvf, RING)
    e("s_mov_b32 %s, %s" % (sr(SL_VOFF), sr(SL_R0)))
    e("s_mov_b32 %s, 0" % sr(SL_CNT))
    a.lab("L_ld_kv")
    kv_off(SL_VOFF, 16384)
    issue_tile(SRD_K, LV_K, 256, kvf, RING)
    kv_off(SL_VOFF, 8192)
    issue_tile(SRD_V, LV_V, 256, kvf, RING)
    if not cfg.kvsame:
        e("s_add_u32 %s, %s, 8192" % (sr(SL_VOFF), sr(SL_VOFF)))
    e("s_add_u32 %s, %s, 1" % (sr(SL_CNT), sr(SL_CNT)))
    e("s_bitcmp1_b32 %s, %s" % (sr(SL_EVM), sr(SL_CNT)))
    e("s_cbranch_scc1 L_ld_disp")
    a.lab("L_ld_evret")
    e("s_cmp_lt_u32 %s, 30" % sr(SL_CNT))
    e("s_cbranch_scc1 L_ld_kv")
    kv_off(SL_VOFF, 8192)
    issue_tile(SRD_V, LV_V, 256, kvf, RING)
    e("s_cmp_eq_u32 %s, 0" % sr(SL_CNT2))
    e("s_cbranch_scc0 L_ld_tail")
    stamp("h0")
    cnt("c0")
    e("s_add_u32 %s, %s, %d" % (sr(SL_KOFF), sr(SL_KOFF), 4 * 32 * 262144))
    if cfg.wsbase:
        e("s_add_u32 %s, %s, 0x%x" % (sr(KA_WS), sr(KA_WS), cfg.wsbase << 20))
        e("s_addc_u32 %s, %s, 0" % (sr(KA_WS + 1), sr(KA_WS + 1)))
    srdb(SRD_X, KA_WS, WS_USED)
    if not cfg.noxchg and not cfg.nocompute:
        okn = a.newlab("lnok")
        e("v_readfirstlane_b32 %s, v%d" % (sr(SL_NONCE), LV_NON))
        e("v_readfirstlane_b32 %s, v%d" % (sr(SL_NONCE + 1), LV_NON + 1))
        e("s_nop 3")
        e("s_cmp_lg_u32 %s, 0" % sr(SL_NONCE))
        e("s_cbranch_scc1 %s" % okn)
        lpn = a.newlab("lnlp")
        a.lab(lpn)
        e("v_mov_b32 v7, 0")
        e("global_load_dwordx2 %s, v7, %s sc1" % (vr(LV_NON, 2), sr(KA_DBG, 2)))
        e("s_waitcnt vmcnt(0)")
        e("v_readfirstlane_b32 %s, v%d" % (sr(SL_NONCE), LV_NON))
        e("v_readfirstlane_b32 %s, v%d" % (sr(SL_NONCE + 1), LV_NON + 1))
        e("s_sub_u32 %s, %s, 1" % (sr(S_SPIN), sr(S_SPIN)))
        e("s_cmp_eq_u32 %s, 0" % sr(S_SPIN))
        e("s_cbranch_scc1 L_end")
        e("s_cmp_eq_u32 %s, 0" % sr(SL_NONCE))
        e("s_cbranch_scc1 %s" % lpn)
        a.lab(okn)
    if cfg.lead2:
        e("s_mov_b32 %s, %d" % (sr(SL_NADJ), cfg.lead2 - 1))
    e("s_mov_b32 %s, 0x%x" % (sr(SL_EVM), sum(1 << (2 * p + 2) for p in range(cfg.p0 - 1, 15))))
    e("s_mov_b32 %s, 1" % sr(SL_CNT2))
    e("s_branch L_ld_head")
    a.lab("L_ld_tail")
    if cfg.lead2:
        e("s_mov_b32 %s, %d" % (sr(SL_NADJ), NS - 1))
        e("s_sub_i32 %s, %s, %s" % (sr(SL_NEED), sr(SL_ISS), sr(SL_NADJ)))
    stamp("h1")
    cnt("c1")
    e("s_branch L_ld_tail2")
    a.lab("L_ld_drain")
    publish_nb()
    e("s_cmp_lt_i32 %s, %s" % (sr(SL_PUB), sr(SL_ISS)))
    e("s_cbranch_scc1 L_ld_drain")
    e("s_waitcnt lgkmcnt(0)")
    stamp("t2")
    e("s_branch L_fin")

    def pf_tile(srdreg, voff, rs, flags, vdst):
        e("s_add_u32 %s, %s, %d" % (sr(SL_OFF2), sr(SL_OFF), 16 * rs))
        for b in range(8):
            e("buffer_load_dwordx4 %s, v%d, %s, %s offen offset:%d %s" % (
                vr(vdst + 4 * b, 4), voff + (b & 3), sr(srdreg, 4), sr(SL_OFF if b < 4 else SL_OFF2),
                (b & 3) * BLK, flags))

    def flag_poll_issue_l():
        e("s_lshl_b32 %s, %s, 9" % (sr(S_T1), sr(S_QUAD)))
        e("buffer_load_dwordx2 %s, v%d, %s, %s offen sc1" % (vr(LV_FL, 2), LV_FA, sr(SRD_X, 4), sr(S_T1)))

    def flag_check_l(tgt_ok):
        e("v_cmp_ne_u32 vcc, %s, v%d" % (sr(SL_NONCE), LV_FL))
        e("v_cmp_ne_u32 s[28:29], %s, v%d" % (sr(SL_NONCE + 1), LV_FL + 1))
        e("s_nop 3")
        e("s_or_b64 vcc, vcc, s[28:29]")
        e("s_cbranch_scc0 %s" % tgt_ok)

    LACC = 64
    LAF = [192, 224]

    def wo_base(k):
        e("s_add_u32 %s, %s, %d" % (sr(S_T1), sr(S_M), k))
        e("s_and_b32 %s, %s, 3" % (sr(S_T1), sr(S_T1)))
        e("s_lshl_b32 %s, %s, 17" % (sr(S_T1), sr(S_T1)))
        e("s_lshl_b32 %s, %s, 19" % (sr(SL_WB), sr(S_X)))
        e("s_add_u32 %s, %s, %s" % (sr(SL_WB), sr(SL_WB), sr(S_T1)))
        e("s_lshl_b32 %s, %s, 8" % (sr(S_T1), sr(S_M)))
        e("s_add_u32 %s, %s, %s" % (sr(SL_WB), sr(SL_WB), sr(S_T1)))

    def wo_round(k):
        wo_base(k)
        for j in range(4):
            e("s_add_u32 %s, %s, %d" % (sr(SL_OFF), sr(SL_WB), j * 32 * 1024))
            issue_tile(SRD_WO, LV_WO, 1024, cfg.wo2flags, RING)

    def o_loads(k):
        e("s_add_u32 %s, %s, %d" % (sr(S_T2), sr(S_M), k))
        e("s_and_b32 %s, %s, 3" % (sr(S_T2), sr(S_T2)))
        e("s_lshl_b32 %s, %s, 2" % (sr(S_T3), sr(S_QUAD)))
        e("s_add_u32 %s, %s, %s" % (sr(S_T2), sr(S_T2), sr(S_T3)))
        e("s_mul_i32 %s, %s, 24576" % (sr(S_T2), sr(S_T2)))
        e("s_add_u32 %s, %s, %d" % (sr(S_T2), sr(S_T2), WS_OBUF))
        for q in range(6):
            e("s_add_u32 %s, %s, %d" % (sr(S_T3), sr(S_T2), q * 4096))
            for s_ in range(4):
                e("buffer_load_dwordx4 %s, v%d, %s, %s offen offset:%d sc1" % (
                    ar((k & 1) * 96 + (q * 4 + s_) * 4, 4), LV_O, sr(SRD_X, 4), sr(S_T3), s_ * 1024))

    def l_reads(dst):
        out = []
        for ks in range(2):
            for db in range(4):
                base = dst + (ks * 4 + db) * 4
                o = ks * 4 * BLK + db * 64
                out.append("ds_read_b64_tr_b16 %s, v%d offset:%d" % (ar(base, 2), LV_VA, o))
                out.append("ds_read_b64_tr_b16 %s, v%d offset:%d" % (ar(base + 2, 2), LV_VA, o + 256))
        return out

    def l_mfmas(cidx, af):
        k, j = divmod(cidx, 4)
        mf = []
        for ks in range(2):
            for db in range(4):
                for w in range(3):
                    acc = LACC + 64 * w + 16 * db
                    cin = "0" if (cidx == 0 and ks == 0) else vr(acc, 16)
                    mf.append("%s %s, %s, %s, %s" % (
                        MFMA, vr(acc, 16), ar(af + (ks * 4 + db) * 4, 4),
                        ar((k & 1) * 96 + w * 32 + (2 * j + ks) * 4, 4), cin))
        return mf

    def l_chunk_single(cidx, slot_sgpr):
        e("v_add_u32 v%d, %s, v%d" % (LV_VA, sr(slot_sgpr), LV_WB))
        a.extend(l_reads(LAF[0]))
        mf = l_mfmas(cidx, LAF[0])
        e("s_waitcnt lgkmcnt(8)")
        a.extend(mf[0:12])
        e("s_waitcnt lgkmcnt(0)")
        a.extend(mf[12:24])

    def l_nxt():
        return ["s_add_u32 %s, %s, %d" % (sr(SL_QSLOT), sr(SL_QSLOT), SLOT),
                "s_cmp_lt_u32 %s, %d" % (sr(SL_QSLOT), RING),
                "s_cselect_b32 %s, %s, 0" % (sr(SL_QSLOT), sr(SL_QSLOT))]

    def flags_wait():
        if not cfg.noxchg and not cfg.nocompute:
            okf = a.newlab("lfok")
            flag_check_l(okf)
            lpf = a.newlab("lfl")
            a.lab(lpf)
            flag_poll_issue_l()
            e("s_waitcnt vmcnt(0)")
            e("s_sub_u32 %s, %s, 1" % (sr(S_SPIN), sr(S_SPIN)))
            e("s_cmp_eq_u32 %s, 0" % sr(S_SPIN))
            e("s_cbranch_scc1 L_end")
            flag_check_l(okf)
            e("s_branch %s" % lpf)
            a.lab(okf)

    a.lab("L_ld_tail2")
    e("s_mov_b32 %s, %s" % (sr(SL_QSLOT), sr(SL_SLOT)))
    wo_round(0)
    wo_round(1)
    o_loads(2)
    for cpend in range(13 - cfg.p0, 8):
        l_chunk_single(cpend, SL_WS0 if (cpend & 1) == 0 else SL_WS1)
        publish_nb()
    wo_round(2)
    wo_round(3)
    stamp("t1")
    o_loads(3)
    for _ in range(8):
        a.extend(l_nxt())
    e("s_waitcnt vmcnt(24)")
    publish_nb()
    e("v_add_u32 v%d, %s, v%d" % (LV_VA, sr(SL_QSLOT), LV_WB))
    a.extend(l_reads(LAF[0]))
    a.extend(l_nxt())
    for cidx in range(8, 16):
        if cidx == 12:
            e("s_waitcnt vmcnt(0)")
        publish_nb()
        e("s_waitcnt lgkmcnt(0)")
        mf = l_mfmas(cidx, LAF[cidx & 1])
        per = [[] for _ in range(24)]
        if cidx < 15:
            per[0] = ["v_add_u32 v%d, %s, v%d" % (LV_VA, sr(SL_QSLOT), LV_WB)]
            rd = l_reads(LAF[(cidx + 1) & 1])
            for g in range(16):
                per[1 + g] = [rd[g]]
            per[17] = l_nxt()
        a.extend(gaps(mf, per))
    e("s_nop 7")
    e("s_nop 7")
    e("s_lshl_b32 %s, %s, 2" % (sr(S_T2), sr(S_G8)))
    e("s_add_u32 %s, %s, %s" % (sr(S_T2), sr(S_T2), sr(S_M)))
    e("s_lshl_b32 %s, %s, 3" % (sr(S_T2), sr(S_T2)))
    e("s_add_u32 %s, %s, %s" % (sr(S_T2), sr(S_T2), sr(S_X)))
    e("s_mul_i32 %s, %s, 24576" % (sr(S_T2), sr(S_T2)))
    e("s_add_u32 %s, %s, %d" % (sr(S_T2), sr(S_T2), WS_PBUF))
    for w in range(3):
        for cch in range(8):
            if cch % 4 == 0:
                e("s_add_u32 %s, %s, %d" % (sr(S_T3), sr(S_T2), w * 8192 + (cch // 4) * 4096))
            acc = LACC + 64 * w
            for i in range(4):
                kk = 4 * cch + i
                e("v_cvt_pk_bf16_f32 v%d, v%d, v%d" % (acc + kk, acc + 2 * kk, acc + 2 * kk + 1))
            e("buffer_store_dwordx4 %s, v%d, %s, %s offen offset:%d %s" % (
                vr(acc + 4 * cch, 4), LV_O, sr(SRD_X, 4), sr(S_T3), (cch & 3) * 1024, cfg.stflags))
    if not cfg.noxchg and not cfg.nocompute:
        e("s_lshl_b32 %s, %s, 2" % (sr(S_T2), sr(S_G8)))
        e("s_add_u32 %s, %s, %s" % (sr(S_T2), sr(S_T2), sr(S_M)))
        e("s_lshl_b32 %s, %s, 9" % (sr(S_T2), sr(S_T2)))
        e("s_lshl_b32 %s, %s, 3" % (sr(S_T3), sr(S_X)))
        e("s_add_u32 %s, %s, %s" % (sr(S_T2), sr(S_T2), sr(S_T3)))
        e("s_add_u32 %s, %s, %d" % (sr(S_T2), sr(S_T2), WS_FLAGP))
        e("v_lshlrev_b32 v48, 7, v0")
        e("v_add_u32 v48, %d, v48" % BIAS)
        e("v_mov_b32 v50, %s" % sr(SL_NONCE))
        e("v_mov_b32 v51, %s" % sr(SL_NONCE + 1))
        e("s_waitcnt vmcnt(0)")
        e("s_mov_b64 exec, 7")
        e("buffer_store_dwordx2 v[50:51], v48, %s, %s offen sc1" % (sr(SRD_X, 4), sr(S_T2)))
        e("s_mov_b64 exec, -1")
    e("s_branch L_ld_drain")

    a.lab("L_ld_disp")
    e("s_lshr_b32 %s, %s, 1" % (sr(SL_PP), sr(SL_CNT)))
    e("s_sub_u32 %s, %s, 1" % (sr(SL_PP), sr(SL_PP)))
    e("s_lshr_b32 %s, %s, 2" % (sr(SL_RND), sr(SL_PP)))
    e("s_and_b32 %s, %s, 3" % (sr(SL_JJ), sr(SL_PP)))
    e("s_cmp_eq_u32 %s, 0" % sr(SL_CNT2))
    e("s_cbranch_scc0 L_ld_x2")
    e("s_cmp_eq_u32 %s, 0" % sr(SL_JJ))
    e("s_cbranch_scc0 L_ld_w1")
    qp_bases(1, SL_RND)
    for w in range(3):
        e("s_add_u32 %s, %s, %d" % (sr(SL_OFF), sr(SL_XB), w * 32 * 1024))
        issue_tile(SRD_X, LV_X, 1024, cfg.x2flags, RING)
    a.lab("L_ld_w1")
    e("s_lshl_b32 %s, %s, 18" % (sr(SL_OFF), sr(SL_JJ)))
    e("s_add_u32 %s, %s, %s" % (sr(SL_OFF), sr(SL_OFF), sr(SL_WB)))
    issue_tile(SRD_WQ, LV_WQ, 8192, cfg.wq2flags, RING)
    e("s_cmp_eq_u32 %s, 14" % sr(SL_PP))
    e("s_cbranch_scc0 L_ld_evret")
    e("s_add_u32 %s, %s, %d" % (sr(SL_OFF), sr(SL_WB), 3 * 32 * 8192))
    issue_tile(SRD_WQ, LV_WQ, 8192, cfg.wq2flags, RING)
    e("s_branch L_ld_evret")
    a.lab("L_ld_x2")
    P0 = cfg.p0
    for p in range(P0 - 1, 15):
        nxp = a.newlab("x2n")
        e("s_cmp_eq_u32 %s, %d" % (sr(SL_PP), p))
        e("s_cbranch_scc0 %s" % nxp)
        if p == P0 - 1:
            if not cfg.noxchg and not cfg.nocompute:
                flag_poll_issue_l()
        else:
            c = p - P0
            if c == 0:
                flags_wait()
                o_loads(0)
            if c == 2:
                o_loads(1)
            if 2 <= c:
                l_chunk_single(c - 2, SL_WS0 if (c & 1) == 0 else SL_WS1)
            if c < 8:
                e("s_mov_b32 %s, %s" % (sr(SL_WS0 if (c & 1) == 0 else SL_WS1), sr(SL_SLOT)))
                wo_base(c >> 2)
                e("s_add_u32 %s, %s, %d" % (sr(SL_OFF), sr(SL_WB), (c & 3) * 32 * 1024))
                issue_tile(SRD_WO, LV_WO, 1024, cfg.woflags, RING)
        e("s_branch L_ld_evret")
        a.lab(nxp)
    e("s_branch L_ld_evret")

    for slow, ok in ool:
        a.lab(slow)
        e("s_call_b64 %s, L_waitfree" % sr(S_RET, 2))
        e("s_branch %s" % ok)
    a.lab("L_waitfree")
    if cfg.stamps:
        e("s_add_u32 %s, %s, 1" % (sr(SL_WFC), sr(SL_WFC)))
    e("ds_read_b96 v[%d:%d], v%d" % (LV_F, LV_F + 2, LV_FADDR))
    publish_nb()
    e("s_waitcnt lgkmcnt(1)")
    e("v_min3_u32 v%d, v%d, v%d, v%d" % (LV_F, LV_F, LV_F + 1, LV_F + 2))
    e("s_sub_u32 %s, %s, 1" % (sr(S_SPIN), sr(S_SPIN)))
    e("v_readfirstlane_b32 %s, v%d" % (sr(SL_FMIN), LV_F))
    e("s_cmp_eq_u32 %s, 0" % sr(S_SPIN))
    e("s_cbranch_scc1 L_end")
    e("s_nop 1")
    e("s_cmp_ge_i32 %s, %s" % (sr(SL_FMIN), sr(SL_NEED)))
    e("s_cbranch_scc0 L_waitfree")
    e("s_setpc_b64 %s" % sr(S_RET, 2))

    if cfg.noxchg:
        a.filt = lambda sx: (sx.startswith("buffer_") or sx.startswith("global_load")
                             or sx.startswith("global_store_dwordx2"))
    a.lab("L_compute")
    e("v_and_b32 v1, 3, v0")
    e("v_lshrrev_b32 v2, 5, v0")
    e("v_lshrrev_b32 v3, 4, v0")
    e("v_and_b32 v3, 1, v3")
    e("v_lshrrev_b32 v4, 2, v0")
    e("v_and_b32 v4, 3, v4")
    e("v_lshlrev_b32 v5, 2, v3")
    e("v_add_u32 v5, v5, v1")
    e("s_movk_i32 %s, %d" % (sr(S_T0), BLK))
    e("v_mul_lo_u32 v5, v5, %s" % sr(S_T0))
    e("v_lshlrev_b32 v6, 8, v4")
    e("v_add_u32 v5, v5, v6")
    for par in range(2):
        e("v_add_u32 v6, %d, v2" % (2 * par))
        e("v_xor_b32 v6, v6, v4")
        e("v_lshlrev_b32 v6, 4, v6")
        e("v_add_u32 v%d, v5, v6" % (V_KB + par))
    e("v_lshrrev_b32 v6, 1, v1")
    e("v_and_b32 v7, 1, v1")
    e("v_lshlrev_b32 v7, 1, v7")
    e("v_or_b32 v6, v6, v7")
    e("v_lshlrev_b32 v6, 3, v6")
    e("v_lshlrev_b32 v7, 5, v3")
    e("v_add_u32 v6, v6, v7")
    e("v_mul_lo_u32 v7, v4, %s" % sr(S_T0))
    e("v_add_u32 v6, v6, v7")
    e("v_lshlrev_b32 v7, 8, v2")
    e("v_add_u32 v%d, v6, v7" % V_VB)
    e("v_add_u32 v%d, v%d, v7" % (V_WB, V_VB))
    e("v_add_u32 v%d, %d, v%d" % (V_VB2, SLOT, V_VB))
    e("v_mov_b32 v%d, %d" % (V_LADDR, FLAG_L))
    e("s_lshl_b32 %s, %s, 2" % (sr(S_T0), sr(S_WAVE)))
    e("s_add_u32 %s, %s, %d" % (sr(S_T0), sr(S_T0), FLAG_F))
    e("v_mov_b32 v%d, %s" % (V_FADDR, sr(S_T0)))
    e("v_mov_b32 v%d, %d" % (V_FV, 100000 if cfg.nocompute else 0))
    e("ds_write_b32 v%d, v%d" % (V_FADDR, V_FV))
    e("v_lshlrev_b32 v%d, 4, v0" % V_L16)
    e("s_mov_b32 %s, 0" % sr(SC_L))
    e("s_mov_b32 %s, 0" % sr(SC_SWC))
    c = (128 ** -0.5) * math.log2(math.e)
    e("s_mov_b32 %s, 0x%x" % (sr(SC_T), f32bits(cfg.T_LOG2)))
    e("s_mov_b32 %s, 0" % sr(SC_IDX))
    e("s_mov_b32 %s, 0" % sr(SC_SLOT))
    e("s_mov_b32 %s, %d" % (sr(SC_WRAP), NQ * SLOT))
    if cfg.ytype == 1:
        e("s_and_b32 %s, %s, 1" % (sr(S_T1), sr(S_M)))
        e("s_mul_i32 %s, %s, %d" % (sr(SC_PADJ), sr(S_T1), E))
    else:
        e("s_mov_b32 %s, %d" % (sr(SC_PADJ), E if cfg.ytype == 2 else 0))
    e("s_mov_b32 %s, 0" % sr(SC_ADJ))
    if cfg.wsbase:
        e("s_add_u32 %s, %s, 0x%x" % (sr(KA_WS), sr(KA_WS), cfg.wsbase << 20))
        e("s_addc_u32 %s, %s, 0" % (sr(KA_WS + 1), sr(KA_WS + 1)))
    srd(SRD_WS, KA_WS, WS_USED)
    srd(SRD_OUT, KA_OUT, 8 * 96 * 1024 * 2)
    e("s_or_b32 %s, %s, %s" % (sr(S_T0), sr(S_WG), sr(S_WAVE)))
    e("s_cmp_eq_u32 %s, 0" % sr(S_T0))
    e("s_cbranch_scc0 L_nononce")
    e("s_memrealtime %s" % sr(SC_NONCE, 2))
    e("s_waitcnt lgkmcnt(0)")
    e("s_or_b32 %s, %s, 1" % (sr(SC_NONCE), sr(SC_NONCE)))
    e("v_mov_b32 v2, %s" % sr(SC_NONCE))
    e("v_mov_b32 v3, %s" % sr(SC_NONCE + 1))
    e("v_mov_b32 v1, 0")
    e("global_store_dwordx2 v1, v[2:3], %s sc1" % sr(KA_DBG, 2))
    a.lab("L_nononce")
    e("s_waitcnt lgkmcnt(0)")
    e("s_barrier")
    stamp("bar")
    if cfg.nocompute:
        e("s_branch L_fin")

    slowwaits = []

    def wait_landed_l(delta, adj=False):
        slow = a.newlab("lw_slow")
        back = a.newlab("lw_back")
        slowwaits.append((slow, back))
        out = ["s_add_u32 %s, %s, %d" % (sr(SC_NEED), sr(SC_IDX), delta)]
        if adj:
            out.append("s_add_u32 %s, %s, %s" % (sr(SC_NEED), sr(SC_NEED), sr(SC_ADJ)))
        out += ["s_cmp_lt_u32 %s, %s" % (sr(SC_L), sr(SC_NEED)),
                "s_cbranch_scc1 %s" % slow,
                back + ":"]
        return out

    def wait_landed(delta, adj=False):
        a.extend(wait_landed_l(delta, adj))

    def slot_adv_l(dst, src, n):
        return ["s_add_u32 %s, %s, %d" % (sr(dst), sr(src), n * SLOT),
                "s_sub_u32 %s, %s, %s" % (sr(S_T0), sr(dst), sr(SC_WRAP)),
                "s_cmp_lt_u32 %s, %s" % (sr(dst), sr(SC_WRAP)),
                "s_cselect_b32 %s, %s, %s" % (sr(dst), sr(dst), sr(S_T0))]

    def slot_adv(dst, src, n):
        a.extend(slot_adv_l(dst, src, n))

    def release_l(sg):
        return ["v_mov_b32 v%d, %s" % (V_FV, sr(sg)), "ds_write_b32 v%d, v%d" % (V_FADDR, V_FV)]

    def k_addr(slot):
        return ["v_add_u32 v%d, %s, v%d" % (V_KA + p, sr(slot), V_KB + p) for p in range(2)]

    def k_reads(dst_a):
        return ["ds_read_b128 %s, v%d offset:%d" % (ar(dst_a + 4 * s, 4), V_KA + (s & 1), (s >> 1) * 64)
                for s in range(8)]

    def v_addr(slot, base):
        return ["v_add_u32 v%d, %s, v%d" % (V_VA, sr(slot), base)]

    def v_reads(dst_a, isw):
        out = []
        for ks in range(2):
            for db in range(4):
                base = dst_a + (ks * 4 + db) * 4
                o2 = 256 if isw else 512
                o = ks * 4 * BLK + db * 64
                out.append("ds_read_b64_tr_b16 %s, v%d offset:%d" % (ar(base, 2), V_VA, o))
                out.append("ds_read_b64_tr_b16 %s, v%d offset:%d" % (ar(base + 2, 2), V_VA, o + o2))
        return out

    def wave_slot(dst, n):
        return ["s_mul_i32 %s, %s, %d" % (sr(S_T1), sr(S_WAVE), SLOT),
                "s_add_u32 %s, %s, %s" % (sr(dst), sr(SC_SLOT), sr(S_T1))] + slot_adv_l(dst, dst, n)

    def x_fetch(buf):
        out = wave_slot(SC_SLOT2, 0) + k_addr(SC_SLOT2) + k_reads(A_XF[buf])
        out += slot_adv_l(SC_SLOT, SC_SLOT, 3)
        return out

    wait_landed(4, True)
    a.extend(x_fetch(0))
    a.extend(v_addr(SC_SLOT, V_WB))
    a.extend(v_reads(A_AF[0], True))
    e("s_add_u32 %s, %s, 4" % (sr(SC_IDX), sr(SC_IDX)))
    slot_adv(SC_SLOT, SC_SLOT, 1)
    for cidx in range(16):
        r, j = divmod(cidx, 4)
        e("s_waitcnt lgkmcnt(0)")
        mf = []
        for ks in range(2):
            for db in range(4):
                acc = V_ACCQ + 16 * db
                cin = "0" if (cidx == 0 and ks == 0) else vr(acc, 16)
                mf.append("%s %s, %s, %s, %s" % (
                    MFMA, vr(acc, 16), ar(A_AF[cidx & 1] + (ks * 4 + db) * 4, 4),
                    ar(A_XF[r & 1] + (2 * j + ks) * 4, 4), cin))
        fill = []
        if cidx < 15:
            nx = 3 if j == 3 else 0
            if cidx == 3:
                fill += ["s_mov_b32 %s, %s" % (sr(SC_ADJ), sr(SC_PADJ))]
            fill += wait_landed_l(nx + 1, True)
            if nx:
                fill += x_fetch((r + 1) & 1)
            fill += v_addr(SC_SLOT, V_WB) + v_reads(A_AF[(cidx + 1) & 1], True)
            fill += release_l(SC_IDX)
            fill += ["s_add_u32 %s, %s, %d" % (sr(SC_IDX), sr(SC_IDX), nx + 1)] + slot_adv_l(SC_SLOT, SC_SLOT, 1)
        else:
            fill += release_l(SC_IDX)
        ng = 6
        per = [[] for _ in range(8)]
        items = fill
        n = len(items)
        pos = 0
        for g in range(ng):
            tgt = max((n * (g + 1)) // ng, pos)
            while tgt < n and items[tgt].endswith(":"):
                tgt += 1
            per[g] = items[pos:tgt]
            pos = tgt
        a.extend(gaps(mf, per))
        if cfg.stamps and ("q%d" % cidx) in stl:
            stamp("q%d" % cidx)

    def q_convert(dst):
        e("s_nop 7")
        e("s_nop 3")
        e("s_mov_b32 %s, 0x%x" % (sr(S_T1), f32bits(c)))
        for i in range(32):
            e("v_mul_f32 v%d, %s, v%d" % (V_ACCQ + 2 * i, sr(S_T1), V_ACCQ + 2 * i))
            e("v_mul_f32 v%d, %s, v%d" % (V_ACCQ + 2 * i + 1, sr(S_T1), V_ACCQ + 2 * i + 1))
            e("v_cvt_pk_bf16_f32 v%d, v%d, v%d" % (dst + i, V_ACCQ + 2 * i, V_ACCQ + 2 * i + 1))
    q_convert(V_Q1)
    if not cfg.nostash:
        e("s_mov_b32 %s, %d" % (sr(SC_SLOT), NQ * SLOT))
    e("s_mov_b32 %s, %d" % (sr(SC_WRAP), RING))
    stamp("qp")

    def qk_mfmas(sdst, qbase, cin):
        return ["%s %s, %s, %s, %s" % (MFMA, vr(sdst, 16), ar(A_KF + 4 * s, 4), vr(qbase + 4 * s, 4),
                                       cin if s == 0 else vr(sdst, 16)) for s in range(8)]

    def softmax_gaps(sc):
        g = []
        for k in range(8):
            l = ["v_exp_f32 v%d, v%d" % (sc + 2 * k, sc + 2 * k),
                 "v_exp_f32 v%d, v%d" % (sc + 2 * k + 1, sc + 2 * k + 1)]
            if k > 0:
                p = k - 1
                l += ["v_add_f32 v%d, v%d, v%d" % (V_LSUM, V_LSUM, sc + 2 * p),
                      "v_add_f32 v%d, v%d, v%d" % (V_LS2, V_LS2, sc + 2 * p + 1),
                      "v_cvt_pk_bf16_f32 v%d, v%d, v%d" % (V_PF + p, sc + 2 * p, sc + 2 * p + 1)]
            g.append(l)
        tail = ["v_add_f32 v%d, v%d, v%d" % (V_LSUM, V_LSUM, sc + 14),
                "v_add_f32 v%d, v%d, v%d" % (V_LS2, V_LS2, sc + 15),
                "v_cvt_pk_bf16_f32 v%d, v%d, v%d" % (V_PF + 7, sc + 14, sc + 15)]
        return g, tail

    def pv_mfmas(vf):
        out = []
        for ks in range(2):
            for db in range(4):
                out.append("%s %s, %s, %s, %s" % (
                    MFMA, vr(V_O + 16 * db, 16), ar(vf + (ks * 4 + db) * 4, 4), vr(V_PF + 4 * ks, 4),
                    vr(V_O + 16 * db, 16)))
        return out

    def max_valu(sn):
        out = ["v_max3_f32 v%d, v%d, v%d, v%d" % (V_TMAX, sn, sn + 1, sn + 2)]
        for i in range(3, 15, 2):
            out.append("v_max3_f32 v%d, v%d, v%d, v%d" % (V_TMAX, V_TMAX, sn + i, sn + i + 1))
        out.append("v_max_f32 v%d, v%d, v%d" % (V_TMAX, V_TMAX, sn + 15))
        return out

    def cross_half_max():
        e("v_mov_b32 v1, v%d" % V_TMAX)
        e("s_nop 1")
        e("v_permlane32_swap_b32 v%d, v1" % V_TMAX)
        e("s_nop 1")
        e("v_max_f32 v%d, v%d, v1" % (V_TMAX, V_TMAX))

    def rare_path(lab, back, sn):
        a.lab(lab)
        cross_half_max()
        e("v_max_f32 v%d, 0, v%d" % (V_TMAX, V_TMAX))
        e("v_sub_f32 v%d, 0, v%d" % (V_ALPHA, V_TMAX))
        e("v_exp_f32 v%d, v%d" % (V_ALPHA, V_ALPHA))
        for i in range(16):
            e("v_sub_f32 v%d, v%d, v%d" % (sn + i, sn + i, V_TMAX))
        for i in range(16):
            e("v_sub_f32 v%d, v%d, v%d" % (V_NEGM + i, V_NEGM + i, V_TMAX))
        e("v_mul_f32 v%d, v%d, v%d" % (V_LSUM, V_LSUM, V_ALPHA))
        e("v_mul_f32 v%d, v%d, v%d" % (V_LS2, V_LS2, V_ALPHA))
        for i in range(64):
            e("v_mul_f32 v%d, v%d, v%d" % (V_O + i, V_O + i, V_ALPHA))
        e("s_branch %s" % back)

    rare = []
    dispatchers = []

    def get_nonce():
        if cfg.noxchg:
            return
        lp = a.newlab("nonce")
        a.lab(lp)
        e("v_mov_b32 v1, 0")
        e("global_load_dwordx2 v[2:3], v1, %s sc1" % sr(KA_DBG, 2))
        e("s_waitcnt vmcnt(0)")
        e("v_readfirstlane_b32 %s, v2" % sr(SC_NONCE))
        e("v_readfirstlane_b32 %s, v3" % sr(SC_NONCE + 1))
        e("s_sub_u32 %s, %s, 1" % (sr(S_SPIN), sr(S_SPIN)))
        e("s_cmp_eq_u32 %s, 0" % sr(S_SPIN))
        e("s_cbranch_scc1 L_end")
        e("s_cmp_eq_u32 %s, 0" % sr(SC_NONCE))
        e("s_cbranch_scc1 %s" % lp)

    def flag_store(off_sgpr, local=False, hi=None):
        e("v_mov_b32 v2, %s" % sr(SC_NONCE))
        e("v_mov_b32 v3, %s" % sr(SC_NONCE + 1 if hi is None else hi))
        e("v_mov_b32 v1, 0")
        e("s_mov_b64 s[34:35], exec")
        e("s_mov_b64 exec, 1")
        if local and cfg.local:
            gl = a.newlab("fsg")
            dn = a.newlab("fsd")
            e("s_cmp_eq_u32 %s, 0" % sr(SC_LOCAL))
            e("s_cbranch_scc1 %s" % gl)
            e("buffer_store_dwordx2 v[2:3], v1, %s, %s offen" % (sr(SRD_WS, 4), sr(off_sgpr)))
            e("s_branch %s" % dn)
            a.lab(gl)
            e("buffer_store_dwordx2 v[2:3], v1, %s, %s offen sc1" % (sr(SRD_WS, 4), sr(off_sgpr)))
            a.lab(dn)
        else:
            e("buffer_store_dwordx2 v[2:3], v1, %s, %s offen sc1" % (sr(SRD_WS, 4), sr(off_sgpr)))
        e("s_mov_b64 exec, s[34:35]")

    def flag_poll(off_sgpr, n):
        if cfg.noxchg:
            return
        lp = a.newlab("poll")
        e("v_min_u32 v1, %d, v0" % (n - 1))
        e("v_lshlrev_b32 v1, 3, v1")
        a.lab(lp)
        e("buffer_load_dwordx2 v[2:3], v1, %s, %s offen sc1" % (sr(SRD_WS, 4), sr(off_sgpr)))
        e("s_waitcnt vmcnt(0)")
        e("v_cmp_ne_u32 vcc, %s, v2" % sr(SC_NONCE))
        e("v_cmp_ne_u32 s[34:35], %s, v3" % sr(SC_NONCE + 1))
        e("s_sub_u32 %s, %s, 1" % (sr(S_SPIN), sr(S_SPIN)))
        e("s_cmp_eq_u32 %s, 0" % sr(S_SPIN))
        e("s_cbranch_scc1 L_end")
        e("s_or_b64 vcc, vcc, s[34:35]")
        e("s_cbranch_scc1 %s" % lp)

    def flago_off(dst, ph, with_m):
        e("s_lshl_b32 %s, %s, 2" % (sr(dst), sr(S_QUAD)))
        e("s_add_u32 %s, %s, %s" % (sr(dst), sr(dst), sr(S_WAVE)))
        e("s_lshl_b32 %s, %s, 7" % (sr(dst), sr(dst)))
        e("s_add_u32 %s, %s, %d" % (sr(dst), sr(dst), WS_FLAGO + ph * 64 * 4 * 128))
        if with_m:
            e("s_lshl_b32 %s, %s, 3" % (sr(S_T0), sr(S_M)))
            e("s_add_u32 %s, %s, %s" % (sr(dst), sr(dst), sr(S_T0)))

    def load_o(ph, regs, ks):
        e("s_lshl_b32 %s, %s, 2" % (sr(S_T1), sr(S_QUAD)))
        e("s_add_u32 %s, %s, %d" % (sr(S_T1), sr(S_T1), ph * 256))
        e("s_mul_i32 %s, %s, 24576" % (sr(S_T1), sr(S_T1)))
        e("s_lshl_b32 %s, %s, 13" % (sr(S_T2), sr(S_WAVE)))
        e("s_add_u32 %s, %s, %s" % (sr(S_T1), sr(S_T1), sr(S_T2)))
        e("s_add_u32 %s, %s, %d" % (sr(S_T1), sr(S_T1), WS_OBUF))
        for k in ks:
            e("s_add_u32 %s, %s, %d" % (sr(S_T2), sr(S_M), k))
            e("s_and_b32 %s, %s, 3" % (sr(S_T2), sr(S_T2)))
            e("s_mul_i32 %s, %s, 24576" % (sr(S_T2), sr(S_T2)))
            e("s_add_u32 %s, %s, %s" % (sr(S_T2), sr(S_T2), sr(S_T1)))
            e("s_add_u32 %s, %s, 4096" % (sr(S_T3), sr(S_T2)))
            for s in range(8):
                e("buffer_load_dwordx4 %s, v%d, %s, %s offen offset:%d sc1" % (
                    ar(regs[k] + 4 * s, 4), V_L16, sr(SRD_WS, 4), sr(S_T2 if s < 4 else S_T3), (s & 3) * 1024))

    def poff(dst, ph, kq_sgpr):
        e("s_add_u32 %s, %s, %d" % (sr(dst), sr(S_G8), ph * 8))
        e("s_lshl_b32 %s, %s, 2" % (sr(dst), sr(dst)))
        e("s_add_u32 %s, %s, %s" % (sr(dst), sr(dst), sr(S_M)))
        e("s_lshl_b32 %s, %s, 3" % (sr(dst), sr(dst)))
        if kq_sgpr is not None:
            e("s_add_u32 %s, %s, %s" % (sr(dst), sr(dst), sr(kq_sgpr)))
        e("s_mul_i32 %s, %s, 24576" % (sr(dst), sr(dst)))
        e("s_lshl_b32 %s, %s, 13" % (sr(S_T0), sr(S_WAVE)))
        e("s_add_u32 %s, %s, %s" % (sr(dst), sr(dst), sr(S_T0)))
        e("s_add_u32 %s, %s, %d" % (sr(dst), sr(dst), WS_PBUF))

    def flagp_off(dst, ph, with_kq):
        e("s_add_u32 %s, %s, %d" % (sr(dst), sr(S_G8), ph * 8))
        e("s_lshl_b32 %s, %s, 2" % (sr(dst), sr(dst)))
        e("s_add_u32 %s, %s, %s" % (sr(dst), sr(dst), sr(S_M)))
        e("s_lshl_b32 %s, %s, 2" % (sr(dst), sr(dst)))
        e("s_add_u32 %s, %s, %s" % (sr(dst), sr(dst), sr(S_WAVE)))
        e("s_lshl_b32 %s, %s, 7" % (sr(dst), sr(dst)))
        e("s_add_u32 %s, %s, %d" % (sr(dst), sr(dst), WS_FLAGP))
        if with_kq:
            e("s_lshl_b32 %s, %s, 3" % (sr(S_T0), sr(S_X)))
            e("s_add_u32 %s, %s, %s" % (sr(dst), sr(dst), sr(S_T0)))

    def partial_store(acc, ph):
        poff(SC_POFF, ph, S_X)
        e("s_add_u32 %s, %s, 4096" % (sr(S_T1), sr(SC_POFF)))
        e("s_nop 3")
        for cch in range(8):
            for i in range(4):
                k = 4 * cch + i
                e("v_cvt_pk_bf16_f32 v%d, v%d, v%d" % (acc + k, acc + 2 * k, acc + 2 * k + 1))
            e("buffer_store_dwordx4 %s, v%d, %s, %s offen offset:%d %s" % (
                vr(acc + 4 * cch, 4), V_L16, sr(SRD_WS, 4), sr(SC_POFF if cch < 4 else S_T1), (cch & 3) * 1024,
                cfg.stflags))

    def reduce(ph, regs):
        flagp_off(SC_FOFF, ph, False)
        flag_poll(SC_FOFF, 8)
        poff(SC_POFF, ph, None)
        e("s_lshl_b32 %s, %s, 10" % (sr(S_T1), sr(S_X)))
        e("s_add_u32 %s, %s, %s" % (sr(SC_POFF), sr(SC_POFF), sr(S_T1)))
        for kq in range(8):
            e("s_add_u32 %s, %s, %d" % (sr(S_T1), sr(SC_POFF), kq * 24576))
            e("buffer_load_dwordx4 %s, v%d, %s, %s offen sc1" % (
                vr(regs + 4 * kq, 4), V_L16, sr(SRD_WS, 4), sr(S_T1)))
        e("v_and_b32 v1, 31, v0")
        e("v_lshlrev_b32 v1, 11, v1")
        e("v_lshrrev_b32 v2, 5, v0")
        e("v_lshlrev_b32 v2, 4, v2")
        e("v_add_u32 v1, v1, v2")
        e("s_add_u32 %s, %s, %d" % (sr(S_T1), sr(S_B4), 4 * ph))
        e("s_mul_i32 %s, %s, 96" % (sr(S_T1), sr(S_T1)))
        e("s_lshl_b32 %s, %s, 5" % (sr(S_T2), sr(S_WAVE)))
        e("s_add_u32 %s, %s, %s" % (sr(S_T1), sr(S_T1), sr(S_T2)))
        e("s_lshl_b32 %s, %s, 11" % (sr(S_T1), sr(S_T1)))
        e("s_lshl_b32 %s, %s, 10" % (sr(S_T2), sr(S_BR)))
        e("s_add_u32 %s, %s, %s" % (sr(S_T1), sr(S_T1), sr(S_T2)))
        e("s_lshl_b32 %s, %s, 8" % (sr(S_T2), sr(S_M)))
        e("s_add_u32 %s, %s, %s" % (sr(S_T1), sr(S_T1), sr(S_T2)))
        e("s_lshl_b32 %s, %s, 5" % (sr(S_T2), sr(S_X)))
        e("s_add_u32 %s, %s, %s" % (sr(S_T1), sr(S_T1), sr(S_T2)))
        acc = regs + 32
        for kq in range(8):
            e("s_waitcnt vmcnt(%d)" % (7 - kq))
            for i in range(4):
                r = regs + 4 * kq + i
                if kq == 0:
                    e("v_lshlrev_b32 v%d, 16, v%d" % (acc + 2 * i, r))
                    e("v_and_b32 v%d, 0xffff0000, v%d" % (acc + 2 * i + 1, r))
                else:
                    e("v_lshlrev_b32 v%d, 16, v%d" % (acc + 8, r))
                    e("v_and_b32 v%d, 0xffff0000, v%d" % (r, r))
                    e("v_add_f32 v%d, v%d, v%d" % (acc + 2 * i, acc + 2 * i, acc + 8))
                    e("v_add_f32 v%d, v%d, v%d" % (acc + 2 * i + 1, acc + 2 * i + 1, r))
        for i in range(4):
            e("v_cvt_pk_bf16_f32 v%d, v%d, v%d" % (4 + i, acc + 2 * i, acc + 2 * i + 1))
        e("buffer_store_dwordx4 v[4:7], v1, %s, %s offen" % (sr(SRD_OUT, 4), sr(S_T1)))

    def head(ph):
        qbase = V_Q1 if ph == 0 else V_Q2
        stg = V_STG if ph == 0 else V_SA
        xacc = V_ACCQ if ph == 0 else V_ACC1
        A_AF2 = 224
        e("v_mov_b32 v%d, 0" % V_LSUM)
        e("v_mov_b32 v%d, 0" % V_LS2)
        wait_landed(1)
        a.extend(k_addr(SC_SLOT))
        a.extend(k_reads(A_KF))
        e("s_waitcnt lgkmcnt(0)")
        zo = ["v_mov_b32 v%d, 0" % (V_O + i) for i in range(64)]
        a.extend(gaps(qk_mfmas(V_SA, qbase, "0"), [zo[8 * g:8 * g + 8] for g in range(8)]))
        slot_adv(SC_SLOT, SC_SLOT, 1)
        wait_landed(3)
        a.extend(k_addr(SC_SLOT))
        slot_adv(SC_SLOT, SC_SLOT, 1)
        a.extend(v_addr(SC_SLOT, V_VB))
        a.extend(k_reads(A_KF))
        a.extend(v_reads(A_VF[0], False))
        slot_adv(SC_SLOT, SC_SLOT, 1)
        e("s_add_u32 %s, %s, 3" % (sr(SC_IDX), sr(SC_IDX)))
        a.extend(max_valu(V_SA))
        cross_half_max()
        for i in range(16):
            e("v_sub_f32 v%d, v%d, v%d" % (V_SA + i, V_SA + i, V_TMAX))
        e("v_sub_f32 v%d, 0, v%d" % (V_NEGM, V_TMAX))
        for i in range(1, 16):
            e("v_mov_b32 v%d, v%d" % (V_NEGM + i, V_NEGM))

        def nxt(dst, src):
            return ["s_add_u32 %s, %s, %d" % (sr(dst), sr(src), SLOT),
                    "s_cmp_lt_u32 %s, %d" % (sr(dst), RING),
                    "s_cselect_b32 %s, %s, 0" % (sr(dst), sr(dst))]

        def iteration(par, kind):
            scur = V_SA if par == 0 else V_SB
            snext = V_SB if par == 0 else V_SA
            ex = ["v_exp_f32 v%d, v%d" % (scur + i, scur + i) for i in range(16)]
            ad = ["v_add_f32 v%d, v%d, v%d" % ((V_LSUM, V_LS2)[i & 1], (V_LSUM, V_LS2)[i & 1], scur + i)
                  for i in range(16)]
            cv = ["v_cvt_pk_bf16_f32 v%d, v%d, v%d" % (V_PF + k, scur + 2 * k, scur + 2 * k + 1) for k in range(8)]
            pv = pv_mfmas(A_VF[par])
            rel = release_l(SC_IDX)
            e("s_waitcnt lgkmcnt(%d)" % (15 if kind == "full" else 0))
            if kind == "full":
                qk = qk_mfmas(snext, qbase, vr(V_NEGM, 16))
                kr = k_reads(A_KF)
                r = v_reads(A_VF[par ^ 1], False)
                mx = max_valu(snext)
                cmp_ = ["v_cmp_lt_f32 vcc, %s, v%d" % (sr(SC_T), V_TMAX)]
                b = nxt(SC_SLOT2, SC_SLOT)
                c_ = nxt(SC_SLOT, SC_SLOT2)
                idx2 = ["s_add_u32 %s, %s, 2" % (sr(SC_IDX), sr(SC_IDX))]
                ka = k_addr(SC_SLOT)
                va = v_addr(SC_SLOT2, V_VB)
                per = [
                    [ex[0], ex[1]] + wait_landed_l(2),
                    [ex[2], ex[3], cv[0], ka[0], b[0]],
                    [ex[4], ex[5], cv[1], ka[1], b[1]],
                    [ex[6], ex[7], cv[2], b[2], rel[0]],
                    [ex[8], ex[9], cv[3], va[0]],
                    [ex[10], ex[11], cv[4], c_[0]],
                    [ex[12], ex[13], cv[5], c_[1]],
                    [ex[14], ex[15], cv[6], cv[7], c_[2], "s_waitcnt lgkmcnt(0)"],
                    [rel[1]] + kr[0:3] + ad[0:2],
                    kr[3:6] + ad[2:4] + idx2,
                    kr[6:8] + r[0:1] + ad[4:6],
                    r[1:4] + ad[6:8] + mx[0:1],
                    r[4:7] + ad[8:10] + mx[1:2],
                    r[7:10] + ad[10:12] + mx[2:3],
                    r[10:13] + ad[12:14] + mx[3:5],
                    r[13:16] + ad[14:16] + mx[5:8] + cmp_,
                ]
                if cfg.ablate:
                    ab = cfg.ablate.split("+")

                    def keep(x):
                        for key, pat in (("add", "v_add_f32"), ("exp", "v_exp_f32"), ("cvt", "v_cvt_pk"),
                                         ("vr", "ds_read_b64"), ("mx", "v_max")):
                            if key in ab and x.startswith(pat):
                                return False
                        return True
                    per = [[x for x in l if keep(x)] for l in per]
                a.extend(gaps(qk + pv, per))
            else:
                g, tl = softmax_gaps(scur)
                if kind == "lastk":
                    a.extend(wait_landed_l(1) + v_addr(SC_SLOT, V_VB))
                    vrr = v_reads(A_VF[par ^ 1], False)
                    g = [l + vrr[2 * k:2 * k + 2] for k, l in enumerate(g)]
                    a.extend(gaps(qk_mfmas(snext, qbase, vr(V_NEGM, 16)), g))
                    a.extend(tl)
                    mx = max_valu(snext) + ["v_cmp_lt_f32 vcc, %s, v%d" % (sr(SC_T), V_TMAX)]
                    book = ["s_add_u32 %s, %s, 1" % (sr(SC_IDX), sr(SC_IDX))] + nxt(SC_SLOT, SC_SLOT)
                    e("s_waitcnt lgkmcnt(15)")
                    per = [[], [], [], mx[0:2], mx[2:4] + book[0:1], mx[4:6] + book[1:3], mx[6:8] + book[3:4],
                           mx[8:9]]
                    a.extend(gaps(pv, per))
                else:
                    for l in g:
                        a.extend(l)
                    a.extend(tl)
                    a.extend(rel)
                    a.extend(pv)
            if kind != "final":
                r_ = a.newlab("rare")
                b_ = a.newlab("back")
                e("s_cbranch_vccnz %s" % r_)
                a.lab(b_)
                rare.append((r_, b_, snext))

        def ch_mfmas(af, j):
            return ["%s %s, %s, %s, %s" % (
                MFMA, vr(xacc + 16 * db, 16), ar(af + (ks * 4 + db) * 4, 4),
                ar(A_XF[0] + (2 * j + ks) * 4, 4), vr(xacc + 16 * db, 16))
                for ks in range(2) for db in range(4)]

        def x_reads():
            if ph == 0:
                return k_addr(SC_SLOT2), k_reads(A_XF[0])
            return (["v_add_u32 v%d, %s, v%d" % (V_KA, sr(SC_SLOT2), V_L16)],
                    ["ds_read_b128 %s, v%d offset:%d" % (ar(A_XF[0] + 4 * s_, 4), V_KA, s_ * BLK) for s_ in range(8)])

        def ch_slot(pos, first=False, last=False):
            afp = A_AF[(pos - 1) & 1]
            afn = A_AF[pos & 1]
            nx = 3 if (pos == 0 and not (first and ph == 1)) else 0
            chk = wait_landed_l(nx + 1 + (1 if last else 0))
            wr = v_reads(afn, True)
            fill = []
            late = []
            if nx:
                ws = wave_slot(SC_SLOT2, 0)
                xa, xr = x_reads()
                adv3 = slot_adv_l(SC_SLOT, SC_SLOT, 3)
                pre = chk + ws + xa + adv3 + v_addr(SC_SLOT, V_WB)
                body = xr[0:6] + wr
                late6, late7 = xr[6:7], xr[7:8]
            else:
                pre = chk + v_addr(SC_SLOT, V_WB)
                body = wr
                late6, late7 = [], []
            post = nxt(SC_SLOT, SC_SLOT) + ["s_add_u32 %s, %s, %d" % (sr(SC_IDX), sr(SC_IDX), nx + 1)]
            if last:
                post += v_addr(SC_SLOT, V_WB) + v_reads(A_AF2, True) + nxt(SC_SLOT, SC_SLOT)
                post += ["s_add_u32 %s, %s, 1" % (sr(SC_IDX), sr(SC_IDX))]
            if first:
                zz = ["v_mov_b32 v%d, 0" % (xacc + i) for i in range(64)]
                a.extend(pre)
                k = 0
                for x_ in body + late6 + late7:
                    a.e(x_)
                    a.extend(zz[k:k + 2])
                    k += 2
                a.extend(zz[k:])
                a.extend(post)
                return
            mf = ch_mfmas(afp, (pos - 1) & 3)
            per = [[] for _ in range(8)]
            per[0] = pre
            n = len(body)
            for g in range(1, 7):
                per[g] = body[(n * (g - 1)) // 6:(n * g) // 6]
            per[3] = per[3] + late6 if False else per[3]
            per[4] = late6 + per[4]
            per[7] = late7 + post
            a.extend(gaps(mf, per))

        acts = []
        mask = [0]

        def at_pass(n, body):
            mask[0] |= 1 << n
            acts.append((n, body))

        if cfg.stamps:
            for nm in stl:
                if nm[0] == "ab"[ph] and nm[1:].isdigit():
                    at_pass(int(nm[1:]), lambda nm=nm: stamp(nm))
        if ph == 0:
            def nonce_issue():
                e("v_mov_b32 v1, 0")
                e("global_load_dwordx2 %s, v1, %s sc1" % (vr(V_NON, 2), sr(KA_DBG, 2)))

            def nonce_get():
                ok = a.newlab("nok")
                e("s_waitcnt vmcnt(0)")
                e("v_readfirstlane_b32 %s, v%d" % (sr(SC_NONCE), V_NON))
                e("v_readfirstlane_b32 %s, v%d" % (sr(SC_NONCE + 1), V_NON + 1))
                e("s_nop 3")
                e("s_cmp_lg_u32 %s, 0" % sr(SC_NONCE))
                e("s_cbranch_scc1 %s" % ok)
                get_nonce()
                a.lab(ok)
            if not cfg.noxchg:
                at_pass(1, nonce_issue)
                at_pass(6, nonce_get)
        else:
            def p1b():
                e("s_waitcnt vmcnt(0)")
                flago_off(SC_FOFF, 0, True)
                flag_store(SC_FOFF)
            def p1nb():
                sk = a.newlab("nbsk")
                e("s_cmp_lg_u32 %s, 0" % sr(SC_SAVE))
                e("s_cbranch_scc1 %s" % sk)
                e("s_getreg_b32 %s, hwreg(HW_REG_IB_STS)" % sr(S_T1))
                e("s_and_b32 %s, %s, 0xc0000f" % (sr(S_T1), sr(S_T1)))
                e("s_cmp_eq_u32 %s, 0" % sr(S_T1))
                e("s_cbranch_scc0 %s" % sk)
                flago_off(SC_FOFF, 0, True)
                flag_store(SC_FOFF)
                e("s_mov_b32 %s, 1" % sr(SC_SAVE))
                a.lab(sk)

            def p1last():
                sk = a.newlab("nbsk")
                e("s_cmp_lg_u32 %s, 0" % sr(SC_SAVE))
                e("s_cbranch_scc1 %s" % sk)
                p1b()
                a.lab(sk)
            if not cfg.noxchg:
                if cfg.nbflag:
                    e("s_mov_b32 %s, 0" % sr(SC_SAVE))
                    at_pass(1, p1nb)
                    at_pass(2, p1last)
                else:
                    at_pass(cfg.flagpass, p1b)
        disp = a.newlab("evdisp")

        def pass_end():
            e("s_add_u32 %s, %s, 1" % (sr(SC_IT), sr(SC_IT)))
            stub = a.newlab("evstub")
            back = a.newlab("evback")
            e("s_bitcmp1_b32 %s, %s" % (sr(SC_EVM), sr(SC_IT)))
            e("s_cbranch_scc1 %s" % stub)
            a.lab(back)
            stubs.append((stub, back, disp))

        def dispatcher(disp=disp, acts=acts):
            a.lab(disp)
            for n, body in acts:
                sk = a.newlab("noev")
                e("s_cmp_eq_u32 %s, %d" % (sr(SC_IT), n))
                e("s_cbranch_scc0 %s" % sk)
                body()
                a.lab(sk)
            e("s_setpc_b64 %s" % sr(SC_RET2, 2))
        dispatchers.append(dispatcher)

        e("s_mov_b32 %s, 0x%x" % (sr(SC_EVM), mask[0]))
        e("s_mov_b32 %s, 0" % sr(SC_IT))
        lp = a.newlab("attn")
        a.lab(lp)
        if ph == 0:
            for pos in range(4):
                iteration(0, "full")
                iteration(1, "full")
                if pos == 0:
                    f1 = a.newlab("chfirst")
                    fb = a.newlab("chback")
                    e("s_cmp_eq_u32 %s, 0" % sr(SC_IT))
                    e("s_cbranch_scc1 %s" % f1)
                    ch_slot(0)
                    a.lab(fb)
                    firsts.append((f1, fb, ch_slot))
                else:
                    ch_slot(pos)
                pass_end()
            e("s_cmp_lt_u32 %s, 12" % sr(SC_IT))
            e("s_cbranch_scc1 %s" % lp)
            for pos in range(3):
                iteration(0, "full")
                iteration(1, "full")
                ch_slot(pos, last=(pos == 2))
                pass_end()
            iteration(0, "lastk")
            a.extend(ch_mfmas(A_AF[0], 2))
            iteration(1, "final")
            a.extend(ch_mfmas(A_AF2, 3))
        else:
            iteration(0, "full")
            iteration(1, "full")
            e("s_lshr_b32 %s, 0x%x, %s" % (sr(S_T1), ((1 << 8) - 1) << cfg.p0, sr(SC_IT)))
            e("s_and_b32 %s, %s, 1" % (sr(S_T1), sr(S_T1)))
            e("s_add_u32 %s, %s, %s" % (sr(SC_IDX), sr(SC_IDX), sr(S_T1)))
            e("s_mul_i32 %s, %s, %d" % (sr(S_T1), sr(S_T1), SLOT))
            e("s_add_u32 %s, %s, %s" % (sr(SC_SLOT), sr(SC_SLOT), sr(S_T1)))
            e("s_cmp_lt_u32 %s, %d" % (sr(SC_SLOT), RING))
            e("s_cselect_b32 %s, %s, 0" % (sr(SC_SLOT), sr(SC_SLOT)))
            pass_end()
            e("s_cmp_lt_u32 %s, 15" % sr(SC_IT))
            e("s_cbranch_scc1 %s" % lp)
            iteration(0, "lastk")
            iteration(1, "final")
        stamp("f%d" % ph)
        e("v_add_f32 v%d, v%d, v%d" % (V_LSUM, V_LSUM, V_LS2))
        e("v_mov_b32 v%d, v%d" % (V_LS2, V_LSUM))
        e("s_nop 1")
        e("v_permlane32_swap_b32 v%d, v%d" % (V_LSUM, V_LS2))
        e("s_nop 1")
        e("v_add_f32 v%d, v%d, v%d" % (V_LSUM, V_LSUM, V_LS2))
        e("v_rcp_f32 v%d, v%d" % (V_ALPHA, V_LSUM))
        if ph == 0:
            q_convert(V_Q2)
        e("s_lshl_b32 %s, %s, 2" % (sr(S_T1), sr(S_QUAD)))
        e("s_add_u32 %s, %s, %s" % (sr(S_T1), sr(S_T1), sr(S_M)))
        e("s_add_u32 %s, %s, %d" % (sr(S_T1), sr(S_T1), ph * 256))
        e("s_mul_i32 %s, %s, 24576" % (sr(S_T1), sr(S_T1)))
        e("s_lshl_b32 %s, %s, 13" % (sr(S_T2), sr(S_WAVE)))
        e("s_add_u32 %s, %s, %s" % (sr(S_T1), sr(S_T1), sr(S_T2)))
        e("s_add_u32 %s, %s, %d" % (sr(SC_OOFF), sr(S_T1), WS_OBUF))
        e("s_add_u32 %s, %s, 4096" % (sr(SC_OOFF2), sr(SC_OOFF)))
        e("s_nop 3")
        for s in range(8):
            for k in range(4):
                i = 4 * s + k
                e("v_mul_f32 v%d, v%d, v%d" % (V_O + 2 * i, V_O + 2 * i, V_ALPHA))
                e("v_mul_f32 v%d, v%d, v%d" % (V_O + 2 * i + 1, V_O + 2 * i + 1, V_ALPHA))
                e("v_cvt_pk_bf16_f32 v%d, v%d, v%d" % (stg + i, V_O + 2 * i, V_O + 2 * i + 1))
            e("buffer_store_dwordx4 %s, v%d, %s, %s offen offset:%d %s" % (
                vr(stg + 4 * s, 4), V_L16, sr(SRD_WS, 4), sr(SC_OOFF if s < 4 else SC_OOFF2),
                (s & 3) * 1024, cfg.stflags))

    stubs = []
    firsts = []

    def ccnt(name):
        if cfg.stamps:
            for k, nm in enumerate(stl):
                if nm == name:
                    e("s_mov_b32 %s, %s" % (sr(S_ST + 2 * k), sr(SC_SWC)))
    ccnt("cq")
    head(0)
    stamp("h0")
    ccnt("c0")
    head(1)
    stamp("h1")
    ccnt("c1")

    def task(acc, bfrag, first, hooks):
        if first:
            wait_landed(1)
        a.extend(v_addr(SC_SLOT, V_WB))
        a.extend(v_reads(A_AF[0], True))
        e("s_add_u32 %s, %s, 1" % (sr(SC_IDX), sr(SC_IDX)))
        slot_adv(SC_SLOT, SC_SLOT, 1)
        fullwait = True
        for cidx in range(16):
            r, j = divmod(cidx, 4)
            mf = []
            for ks in range(2):
                for db in range(4):
                    cin = "0" if (cidx == 0 and ks == 0) else vr(acc + 16 * db, 16)
                    mf.append("%s %s, %s, %s, %s" % (
                        MFMA, vr(acc + 16 * db, 16), ar(A_AF[cidx & 1] + (ks * 4 + db) * 4, 4),
                        bfrag(r, 2 * j + ks), cin))
            per = [[] for _ in range(8)]
            if cidx == 15:
                fullwait = True
            if fullwait:
                e("s_waitcnt lgkmcnt(0)")
            if cidx < 15:
                wr = v_reads(A_AF[(cidx + 1) & 1], True)
                adv = ["s_add_u32 %s, %s, 1" % (sr(SC_IDX), sr(SC_IDX))] + slot_adv_l(SC_SLOT, SC_SLOT, 1)
                chk = wait_landed_l(1) if first else []
                per[0] = chk + v_addr(SC_SLOT, V_WB) + wr[0:2]
                per[1] = wr[2:4] + adv[0:2]
                per[2] = wr[4:6] + adv[2:4]
                per[3] = wr[6:8] + adv[4:5]
                per[4] = wr[8:10]
                per[5] = wr[10:12]
                per[6] = wr[12:14]
                per[7] = wr[14:16]
            if not fullwait:
                for g in (1, 3, 5):
                    per[g] = per[g] + ["s_waitcnt lgkmcnt(12)"]
                e("s_waitcnt lgkmcnt(12)")
            a.extend(gaps(mf, per))
            fullwait = False
            if hooks.get(cidx):
                hooks[cidx]()
                fullwait = True

    ACC2 = V_O

    def hk_after_round0():
        e("s_waitcnt vmcnt(0)")
        flago_off(SC_FOFF, 1, True)
        flag_store(SC_FOFF)
        flago_off(SC_FOFF, 1, False)
        flag_poll(SC_FOFF, 4)
        load_o(1, A_OF2, [1, 2, 3])
        e("s_waitcnt vmcnt(16)")
        stamp("t1")

    task(ACC2, lambda r, s: vr(V_SA + 4 * s, 4) if r == 0 else ar(A_OF2[r] + 4 * s, 4), True,
         {3: hk_after_round0, 7: lambda: e("s_waitcnt vmcnt(8)"), 11: lambda: e("s_waitcnt vmcnt(0)")})
    e("s_nop 7")
    partial_store(ACC2, 1)
    stamp("t2")
    e("s_waitcnt vmcnt(0)")
    stamp("w0")
    flagp_off(SC_FOFF, 1, True)
    flag_store(SC_FOFF)
    reduce(1, 160)
    stamp("r0")
    reduce(0, 160)
    e("s_waitcnt vmcnt(0)")
    stamp("r1")

    a.lab("L_fin")
    savef = a.filt
    a.filt = None
    if cfg.dbgstamps:
        dsk = a.newlab("dbgsk")
        e("s_waitcnt lgkmcnt(0)")
        e("s_mov_b32 s28, -1")
        e("s_cmp_eq_u32 s2, 0")
        e("s_cselect_b32 s28, 0, s28")
        e("s_cmp_eq_u32 s2, 129")
        e("s_cselect_b32 s28, 1, s28")
        e("s_cmp_eq_u32 s28, -1")
        e("s_cbranch_scc1 %s" % dsk)
        e("s_cmp_eq_u32 %s, 0" % sr(S_WAVE))
        e("s_cbranch_scc1 %s" % (dsk + "a"))
        e("s_cmp_eq_u32 %s, 3" % sr(S_WAVE))
        e("s_cbranch_scc0 %s" % dsk)
        e("s_cmp_eq_u32 s28, 0")
        e("s_cbranch_scc0 %s" % dsk)
        e("s_mov_b32 s28, 2")
        a.lab(dsk + "a")
        e("s_lshl_b32 s28, s28, 4")
        e("s_add_u32 s28, s28, 16")
        e("v_mov_b32 v1, s28")
        for j in range(4):
            e("s_sub_u32 s29, s%d, s%d" % (S_ST + 2 * (j + 1) + (2 * 3 if j == 3 else 0), S_ST))
            e("v_mov_b32 v%d, s29" % (4 + j))
        e("s_mov_b64 exec, 1")
        e("global_store_dwordx4 v1, v[4:7], %s" % sr(KA_DBG, 2))
        e("s_waitcnt vmcnt(0)")
        a.lab(dsk)
        e("s_branch L_end")
    if cfg.stamps:
        e("s_waitcnt lgkmcnt(0)")
        for k, nm in enumerate(stl):
            if nm == "loc":
                e("s_mov_b32 %s, %s" % (sr(S_ST + 2 * k), sr(SC_LOCAL)))
        e("s_lshl_b32 s28, s2, 9")
        e("s_lshl_b32 s29, %s, 7" % sr(S_WAVE))
        e("s_add_u32 s28, s28, s29")
        e("s_add_u32 s28, s28, 0x%x" % WS_STAMP)
        e("v_mov_b32 v1, s28")
        e("s_getreg_b32 s30, hwreg(HW_REG_XCC_ID)")
        e("s_mov_b64 exec, 1")
        for k in range(4):
            for j in range(4):
                e("v_mov_b32 v%d, s%d" % (4 + j, S_ST + 4 * k + j))
            e("global_store_dwordx4 v1, v[4:7], %s offset:%d" % (sr(KA_WS, 2), 16 * k))
            e("s_waitcnt vmcnt(0)")
        e("v_mov_b32 v4, s30")
        e("global_store_dword v1, v4, %s offset:64" % sr(KA_WS, 2))
        e("s_waitcnt vmcnt(0)")
    a.lab("L_end")
    e("s_endpgm")
    a.filt = savef

    for r, b, sn in rare:
        rare_path(r, b, sn)
    for d in dispatchers:
        d()
    for stub, back, disp in stubs:
        a.lab(stub)
        e("s_call_b64 %s, %s" % (sr(SC_RET2, 2), disp))
        e("s_branch %s" % back)
    for f1, fb, fn in firsts:
        a.lab(f1)
        fn(0, first=True)
        e("s_branch %s" % fb)
    for slow, back in slowwaits:
        a.lab(slow)
        if cfg.stamps:
            e("s_add_u32 %s, %s, 1" % (sr(SC_SWC), sr(SC_SWC)))
        e("ds_read_b32 v%d, v%d" % (V_LRD, V_LADDR))
        e("s_waitcnt lgkmcnt(0)")
        e("v_readfirstlane_b32 %s, v%d" % (sr(SC_L), V_LRD))
        e("s_sub_u32 %s, %s, 1" % (sr(S_SPIN), sr(S_SPIN)))
        e("s_cmp_eq_u32 %s, 0" % sr(S_SPIN))
        e("s_cbranch_scc1 L_end")
        e("s_cmp_lt_u32 %s, %s" % (sr(SC_L), sr(SC_NEED)))
        if cfg.psleep:
            e("s_cbranch_scc0 %s" % back)
            e("s_sleep %d" % cfg.psleep)
            e("s_branch %s" % slow)
        else:
            e("s_cbranch_scc1 %s" % slow)
            e("s_branch %s" % back)
    txt = a.text()

    kd = []
    kd.append('.section .rodata,"a"')
    kd.append(".p2align 6")
    kd.append(".amdhsa_kernel %s_kernel" % NAME)
    kd.append("  .amdhsa_next_free_vgpr 512")
    kd.append("  .amdhsa_next_free_sgpr 102")
    kd.append("  .amdhsa_accum_offset 256")
    kd.append("  .amdhsa_group_segment_fixed_size 0")
    kd.append("  .amdhsa_kernarg_size 104")
    kd.append("  .amdhsa_user_sgpr_count 2")
    kd.append("  .amdhsa_user_sgpr_kernarg_segment_ptr 1")
    kd.append("  .amdhsa_system_sgpr_workgroup_id_x 1")
    kd.append(".end_amdhsa_kernel")
    return "\n".join(hdr) + "\n" + txt + "\n".join(kd) + "\n"


if __name__ == "__main__":
    import argparse
    ap = argparse.ArgumentParser()
    ap.add_argument("-o", default="cdna_kernels/%s.s" % NAME)
    ap.add_argument("--stamps", action="store_true")
    ap.add_argument("--set", action="append", default=[])
    args = ap.parse_args()
    cfg = Cfg()
    cfg.stamps = args.stamps
    for kv in args.set:
        k, v = kv.split("=", 1)
        cur = getattr(cfg, k)
        if isinstance(cur, bool):
            v = v in ("1", "True", "true")
        elif isinstance(cur, int):
            v = int(v)
        elif isinstance(cur, float):
            v = float(v)
        setattr(cfg, k, v)
    open(args.o, "w").write(build(cfg))
    print("wrote", args.o)
```
